```python
import torch

def _softmax(x, axis=-1):
    return torch.softmax(x, dim=axis)

def _gelu(x):
    return torch.nn.functional.gelu(x, approximate='tanh')

def _silu(x):
    return torch.nn.functional.silu(x)

def _sigmoid(x):
    return torch.sigmoid(x)

def _layernorm(x, axis=-1, eps=1e-05):
    m = x.mean(dim=axis, keepdim=True)
    v = x.var(dim=axis, keepdim=True, unbiased=False)
    return (x - m) / torch.sqrt(v + eps)

def _scatter_add(tgt, idx, src, axis=0):
    return tgt.clone().index_add_(axis, idx, src)

def _segment_sum(src, seg, n):
    out = torch.zeros((n,) + src.shape[1:], dtype=src.dtype)
    return out.index_add_(0, seg, src)

def _pad(x, pw):
    flat = tuple((v for pair in reversed(pw) for v in pair))
    return torch.nn.functional.pad(x, flat)
kernel_name = 'recurrent_scan__memory_aug_recurrent_mem_tr__glu_gated_swiglu__prompt'

def setup_inputs():

    _w = lambda a: (lambda t: t.to(torch.bfloat16) if t.is_floating_point() else t)(torch.as_tensor(a))

    def _A_setup():
        B, S, Dm = (1, 2048, 448)
        H, Dh = (16, 256)
        M, seg = (8, 32)
        seg = min(seg, S)
        S = S // seg * seg
        return {'x': _w((lambda *s: torch.randn(*s, dtype=torch.bfloat16) * 0.1)(B, S, Dm)), 'mem0': _w((lambda *s: torch.randn(*s, dtype=torch.bfloat16) * 1.6)(B, M, Dm)), 'Wq': _w((lambda *s: torch.randn(*s, dtype=torch.bfloat16) * 0.8)(Dm, H, Dh) * Dm ** (-0.5)), 'Wk': _w((lambda *s: torch.randn(*s, dtype=torch.bfloat16) * 0.8)(Dm, H, Dh) * Dm ** (-0.5)), 'Wv': _w((lambda *s: torch.randn(*s, dtype=torch.bfloat16) * 1.6)(Dm, H, Dh) * Dm ** (-0.5)), 'Wo': _w((lambda *s: torch.randn(*s, dtype=torch.bfloat16) * 1.6)(H, Dh, Dm) * (H * Dh) ** (-0.5)), 'seg_len': seg}
    _A_in = _A_setup()

    def _B_setup():
        B, S, D, F = (1, 2048, 448, 1792)
        return {'x': _w((lambda *s: torch.randn(*s, dtype=torch.bfloat16) * 0.1)(B, S, D)), 'w1': _w((lambda *s: torch.randn(*s, dtype=torch.bfloat16) * 0.4)(D, F) * (2.0 / D) ** 0.5), 'w3': _w((lambda *s: torch.randn(*s, dtype=torch.bfloat16) * 0.4)(D, F) * (2.0 / D) ** 0.5), 'w2': _w((lambda *s: torch.randn(*s, dtype=torch.bfloat16) * 0.4)(F, D) * (2.0 / F) ** 0.5)}
    _B_in = _B_setup()
    return {'A_x': _A_in['x'], 'A_mem0': _A_in['mem0'], 'A_Wq': _A_in['Wq'], 'A_Wk': _A_in['Wk'], 'A_Wv': _A_in['Wv'], 'A_Wo': _A_in['Wo'], 'A_seg_len': _A_in['seg_len'], 'B_x': _B_in['x'], 'B_w1': _B_in['w1'], 'B_w3': _B_in['w3'], 'B_w2': _B_in['w2']}

def reference(A_x, A_mem0, A_Wq, A_Wk, A_Wv, A_Wo, A_seg_len, B_x, B_w1, B_w3, B_w2):

    def _A_ref(x, mem0, Wq, Wk, Wv, Wo, seg_len):
        B, S, Dm = x.shape
        H, Dh = (Wq.shape[1], Wq.shape[2])
        M = mem0.shape[1]
        scale = Dh ** (-0.5)
        n_seg = S // seg_len
        L = M + seg_len
        idx = torch.arange(L)
        mask = (idx[:, None] < M) | (idx[:, None] >= idx[None, :])
        mem = mem0
        outs = []
        for s in range(n_seg):
            xs = x[:, s * seg_len:(s + 1) * seg_len, :].clone()
            h = torch.concatenate([mem, xs], axis=1)
            q = torch.einsum('btd,dhe->bhte', h, Wq)
            k = torch.einsum('btd,dhe->bhte', h, Wk)
            v = torch.einsum('btd,dhe->bhte', h, Wv)
            scores = torch.einsum('bhqe,bhke->bhqk', q, k) * scale
            scores = torch.where(mask[None, None], scores, -1000000000.0)
            p = _softmax(scores, axis=-1)
            o = torch.einsum('bhqk,bhke->bhqe', p, v)
            o = torch.einsum('bhte,hed->btd', o, Wo)
            mem = o[:, :M, :].clone()
            outs.append(o[:, M:, :])
        return torch.concatenate(outs, axis=1)

    def _B_ref(x, w1, w3, w2):
        gate = torch.einsum('bsd,df->bsf', x, w1)
        up = torch.einsum('bsd,df->bsf', x, w3)
        h = _silu(gate) * up
        out = torch.einsum('bsf,fd->bsd', h, w2)
        return out
    x = A_x
    xn = _layernorm(x, axis=-1)
    s = _A_ref(xn, A_mem0, A_Wq, A_Wk, A_Wv, A_Wo, A_seg_len)
    g = _silu(_B_ref(xn, B_w1, B_w3, B_w2))
    return x + s * g
```

```python
class Asm:
    def __init__(self):
        self.lines = []
        self.nlabel = 0
    def __call__(self, s):
        for l in s.strip('\n').split('\n'):
            self.lines.append('    ' + l.strip())
    def raw(self, s):
        self.lines.append(s)
    def label(self, name):
        self.lines.append(name + ':')
    def newlabel(self, base='L'):
        self.nlabel += 1
        return f'{base}_{self.nlabel}'
    def c(self, s):
        self.lines.append('    ; ' + s)
    def nop(self, n):
        while n > 0:
            k = min(n, 16)
            self(f's_nop {k-1}')
            n -= k
    def text(self):
        return '\n'.join(self.lines) + '\n'

def v(i, n=1):
    return f'v{i}' if n == 1 else f'v[{i}:{i+n-1}]'
def a(i, n=1):
    return f'a{i}' if n == 1 else f'a[{i}:{i+n-1}]'
def s(i, n=1):
    return f's{i}' if n == 1 else f's[{i}:{i+n-1}]'
def r(i, n=1):
    if i < 256:
        assert i + n <= 256
        return v(i, n)
    return a(i - 256, n)
```

```python
from asmlib import *
from layout import *
from k1 import sdivmod, srd
from wk import prologue, load_frags, f2u, LOG2E

STG, XB, XS_ = 0, 8192, 576
RED, WL = 8192, 16384
CHAIN_LDS = WL + 4*14*1024
SPIN = 200000
NSTEP = 63
PROFILE = False
EWPOS = 0
QUICK = False
DBG_U0 = DBG_X0 = DBG_NOY = 0
BDEL = 8
STAG = 24
EWM_POS = 0

def stamp(A, i):
    if PROFILE: A(f's_memrealtime {s(50+2*i,2)}')
def stamp_flush(A, n, tmp, tmp2):
    if not PROFILE: return
    A('s_waitcnt lgkmcnt(0)')
    for i in range(n): A(f'v_writelane_b32 {v(tmp)}, {s(50+2*i)}, {i}')
    A(f'v_mbcnt_lo_u32_b32 {v(tmp2)}, -1, 0')
    A(f'v_lshlrev_b32 {v(tmp2)}, 2, {v(tmp2)}')
    A('s_lshl_b32 s48, s20, 6')
    A('s_add_u32 s48, s48, s49')
    A('s_mov_b64 s[68:69], exec')
    A('s_mov_b64 exec, 0xffff')
    A(f'buffer_store_dword {v(tmp)}, {v(tmp2)}, s[4:7], s48 offen')
    A('s_mov_b64 exec, s[68:69]')
def stamp_init(A):
    if not PROFILE: return
    A('s_lshl_b32 s49, s15, 2'); A('s_add_u32 s49, s49, s3'); A('s_lshl_b32 s49, s49, 12')
    A(f's_add_u32 s49, s49, {PROF}')

class Lds:
    def __init__(self, A): self.A = A; self.q = []
    def op(self, name, ins): self.A(ins); self.q.append(name)
    def need(self, name):
        if name not in self.q: return
        i = self.q.index(name)
        n = len(self.q) - 1 - i
        self.A(f's_waitcnt lgkmcnt({min(n,15)})')
        self.q = self.q[i+1:] if n <= 15 else self.q
    def drain(self):
        self.A('s_waitcnt lgkmcnt(0)'); self.q = []

def smf(A, d, a_, b):
    A(f'v_smfmac_f32_16x16x64_bf16 {v(d,4)}, {r(a_,4)}, {r(b,8)}, v2')

NF = 2
def common_setup(A):
    A('v_and_b32 v11, 8, v0')
    A('v_cmp_eq_u32 vcc, 0, v11')
    A('v_mov_b32 v2, 0xeeee')
    A('v_mov_b32 v11, 0x4444')
    A('v_cndmask_b32 v2, v2, v11, vcc')
    A('v_lshrrev_b32 v11, 4, v0'); A('v_lshlrev_b32 v8, 7, v11')
    A('v_and_b32 v11, 7, v0'); A('v_lshl_add_u32 v8, v11, 4, v8')
    A('s_mul_i32 s16, s3, 112')
    A('v_add_u32 v3, s16, v0'); A('v_lshlrev_b32 v3, 4, v3')
    A('v_min_u32 v4, 47, v0'); A('v_add_u32 v4, s16, v4'); A('v_add_u32 v4, 64, v4'); A('v_lshlrev_b32 v4, 4, v4')
    A('v_min_u32 v5, 13, v0'); A('v_lshlrev_b32 v5, 2, v5')
    A(f's_mov_b32 s40, {EWM}')
    A(f's_mov_b32 s41, {EWP}')
    A('s_lshl_b32 s16, s15, 8')
    A('s_add_u32 s46, s40, s16')
    A('s_add_u32 s47, s41, s16')
    A('s_mov_b64 s[42:43], 0xffff')

def step_addr(A):
    A('s_and_b32 s21, s20, 3')
    A(f's_lshl_b32 s24, s21, 14')
    A(f's_add_u32 s24, s24, {MEMR}')
    A('s_add_u32 s25, s24, 8192')
    A(f's_lshl_b32 s26, s21, 15')
    A(f's_add_u32 s26, s26, {PR}')
    A('s_add_u32 s45, s26, 16384')
    A('s_xor_b32 s22, s21, 2')
    A(f's_lshl_b32 s27, s22, 15')
    A(f's_add_u32 s27, s27, {PR}')
    A('s_add_u32 s44, s20, 1')
    A('s_and_b32 s22, s44, 3')
    A(f's_lshl_b32 s28, s22, 14')
    A(f's_add_u32 s28, s28, {MEMR}')
    A('s_xor_b32 s22, s22, 2')
    A(f's_lshl_b32 s29, s22, 14')
    A(f's_add_u32 s29, s29, {MEMR}')

def store_flag(A, voff, base, st, tmp):
    A(f'v_mov_b32 {v(tmp)}, s44')
    if base == 's41': A('s_mov_b32 exec_lo, 0')
    A(f'buffer_store_dword {v(tmp)}, {v(voff)}, s[4:7], {base} offen{st}')
    if base == 's41': A('s_mov_b32 exec_lo, -1')

def wait_flag(A, voff, base, want, regs, fail, poller):
    nf = NF
    Lb = A.newlabel('wfb')
    if poller is not None:
        L = A.newlabel('wf'); Lok = A.newlabel('wfo')
        A(f's_cmp_lg_u32 s3, {poller}')
        A(f's_cbranch_scc1 {Lb}')
        A(f's_mov_b32 s30, {SPIN}')
        A('s_mov_b64 exec, s[42:43]')
        def issue(k): A(f'buffer_load_dword {v(regs[k])}, {v(voff)}, s[4:7], {base} offen offset:{k*128} sc1')
        for k in range(nf-1):
            issue(k); A.nop(52//nf)
        A.label(L)
        for k in range(nf):
            issue((k+nf-1) % nf)
            A(f's_waitcnt vmcnt({nf-1})')
            A(f'v_cmp_gt_u32 vcc, {want}, {v(regs[k])}')
            A(f's_cbranch_vccz {Lok}')
        A('s_sub_u32 s30, s30, 1')
        A('s_cmp_lg_u32 s30, 0')
        A(f's_cbranch_scc1 {L}')
        A('s_mov_b64 exec, -1')
        A(f's_branch {fail}')
        A.label(Lok)
        A('s_mov_b64 exec, -1')
    A.label(Lb)
    A('s_barrier')

def poll_mem(A, sets, fail):
    L = A.newlabel('pm'); Lok = A.newlabel('pmo')
    def issue(k):
        so = 's24' if k == 0 else 's25'
        A(f'buffer_load_dwordx4 {v(sets[k],4)}, v3, s[4:7], {so} offen sc1')
        A(f'buffer_load_dwordx4 {v(sets[k]+4,4)}, v4, s[4:7], {so} offen sc1')
    def check(k):
        b = sets[k]
        A(f'ds_write_b128 v3, {v(b,4)}')
        A(f'ds_write_b128 v4, {v(b+4,4)}')
        A(f'v_max3_u32 v0, {v(b)}, {v(b+2)}, {v(b+4)}')
        A(f'v_max_u32 v0, v0, {v(b+6)}')
        A('v_cmp_eq_u32 vcc, -1, v0')
        A(f's_cbranch_vccz {Lok}')
    A(f's_mov_b32 s30, {SPIN}')
    if len(sets) == 1:
        A.label(L)
        issue(0); A('s_waitcnt vmcnt(0)'); check(0)
    else:
        issue(0)
        A.nop(STAG)
        A.label(L)
        issue(1); A('s_waitcnt vmcnt(2)'); check(0)
        issue(0); A('s_waitcnt vmcnt(2)'); check(1)
    A('s_sub_u32 s30, s30, 1')
    A('s_cmp_lg_u32 s30, 0')
    A(f's_cbranch_scc1 {L}')
    A(f's_branch {fail}')
    A.label(Lok)
    stamp(A, 0)
    A('s_waitcnt lgkmcnt(0)')
    A('s_barrier')
    stamp(A, 1)

def post_paired(d0, d1, xreg, xoff, t):
    I = [f'v_cvt_pk_bf16_f32 {v(t+rr)}, {v(d0+rr)}, {v(d1+rr)}' for rr in range(4)]
    W = [f'ds_write_b32 {v(xreg)}, {v(t+rr)} offset:{xoff+16*rr}' for rr in range(4)]
    return I, W
def post_single(d, xreg, xoff):
    I = [f'v_permlane32_swap_b32 {v(d)}, {v(d+1)}', f'v_permlane32_swap_b32 {v(d+2)}, {v(d+3)}',
         f'v_cvt_pk_bf16_f32 {v(d)}, {v(d)}, {v(d+1)}', f'v_cvt_pk_bf16_f32 {v(d+2)}, {v(d+2)}, {v(d+3)}']
    W = [f'ds_write_b32 {v(xreg)}, {v(d)} offset:{xoff}', f'ds_write_b32 {v(xreg)}, {v(d+2)} offset:{xoff+32}']
    return I, W

def x_addrs(A):
    A('v_and_b32 v11, 12, v0'); A('v_mul_u32_u24 v9, 36, v11')
    A('v_and_b32 v11, 3, v0');  A('v_lshl_add_u32 v9, v11, 2, v9')
    A('v_and_b32 v11, 16, v0'); A('v_lshl_add_u32 v9, v11, 2, v9')
    A(f's_mul_i32 s16, s3, {2*XS_}'); A(f's_add_u32 s16, s16, {XB}')
    A('v_add_u32 v9, s16, v9')
    A('v_lshrrev_b32 v11, 5, v0')
    A('v_lshl_add_u32 v10, v11, 4, v9')
    A(f'v_mul_u32_u24 v11, {XS_}, v11')
    A('v_add_u32 v9, v9, v11')

def gen_score(A, st, tag, fail, done):
    Lfin = f'sc_fin_{tag}'
    A('s_cmp_eq_u32 s3, 3')
    A(f's_cbranch_scc1 {Lfin}')
    ACC = [12, 16, 20, 24]
    SL = [28 + 4*i for i in range(9)]
    W = lambda tl, p: 64 + (tl*14+p)*8
    Lloop = f'sc_loop_{tag}'
    A('s_mov_b32 s20, 0')
    A.label(Lloop)
    step_addr(A)
    for k in range(8): A(f'v_mov_b64 {v(12+2*k,2)}, 0')
    wait_flag(A, 5, 's46', 's20', [SL[0]+k for k in range(4)], fail, 0)
    poll_mem(A, [SL[0], SL[2]], fail)
    Q = Lds(A)
    def rd(Q, p, slot):
        Q.op(('r', p), f'ds_read_b128 {v(SL[slot],4)}, v8 offset:{p*512}')
    slot = {}
    for p in range(5): slot[p] = 4+p; rd(Q, p, 4+p)
    for p in range(14):
        Q.need(('r', p))
        smf(A, ACC[0], SL[slot[p]], W(0, p)); smf(A, ACC[1], SL[slot[p]], W(1, p))
        if p == 1:
            A('s_waitcnt vmcnt(0)')
            for pp in range(5, 9): slot[pp] = pp-5; rd(Q, pp, pp-5)
        if 1 <= p < 6: slot[p+8] = slot.pop(p-1); rd(Q, p+8, slot[p+8])
    def phase(tl, order, rer, I, Wr):
        fill = [('v', x) for x in I] + [('w', x) for x in Wr] + [('n', None)]*BDEL + [('b', None)]
        rer = list(rer)
        for n, p in enumerate(order):
            Q.need(('r', p))
            smf(A, ACC[tl], SL[slot[p]], W(tl, p))
            if rer:
                pn = rer.pop(0); slot[pn] = slot.pop(p); rd(Q, pn, slot[pn])
            if n >= 4:
                for _ in range(2):
                    if not fill: break
                    kind, x = fill.pop(0)
                    if kind == 'v': A(x)
                    elif kind == 'w': Q.op('w', x)
                    elif kind == 'n': pass
                    else: Q.drain(); A('s_barrier')
        assert not fill, fill
    I, Wr = post_paired(ACC[0], ACC[1], 9, 0, ACC[0])
    phase(2, [5, 6, 7, 8, 9, 10, 11, 12, 13, 0, 1, 2, 3, 4], [0, 1, 2, 3, 4], I, Wr)
    stamp(A, 2)
    I, Wr = post_single(ACC[2], 10, 8*XS_)
    phase(3, [10, 11, 12, 13, 0, 1, 2, 3, 4, 5, 6, 7, 8, 9], [5, 6, 7, 8, 9], I, Wr)
    stamp(A, 3)
    A.nop(8)
    I, Wr = post_single(ACC[3], 10, 9*XS_)
    for x in I + Wr: A(x)
    A('s_waitcnt lgkmcnt(0)')
    A('s_barrier')
    stamp(A, 4); stamp_flush(A, 5, 0, 1)
    A('s_add_u32 s20, s20, 1')
    A(f's_cmp_lt_u32 s20, {NSTEP}')
    A(f's_cbranch_scc1 {Lloop}')
    A(f's_branch {done}')

    A.label(Lfin)
    ACC = [16, 20]; DX, DM = 24, 28
    PS = [32, 48]
    AF = [64 + 4*p for p in range(14)]
    A2 = [120 + 4*i for i in range(4)]
    T = 136
    XSR = [144 + 8*kk for kk in range(14)]
    W = lambda tl, p: 256 + (tl*14+p)*8
    posof = lambda kk: kk
    A('v_lshlrev_b32 v12, 4, v0')
    A('v_and_b32 v11, 16, v0'); A('v_lshlrev_b32 v1, 2, v11')
    A('v_lshrrev_b32 v11, 5, v0'); A('v_lshl_add_u32 v1, v11, 4, v1')
    A('v_and_b32 v11, 12, v0'); A('v_lshl_add_u32 v13, v11, 6, v1')
    A('v_and_b32 v11, 3, v0'); A('v_lshl_add_u32 v13, v11, 2, v13')
    A('s_lshr_b32 s16, s17, 1'); A('s_lshl_b32 s16, s16, 10')
    A('s_and_b32 s18, s17, 1'); A('s_lshl_b32 s19, s18, 7'); A('s_add_u32 s16, s16, s19')
    A('v_add_u32 v13, s16, v13')
    A('v_and_b32 v11, 8, v0');  A('v_lshl_add_u32 v14, v11, 2, v1')
    A('v_cmp_ne_u32 s[34:35], 0, v11')
    A('v_and_b32 v11, 3, v0');  A('v_lshl_add_u32 v14, v11, 1, v14')
    A('v_and_b32 v11, 4, v0');  A('v_lshl_add_u32 v14, v11, 5, v14')
    A('s_lshr_b32 s16, s17, 2'); A('s_lshl_b32 s16, s16, 9')
    A('s_lshl_b32 s19, s18, 8'); A('s_add_u32 s16, s16, s19')
    A('s_and_b32 s19, s17, 2'); A('s_lshl_b32 s19, s19, 2'); A('s_add_u32 s16, s16, s19')
    A('s_add_u32 s16, s16, 8192'); A('v_add_u32 v14, s16, v14')
    A('s_lshl_b32 s16, s17, 2'); A('v_lshlrev_b32 v6, 7, v0'); A('v_add_u32 v6, s16, v6')
    A('v_lshrrev_b32 v11, 4, v0'); A('v_mul_u32_u24 v15, 144, v11')
    A('v_and_b32 v11, 7, v0'); A('v_lshl_add_u32 v15, v11, 4, v15')
    A(f'v_add_u32 v15, {XB}, v15')
    A(f's_mov_b32 s31, 0x{f2u(LOG2E):08x}')
    A('s_mov_b32 s33, 0x7fff7fff')
    def load_xs():
        for i in range(28):
            if i % 4 == 0:
                if i == 0: A('s_mov_b32 s23, s32')
                else: A('s_add_u32 s23, s23, 4096')
            A(f'buffer_load_dwordx4 {v(XSR[0]+4*i,4)}, v12, s[4:7], s23 offen offset:{(i%4)*1024}')
    A(f's_mov_b32 s32, {XNS}')
    load_xs()
    Lloop = f'sf_loop_{tag}'
    A('s_mov_b32 s20, 0')
    A.label(Lloop)
    if QUICK:
        Lq = A.newlabel('q')
        A('s_cmp_lg_u32 s20, 2'); A(f's_cbranch_scc1 {Lq}'); A('s_memrealtime s[64:65]'); A('s_memtime s[60:61]'); A.label(Lq)
    step_addr(A)
    for k in range(8): A(f'v_mov_b64 {v(16+2*k,2)}, 0')
    wait_flag(A, 5, 's46', 's20', None, fail, None)
    poll_mem(A, PS, fail)
    Q = Lds(A)
    for p in range(14):
        Q.op(('r', p), f'ds_read_b128 {v(AF[p],4)}, v8 offset:{p*512}')
    for p in range(14):
        Q.need(('r', p))
        smf(A, ACC[0], AF[p], W(0, p)); smf(A, ACC[1], AF[p], W(1, p))
    A.nop(8)
    I, Wr = post_paired(ACC[0], ACC[1], 9, 0, ACC[0])
    for x in I: A(x)
    for x in Wr: Q.op('w', x)
    nb = [0]
    def rd2(kk2):
        Q.op(('x', kk2), f'ds_read_b128 {v(A2[nb[0]%4],4)}, v15 offset:{kk2*XS_}')
        buf[kk2] = A2[nb[0] % 4]; nb[0] += 1
    buf = {}
    def second(kk2):
        Q.need(('x', kk2))
        smf(A, DX, buf[kk2], XSR[kk2])
        A(f'v_mfma_f32_16x16x32_bf16 {v(DM,4)}, {v(buf[kk2],4)}, {v(AF[posof(kk2)],4)}, {v(DM,4)}')
    rd2(6); rd2(7)
    second(6); second(7)
    A('s_barrier')
    stamp(A, 2)
    for kk2 in range(4): rd2(kk2)
    second(0); rd2(4); second(1); rd2(5); second(2); second(3)
    A('s_barrier')
    rd2(8); rd2(10)
    second(4); rd2(12); second(5); second(8); second(10); second(12)
    A('s_barrier')
    stamp(A, 3)
    rd2(9); rd2(11); rd2(13)
    if EWPOS == -1: store_flag(A, 6, 's41', st, T+7)
    second(9); second(11); second(13)
    if EWPOS == 0: store_flag(A, 6, 's41', st, T+7)
    A.nop(8)
    stamp(A, 4)
    for d in (DX, DM):
        A(f'v_permlane32_swap_b32 {v(d)}, {v(d+1)}')
        A(f'v_permlane32_swap_b32 {v(d+2)}, {v(d+3)}')
    mx = [T, T+1]; sm = [T+2, T+3]
    el = lambda t: (DX+2*t, DX+2*t+1, DM+2*t)
    for t in range(2):
        A(f'v_max3_f32 {v(mx[t])}, {v(el(t)[0])}, {v(el(t)[1])}, {v(el(t)[2])}')
    for ror in (8, 4, 2, 1):
        A('s_nop 0')
        for t in range(2):
            A(f'v_max_f32_dpp {v(mx[t])}, {v(mx[t])}, {v(mx[t])} row_ror:{ror} row_mask:0xf bank_mask:0xf')
    if EWPOS == 1: store_flag(A, 6, 's41', st, T+7)
    for t in range(2):
        A(f'v_mul_f32 {v(mx[t])}, 0x{f2u(-LOG2E):08x}, {v(mx[t])}')
    for j in range(3):
        for t in range(2):
            A(f'v_fma_f32 {v(el(t)[j])}, {v(el(t)[j])}, s31, {v(mx[t])}')
    for j in (2, 0, 1):
        for t in range(2):
            A(f'v_exp_f32 {v(el(t)[j])}, {v(el(t)[j])}')
    if EWPOS == 2: store_flag(A, 6, 's41', st, T+7)
    for t in range(2):
        A(f'v_fma_f32 {v(sm[t])}, {v(el(t)[2])}, 0.5, {v(el(t)[0])}')
    for t in range(2):
        A(f'v_add_f32 {v(sm[t])}, {v(sm[t])}, {v(el(t)[1])}')
    for ror in (8, 4, 2, 1):
        A('s_nop 0')
        for t in range(2):
            A(f'v_add_f32_dpp {v(sm[t])}, {v(sm[t])}, {v(sm[t])} row_ror:{ror} row_mask:0xf bank_mask:0xf')
    if EWPOS == 3: store_flag(A, 6, 's41', st, T+7)
    for t in range(2):
        A(f'v_rcp_f32 {v(sm[t])}, {v(sm[t])}')
    A(f'v_cndmask_b32 {v(T+6)}, {v(DM)}, {v(DM+2)}, s[34:35]')
    for j in range(2):
        for t in range(2):
            A(f'v_mul_f32 {v(el(t)[j])}, {v(el(t)[j])}, {v(sm[t])}')
    A(f'v_cndmask_b32 {v(T+7)}, {v(sm[0])}, {v(sm[1])}, s[34:35]')
    for t in range(2):
        A(f'v_cvt_pk_bf16_f32 {v(T+4+t)}, {v(el(t)[0])}, {v(el(t)[1])}')
    A(f'v_mul_f32 {v(T+6)}, {v(T+6)}, {v(T+7)}')
    for t in range(2):
        A(f'v_and_b32 {v(T+4+t)}, s33, {v(T+4+t)}')
    A(f'v_cvt_pk_bf16_f32 {v(T+6)}, {v(T+6)}, {v(T+6)}')
    for t in range(2):
        A(f'buffer_store_dword {v(T+4+t)}, v13, s[4:7], s26 offen offset:{32*t}{st}')
    A(f'v_and_b32 {v(T+6)}, s33, {v(T+6)}')
    A(f'buffer_store_short {v(T+6)}, v14, s[4:7], s26 offen{st}')
    for t in range(2):
        A(f'buffer_store_dword {v(T+4+t)}, v13, s[4:7], s45 offen offset:{32*t}{st}')
    A(f'buffer_store_short {v(T+6)}, v14, s[4:7], s45 offen{st}')
    if EWPOS == 4: store_flag(A, 6, 's41', st, T+7)
    stamp(A, 5)
    A(f'v_mov_b32 {v(T+7)}, -1')
    for cp in range(KC):
        if cp: A('s_add_u32 s27, s27, 16384')
        for t in range(2):
            A(f'buffer_store_dword {v(T+7)}, v13, s[4:7], s27 offen offset:{32*t}{st}')
        A(f'buffer_store_short {v(T+7)}, v14, s[4:7], s27 offen{st}')
    if not DBG_X0: A('s_add_u32 s32, s32, 28672')
    load_xs()
    stamp_flush(A, 6, 0, 1)
    A('s_add_u32 s20, s20, 1')
    A(f's_cmp_lt_u32 s20, {NSTEP}')
    A(f's_cbranch_scc1 {Lloop}')
    if QUICK:
        A('s_memrealtime s[66:67]'); A('s_memtime s[62:63]'); A('s_waitcnt lgkmcnt(0)')
        A('s_sub_u32 s62, s62, s60'); A('v_mov_b32 v0, s62'); A('s_lshl_b32 s16, s17, 2'); A('s_add_u32 s16, s16, 192'); A('v_mov_b32 v1, s16')
        A('buffer_store_dword v0, v1, s[8:11], 0 offen')
        A('s_sub_u32 s66, s66, s64'); A('v_mov_b32 v0, s66'); A('s_lshl_b32 s16, s17, 2'); A('s_add_u32 s16, s16, 128'); A('v_mov_b32 v1, s16')
        A('buffer_store_dword v0, v1, s[8:11], 0 offen')
    A(f's_branch {done}')

def load_ctile(A, dst, offa, offb, plist=range(14)):
    out = []
    for p in plist:
        if p % 4 == 0 or p == plist[0]:
            A(f's_add_u32 s22, s18, {offa+(p//4)*4096}')
            A(f's_add_u32 s23, s18, {offb+(p//4)*4096}')
        im = (p % 4)*1024
        A(f'buffer_load_dwordx4 {r(dst(p),4)}, v1, s[4:7], s22 offen offset:{im}')
        A(f'buffer_load_dwordx4 {r(dst(p)+4,4)}, v1, s[4:7], s23 offen offset:{im}')
        out.append(dst(p))
    return out

def interleave(A, g):
    if g < 256:
        A(f'v_swap_b32 {v(g+1)}, {v(g+4)}')
        A(f'v_swap_b32 {v(g+2)}, {v(g+4)}')
        A(f'v_swap_b32 {v(g+3)}, {v(g+5)}')
        A(f'v_swap_b32 {v(g+5)}, {v(g+6)}')
    else:
        q = g - 256
        A(f'v_accvgpr_read_b32 v11, {a(q+1)}')
        A(f'v_accvgpr_mov_b32 {a(q+1)}, {a(q+4)}')
        A(f'v_accvgpr_mov_b32 {a(q+4)}, {a(q+2)}')
        A(f'v_accvgpr_write_b32 {a(q+2)}, v11')
        A(f'v_accvgpr_read_b32 v11, {a(q+3)}')
        A(f'v_accvgpr_mov_b32 {a(q+3)}, {a(q+5)}')
        A(f'v_accvgpr_mov_b32 {a(q+5)}, {a(q+6)}')
        A(f'v_accvgpr_write_b32 {a(q+6)}, v11')

def load_tiles(A, tiles):
    pend = []
    for i, (dst, oa, ob, pl) in enumerate(tiles):
        g = load_ctile(A, dst, oa, ob, pl)
        if pend:
            A(f's_waitcnt vmcnt({2*len(g)})')
            for x in pend: interleave(A, x)
        pend = g
    A('s_waitcnt vmcnt(0)')
    for x in pend: interleave(A, x)

def score_weights(A):
    TS = 14*1024
    Lw3 = A.newlabel('w3'); Ld = A.newlabel('wd')
    A(f's_mul_i32 s18, s17, {28*TS}')
    A(f's_add_u32 s18, s18, {MC}')
    A(f's_mul_i32 s19, s3, {4*TS}')
    A('s_add_u32 s18, s18, s19')
    A('s_cmp_eq_u32 s3, 3')
    A(f's_cbranch_scc1 {Lw3}')
    W = lambda tl: (lambda p: 64 + (tl*14+p)*8)
    load_tiles(A, [(W(0), 0, 2*TS, range(14)), (W(1), TS, 3*TS, range(14)),
                   (W(2), 16*TS, 17*TS, range(14)), (W(3), 18*TS, 19*TS, range(14))])
    A(f's_branch {Ld}')
    A.label(Lw3)
    W = lambda tl: (lambda p: 256 + (tl*14+p)*8)
    load_tiles(A, [(W(0), 0, 2*TS, range(14)), (W(1), TS, 3*TS, range(14))])
    A.label(Ld)

V_W0 = 120
def VW(ti, p): return V_W0 + (ti*14+p)*8
def gen_value(A, st, tag, fail, done, ystore=''):
    UB, ACC, YP = 16, 48, 64
    PM = 72
    SL = [76 + 4*i for i in range(4)]
    PM2 = 92
    TM = [96, 104, 112]
    Lloop = f'va_loop_{tag}'
    for k in range(4): A(f'v_mov_b32 {v(PM+k)}, 0'); A(f'v_mov_b32 {v(PM2+k)}, 0')
    A('s_mov_b32 s20, 0')
    A.label(Lloop)
    step_addr(A)
    for k in range(8): A(f'v_mov_b64 {v(ACC+2*k,2)}, 0')
    wait_flag(A, 5, 's46', 's20', [TM[1]+k for k in range(4)], fail, 1)
    poll_mem(A, [TM[1], TM[2]], fail)
    Q = Lds(A)
    slot = {}
    free = [0, 1, 2, 3]
    nxt = [0]
    def rd():
        p = nxt[0]
        if p > 13 or not free: return
        sl = free.pop(0); slot[p] = sl; nxt[0] += 1
        Q.op(('r', p), f'ds_read_b128 {v(SL[sl],4)}, v8 offset:{p*512}')
    def ldsw(p):
        t = TM[p % 3]
        Q.op(('wa', p), f'ds_read_b128 {v(t,4)}, v11 offset:{(p-7)*2048}')
        Q.op(('wb', p), f'ds_read_b128 {v(t+4,4)}, v11 offset:{(p-7)*2048+1024}')
    for _ in range(4): rd()
    A(f's_add_u32 s23, s36, {14*4096}')
    uq = []
    for hpl in range(2):
        for j in range(4):
            uq.append(f'buffer_load_dwordx4 {v(UB+hpl*16+j*4,4)}, v12, s[4:7], {"s23" if hpl else "s36"} offen offset:{j*1024} sc1')
    for p in range(14):
        Q.need(('r', p))
        for ti in range(3):
            smf(A, ACC+4*ti, SL[slot[p]], VW(ti, p))
            if ti == 0 and p == 2: A('s_waitcnt vmcnt(0)')
            if ti == 1 and 2 <= p < 6: A(uq.pop(0)); A(uq.pop(0))
            if ti == 0 and 3 <= p < 6: ldsw(p+4)
            if ti == 1 and p == 6:
                Ls0 = A.newlabel('ys'); A('s_cmp_eq_u32 s20, 0'); A(f's_cbranch_scc1 {Ls0}')
                for ct in range(2):
                    A(f'buffer_store_dwordx4 {v(YP+4*ct,4)}, v12, s[4:7], s37 offen offset:{ct*1024}{ystore}')
                A.label(Ls0)
        if p < 7: smf(A, ACC+12, SL[slot[p]], VW(3, p))
        else:
            Q.need(('wb', p))
            smf(A, ACC+12, SL[slot[p]], TM[p % 3])
            if p+3 < 14: ldsw(p+3)
        free.append(slot[p]); rd()
    if not DBG_U0: A(f's_add_u32 s36, s36, {16*28*1024}')
    A.nop(8)
    for ct in range(2):
        for hp in range(2):
            d = ACC + 4*(hp*2+ct)
            A(f'v_cvt_pk_bf16_f32 {v(YP+4*ct+2*hp)}, {v(d)}, {v(d+1)}')
            A(f'v_cvt_pk_bf16_f32 {v(YP+4*ct+2*hp+1)}, {v(d+2)}, {v(d+3)}')
    stamp(A, 2)
    A(f's_add_u32 s37, s37, {14*4*2*1024}')
    Lgo = A.newlabel('vgo')
    A(f's_cmp_lt_u32 s20, {NSTEP}')
    A(f's_cbranch_scc1 {Lgo}')
    for ct in range(2):
        A(f'buffer_store_dwordx4 {v(YP+4*ct,4)}, v12, s[4:7], s37 offen offset:{ct*1024}{ystore}')
    A(f's_branch {done}')
    A.label(Lgo)
    D = [ACC, ACC+4]
    PMs = [PM, PM2]; PXs = [PM+4, PM2+4]
    wait_flag(A, 7, 's47', 's44', [PXs[0]+k for k in range(4)], fail, 1)
    stamp(A, 6)
    if PROFILE: A('s_mov_b32 s64, 0')
    def issue(k):
        so = 's26' if k == 0 else 's45'
        for hpl in range(2):
            A(f'buffer_load_dwordx4 {v(PXs[k]+4*hpl,4)}, v9, s[4:7], {so} offen offset:{hpl*1024} sc1')
        A('s_mov_b64 exec, s[34:35]')
        A(f'buffer_load_dwordx4 {v(PMs[k],4)}, v10, s[4:7], {so} offen sc1')
        A('s_mov_b64 exec, -1')
    L = A.newlabel('pp'); Lf = A.newlabel('ppf')
    def attempt(k):
        for kk in range(4): A(f'v_mov_b64 {v(ACC+2*kk,2)}, 0')
        A('s_nop 0')
        A('s_waitcnt vmcnt(3)')
        if PROFILE: A('s_add_u32 s64, s64, 1')
        b = PMs[k]
        chk = [f'v_or3_b32 v0, {v(b)}, {v(b+1)}, {v(b+2)}', f'v_or3_b32 v1, {v(b+3)}, {v(b+4)}, {v(b+5)}',
               f'v_or3_b32 v0, v0, {v(b+6)}, {v(b+7)}', f'v_or3_b32 v1, v1, {v(b+8)}, {v(b+9)}',
               f'v_or3_b32 v0, v0, {v(b+10)}, {v(b+11)}', 'v_or_b32 v0, v0, v1', 'v_and_b32 v0, 0x80008000, v0', 'v_cmp_ne_u32 vcc, 0, v0']
        for ct in range(2):
            A(f'v_mfma_f32_16x16x32_bf16 {v(D[ct],4)}, {v(b,4)}, {v(YP+4*ct,4)}, {v(D[ct],4)}')
            A(chk.pop(0)); A(chk.pop(0))
        for hpl in range(2):
            for ct in range(2):
                smf(A, D[ct], PXs[k]+4*hpl, UB+hpl*16+ct*8)
                A(chk.pop(0))
        A(f's_cbranch_vccz {Lf}')
        A('s_nop 1')
    A(f's_mov_b32 s30, {SPIN}')
    issue(0)
    A.nop(STAG)
    A.label(L)
    issue(1); attempt(0)
    issue(0); attempt(1)
    A('s_sub_u32 s30, s30, 1')
    A('s_cmp_lg_u32 s30, 0')
    A(f's_cbranch_scc1 {L}')
    A(f's_branch {fail}')
    A.label(Lf)
    stamp(A, 3)
    if EWM_POS == 0:
        Lsf = A.newlabel('sf'); A('s_cmp_lg_u32 s3, 0'); A(f's_cbranch_scc1 {Lsf}')
        store_flag(A, 6, 's40', st, 0); A.label(Lsf)
    A.nop(6)
    for rr in range(4): A(f'v_permlane32_swap_b32 {v(D[0]+rr)}, {v(D[1]+rr)}')
    for rr in range(4):
        A(f'v_add_f32 {v(D[0]+rr)}, {v(D[0]+rr)}, {v(D[1]+rr)}')
        A(f'ds_write_b32 v13, {v(D[0]+rr)} offset:{128*rr}')
    A('s_waitcnt lgkmcnt(0)')
    A('s_barrier')
    stamp(A, 4)
    Lnx = A.newlabel('vnx')
    A('s_cmp_lg_u32 s3, 0')
    A(f's_cbranch_scc1 {Lnx}')
    R4 = [ACC, ACC+4, ACC+8, ACC+12]
    for w in range(4):
        A(f'ds_read_b128 {v(R4[w],4)}, v14 offset:{w*1024}')
    if EWM_POS == 1: store_flag(A, 6, 's40', st, 0)
    A('s_waitcnt lgkmcnt(2)')
    A(f'v_pk_add_f32 {v(R4[0],2)}, {v(R4[0],2)}, {v(R4[1],2)}')
    A(f'v_pk_add_f32 {v(R4[0]+2,2)}, {v(R4[0]+2,2)}, {v(R4[1]+2,2)}')
    A('s_waitcnt lgkmcnt(0)')
    A(f'v_pk_add_f32 {v(R4[2],2)}, {v(R4[2],2)}, {v(R4[3],2)}')
    A(f'v_pk_add_f32 {v(R4[2]+2,2)}, {v(R4[2]+2,2)}, {v(R4[3]+2,2)}')
    A(f'v_pk_add_f32 {v(R4[0],2)}, {v(R4[0],2)}, {v(R4[2],2)}')
    A(f'v_pk_add_f32 {v(R4[0]+2,2)}, {v(R4[0]+2,2)}, {v(R4[2]+2,2)}')
    A(f'v_cvt_pk_bf16_f32 {v(R4[1])}, {v(R4[0])}, {v(R4[0]+1)}')
    A(f'v_cvt_pk_bf16_f32 {v(R4[1]+1)}, {v(R4[0]+2)}, {v(R4[0]+3)}')
    A(f'v_min_u32 {v(R4[1])}, 0xfffffffe, {v(R4[1])}')
    A(f'buffer_store_dwordx2 {v(R4[1],2)}, v15, s[4:7], s28 offen{st}')
    A('s_add_u32 s28, s28, 8192')
    A(f'buffer_store_dwordx2 {v(R4[1],2)}, v15, s[4:7], s28 offen{st}')
    if EWM_POS == 2: store_flag(A, 6, 's40', st, 0)
    stamp(A, 5)
    A(f'v_mov_b64 {v(R4[2],2)}, -1')
    A(f'buffer_store_dwordx2 {v(R4[2],2)}, v15, s[4:7], s29 offen{st}')
    A('s_add_u32 s29, s29, 8192')
    A(f'buffer_store_dwordx2 {v(R4[2],2)}, v15, s[4:7], s29 offen{st}')
    A(f'buffer_store_dwordx2 {v(R4[1],2)}, v15, s[4:7], s39 offen{ystore}')
    A.label(Lnx)
    stamp_flush(A, 8, 0, 1)
    A('s_add_u32 s39, s39, 8192')
    A('s_add_u32 s20, s20, 1')
    A(f's_branch {Lloop}')

def value_setup(A):
    TS = 14*1024; HS = 28*TS
    A(f's_mul_i32 s18, s3, {4*HS}')
    A(f's_mul_i32 s22, s17, {2*TS}')
    A('s_add_u32 s18, s18, s22')
    A(f's_add_u32 s18, s18, {NC}')
    A('v_lshlrev_b32 v12, 4, v0')
    load_tiles(A, [((lambda p: V_W0 + (p-7)*8), 2*HS+TS, 3*HS+TS, range(7, 14))])
    A(f's_mul_i32 s23, s3, {14*1024}')
    A(f's_add_u32 s23, s23, {WL}')
    A('v_add_u32 v11, s23, v12')
    for i in range(14):
        A(f'ds_write_b128 v11, {v(V_W0+4*i,4)} offset:{i*1024}')
    A('s_waitcnt lgkmcnt(0)')
    tl = []
    for ti in range(4):
        hp, ct = ti >> 1, ti & 1
        tl.append(((lambda p, ti=ti: VW(ti, p)), (2*hp)*HS+ct*TS, (2*hp+1)*HS+ct*TS, range(14) if ti < 3 else range(7)))
    load_tiles(A, tl)
    A('s_lshl_b32 s23, s3, 11'); A('v_add_u32 v9, s23, v12')
    A('s_lshl_b32 s23, s3, 9'); A('s_add_u32 s23, s23, 8192'); A('v_add_u32 v10, s23, v8')
    A('v_and_b32 v11, 16, v0'); A('v_lshlrev_b32 v13, 5, v11')
    A('v_and_b32 v11, 15, v0'); A('v_lshl_add_u32 v13, v11, 3, v13')
    A('v_lshlrev_b32 v7, 2, v11')
    A('v_lshrrev_b32 v11, 5, v0'); A('v_lshl_add_u32 v13, v11, 2, v13')
    A('s_lshl_b32 s23, s3, 10'); A(f's_add_u32 s23, s23, {RED}'); A('v_add_u32 v13, s23, v13')
    A('v_and_b32 v11, 14, v0'); A('v_lshlrev_b32 v14, 6, v11')
    A('v_lshrrev_b32 v11, 4, v0'); A('v_lshl_add_u32 v14, v11, 5, v14')
    A('v_and_b32 v11, 1, v0'); A('v_lshl_add_u32 v14, v11, 4, v14')
    A(f'v_add_u32 v14, {RED}, v14')
    A('v_lshlrev_b32 v15, 3, v0'); A('s_lshl_b32 s23, s17, 9'); A('v_add_u32 v15, s23, v15')
    A('s_lshl_b32 s23, s17, 2'); A('v_lshlrev_b32 v6, 7, v0'); A('v_add_u32 v6, s23, v6')
    A('s_mov_b32 s34, 0x00ff00ff'); A('s_mov_b32 s35, 0x00ff00ff')
    A(f's_mul_i32 s36, s3, {2*14*4096}')
    A('s_lshl_b32 s23, s17, 12')
    A('s_add_u32 s36, s36, s23')
    A(f's_add_u32 s36, s36, {UF}')
    A('s_lshl_b32 s37, s17, 2'); A('s_add_u32 s37, s37, s3'); A('s_lshl_b32 s37, s37, 11')
    A(f's_add_u32 s37, s37, {YG - 14*4*2*1024}')
    A(f's_mov_b32 s39, {MEMG+8192}')

def value_setup2(A):
    A(f's_mul_i32 s23, s3, {14*1024}')
    A(f's_add_u32 s23, s23, {WL}')
    A('v_add_u32 v11, s23, v12')

def mode_exchange(A):
    srd(A, 8, 96, 256)
    A('s_getreg_b32 s12, hwreg(HW_REG_XCC_ID)')
    A('s_and_b32 s12, s12, 15')
    A('s_add_u32 s12, s12, 1')
    A('v_mov_b32 v8, s12')
    A('s_lshl_b32 s13, s15, 2')
    A('v_mov_b32 v9, s13')
    A('s_waitcnt lgkmcnt(0)')
    A('buffer_store_dword v8, v9, s[8:11], 0 offen sc1')

def mode_gather(A, fail):
    A('v_min_u32 v1, 29, v0')
    A('v_lshlrev_b32 v1, 2, v1')
    L = A.newlabel('mg')
    A(f's_mov_b32 s30, {SPIN}')
    A.label(L)
    A('buffer_load_dword v11, v1, s[8:11], 0 offen sc1')
    A('s_sub_u32 s30, s30, 1')
    A('s_cmp_eq_u32 s30, 0')
    A(f's_cbranch_scc1 {fail}')
    A('s_waitcnt vmcnt(0)')
    A('v_cmp_eq_u32 vcc, 0, v11')
    A(f's_cbranch_vccnz {L}')
    A('v_cmp_ne_u32 vcc, s12, v11')
    A('s_cmp_eq_u64 vcc, 0')
    A('s_cselect_b32 s14, 1, 0')

def gen_chain_body(A, fail, done, ystore=''):
    mode_exchange(A)
    common_setup(A)
    stamp_init(A)
    A('s_cmp_ge_u32 s15, 16')
    A('s_cbranch_scc1 ch_value')
    A('s_mov_b32 s17, s15')
    score_weights(A)
    x_addrs(A)
    mode_gather(A, fail)
    A('s_cmp_eq_u32 s14, 0')
    A('s_cbranch_scc1 ch_score_slow')
    gen_score(A, '', 'f', fail, done)
    A.label('ch_score_slow')
    gen_score(A, ' sc1', 's', fail, done)
    A.label('ch_value')
    A('s_sub_u32 s17, s15, 16')
    value_setup(A)
    mode_gather(A, fail)
    value_setup2(A)
    A('s_cmp_eq_u32 s14, 0')
    A('s_cbranch_scc1 ch_value_slow')
    gen_value(A, '', 'f', fail, done, ystore)
    A.label('ch_value_slow')
    gen_value(A, ' sc1', 's', fail, done, ystore)

def gen_k3(A):
    A.label('k3_kernel')
    A('s_and_b32 s15, s2, 7')
    A('s_cmp_lg_u32 s15, 0')
    A('s_cbranch_scc1 k3_end')
    A('s_lshr_b32 s15, s2, 3')
    A('s_cmp_ge_u32 s15, 30')
    A('s_cbranch_scc1 k3_end')
    prologue(A)
    gen_chain_body(A, 'k3_end', 'k3_end')
    A.label('k3_end')
    A('s_endpgm')
    return dict(name='k3_kernel', grid=256, block=256, lds=CHAIN_LDS, vgpr=256, sgpr=72, agpr=256)
```

```python
import sys
from asmlib import *
from layout import *
NAME='recurrent_scan__memory_aug_recurrent_mem_tr__glu_gated_swiglu__prompt'
def build(gens, out):
    A = Asm()
    infos = []
    for g in gens:
        A.raw('.p2align 8')
        infos.append(g(A))
    hdr = open(f'cdna_kernels/{NAME}.s.ref').read().split('\n')
    head = [l for l in hdr if l.startswith(';') and '@launch' not in l and 'Override launch' not in l and 'grid=ceil' not in l]
    txt = '\n'.join(head) + '\n'
    for i in infos:
        txt += f"; @launch kernel={i['name']} grid=({i['grid']},1,1) block=({i['block']},1,1) lds={i['lds']}\n"
    txt += '.amdgcn_target "amdgcn-amd-amdhsa--gfx950"\n.text\n'
    for i in infos:
        txt += f".globl {i['name']}\n.type {i['name']},@function\n"
    txt += A.text()
    txt += '.section .rodata,"a"\n'
    seen=set()
    for i in infos:
        if i['name'] in seen: continue
        seen.add(i['name'])
        acc = (i['vgpr']+3)//4*4
        nfv = i['vgpr'] if not i['agpr'] else acc + i['agpr']
        txt += f""".p2align 6
.amdhsa_kernel {i['name']}
  .amdhsa_next_free_vgpr {nfv}
  .amdhsa_next_free_sgpr {i['sgpr']}
  .amdhsa_accum_offset {acc}
  .amdhsa_group_segment_fixed_size 0
  .amdhsa_kernarg_size 112
  .amdhsa_user_sgpr_count 2
  .amdhsa_user_sgpr_kernarg_segment_ptr 1
  .amdhsa_system_sgpr_workgroup_id_x 1
  .amdhsa_float_denorm_mode_32 3
  .amdhsa_float_denorm_mode_16_64 3
.end_amdhsa_kernel
"""
    open(out,'w').write(txt)
    return infos
if __name__=='__main__':
    from k1 import gen_k1
    build([gen_k1], 't1.s')
```

```python
from asmlib import *
from layout import *

def magic(div, maxv):
    for sh in range(8, 31):
        m = -(-(1 << sh) // div)
        if (maxv - 1) * m >= (1 << 32): continue
        if all(((x * m) >> sh) == x // div for x in range(maxv)):
            return m, sh
    raise Exception('no magic')

def sdivmod(A, q, rem, x, div, maxv):
    m, sh = magic(div, maxv)
    A(f's_mul_i32 {s(q)}, {s(x)}, {m}')
    A(f's_lshr_b32 {s(q)}, {s(q)}, {sh}')
    A(f's_mul_i32 {s(rem)}, {s(q)}, {div}')
    A(f's_sub_u32 {s(rem)}, {s(x)}, {s(rem)}')

def srd(A, d, karg_off, size):
    A(f's_load_dwordx2 {s(d,2)}, s[0:1], {karg_off}')
    A(f's_mov_b32 {s(d+2)}, {size}')
    A(f's_mov_b32 {s(d+3)}, 0x00020000')

SZ_X = 2048*448*2
SZ_MEM0 = 8*448*2
SZ_W = 448*16*256*2
SZ_F = 448*1792*2

K1_LN0, K1_M0, K1_N0, K1_R0, K1_I0 = 0, 32, 228, 424, 498
K1_NWG = 499

def gen_k1(A):
    A.label('k1_kernel')
    Lend = 'k1_end'
    A(f's_cmp_ge_u32 s2, {K1_NWG}')
    A(f's_cbranch_scc1 {Lend}')
    srd(A, 4, 104, WS_END)
    A('v_lshrrev_b32 v1, 6, v0')
    A('v_and_b32 v0, 63, v0')
    A('v_readfirstlane_b32 s3, v1')
    A('v_lshrrev_b32 v2, 4, v0')
    A('v_and_b32 v3, 15, v0')
    A('v_lshlrev_b32 v4, 4, v0')
    A('s_mov_b32 s20, 0x05040100')
    A('s_mov_b32 s21, 0x07060302')
    A(f's_cmp_ge_u32 s2, {K1_I0}')
    A('s_cbranch_scc1 k1_init')
    A(f's_cmp_ge_u32 s2, {K1_R0}')
    A('s_cbranch_scc1 k1_reformat')
    A(f's_cmp_ge_u32 s2, {K1_N0}')
    A('s_cbranch_scc1 k1_N')
    A(f's_cmp_ge_u32 s2, {K1_M0}')
    A('s_cbranch_scc1 k1_M')
    srd(A, 8, 0, SZ_X)
    A('s_lshl_b32 s16, s2, 2')
    A('s_add_u32 s16, s16, s3')
    A('s_mul_i32 s17, s16, %d' % (16*896))
    A('v_mul_u32_u24 v5, 896, v3')
    A('v_lshl_add_u32 v5, v2, 4, v5')
    A('s_waitcnt lgkmcnt(0)')
    RAW, XF = 8, 64
    for kk in range(14):
        A(f'buffer_load_dwordx4 {v(RAW+4*kk,4)}, v5, s[8:11], s17 offen offset:{64*kk}')
    A('v_mov_b32 v6, 0')
    A('v_mov_b32 v7, 0')
    for kk in range(14):
        A(f's_waitcnt vmcnt({13-kk})')
        for d in range(4):
            i = 4*kk+d
            A(f'v_lshlrev_b32 {v(XF+2*i)}, 16, {v(RAW+i)}')
            A(f'v_and_b32 {v(XF+2*i+1)}, 0xffff0000, {v(RAW+i)}')
            A(f'v_add_f32 v6, v6, {v(XF+2*i)}')
            A(f'v_add_f32 v7, v7, {v(XF+2*i+1)}')
    def allred(reg, tmp):
        A(f'v_mov_b32 {v(tmp)}, {v(reg)}')
        A('s_nop 1')
        A(f'v_permlane16_swap_b32 {v(reg)}, {v(tmp)}')
        A('s_nop 1')
        A(f'v_add_f32 {v(reg)}, {v(reg)}, {v(tmp)}')
        A(f'v_mov_b32 {v(tmp)}, {v(reg)}')
        A('s_nop 1')
        A(f'v_permlane32_swap_b32 {v(reg)}, {v(tmp)}')
        A('s_nop 1')
        A(f'v_add_f32 {v(reg)}, {v(reg)}, {v(tmp)}')
    A('v_add_f32 v6, v6, v7')
    allred(6, 7)
    import struct
    f2u = lambda f: struct.unpack('<I', struct.pack('<f', f))[0]
    A(f'v_mul_f32 v6, 0x{f2u(1.0/448):08x}, v6')
    A('v_mov_b32 v176, 0')
    A('v_mov_b32 v177, 0')
    for i in range(56):
        A(f'v_sub_f32 v178, {v(XF+2*i)}, v6')
        A(f'v_sub_f32 v179, {v(XF+2*i+1)}, v6')
        A('v_fmac_f32 v176, v178, v178')
        A('v_fmac_f32 v177, v179, v179')
    A('v_add_f32 v176, v176, v177')
    allred(176, 177)
    A(f'v_mul_f32 v176, 0x{f2u(1.0/448):08x}, v176')
    A('v_cvt_pk_bf16_f32 v6, v6, v176')
    A('v_and_b32 v176, 0xffff0000, v6')
    A('v_lshlrev_b32 v6, 16, v6')
    A(f'v_add_f32 v176, 0x{f2u(1e-5):08x}, v176')
    A('v_cvt_pk_bf16_f32 v176, v176, v176')
    A('v_and_b32 v176, 0xffff0000, v176')
    A('v_sqrt_f32 v176, v176')
    A('s_nop 0')
    A('v_cvt_pk_bf16_f32 v176, v176, v176')
    A('v_and_b32 v176, 0xffff0000, v176')
    A('v_rcp_f32 v177, v176')
    A('s_nop 0')
    A('v_fma_f32 v178, -v176, v177, 1.0')
    A('v_fma_f32 v177, v178, v177, v177')
    for i in range(56):
        A(f'v_sub_f32 v178, {v(XF+2*i)}, v6')
        A(f'v_sub_f32 v179, {v(XF+2*i+1)}, v6')
        A('v_cvt_pk_bf16_f32 v178, v178, v179')
        A('v_and_b32 v179, 0xffff0000, v178')
        A('v_lshlrev_b32 v178, 16, v178')
        A('v_mul_f32 v178, v178, v177')
        A('v_mul_f32 v179, v179, v177')
        A(f'v_cvt_pk_bf16_f32 {v(RAW+i)}, v178, v179')
    A('s_mul_i32 s17, s16, %d' % (14*1024))
    A(f's_add_u32 s18, s17, {XNP}')
    if XNF: A(f's_add_u32 s17, s17, {XNF}')
    A('v_and_b32 v5, 1, v2'); A('v_lshlrev_b32 v5, 9, v5')
    A('v_lshrrev_b32 v6, 1, v2'); A('v_lshl_add_u32 v5, v6, 8, v5')
    A('v_lshrrev_b32 v6, 1, v3'); A('v_lshl_add_u32 v6, v6, 4, v5')
    A('v_and_b32 v7, 1, v3'); A('v_lshl_add_u32 v6, v7, 10, v6')
    A('v_cmp_eq_u32 s[22:23], 1, v7')
    A('v_lshl_add_u32 v5, v3, 4, v5')
    A('s_lshr_b32 s19, s16, 1'); A(f's_mul_i32 s19, s19, {28*1024}')
    A('s_and_b32 s24, s16, 1'); A('s_lshl_b32 s24, s24, 7')
    A('s_add_u32 s19, s19, s24'); A(f's_add_u32 s19, s19, {XNS}')
    for kk in range(14):
        if kk % 4 == 0 and kk:
            A('s_add_u32 s17, s17, 4096')
            A('s_add_u32 s18, s18, 4096')
        if kk % 2 == 0 and kk: A('s_add_u32 s19, s19, 4096')
        b = RAW+4*kk
        A(f'buffer_store_dwordx4 {v(b,4)}, v4, s[4:7], s17 offen offset:{(kk%4)*1024}')
        t = XF + 8*kk
        for d in range(4): A(f'v_mov_b32 {v(t+d)}, {v(b+d)}')
        A('s_nop 1')
        A(f'v_permlane32_swap_b32 {v(t)}, {v(t+2)}')
        A(f'v_permlane32_swap_b32 {v(t+1)}, {v(t+3)}')
        A('s_nop 1')
        A(f'buffer_store_dwordx4 {v(t,4)}, v5, s[4:7], s18 offen offset:{(kk%4)*1024}')
        A(f'v_cndmask_b32 v178, {v(t+2)}, {v(t)}, s[22:23]')
        A(f'v_cndmask_b32 v179, {v(t+3)}, {v(t+1)}, s[22:23]')
        A('s_nop 1')
        A('v_mov_b32_dpp v180, v178 quad_perm:[1,0,3,2] row_mask:0xf bank_mask:0xf')
        A('v_mov_b32_dpp v181, v179 quad_perm:[1,0,3,2] row_mask:0xf bank_mask:0xf')
        A(f'v_cndmask_b32 {v(t+4)}, {v(t)}, v180, s[22:23]')
        A(f'v_cndmask_b32 {v(t+5)}, v180, {v(t+2)}, s[22:23]')
        A(f'v_cndmask_b32 {v(t+6)}, {v(t+1)}, v181, s[22:23]')
        A(f'v_cndmask_b32 {v(t+7)}, v181, {v(t+3)}, s[22:23]')
        A(f'buffer_store_dwordx4 {v(t+4,4)}, v6, s[4:7], s19 offen offset:{(kk%2)*2048}')
    A('s_endpgm')

    ACC = 8
    BUF = [72, 136]
    TMP = 200
    def common(first_wg, offA, offB):
        srd(A, 8, offA, SZ_W)
        srd(A, 12, offB, SZ_W)
        A(f's_sub_u32 s16, s2, {first_wg}')
        A('s_lshl_b32 s16, s16, 2')
        A('s_add_u32 s16, s16, s3')
        sdivmod(A, 17, 18, 16, 49, 784)
        sdivmod(A, 19, 22, 18, 7, 49)
        A('v_lshlrev_b32 v5, 13, v3')
        A('v_lshl_add_u32 v5, v2, 4, v5')
        A('s_lshl_b32 s23, s17, 9')
        A('s_lshl_b32 s24, s19, 19')
        A('s_add_u32 s24, s24, s23')
        for t4 in range(4):
            u, ab = t4 >> 1, t4 & 1
            if t4: A(f's_add_u32 {s(24+t4)}, s24, {(32*u+16*ab)*8192}')
        for i in range(64):
            A(f'v_mov_b32 {v(ACC+i)}, 0')
    def loadA(buf, ks2, ks):
        for t4 in range(4):
            A(f'buffer_load_dwordx4 {v(buf+32*ks2+4*t4,4)}, v5, s[8:11], {s(24+t4)} offen offset:{64*ks}')
    def mfmas(abase, bregs):
        for t4 in range(4):
            for tt in range(4):
                d = ACC + (t4*4+tt)*4
                A(f'v_mfma_f32_16x16x32_bf16 {v(d,4)}, {v(abase+4*t4,4)}, {v(bregs[tt],4)}, {v(d,4)}')
    def epilogue(base, isM):
        A.nop(10)
        A('s_mul_i32 s28, s17, 28')
        A('s_lshl_b32 s29, s22, 2')
        A('s_add_u32 s28, s28, s29')
        A('s_mul_i32 s28, s28, 7')
        A('s_add_u32 s28, s28, s19')
        A('s_lshl_b32 s28, s28, 11')
        A(f's_add_u32 s28, s28, {base}')
        if not isM:
            A('v_lshrrev_b32 v4, 3, v3'); A(f'v_mul_u32_u24 v4, {2*14336}, v4')
            A('v_lshl_add_u32 v4, v2, 8, v4')
            A('v_and_b32 v5, 7, v3'); A('v_lshl_add_u32 v4, v5, 5, v4')
            A('s_add_u32 s29, s28, 14336')
        for tt in range(4):
            for u in range(2):
                o = BUF[0] + (tt*2+u)*4
                for ab in range(2):
                    d = ACC + ((u*2+ab)*4+tt)*4
                    if isM:
                        for rr in range(4):
                            A(f'v_mul_f32 {v(d+rr)}, 0x3d800000, {v(d+rr)}')
                    A(f'v_cvt_pk_bf16_f32 {v(o+2*ab)}, {v(d)}, {v(d+1)}')
                    A(f'v_cvt_pk_bf16_f32 {v(o+2*ab+1)}, {v(d+2)}, {v(d+3)}')
                if isM: A(f'buffer_store_dwordx4 {v(o,4)}, v4, s[4:7], s28 offen offset:{u*1024}')
                else: A(f'buffer_store_dwordx4 {v(o,4)}, v4, s[4:7], {"s29" if tt&1 else "s28"} offen offset:{u*1024+(tt>>1)*16}')
            if tt < 3 and isM: A(f's_add_u32 s28, s28, {7*2048}')
        A('s_endpgm')

    A.label('k1_M')
    common(K1_M0, 16, 24)
    A('v_lshlrev_b32 v6, 14, v3')
    A('v_lshl_add_u32 v6, v2, 4, v6')
    A('s_lshl_b32 s28, s22, 19')
    A('s_add_u32 s28, s28, s23')
    for tt in range(1, 4):
        A(f's_add_u32 {s(28+tt)}, s28, {(32*(tt>>1)+(tt&1))*8192}')
    A('s_waitcnt lgkmcnt(0)')
    def loadM(bi, batch):
        for ks2 in range(2):
            ks = 2*batch+ks2
            loadA(BUF[bi], ks2, ks)
            for tt in range(4):
                A(f'buffer_load_dwordx4 {v(BUF[bi]+32*ks2+16+4*tt,4)}, v6, s[12:15], {s(28+tt)} offen offset:{64*ks}')
    loadM(0, 0); loadM(1, 1)
    for batch in range(4):
        bi = batch & 1
        A(f's_waitcnt vmcnt({16 if batch < 3 else 0})')
        for ks2 in range(2):
            mfmas(BUF[bi]+32*ks2, [BUF[bi]+32*ks2+16+4*tt for tt in range(4)])
        if batch+2 < 4: loadM(bi, batch+2)
    epilogue(MC, True)

    A.label('k1_N')
    common(K1_N0, 32, 40)
    A(f'v_mul_u32_u24 v6, {8*896}, v2')
    A('v_lshl_add_u32 v6, v3, 3, v6')
    A(f'v_add_u32 v7, {4*896}, v6')
    A('s_mul_i32 s28, s17, 229376')
    A('s_lshl_b32 s29, s22, 7')
    A('s_add_u32 s28, s28, s29')
    A('s_waitcnt lgkmcnt(0)')
    def loadN(bi, batch):
        for ks2 in range(2):
            ks = 2*batch+ks2
            loadA(BUF[bi], ks2, ks)
            A(f's_add_u32 s29, s28, {ks*32*896}')
            for ee in range(8):
                A(f'buffer_load_dwordx2 {v(BUF[bi]+32*ks2+16+2*ee,2)}, {"v6" if ee<4 else "v7"}, s[12:15], s29 offen offset:{(ee&3)*896}')
    loadN(0, 0); loadN(1, 1)
    for batch in range(4):
        bi = batch & 1
        A(f's_waitcnt vmcnt({24 if batch < 3 else 0})')
        for ks2 in range(2):
            L = BUF[bi]+32*ks2+16
            for j in range(4):
                for m in range(4):
                    A(f'v_perm_b32 {v(TMP+4*j+m)}, {v(L+2*(2*m+1)+(j>>1))}, {v(L+2*(2*m)+(j>>1))}, {"s21" if j&1 else "s20"}')
            A('s_nop 1')
            mfmas(BUF[bi]+32*ks2, [TMP+4*j for j in range(4)])
        if batch+2 < 4: loadN(bi, batch+2)
    epilogue(NC, False)

    A.label('k1_reformat')
    A(f's_sub_u32 s16, s2, {K1_R0}')
    A('s_lshl_b32 s16, s16, 2')
    A('s_add_u32 s16, s16, s3')
    A('s_cmp_ge_u32 s16, 294')
    A(f's_cbranch_scc1 {Lend}')
    sdivmod(A, 17, 18, 16, 98, 296)
    A('s_lshl_b32 s19, s17, 3')
    A('s_add_u32 s19, s19, 64')
    A('s_load_dwordx2 s[8:9], s[0:1], s19')
    A(f's_mov_b32 s10, {SZ_F}')
    A('s_mov_b32 s11, 0x00020000')
    A('s_cmp_eq_u32 s17, 2')
    A('s_cbranch_scc1 k1_rw2')
    sdivmod(A, 19, 22, 18, 7, 98)
    A('v_lshrrev_b32 v5, 5, v0')
    A('v_and_b32 v6, 31, v0')
    A(f'v_mul_u32_u24 v7, {8*3584}, v5')
    A('v_lshl_add_u32 v7, v6, 4, v7')
    A(f's_mul_i32 s23, s19, {32*3584}')
    A('s_lshl_b32 s24, s22, 9')
    A('s_add_u32 s23, s23, s24')
    A('s_waitcnt lgkmcnt(0)')
    R0, R1, T0 = 8, 40, 72
    for jj in range(2):
        for ee in range(8):
            A(f's_add_u32 s24, s23, {(jj*16+ee)*3584}')
            A(f'buffer_load_dwordx4 {v((R0,R1)[jj]+4*ee,4)}, v7, s[8:11], s24 offen')
    A('v_lshrrev_b32 v8, 2, v6') if False else None
    A('v_lshrrev_b32 v1, 2, v6')
    A(f'v_mul_u32_u24 v1, {2*2*14*1024}, v1')
    A('v_and_b32 v6, 3, v6')
    A('v_lshl_add_u32 v1, v6, 6, v1')
    A('v_lshl_add_u32 v1, v5, 8, v1')
    A(f's_mul_i32 s24, s22, {8*2*2*14*1024}')
    A(f's_mul_i32 s25, s17, {14*1024}')
    A('s_add_u32 s24, s24, s25')
    A('s_lshl_b32 s25, s19, 10')
    A('s_add_u32 s24, s24, s25')
    A(f's_add_u32 s24, s24, {W13}')
    A(f's_add_u32 s25, s24, {2*14*1024}')
    for jj in range(2):
        A(f's_waitcnt vmcnt({8 if jj==0 else 8})')
        R = (R0, R1)[jj]
        T = T0 + 32*jj
        for col in range(8):
            m, o = col >> 1, col & 1
            for k in range(4):
                A(f'v_perm_b32 {v(T+4*col+k)}, {v(R+4*(2*k+1)+m)}, {v(R+4*(2*k)+m)}, {"s21" if o else "s20"}')
        for col in range(8):
            ab, rr = col >> 2, col & 3
            A(f'buffer_store_dwordx4 {v(T+4*col,4)}, v1, s[4:7], {"s25" if ab else "s24"} offen offset:{jj*512+rr*16}')
    A('s_endpgm')
    A.label('k1_rw2')
    sdivmod(A, 19, 22, 18, 7, 98)
    A('v_lshrrev_b32 v5, 3, v0')
    A('v_and_b32 v6, 7, v0')
    A(f'v_mul_u32_u24 v7, {8*896}, v5')
    A('v_lshl_add_u32 v7, v6, 4, v7')
    A(f's_mul_i32 s23, s19, {128*896}')
    A('s_lshl_b32 s24, s22, 7')
    A('s_add_u32 s23, s23, s24')
    A('s_waitcnt lgkmcnt(0)')
    for jj in range(2):
        for ee in range(8):
            A(f's_add_u32 s24, s23, {(jj*64+ee)*896}')
            A(f'buffer_load_dwordx4 {v((R0,R1)[jj]+4*ee,4)}, v7, s[8:11], s24 offen')
    A('v_lshrrev_b32 v1, 2, v5')
    A('v_lshlrev_b32 v1, 10, v1')
    A('v_and_b32 v5, 3, v5')
    A('v_lshl_add_u32 v1, v5, 8, v1')
    A('v_and_b32 v5, 3, v6')
    A('v_lshl_add_u32 v1, v5, 6, v1')
    A('v_lshrrev_b32 v5, 2, v6')
    A(f'v_mul_u32_u24 v5, {2*56*1024}, v5')
    A('v_add_u32 v1, v1, v5')
    A(f's_mul_i32 s24, s22, {4*56*1024}')
    A('s_lshl_b32 s25, s19, 12')
    A('s_add_u32 s24, s24, s25')
    A(f's_add_u32 s24, s24, {W2F}')
    A(f's_add_u32 s25, s24, {56*1024}')
    for jj in range(2):
        A('s_waitcnt vmcnt(8)')
        R = (R0, R1)[jj]
        T = T0 + 32*jj
        for col in range(8):
            m, o = col >> 1, col & 1
            for k in range(4):
                A(f'v_perm_b32 {v(T+4*col+k)}, {v(R+4*(2*k+1)+m)}, {v(R+4*(2*k)+m)}, {"s21" if o else "s20"}')
        for col in range(8):
            A(f'buffer_store_dwordx4 {v(T+4*col,4)}, v1, s[4:7], {s(24+(col&1))} offen offset:{jj*2048+(col>>1)*16}')
    A('s_endpgm')

    A.label('k1_init')
    srd(A, 8, 8, SZ_MEM0)
    A('s_lshl_b32 s16, s3, 6')
    A('v_add_u32 v5, s16, v0')
    A('v_mov_b32 v8, -1'); A('v_mov_b32 v9, -1'); A('v_mov_b32 v10, -1'); A('v_mov_b32 v11, -1')
    A('v_lshlrev_b32 v6, 4, v5')
    start = MEMR + KC*8192
    nbytes = FLAGS - start
    assert nbytes % 4096 == 0
    A(f's_mov_b32 s17, {start}')
    A('s_waitcnt lgkmcnt(0)')
    A.label('k1_fill')
    A('buffer_store_dwordx4 v[8:11], v6, s[4:7], s17 offen')
    A('s_add_u32 s17, s17, 4096')
    A(f's_cmp_lt_u32 s17, {FLAGS}')
    A('s_cbranch_scc1 k1_fill')
    A('v_mov_b32 v12, 0'); A('v_mov_b32 v13, 0'); A('v_mov_b32 v14, 0'); A('v_mov_b32 v15, 0')
    A.label('k1_fill2')
    A('buffer_store_dwordx4 v[12:15], v6, s[4:7], s17 offen')
    A('s_add_u32 s17, s17, 4096')
    A(f's_cmp_lt_u32 s17, {PROF}')
    A('s_cbranch_scc1 k1_fill2')
    for it in range(2):
        A(f'v_add_u32 v7, {256*it}, v5')
        A('v_and_b32 v16, 7, v7')
        A('v_mul_u32_u24 v16, 896, v16')
        A('v_lshrrev_b32 v17, 3, v7')
        A('v_lshl_add_u32 v16, v17, 4, v16')
        A('v_lshlrev_b32 v17, 4, v7')
        A('v_cmp_gt_u32 vcc, 448, v7')
        A('s_and_saveexec_b64 s[18:19], vcc')
        Ls = A.newlabel('k1_skip')
        A(f's_cbranch_execz {Ls}')
        A('buffer_load_dwordx4 v[20:23], v16, s[8:11], 0 offen')
        A('s_waitcnt vmcnt(0)')
        for d in range(4):
            A(f'v_min_u32 {v(20+d)}, 0xfffffffe, {v(20+d)}')
        for cp in range(KC):
            A(f's_mov_b32 s17, {MEMR + cp*8192}')
            A('buffer_store_dwordx4 v[20:23], v17, s[4:7], s17 offen')
        A(f's_mov_b32 s17, {MEMG}')
        A('buffer_store_dwordx4 v[20:23], v17, s[4:7], s17 offen')
        A('s_waitcnt vmcnt(0)')
        A.label(Ls)
        A('s_mov_b64 exec, s[18:19]')
    A.label(Lend)
    A('s_endpgm')
    return dict(name='k1_kernel', grid=K1_NWG, block=256, lds=0, vgpr=216, sgpr=40, agpr=0)
```

```python
KB=1024
XNF = 0
XNP = XNF + 128*14*KB
XNS = XNP + 128*14*KB
MC  = XNS + 64*14*2*KB
NC  = MC + 16*28*14*KB
W13 = NC + 16*28*14*KB
W2F = W13 + 56*2*2*14*KB
UF  = W2F + 28*56*KB
HF  = UF + 64*16*28*KB
GF  = HF + 128*56*KB
MEMG= GF + 2048*KB
YG  = MEMG + 64*8192
PXX = YG + 64*14*4*2*KB
PXM = PXX + 64*2*16*KB
KC = 2
MEMR= PXM + 64*2*8*KB
PR  = MEMR + 4*KC*8192
FLAGS = PR + 4*KC*16384
EWP = FLAGS
EWM = FLAGS + 8192
PFL = FLAGS + 16384
YPR = FLAGS + 20480
WFL = FLAGS + 24576
PROF = FLAGS + 65536
WS_END = PROF + 256*4*64*64
WS_SIZE = 268435456
if __name__=='__main__':
    for k,val in list(globals().items()):
        if isinstance(val,int): print(k,val,hex(val))
```

```python
from asmlib import *
from layout import *
from k1 import sdivmod, srd, SZ_X
import struct
f2u = lambda f: struct.unpack('<I', struct.pack('<f', f))[0]
LOG2E = 1.4426950408889634

def prologue(A):
    srd(A, 4, 104, WS_END)
    A('v_lshrrev_b32 v1, 6, v0')
    A('v_and_b32 v0, 63, v0')
    A('v_readfirstlane_b32 s3, v1')
    A('v_lshlrev_b32 v1, 4, v0')
    A('s_waitcnt lgkmcnt(0)')

def load_frags(A, regs, soff, tmp_s, flags=''):
    for i, rg in enumerate(regs):
        if i % 4 == 0:
            if i == 0: A(f's_mov_b32 {s(tmp_s)}, {s(soff)}')
            else: A(f's_add_u32 {s(tmp_s)}, {s(tmp_s)}, 4096')
        A(f'buffer_load_dwordx4 {r(rg,4)}, v1, s[4:7], {s(tmp_s)} offen offset:{(i%4)*1024}{flags}')

def silu_bf(A, x, t):
    A(f'v_mul_f32 {v(t)}, 0x{f2u(-LOG2E):08x}, {v(x)}')
    A(f'v_exp_f32 {v(t)}, {v(t)}')
    A('s_nop 0')
    A(f'v_add_f32 {v(t)}, 1.0, {v(t)}')
    A(f'v_rcp_f32 {v(t)}, {v(t)}')
    A('s_nop 0')
    A(f'v_mul_f32 {v(x)}, {v(x)}, {v(t)}')

def wsgemm(A, kind, wid=2, st_flags=''):
    W = [256 + 4*i for i in range(56)]
    ACC, OUT = 16, 48
    XB = [[64 + 4*i for i in range(28)], [176 + 4*i for i in range(20)] + [480 + 4*i for i in range(8)]]
    ncls, nseg = (8, 8) if kind == 'U' else (16, 4)
    sh = 3 if kind == 'U' else 4
    A(f's_and_b32 s16, {s(wid)}, {ncls-1}')
    A(f's_lshr_b32 s17, {s(wid)}, {sh}')
    A('s_lshl_b32 s17, s17, 2')
    A('s_add_u32 s17, s17, s3')
    if kind == 'U':
        sdivmod(A, 22, 23, 17, 14, 112)
        A(f's_mul_i32 s18, s22, {2*28*14*1024}')
        A(f's_mul_i32 s23, s23, {2*14*1024}')
        A('s_add_u32 s18, s18, s23')
        A(f's_add_u32 s18, s18, {NC}')
        A(f's_add_u32 s24, s18, {28*14*1024}')
    else:
        A(f's_mul_i32 s18, s17, {56*1024}')
        A(f's_add_u32 s18, s18, {W13}')
        A(f's_add_u32 s24, s18, {28*1024}')
    xbase = XNP if kind == 'U' else XNF
    A(f's_mul_i32 s19, s16, {28*1024}')
    A(f's_add_u32 s19, s19, {xbase}')
    load_frags(A, XB[0], 19, 20)
    load_frags(A, W[:28], 18, 20)
    load_frags(A, W[28:], 24, 20)
    if kind == 'U':
        A(f's_mul_i32 s21, s16, {16*28*1024}')
        A('s_lshl_b32 s22, s17, 12')
        A('s_add_u32 s21, s21, s22')
        A(f's_add_u32 s21, s21, {UF}')
        dstep = ncls*16*28*1024
    else:
        A(f's_mul_i32 s21, s16, {2*56*1024}')
        A('s_lshl_b32 s22, s17, 10')
        A('s_add_u32 s21, s21, s22')
        A(f's_add_u32 s21, s21, {HF}')
        dstep = ncls*2*56*1024
    nst = 4 if kind == 'U' else 2
    for it in range(nseg):
        xb = XB[it & 1]
        if it+1 < nseg:
            A(f's_add_u32 s19, s19, {ncls*28*1024}')
            load_frags(A, XB[(it+1) & 1], 19, 20)
            A(f's_waitcnt vmcnt(28)')
        else:
            A('s_waitcnt vmcnt(0)')
        for kk in range(14):
            for tl in range(4):
                for tt in range(2):
                    d = ACC + (tl*2+tt)*4
                    c = '0' if kk == 0 else v(d, 4)
                    xw, ww = r(xb[tt*14+kk], 4), r(W[tl*14+kk], 4)
                    if kind == 'U': A(f'v_mfma_f32_16x16x32_bf16 {v(d,4)}, {xw}, {ww}, {c}')
                    else: A(f'v_mfma_f32_16x16x32_bf16 {v(d,4)}, {ww}, {xw}, {c}')
        A.nop(8)
        if kind == 'U':
            for ct in range(2):
                for tt in range(2):
                    o = OUT + 4*(ct*2+tt)
                    da = ACC + ((ct)*2+tt)*4
                    db = ACC + ((2+ct)*2+tt)*4
                    A(f'v_cvt_pk_bf16_f32 {v(o)}, {v(da)}, {v(da+1)}')
                    A(f'v_cvt_pk_bf16_f32 {v(o+1)}, {v(db)}, {v(db+1)}')
                    A(f'v_cvt_pk_bf16_f32 {v(o+2)}, {v(da+2)}, {v(da+3)}')
                    A(f'v_cvt_pk_bf16_f32 {v(o+3)}, {v(db+2)}, {v(db+3)}')
                    A(f'buffer_store_dwordx4 {v(o,4)}, v1, s[4:7], s21 offen offset:{(ct*2+tt)*1024}{st_flags}')
        else:
            for tt in range(2):
                o = OUT + 4*tt
                for ab in range(2):
                    gd = ACC + ((ab*2+0)*2+tt)*4
                    ud = ACC + ((ab*2+1)*2+tt)*4
                    for p in range(2):
                        g0, g1, u0, u1 = gd+2*p, gd+2*p+1, ud+2*p, ud+2*p+1
                        A(f'v_cvt_pk_bf16_f32 v8, {v(g0)}, {v(g1)}')
                        A(f'v_cvt_pk_bf16_f32 v9, {v(u0)}, {v(u1)}')
                        A(f'v_lshlrev_b32 {v(g0)}, 16, v8')
                        A(f'v_and_b32 {v(g1)}, 0xffff0000, v8')
                        A(f'v_lshlrev_b32 {v(u0)}, 16, v9')
                        A(f'v_and_b32 {v(u1)}, 0xffff0000, v9')
                        silu_bf(A, g0, 10); silu_bf(A, g1, 11)
                        A(f'v_cvt_pk_bf16_f32 v8, {v(g0)}, {v(g1)}')
                        A(f'v_lshlrev_b32 {v(g0)}, 16, v8')
                        A(f'v_and_b32 {v(g1)}, 0xffff0000, v8')
                        A(f'v_mul_f32 {v(g0)}, {v(g0)}, {v(u0)}')
                        A(f'v_mul_f32 {v(g1)}, {v(g1)}, {v(u1)}')
                        A(f'v_cvt_pk_bf16_f32 {v(o+2*ab+p)}, {v(g0)}, {v(g1)}')
                if tt: A(f's_add_u32 s22, s21, {56*1024}')
                A(f'buffer_store_dwordx4 {v(o,4)}, v1, s[4:7], {"s22" if tt else "s21"} offen{st_flags}')
        if it+1 < nseg:
            A(f's_add_u32 s21, s21, {dstep}')

def gen_k2(A):
    A.label('k2_kernel')
    A('s_cmp_ge_u32 s2, 224')
    A('s_cbranch_scc1 k2_end')
    prologue(A)
    wsgemm(A, 'U')
    wsgemm(A, 'F1')
    A.label('k2_end')
    A('s_endpgm')
    return dict(name='k2_kernel', grid=224, block=256, lds=0, vgpr=256, sgpr=40, agpr=256)
```

```python
from asmlib import *
from layout import *
from k1 import sdivmod, srd, SZ_X
from wk import prologue, load_frags, silu_bf, f2u, LOG2E

RS = 272
SPIN = 400000

def spin_wait(A, issue, ok_cmp, fail, sleep=2):
    L = A.newlabel('sw'); Lok = A.newlabel('swo')
    A(f's_mov_b32 s30, {SPIN}')
    A.label(L)
    issue()
    A('s_waitcnt vmcnt(0)')
    ok_cmp()
    A(f's_cbranch_vccz {Lok}')
    if sleep: A(f's_sleep {sleep}')
    A('s_sub_u32 s30, s30, 1')
    A('s_cmp_lg_u32 s30, 0')
    A(f's_cbranch_scc1 {L}')
    A(f's_branch {fail}')
    A.label(Lok)

def phase_f2(A, item, st=''):
    sdivmod(A, 16, 17, item, 7, 224)
    ACC = 0
    ACC = 192
    HA = [[(8 + (rt*14+k)*4) if (8+(rt*14+k)*4) < 192 else None for k in range(14)] for rt in range(4)]
    AFR = lambda rt, k: 256 + (rt*14+k)*4
    BFR = lambda T, k: (8 + (T*7+k)*4)
    BF2 = lambda T, k: (120 + (T*7+k)*4) if (120+(T*7+k)*4) < 192 else (480 + (T*7+k-18)*4 if (T*7+k-18) < 8 else None)
    K1_, K2_ = 8, 6
    K1_, K2_ = 9, 5
    A(f's_mul_i32 s18, s16, {4*56*1024}')
    A(f's_mul_i32 s19, s3, {14*1024}')
    A('s_add_u32 s18, s18, s19')
    A(f's_add_u32 s18, s18, {HF}')
    A(f's_mul_i32 s21, s17, {4*56*1024}')
    A('s_add_u32 s21, s21, s19')
    A(f's_add_u32 s21, s21, {W2F}')
    BA = lambda T, k: 8 + (T*7+k)*4
    def BB(T, k):
        i = T*7+k
        return 120 + 4*i if i < 18 else (480 + 4*(i-18) if i < 26 else 8 + 4*(i-26))
    for T in range(4):
        A(f's_add_u32 s22, s21, {T*56*1024}')
        load_frags(A, [BA(T, k) for k in range(7)], 22, 20)
    for rt in range(4):
        A(f's_add_u32 s22, s18, {rt*56*1024}')
        load_frags(A, [AFR(rt, k) for k in range(14)], 22, 20, flags=' sc1' if st else '')
    late = []
    for T in range(4):
        A(f's_add_u32 s22, s21, {T*56*1024+7*1024}')
        regs = [BB(T, k) for k in range(7)]
        if T == 3: regs = regs[:5]
        load_frags(A, regs, 22, 20)
    A('s_waitcnt vmcnt(26)')
    for k in range(7):
        for rt in range(4):
            for T in range(4):
                d = ACC + (rt*4+T)*4
                A(f'v_mfma_f32_16x16x32_bf16 {v(d,4)}, {r(AFR(rt,k),4)}, {r(BA(T,k),4)}, {"0" if k == 0 else v(d,4)}')
        if k == 2:
            A(f's_add_u32 s22, s21, {3*56*1024+12*1024}')
            load_frags(A, [BB(3, 5), BB(3, 6)], 22, 20)
    A('s_waitcnt vmcnt(0)')
    for k in range(7):
        for rt in range(4):
            for T in range(4):
                d = ACC + (rt*4+T)*4
                A(f'v_mfma_f32_16x16x32_bf16 {v(d,4)}, {r(AFR(rt,k+7),4)}, {r(BB(T,k),4)}, {v(d,4)}')
    A.nop(8)
    A('v_lshrrev_b32 v2, 4, v0'); A(f'v_mul_u32_u24 v2, {4*RS}, v2')
    A('v_and_b32 v3, 15, v0'); A('v_lshl_add_u32 v2, v3, 3, v2')
    A(f's_mul_i32 s22, s3, {64*RS}'); A('v_add_u32 v2, s22, v2')
    A('s_barrier')
    for rt in range(4):
        A(f'v_add_u32 v3, {rt*16*RS}, v2')
        for rr in range(4):
            for m in range(2):
                d0 = ACC + (rt*4+2*m)*4 + rr; d1 = d0 + 4
                o = (rr*RS + m*128)//4
                A(f'ds_write2_b32 v3, {v(d0)}, {v(d1)} offset0:{o} offset1:{o+1}')
    A('s_waitcnt lgkmcnt(0)')
    A('s_barrier')
    A('s_lshl_b32 s22, s3, 4')
    A('v_lshrrev_b32 v2, 2, v0'); A('v_add_u32 v2, s22, v2')
    A('v_and_b32 v3, 3, v0')
    A(f'v_mul_u32_u24 v4, {RS}, v2'); A('v_lshl_add_u32 v4, v3, 6, v4')
    for w in range(4):
        if w: A(f'v_add_u32 v4, {64*RS}, v4')
        for j in range(4): A(f'ds_read_b128 {v(8+16*w+4*j,4)}, v4 offset:{16*j}')
    A('v_mul_u32_u24 v5, 896, v2'); A('v_lshl_add_u32 v5, v3, 5, v5')
    A(f's_mul_i32 s22, s16, {64*896}'); A('s_lshl_b32 s23, s17, 7'); A('s_add_u32 s22, s22, s23'); A(f's_add_u32 s22, s22, {GF}')
    A('s_waitcnt lgkmcnt(0)')
    for j in range(8):
        A(f'v_pk_add_f32 {v(8+2*j,2)}, {v(8+2*j,2)}, {v(24+2*j,2)}')
        A(f'v_pk_add_f32 {v(40+2*j,2)}, {v(40+2*j,2)}, {v(56+2*j,2)}')
        A(f'v_pk_add_f32 {v(8+2*j,2)}, {v(8+2*j,2)}, {v(40+2*j,2)}')
    for j in range(8):
        a_, b_ = 8+2*j, 9+2*j
        A(f'v_cvt_pk_bf16_f32 v6, {v(a_)}, {v(b_)}')
        A(f'v_lshlrev_b32 {v(a_)}, 16, v6'); A(f'v_and_b32 {v(b_)}, 0xffff0000, v6')
        silu_bf(A, a_, 72); silu_bf(A, b_, 73)
        A(f'v_cvt_pk_bf16_f32 {v(80+j)}, {v(a_)}, {v(b_)}')
    A(f'buffer_store_dwordx4 v[80:83], v5, s[4:7], s22 offen{st}')
    A(f'buffer_store_dwordx4 v[84:87], v5, s[4:7], s22 offen offset:16{st}')

S_STG = 28*1024
def phase_s(A, h_s, qs_s, fail, sync):
    st = ' sc1' if sync else ''
    XP = lambda tt, kk: 256 + (tt*14+kk)*4
    XN = lambda kt, kk: 368 + (kt*14+kk)*4
    TF = lambda P, tt: 144 + (P*2+tt)*4
    DT = 16
    DS = {(0, 0): 32, (0, 1): 36, (1, 1): 40}
    DM = [44, 48]
    WB = [56 + 4*i for i in range(14)]
    A(f's_lshl_b32 s16, {s(qs_s)}, 2'); A('s_add_u32 s16, s16, s3')
    A(f's_mul_i32 s17, s16, {28*1024}')
    A(f's_add_u32 s18, s17, {XNP}')
    if XNF: A(f's_add_u32 s17, s17, {XNF}')
    A(f's_mul_i32 s19, {s(h_s)}, {28*14*1024}')
    A(f's_mul_i32 s21, s3, {7*1024}')
    A('s_add_u32 s19, s19, s21')
    A(f's_add_u32 s19, s19, {MC}')
    NB = 4
    def dma(P):
        for half in range(2):
            A(f's_add_u32 s22, s21, {(P % NB)*S_STG + half*4096}')
            A('s_mov_b32 m0, s22')
            A(f's_add_u32 s23, s19, {P*S_STG + half*4096}')
            for j in range(4 if half == 0 else 3):
                A(f'buffer_load_dwordx4 v1, s[4:7], s23 offen offset:{j*1024} lds')
    A('s_barrier')
    for P in range(3): dma(P)
    load_frags(A, [XP(tt, kk) for tt in range(2) for kk in range(14)], 18, 20)
    load_frags(A, [XN(kt, kk) for kt in range(2) for kk in range(14)], 17, 20)
    for P in range(14):
        if P == 0: A('s_waitcnt vmcnt(0)')
        else:
            later = sum(7 for x in range(P+1, min(P+3, 14)) if x >= 3)
            A(f's_waitcnt vmcnt({later if P >= 3 else 63})') if P >= 3 else None
        A('s_barrier')
        if P+3 < 14: dma(P+3)
        base = (P % NB)*S_STG
        if base >= 32768:
            A(f'v_add_u32 v2, {base}, v1'); ar, ab = 'v2', 0
        else: ar, ab = 'v1', base
        for e in range(2):
            for kk in range(14):
                A(f'ds_read_b128 {v(WB[kk],4)}, {ar} offset:{ab + (e*14+kk)*1024}')
            for kk in range(14):
                A(f's_waitcnt lgkmcnt({13-kk})')
                for tt in range(2):
                    d = DT + (e*2+tt)*4
                    A(f'v_mfma_f32_16x16x32_bf16 {v(d,4)}, {v(WB[kk],4)}, {r(XP(tt,kk),4)}, {"0" if kk == 0 else v(d,4)}')
        A.nop(8)
        for tt in range(2):
            for rr in range(4):
                A(f'v_cvt_pk_bf16_f32 {v(TF(P,tt)+rr)}, {v(DT+tt*4+rr)}, {v(DT+8+tt*4+rr)}')
        A('s_nop 1')
        for (kt, tt), d in DS.items():
            A(f'v_mfma_f32_16x16x32_bf16 {v(d,4)}, {r(XN(kt,P),4)}, {v(TF(P,tt),4)}, {"0" if P == 0 else v(d,4)}')
    A('v_lshrrev_b32 v3, 4, v0'); A('v_lshlrev_b32 v2, 7, v3')
    A('v_and_b32 v4, 7, v0'); A('v_lshl_add_u32 v2, v4, 4, v2')
    A('s_lshl_b32 s17, s16, 13'); A(f's_add_u32 s17, s17, {MEMG}'); A('s_add_u32 s18, s17, 4096')
    def issue():
        for kk in range(14):
            A(f'buffer_load_dwordx4 {v(WB[kk],4)}, v2, s[4:7], {"s17" if kk < 8 else "s18"} offen offset:{(kk%8)*512}{st}')
    if sync:
        def chk():
            A(f'v_max_u32 v4, {v(WB[0])}, {v(WB[0]+2)}')
            for kk in range(1, 14): A(f'v_max3_u32 v4, v4, {v(WB[kk])}, {v(WB[kk]+2)}')
            A('v_cmp_eq_u32 vcc, -1, v4')
        spin_wait(A, issue, chk, fail, sleep=8)
    else:
        issue(); A('s_waitcnt vmcnt(0)')
    for kk in range(14):
        for tt in range(2):
            A(f'v_mfma_f32_16x16x32_bf16 {v(DM[tt],4)}, {v(WB[kk],4)}, {v(TF(kk,tt),4)}, {"0" if kk == 0 else v(DM[tt],4)}')
    A('v_and_b32 v4, 15, v0'); A('v_lshlrev_b32 v5, 2, v3'); A('v_sub_u32 v4, v4, v5')
    A('v_mov_b32 v5, 0xff800000')
    A.nop(6)
    for tt in range(2):
        d = DS[(tt, tt)]
        for rr in range(4):
            A(f'v_cmp_le_i32 vcc, {rr}, v4')
            A('s_nop 1')
            A(f'v_cndmask_b32 {v(d+rr)}, v5, {v(d+rr)}, vcc')
    A(f's_mov_b32 s31, 0x{f2u(LOG2E):08x}')
    def xred(reg, tmp, op):
        for sw in ('v_permlane16_swap_b32', 'v_permlane32_swap_b32'):
            A(f'v_mov_b32 {v(tmp)}, {v(reg)}'); A('s_nop 1')
            A(f'{sw} {v(reg)}, {v(tmp)}'); A('s_nop 0')
            A(f'{op} {v(reg)}, {v(reg)}, {v(tmp)}')
    A('v_and_b32 v6, 8, v0'); A('v_lshlrev_b32 v6, 7, v6')
    A('v_and_b32 v7, 7, v0'); A('v_lshl_add_u32 v6, v7, 4, v6')
    A('v_lshrrev_b32 v7, 1, v6') ; A('v_and_b32 v7, 0x200, v7'); A('v_and_b32 v8, 0x70, v6'); A('v_or_b32 v7, v7, v8')
    A('v_and_b32 v8, 1, v3'); A('v_lshl_add_u32 v7, v8, 7, v7')
    A('v_lshl_add_u32 v6, v8, 3, v6')
    A('v_lshrrev_b32 v8, 1, v3'); A('v_lshl_add_u32 v6, v8, 8, v6')
    A(f's_lshr_b32 s17, {s(h_s)}, 1'); A('s_lshl_b32 s18, s16, 3'); A('s_add_u32 s17, s17, s18'); A('s_lshl_b32 s17, s17, 12')
    A(f's_and_b32 s18, {s(h_s)}, 1'); A('s_lshl_b32 s19, s18, 7'); A('s_add_u32 s17, s17, s19'); A(f's_add_u32 s17, s17, {PXX}')
    A(f's_lshr_b32 s19, {s(h_s)}, 2'); A('s_lshl_b32 s21, s16, 2'); A('s_add_u32 s19, s19, s21'); A('s_lshl_b32 s19, s19, 11')
    A('s_lshl_b32 s18, s18, 8'); A('s_add_u32 s19, s19, s18')
    A(f's_and_b32 s18, {s(h_s)}, 2'); A('s_lshl_b32 s18, s18, 2'); A('s_add_u32 s19, s19, s18'); A(f's_add_u32 s19, s19, {PXM}')
    for tt in range(2):
        xs = [DS[(0, tt)]] + ([DS[(1, 1)]] if tt else [])
        vals = [DM[tt]+rr for rr in range(4)] + [d+rr for d in xs for rr in range(4)]
        A(f'v_max3_f32 v9, {v(vals[0])}, {v(vals[1])}, {v(vals[2])}')
        i = 3
        while i < len(vals):
            if i+1 < len(vals): A(f'v_max3_f32 v9, v9, {v(vals[i])}, {v(vals[i+1])}'); i += 2
            else: A(f'v_max_f32 v9, v9, {v(vals[i])}'); i += 1
        xred(9, 10, 'v_max_f32')
        A(f'v_mul_f32 v9, 0x{f2u(-LOG2E):08x}, v9')
        for x in vals: A(f'v_fma_f32 {v(x)}, {v(x)}, s31, v9')
        for x in vals: A(f'v_exp_f32 {v(x)}, {v(x)}')
        A('s_nop 0')
        A(f'v_add_f32 v9, {v(vals[0])}, {v(vals[1])}'); A(f'v_add_f32 v10, {v(vals[2])}, {v(vals[3])}')
        A('v_add_f32 v9, v9, v10'); A('v_mul_f32 v9, 0.5, v9')
        for x in vals[4:]: A(f'v_add_f32 v9, v9, {v(x)}')
        xred(9, 10, 'v_add_f32')
        A('v_rcp_f32 v9, v9'); A('s_nop 0')
        for x in vals: A(f'v_mul_f32 {v(x)}, {v(x)}, v9')
        for kt in range(2):
            if kt < len(xs):
                d = xs[kt]
                A(f'v_cvt_pk_bf16_f32 v12, {v(d)}, {v(d+1)}'); A(f'v_cvt_pk_bf16_f32 v13, {v(d+2)}, {v(d+3)}')
            else:
                A('v_mov_b32 v12, 0'); A('v_mov_b32 v13, 0')
            A(f'buffer_store_dwordx2 v[12:13], v6, s[4:7], s17 offen offset:{tt*2048+kt*512}{st}')
            A('s_nop 1')
        d = DM[tt]
        A(f'v_cvt_pk_bf16_f32 v14, {v(d)}, {v(d+1)}'); A(f'v_cvt_pk_bf16_f32 v15, {v(d+2)}, {v(d+3)}')
        A('s_mov_b32 exec_hi, 0')
        A(f'buffer_store_dwordx2 v[14:15], v7, s[4:7], s19 offen offset:{tt*1024}{st}')
        A('s_mov_b32 exec_hi, -1')
        A('s_nop 1')
    if sync:
        A('s_waitcnt vmcnt(0)')
        A('v_mov_b32 v12, 1')
        A('s_lshl_b32 s17, s16, 6'); A(f's_lshl_b32 s18, {s(h_s)}, 2'); A('s_add_u32 s17, s17, s18'); A(f's_add_u32 s17, s17, {PFL}')
        A('v_mov_b32 v13, 0')
        A('buffer_store_dword v12, v13, s[4:7], s17 offen sc1')

def phase_o(A, seg_s, b_s, fail, sync):
    ld = ' sc1' if sync else ''
    UB = lambda ml, hpl, ct: 16 + ((ml*2+hpl)*2+ct)*8
    YB = lambda ml, ct: 80 + (ml*2+ct)*4
    PX = lambda oc, hpl: 96 + (oc*2+hpl)*4
    PMr = lambda oc: 128 + oc*4
    ACC = lambda oc, ml, ct: 144 + ((oc*2+ml)*2+ct)*4
    XG = 208
    A('v_and_b32 v3, 8, v0'); A('v_cmp_eq_u32 vcc, 0, v3')
    A('v_mov_b32 v2, 0xeeee'); A('v_mov_b32 v3, 0x4444'); A('v_cndmask_b32 v2, v2, v3, vcc')
    A(f's_lshl_b32 s16, {s(seg_s)}, 3'); A('s_lshl_b32 s17, s3, 1'); A('s_add_u32 s16, s16, s17')
    A('s_mul_i32 s18, s16, 14'); A(f's_lshl_b32 s17, {s(b_s)}, 1'); A('s_add_u32 s18, s18, s17'); A('s_lshl_b32 s18, s18, 12')
    A(f's_add_u32 s18, s18, {UF}')
    for hpl in range(2):
        for ml in range(2):
            A(f's_add_u32 s19, s18, {(hpl*14+ml)*4096}')
            for j in range(4):
                A(f'buffer_load_dwordx4 {v(UB(ml,hpl,0)+4*j,4)}, v1, s[4:7], s19 offen offset:{j*1024}{ld}')
    A('s_lshl_b32 s22, s3, 3')
    A('v_lshrrev_b32 v4, 3, v0'); A('v_add_u32 v4, s22, v4')
    A('v_and_b32 v5, 7, v0')
    A('v_mul_u32_u24 v6, 896, v4'); A('v_lshl_add_u32 v6, v5, 4, v6')
    A(f's_mul_i32 s22, {s(seg_s)}, {32*896}'); A(f's_lshl_b32 s23, {s(b_s)}, 7'); A('s_add_u32 s22, s22, s23')
    A(f's_add_u32 s23, s22, {GF}')
    A(f'buffer_load_dwordx4 {v(XG,4)}, v6, s[8:11], s22 offen')
    A(f'buffer_load_dwordx4 {v(XG+4,4)}, v6, s[4:7], s23 offen{ld}')
    for k in range(32): A(f'v_mov_b64 {v(144+2*k,2)}, 0')
    for k in range(8): A(f'v_mov_b64 {v(128+2*k,2)}, 0')
    if sync:
        A('v_and_b32 v7, 15, v0'); A('v_lshlrev_b32 v7, 2, v7')
        A(f's_lshl_b32 s19, {s(seg_s)}, 6'); A(f's_add_u32 s19, s19, {PFL}'); A('v_add_u32 v7, s19, v7')
        A('v_mov_b32 v8, 1')
        A(f's_lshl_b32 s19, {s(b_s)}, 3'); A('s_add_u32 s19, s19, s3'); A('s_lshl_b32 s19, s19, 2'); A(f's_add_u32 s19, s19, {YPR}')
        A('v_and_b32 v9, 1, v0'); A('v_lshlrev_b32 v9, 4, v9'); A('v_add_u32 v9, s19, v9')
        A(f's_add_u32 s19, {s(seg_s)}, 1'); A('v_mov_b32 v10, s19')
        A('v_cmp_lt_u32 vcc, 31, v0'); A('s_nop 1')
        A('v_cndmask_b32 v7, v7, v9, vcc'); A('v_cndmask_b32 v8, v8, v10, vcc')
        spin_wait(A, lambda: A('buffer_load_dword v9, v7, s[4:7], 0 offen sc1'), lambda: A('v_cmp_gt_u32 vcc, v8, v9'), fail, sleep=4)
    A('s_lshl_b32 s18, s16, 12'); A(f's_add_u32 s18, s18, {PXX}'); A('s_add_u32 s19, s18, 4096')
    for hpl in range(2):
        for oc in range(4):
            A(f'buffer_load_dwordx4 {v(PX(oc,hpl),4)}, v1, s[4:7], {"s19" if hpl else "s18"} offen offset:{oc*1024}{ld}')
    A('v_lshrrev_b32 v7, 4, v0'); A('v_lshlrev_b32 v7, 7, v7'); A('v_and_b32 v8, 7, v0'); A('v_lshl_add_u32 v7, v8, 4, v7')
    A(f's_lshl_b32 s18, {s(seg_s)}, 2'); A('s_add_u32 s18, s18, s3'); A('s_lshl_b32 s18, s18, 11'); A(f's_add_u32 s18, s18, {PXM}')
    A('s_mov_b32 exec_lo, 0x00ff00ff'); A('s_mov_b32 exec_hi, 0x00ff00ff')
    for oc in range(4):
        A(f'buffer_load_dwordx4 {v(PMr(oc),4)}, v7, s[4:7], s18 offen offset:{oc*512}{ld}')
    A('s_mov_b64 exec, -1')
    A(f's_mul_i32 s18, {s(seg_s)}, 14'); A('s_add_u32 s18, s18, s17'); A('s_lshl_b32 s18, s18, 2'); A('s_add_u32 s18, s18, s3'); A('s_lshl_b32 s18, s18, 11')
    A(f's_add_u32 s18, s18, {YG}'); A('s_add_u32 s19, s18, 8192')
    for ml in range(2):
        for ct in range(2):
            A(f'buffer_load_dwordx4 {v(YB(ml,ct),4)}, v1, s[4:7], {"s19" if ml else "s18"} offen offset:{ct*1024}{ld}')
    A('s_waitcnt vmcnt(8)')
    for oc in range(4):
        for hpl in range(2):
            for ml in range(2):
                for ct in range(2):
                    A(f'v_smfmac_f32_16x16x64_bf16 {v(ACC(oc,ml,ct),4)}, {v(PX(oc,hpl),4)}, {v(UB(ml,hpl,ct),8)}, v2')
    A('s_waitcnt vmcnt(0)')
    for oc in range(4):
        for ml in range(2):
            for ct in range(2):
                d = ACC(oc, ml, ct)
                A(f'v_mfma_f32_16x16x32_bf16 {v(d,4)}, {v(PMr(oc),4)}, {v(YB(ml,ct),4)}, {v(d,4)}')
    A('v_lshrrev_b32 v7, 5, v0'); A(f'v_mul_u32_u24 v7, {32*RS}, v7')
    A('v_and_b32 v8, 16, v0'); A(f'v_mul_u32_u24 v8, {RS//4}, v8'); A('v_add_u32 v7, v7, v8')
    A('v_and_b32 v8, 15, v0'); A('v_lshl_add_u32 v7, v8, 3, v7')
    A(f's_mul_i32 s18, s3, {64*RS}'); A('v_add_u32 v7, s18, v7')
    A('s_barrier')
    for oc in range(4):
        A(f'v_add_u32 v8, {oc*8*RS}, v7')
        for rr in range(4):
            for ml in range(2):
                o = (rr*RS + ml*128)//4
                A(f'ds_write2_b32 v8, {v(ACC(oc,ml,0)+rr)}, {v(ACC(oc,ml,1)+rr)} offset0:{o} offset1:{o+1}')
    A('s_waitcnt lgkmcnt(0)')
    A('s_barrier')
    A(f'v_mul_u32_u24 v7, {RS}, v4'); A('v_lshl_add_u32 v7, v5, 5, v7')
    for sl in range(8):
        if sl and sl % 2 == 0: A(f'v_add_u32 v7, {64*RS}, v7')
        for j in range(2): A(f'ds_read_b128 {v(16+8*sl+4*j,4)}, v7 offset:{(sl&1)*32*RS+16*j}')
    A('s_waitcnt lgkmcnt(0)')
    for step in (1, 2, 4):
        for sl in range(0, 8, 2*step):
            for j in range(4):
                A(f'v_pk_add_f32 {v(16+8*sl+2*j,2)}, {v(16+8*sl+2*j,2)}, {v(16+8*(sl+step)+2*j,2)}')
    for j in range(4):
        a_, b_ = 16+2*j, 17+2*j
        A(f'v_cvt_pk_bf16_f32 v8, {v(a_)}, {v(b_)}')
        A(f'v_lshlrev_b32 {v(a_)}, 16, v8'); A(f'v_and_b32 {v(b_)}, 0xffff0000, v8')
        A(f'v_lshlrev_b32 v9, 16, {v(XG+4+j)}'); A(f'v_and_b32 v10, 0xffff0000, {v(XG+4+j)}')
        A(f'v_mul_f32 {v(a_)}, {v(a_)}, v9'); A(f'v_mul_f32 {v(b_)}, {v(b_)}, v10')
        A(f'v_cvt_pk_bf16_f32 v8, {v(a_)}, {v(b_)}')
        A(f'v_lshlrev_b32 {v(a_)}, 16, v8'); A(f'v_and_b32 {v(b_)}, 0xffff0000, v8')
        A(f'v_lshlrev_b32 v9, 16, {v(XG+j)}'); A(f'v_and_b32 v10, 0xffff0000, {v(XG+j)}')
        A(f'v_add_f32 {v(a_)}, {v(a_)}, v9'); A(f'v_add_f32 {v(b_)}, {v(b_)}, v10')
        A(f'v_cvt_pk_bf16_f32 {v(24+j)}, {v(a_)}, {v(b_)}')
    A('buffer_store_dwordx4 v[24:27], v6, s[12:15], s22 offen')

W_LDS = 4*S_STG
def gen_k4(A):
    A.label('k4_kernel'); A('s_cmp_ge_u32 s2, 224'); A('s_cbranch_scc1 k4_end')
    prologue(A); phase_f2(A, 2)
    A.label('k4_end'); A('s_endpgm')
    return dict(name='k4_kernel', grid=224, block=256, lds=W_LDS, vgpr=256, sgpr=48, agpr=256)
def gen_k5(A):
    A.label('k5_kernel'); A('s_cmp_ge_u32 s2, 256'); A('s_cbranch_scc1 k5_end')
    prologue(A)
    A('s_and_b32 s32, s2, 15'); A('s_lshr_b32 s33, s2, 4')
    phase_s(A, 32, 33, 'k5_end', False)
    A.label('k5_end'); A('s_endpgm')
    return dict(name='k5_kernel', grid=256, block=256, lds=W_LDS, vgpr=256, sgpr=48, agpr=256)
def gen_k6(A):
    A.label('k6_kernel'); A('s_cmp_ge_u32 s2, 448'); A('s_cbranch_scc1 k6_end')
    srd(A, 8, 0, SZ_X); srd(A, 12, 88, SZ_X)
    prologue(A)
    sdivmod(A, 32, 33, 2, 7, 448)
    phase_o(A, 32, 33, 'k6_end', False)
    A.label('k6_end'); A('s_endpgm')
    return dict(name='k6_kernel', grid=448, block=256, lds=W_LDS, vgpr=256, sgpr=48, agpr=0)
```

```python
from asmlib import *
from layout import *
from k1 import sdivmod, srd
from wk import prologue, load_frags, f2u, LOG2E, tstamp

STG, XB, XS_ = 0, 8192, 576
RED, WL = 8192, 16384
CHAIN_LDS = WL + 4*14*1024
SPIN = 200000
NSTEP = 63
PROFILE = False
EWPOS = 0
QUICK = False
DBG_NOYW = 0
DBG_NOYF = 0
WBSTEP = 4
WBLAST = 2
NROLE = 30
DBG_NOITEM = DBG_PLAIN = 0
DBG_U0 = DBG_X0 = DBG_NOY = 0
BDEL = 8
STAG = 24
EWM_POS = 0

def stamp(A, i):
    if PROFILE: A(f's_memrealtime {s(50+2*i,2)}')
def stamp_flush(A, n, tmp, tmp2):
    if not PROFILE: return
    A('s_waitcnt lgkmcnt(0)')
    for i in range(n): A(f'v_writelane_b32 {v(tmp)}, {s(50+2*i)}, {i}')
    A(f'v_mbcnt_lo_u32_b32 {v(tmp2)}, -1, 0')
    A(f'v_lshlrev_b32 {v(tmp2)}, 2, {v(tmp2)}')
    A('s_lshl_b32 s48, s20, 6')
    A('s_add_u32 s48, s48, s49')
    A('s_mov_b64 s[68:69], exec')
    A('s_mov_b64 exec, 0xffff')
    A(f'buffer_store_dword {v(tmp)}, {v(tmp2)}, s[4:7], s48 offen')
    A('s_mov_b64 exec, s[68:69]')
def stamp_init(A):
    if not PROFILE: return
    A('s_lshl_b32 s49, s15, 2'); A('s_add_u32 s49, s49, s3'); A('s_lshl_b32 s49, s49, 12')
    A(f's_add_u32 s49, s49, {PROF}')

class Lds:
    def __init__(self, A): self.A = A; self.q = []
    def op(self, name, ins): self.A(ins); self.q.append(name)
    def need(self, name):
        if name not in self.q: return
        i = self.q.index(name)
        n = len(self.q) - 1 - i
        self.A(f's_waitcnt lgkmcnt({min(n,15)})')
        self.q = self.q[i+1:] if n <= 15 else self.q
    def drain(self):
        self.A('s_waitcnt lgkmcnt(0)'); self.q = []

def smf(A, d, a_, b):
    A(f'v_smfmac_f32_16x16x64_bf16 {v(d,4)}, {r(a_,4)}, {r(b,8)}, v2')

NF = 2
def common_setup(A):
    A('v_and_b32 v11, 8, v0')
    A('v_cmp_eq_u32 vcc, 0, v11')
    A('v_mov_b32 v2, 0xeeee')
    A('v_mov_b32 v11, 0x4444')
    A('v_cndmask_b32 v2, v2, v11, vcc')
    A('v_lshrrev_b32 v11, 4, v0'); A('v_lshlrev_b32 v8, 7, v11')
    A('v_and_b32 v11, 7, v0'); A('v_lshl_add_u32 v8, v11, 4, v8')
    A('s_mul_i32 s16, s3, 112')
    A('v_add_u32 v3, s16, v0'); A('v_lshlrev_b32 v3, 4, v3')
    A('v_min_u32 v4, 47, v0'); A('v_add_u32 v4, s16, v4'); A('v_add_u32 v4, 64, v4'); A('v_lshlrev_b32 v4, 4, v4')
    A('v_min_u32 v5, 13, v0'); A('v_lshlrev_b32 v5, 2, v5')
    A(f's_mov_b32 s40, {EWM}')
    A(f's_mov_b32 s41, {EWP}')
    A('s_lshl_b32 s16, s15, 8')
    A('s_add_u32 s46, s40, s16')
    A('s_add_u32 s47, s41, s16')
    A('s_mov_b64 s[42:43], 0xffff')

def step_addr(A):
    A('s_and_b32 s21, s20, 3')
    A(f's_lshl_b32 s24, s21, 14')
    A(f's_add_u32 s24, s24, {MEMR}')
    A('s_add_u32 s25, s24, 8192')
    A(f's_lshl_b32 s26, s21, 15')
    A(f's_add_u32 s26, s26, {PR}')
    A('s_add_u32 s45, s26, 16384')
    A('s_xor_b32 s22, s21, 2')
    A(f's_lshl_b32 s27, s22, 15')
    A(f's_add_u32 s27, s27, {PR}')
    A('s_add_u32 s44, s20, 1')
    A('s_and_b32 s22, s44, 3')
    A(f's_lshl_b32 s28, s22, 14')
    A(f's_add_u32 s28, s28, {MEMR}')
    A('s_xor_b32 s22, s22, 2')
    A(f's_lshl_b32 s29, s22, 14')
    A(f's_add_u32 s29, s29, {MEMR}')

def store_flag(A, voff, base, st, tmp):
    A(f'v_mov_b32 {v(tmp)}, s44')
    if base == 's41': A('s_mov_b32 exec_lo, 0')
    A(f'buffer_store_dword {v(tmp)}, {v(voff)}, s[4:7], {base} offen{st}')
    if base == 's41': A('s_mov_b32 exec_lo, -1')

def wait_flag(A, voff, base, want, regs, fail, poller):
    nf = NF
    Lb = A.newlabel('wfb')
    if poller is not None:
        L = A.newlabel('wf'); Lok = A.newlabel('wfo')
        A(f's_cmp_lg_u32 s3, {poller}')
        A(f's_cbranch_scc1 {Lb}')
        A(f's_mov_b32 s30, {SPIN}')
        A('s_mov_b64 exec, s[42:43]')
        def issue(k): A(f'buffer_load_dword {v(regs[k])}, {v(voff)}, s[4:7], {base} offen offset:{k*128} sc1')
        for k in range(nf-1):
            issue(k); A.nop(52//nf)
        A.label(L)
        for k in range(nf):
            issue((k+nf-1) % nf)
            A(f's_waitcnt vmcnt({nf-1})')
            A(f'v_cmp_gt_u32 vcc, {want}, {v(regs[k])}')
            A(f's_cbranch_vccz {Lok}')
        A('s_sub_u32 s30, s30, 1')
        A('s_cmp_lg_u32 s30, 0')
        A(f's_cbranch_scc1 {L}')
        A('s_mov_b64 exec, -1')
        A(f's_branch {fail}')
        A.label(Lok)
        A('s_mov_b64 exec, -1')
    A.label(Lb)
    A('s_barrier')

def poll_mem(A, sets, fail):
    L = A.newlabel('pm'); Lok = A.newlabel('pmo')
    def issue(k):
        so = 's24' if k == 0 else 's25'
        A(f'buffer_load_dwordx4 {v(sets[k],4)}, v3, s[4:7], {so} offen sc1')
        A(f'buffer_load_dwordx4 {v(sets[k]+4,4)}, v4, s[4:7], {so} offen sc1')
    def check(k):
        b = sets[k]
        A(f'ds_write_b128 v3, {v(b,4)}')
        A(f'ds_write_b128 v4, {v(b+4,4)}')
        A(f'v_max3_u32 v0, {v(b)}, {v(b+2)}, {v(b+4)}')
        A(f'v_max_u32 v0, v0, {v(b+6)}')
        A('v_cmp_eq_u32 vcc, -1, v0')
        A(f's_cbranch_vccz {Lok}')
    A(f's_mov_b32 s30, {SPIN}')
    if len(sets) == 1:
        A.label(L)
        issue(0); A('s_waitcnt vmcnt(0)'); check(0)
    else:
        issue(0)
        A.nop(STAG)
        A.label(L)
        issue(1); A('s_waitcnt vmcnt(2)'); check(0)
        issue(0); A('s_waitcnt vmcnt(2)'); check(1)
    A('s_sub_u32 s30, s30, 1')
    A('s_cmp_lg_u32 s30, 0')
    A(f's_cbranch_scc1 {L}')
    A(f's_branch {fail}')
    A.label(Lok)
    stamp(A, 0)
    A('s_waitcnt lgkmcnt(0)')
    A('s_barrier')
    stamp(A, 1)

def post_paired(d0, d1, xreg, xoff, t):
    I = [f'v_cvt_pk_bf16_f32 {v(t+rr)}, {v(d0+rr)}, {v(d1+rr)}' for rr in range(4)]
    W = [f'ds_write_b32 {v(xreg)}, {v(t+rr)} offset:{xoff+16*rr}' for rr in range(4)]
    return I, W
def post_single(d, xreg, xoff):
    I = [f'v_permlane32_swap_b32 {v(d)}, {v(d+1)}', f'v_permlane32_swap_b32 {v(d+2)}, {v(d+3)}',
         f'v_cvt_pk_bf16_f32 {v(d)}, {v(d)}, {v(d+1)}', f'v_cvt_pk_bf16_f32 {v(d+2)}, {v(d+2)}, {v(d+3)}']
    W = [f'ds_write_b32 {v(xreg)}, {v(d)} offset:{xoff}', f'ds_write_b32 {v(xreg)}, {v(d+2)} offset:{xoff+32}']
    return I, W

def x_addrs(A):
    A('v_and_b32 v11, 12, v0'); A('v_mul_u32_u24 v9, 36, v11')
    A('v_and_b32 v11, 3, v0');  A('v_lshl_add_u32 v9, v11, 2, v9')
    A('v_and_b32 v11, 16, v0'); A('v_lshl_add_u32 v9, v11, 2, v9')
    A(f's_mul_i32 s16, s3, {2*XS_}'); A(f's_add_u32 s16, s16, {XB}')
    A('v_add_u32 v9, s16, v9')
    A('v_lshrrev_b32 v11, 5, v0')
    A('v_lshl_add_u32 v10, v11, 4, v9')
    A(f'v_mul_u32_u24 v11, {XS_}, v11')
    A('v_add_u32 v9, v9, v11')

def gen_score(A, st, tag, fail, done):
    Lfin = f'sc_fin_{tag}'
    A('s_cmp_eq_u32 s3, 3')
    A(f's_cbranch_scc1 {Lfin}')
    ACC = [12, 16, 20, 24]
    SL = [28 + 4*i for i in range(9)]
    W = lambda tl, p: 64 + (tl*14+p)*8
    Lloop = f'sc_loop_{tag}'
    A('s_mov_b32 s20, 0')
    A.label(Lloop)
    step_addr(A)
    for k in range(8): A(f'v_mov_b64 {v(12+2*k,2)}, 0')
    wait_flag(A, 5, 's46', 's20', [SL[0]+k for k in range(4)], fail, 0)
    poll_mem(A, [SL[0], SL[2]], fail)
    Q = Lds(A)
    def rd(Q, p, slot):
        Q.op(('r', p), f'ds_read_b128 {v(SL[slot],4)}, v8 offset:{p*512}')
    slot = {}
    for p in range(5): slot[p] = 4+p; rd(Q, p, 4+p)
    for p in range(14):
        Q.need(('r', p))
        smf(A, ACC[0], SL[slot[p]], W(0, p)); smf(A, ACC[1], SL[slot[p]], W(1, p))
        if p == 1:
            A('s_waitcnt vmcnt(0)')
            for pp in range(5, 9): slot[pp] = pp-5; rd(Q, pp, pp-5)
        if 1 <= p < 6: slot[p+8] = slot.pop(p-1); rd(Q, p+8, slot[p+8])
    def phase(tl, order, rer, I, Wr):
        fill = [('v', x) for x in I] + [('w', x) for x in Wr] + [('n', None)]*BDEL + [('b', None)]
        rer = list(rer)
        for n, p in enumerate(order):
            Q.need(('r', p))
            smf(A, ACC[tl], SL[slot[p]], W(tl, p))
            if rer:
                pn = rer.pop(0); slot[pn] = slot.pop(p); rd(Q, pn, slot[pn])
            if n >= 4:
                for _ in range(2):
                    if not fill: break
                    kind, x = fill.pop(0)
                    if kind == 'v': A(x)
                    elif kind == 'w': Q.op('w', x)
                    elif kind == 'n': pass
                    else: Q.drain(); A('s_barrier')
        assert not fill, fill
    I, Wr = post_paired(ACC[0], ACC[1], 9, 0, ACC[0])
    phase(2, [5, 6, 7, 8, 9, 10, 11, 12, 13, 0, 1, 2, 3, 4], [0, 1, 2, 3, 4], I, Wr)
    stamp(A, 2)
    I, Wr = post_single(ACC[2], 10, 8*XS_)
    phase(3, [10, 11, 12, 13, 0, 1, 2, 3, 4, 5, 6, 7, 8, 9], [5, 6, 7, 8, 9], I, Wr)
    stamp(A, 3)
    A.nop(8)
    I, Wr = post_single(ACC[3], 10, 9*XS_)
    for x in I + Wr: A(x)
    A('s_waitcnt lgkmcnt(0)')
    A('s_barrier')
    stamp(A, 4); stamp_flush(A, 5, 0, 1)
    A('s_add_u32 s20, s20, 1')
    A(f's_cmp_lt_u32 s20, {NSTEP}')
    A(f's_cbranch_scc1 {Lloop}')
    A(f's_branch {done}')

    A.label(Lfin)
    ACC = [16, 20]; DX, DM = 24, 28
    PS = [32, 48]
    AF = [64 + 4*p for p in range(14)]
    A2 = [120 + 4*i for i in range(4)]
    T = 136
    XSR = [144 + 8*kk for kk in range(14)]
    W = lambda tl, p: 256 + (tl*14+p)*8
    posof = lambda kk: kk
    A('v_lshlrev_b32 v12, 4, v0')
    A('v_and_b32 v11, 16, v0'); A('v_lshlrev_b32 v1, 2, v11')
    A('v_lshrrev_b32 v11, 5, v0'); A('v_lshl_add_u32 v1, v11, 4, v1')
    A('v_and_b32 v11, 12, v0'); A('v_lshl_add_u32 v13, v11, 6, v1')
    A('v_and_b32 v11, 3, v0'); A('v_lshl_add_u32 v13, v11, 2, v13')
    A('s_lshr_b32 s16, s17, 1'); A('s_lshl_b32 s16, s16, 10')
    A('s_and_b32 s18, s17, 1'); A('s_lshl_b32 s19, s18, 7'); A('s_add_u32 s16, s16, s19')
    A('v_add_u32 v13, s16, v13')
    A('v_and_b32 v11, 8, v0');  A('v_lshl_add_u32 v14, v11, 2, v1')
    A('v_cmp_ne_u32 s[34:35], 0, v11')
    A('v_and_b32 v11, 3, v0');  A('v_lshl_add_u32 v14, v11, 1, v14')
    A('v_and_b32 v11, 4, v0');  A('v_lshl_add_u32 v14, v11, 5, v14')
    A('s_lshr_b32 s16, s17, 2'); A('s_lshl_b32 s16, s16, 9')
    A('s_lshl_b32 s19, s18, 8'); A('s_add_u32 s16, s16, s19')
    A('s_and_b32 s19, s17, 2'); A('s_lshl_b32 s19, s19, 2'); A('s_add_u32 s16, s16, s19')
    A('s_add_u32 s16, s16, 8192'); A('v_add_u32 v14, s16, v14')
    A('s_lshl_b32 s16, s17, 2'); A('v_lshlrev_b32 v6, 7, v0'); A('v_add_u32 v6, s16, v6')
    A('v_lshrrev_b32 v11, 4, v0'); A('v_mul_u32_u24 v15, 144, v11')
    A('v_and_b32 v11, 7, v0'); A('v_lshl_add_u32 v15, v11, 4, v15')
    A(f'v_add_u32 v15, {XB}, v15')
    A(f's_mov_b32 s31, 0x{f2u(LOG2E):08x}')
    A('s_mov_b32 s33, 0x7fff7fff')
    def load_xs():
        for i in range(28):
            if i % 4 == 0:
                if i == 0: A('s_mov_b32 s23, s32')
                else: A('s_add_u32 s23, s23, 4096')
            A(f'buffer_load_dwordx4 {v(XSR[0]+4*i,4)}, v12, s[4:7], s23 offen offset:{(i%4)*1024}')
    A(f's_mov_b32 s32, {XNS}')
    load_xs()
    Lloop = f'sf_loop_{tag}'
    A('s_mov_b32 s20, 0')
    A.label(Lloop)
    if QUICK:
        Lq = A.newlabel('q')
        A('s_cmp_lg_u32 s20, 2'); A(f's_cbranch_scc1 {Lq}'); A('s_memrealtime s[64:65]'); A('s_memtime s[60:61]'); A.label(Lq)
    step_addr(A)
    for k in range(8): A(f'v_mov_b64 {v(16+2*k,2)}, 0')
    wait_flag(A, 5, 's46', 's20', None, fail, None)
    poll_mem(A, PS, fail)
    Q = Lds(A)
    for p in range(14):
        Q.op(('r', p), f'ds_read_b128 {v(AF[p],4)}, v8 offset:{p*512}')
    for p in range(14):
        Q.need(('r', p))
        smf(A, ACC[0], AF[p], W(0, p)); smf(A, ACC[1], AF[p], W(1, p))
    A.nop(8)
    I, Wr = post_paired(ACC[0], ACC[1], 9, 0, ACC[0])
    for x in I: A(x)
    for x in Wr: Q.op('w', x)
    nb = [0]
    def rd2(kk2):
        Q.op(('x', kk2), f'ds_read_b128 {v(A2[nb[0]%4],4)}, v15 offset:{kk2*XS_}')
        buf[kk2] = A2[nb[0] % 4]; nb[0] += 1
    buf = {}
    def second(kk2):
        Q.need(('x', kk2))
        smf(A, DX, buf[kk2], XSR[kk2])
        A(f'v_mfma_f32_16x16x32_bf16 {v(DM,4)}, {v(buf[kk2],4)}, {v(AF[posof(kk2)],4)}, {v(DM,4)}')
    rd2(6); rd2(7)
    second(6); second(7)
    A('s_barrier')
    stamp(A, 2)
    for kk2 in range(4): rd2(kk2)
    second(0); rd2(4); second(1); rd2(5); second(2); second(3)
    A('s_barrier')
    rd2(8); rd2(10)
    second(4); rd2(12); second(5); second(8); second(10); second(12)
    A('s_barrier')
    stamp(A, 3)
    rd2(9); rd2(11); rd2(13)
    if EWPOS == -1: store_flag(A, 6, 's41', st, T+7)
    second(9); second(11); second(13)
    if EWPOS == 0: store_flag(A, 6, 's41', st, T+7)
    A.nop(8)
    stamp(A, 4)
    for d in (DX, DM):
        A(f'v_permlane32_swap_b32 {v(d)}, {v(d+1)}')
        A(f'v_permlane32_swap_b32 {v(d+2)}, {v(d+3)}')
    mx = [T, T+1]; sm = [T+2, T+3]
    el = lambda t: (DX+2*t, DX+2*t+1, DM+2*t)
    for t in range(2):
        A(f'v_max3_f32 {v(mx[t])}, {v(el(t)[0])}, {v(el(t)[1])}, {v(el(t)[2])}')
    for ror in (8, 4, 2, 1):
        A('s_nop 0')
        for t in range(2):
            A(f'v_max_f32_dpp {v(mx[t])}, {v(mx[t])}, {v(mx[t])} row_ror:{ror} row_mask:0xf bank_mask:0xf')
    if EWPOS == 1: store_flag(A, 6, 's41', st, T+7)
    for t in range(2):
        A(f'v_mul_f32 {v(mx[t])}, 0x{f2u(-LOG2E):08x}, {v(mx[t])}')
    for j in range(3):
        for t in range(2):
            A(f'v_fma_f32 {v(el(t)[j])}, {v(el(t)[j])}, s31, {v(mx[t])}')
    for j in (2, 0, 1):
        for t in range(2):
            A(f'v_exp_f32 {v(el(t)[j])}, {v(el(t)[j])}')
    if EWPOS == 2: store_flag(A, 6, 's41', st, T+7)
    for t in range(2):
        A(f'v_fma_f32 {v(sm[t])}, {v(el(t)[2])}, 0.5, {v(el(t)[0])}')
    for t in range(2):
        A(f'v_add_f32 {v(sm[t])}, {v(sm[t])}, {v(el(t)[1])}')
    for ror in (8, 4, 2, 1):
        A('s_nop 0')
        for t in range(2):
            A(f'v_add_f32_dpp {v(sm[t])}, {v(sm[t])}, {v(sm[t])} row_ror:{ror} row_mask:0xf bank_mask:0xf')
    if EWPOS == 3: store_flag(A, 6, 's41', st, T+7)
    for t in range(2):
        A(f'v_rcp_f32 {v(sm[t])}, {v(sm[t])}')
    A(f'v_cndmask_b32 {v(T+6)}, {v(DM)}, {v(DM+2)}, s[34:35]')
    for j in range(2):
        for t in range(2):
            A(f'v_mul_f32 {v(el(t)[j])}, {v(el(t)[j])}, {v(sm[t])}')
    A(f'v_cndmask_b32 {v(T+7)}, {v(sm[0])}, {v(sm[1])}, s[34:35]')
    for t in range(2):
        A(f'v_cvt_pk_bf16_f32 {v(T+4+t)}, {v(el(t)[0])}, {v(el(t)[1])}')
    A(f'v_mul_f32 {v(T+6)}, {v(T+6)}, {v(T+7)}')
    for t in range(2):
        A(f'v_and_b32 {v(T+4+t)}, s33, {v(T+4+t)}')
    A(f'v_cvt_pk_bf16_f32 {v(T+6)}, {v(T+6)}, {v(T+6)}')
    for t in range(2):
        A(f'buffer_store_dword {v(T+4+t)}, v13, s[4:7], s26 offen offset:{32*t}{st}')
    A(f'v_and_b32 {v(T+6)}, s33, {v(T+6)}')
    A(f'buffer_store_short {v(T+6)}, v14, s[4:7], s26 offen{st}')
    for t in range(2):
        A(f'buffer_store_dword {v(T+4+t)}, v13, s[4:7], s45 offen offset:{32*t}{st}')
    A(f'buffer_store_short {v(T+6)}, v14, s[4:7], s45 offen{st}')
    if EWPOS == 4: store_flag(A, 6, 's41', st, T+7)
    stamp(A, 5)
    A(f'v_mov_b32 {v(T+7)}, -1')
    for cp in range(KC):
        if cp: A('s_add_u32 s27, s27, 16384')
        for t in range(2):
            A(f'buffer_store_dword {v(T+7)}, v13, s[4:7], s27 offen offset:{32*t}{st}')
        A(f'buffer_store_short {v(T+7)}, v14, s[4:7], s27 offen{st}')
    tstamp(A, 16, 0, 1, sreg=20)
    if not DBG_X0: A('s_add_u32 s32, s32, 28672')
    load_xs()
    stamp_flush(A, 6, 0, 1)
    A('s_add_u32 s20, s20, 1')
    A(f's_cmp_lt_u32 s20, {NSTEP}')
    A(f's_cbranch_scc1 {Lloop}')
    if QUICK:
        A('s_memrealtime s[66:67]'); A('s_memtime s[62:63]'); A('s_waitcnt lgkmcnt(0)')
        A('s_sub_u32 s62, s62, s60'); A('v_mov_b32 v0, s62'); A('s_lshl_b32 s16, s17, 2'); A('s_add_u32 s16, s16, 192'); A('v_mov_b32 v1, s16')
        A('buffer_store_dword v0, v1, s[8:11], 0 offen')
        A('s_sub_u32 s66, s66, s64'); A('v_mov_b32 v0, s66'); A('s_lshl_b32 s16, s17, 2'); A('s_add_u32 s16, s16, 128'); A('v_mov_b32 v1, s16')
        A('buffer_store_dword v0, v1, s[8:11], 0 offen')
    A(f's_branch {done}')

def load_ctile(A, dst, offa, offb, plist=range(14)):
    out = []
    for p in plist:
        if p % 4 == 0 or p == plist[0]:
            A(f's_add_u32 s22, s18, {offa+(p//4)*4096}')
            A(f's_add_u32 s23, s18, {offb+(p//4)*4096}')
        im = (p % 4)*1024
        A(f'buffer_load_dwordx4 {r(dst(p),4)}, v1, s[4:7], s22 offen offset:{im}')
        A(f'buffer_load_dwordx4 {r(dst(p)+4,4)}, v1, s[4:7], s23 offen offset:{im}')
        out.append(dst(p))
    return out

def interleave(A, g):
    if g < 256:
        A(f'v_swap_b32 {v(g+1)}, {v(g+4)}')
        A(f'v_swap_b32 {v(g+2)}, {v(g+4)}')
        A(f'v_swap_b32 {v(g+3)}, {v(g+5)}')
        A(f'v_swap_b32 {v(g+5)}, {v(g+6)}')
    else:
        q = g - 256
        A(f'v_accvgpr_read_b32 v11, {a(q+1)}')
        A(f'v_accvgpr_mov_b32 {a(q+1)}, {a(q+4)}')
        A(f'v_accvgpr_mov_b32 {a(q+4)}, {a(q+2)}')
        A(f'v_accvgpr_write_b32 {a(q+2)}, v11')
        A(f'v_accvgpr_read_b32 v11, {a(q+3)}')
        A(f'v_accvgpr_mov_b32 {a(q+3)}, {a(q+5)}')
        A(f'v_accvgpr_mov_b32 {a(q+5)}, {a(q+6)}')
        A(f'v_accvgpr_write_b32 {a(q+6)}, v11')

def load_tiles(A, tiles):
    pend = []
    for i, (dst, oa, ob, pl) in enumerate(tiles):
        g = load_ctile(A, dst, oa, ob, pl)
        if pend:
            A(f's_waitcnt vmcnt({2*len(g)})')
            for x in pend: interleave(A, x)
        pend = g
    A('s_waitcnt vmcnt(0)')
    for x in pend: interleave(A, x)

def score_weights(A):
    TS = 14*1024
    Lw3 = A.newlabel('w3'); Ld = A.newlabel('wd')
    A(f's_mul_i32 s18, s17, {28*TS}')
    A(f's_add_u32 s18, s18, {MC}')
    A(f's_mul_i32 s19, s3, {4*TS}')
    A('s_add_u32 s18, s18, s19')
    A('s_cmp_eq_u32 s3, 3')
    A(f's_cbranch_scc1 {Lw3}')
    W = lambda tl: (lambda p: 64 + (tl*14+p)*8)
    load_tiles(A, [(W(0), 0, 2*TS, range(14)), (W(1), TS, 3*TS, range(14)),
                   (W(2), 16*TS, 17*TS, range(14)), (W(3), 18*TS, 19*TS, range(14))])
    A(f's_branch {Ld}')
    A.label(Lw3)
    W = lambda tl: (lambda p: 256 + (tl*14+p)*8)
    load_tiles(A, [(W(0), 0, 2*TS, range(14)), (W(1), TS, 3*TS, range(14))])
    A.label(Ld)

V_W0 = 120
def VW(ti, p): return V_W0 + (ti*14+p)*8
def gen_value(A, st, tag, fail, done, ystore=''):
    UB, ACC, YP = 16, 48, 64
    PM = 72
    SL = [76 + 4*i for i in range(4)]
    PM2 = 92
    TM = [96, 104, 112]
    Lloop = f'va_loop_{tag}'
    for k in range(4): A(f'v_mov_b32 {v(PM+k)}, 0'); A(f'v_mov_b32 {v(PM2+k)}, 0')
    A('s_mov_b32 s20, 0')
    A.label(Lloop)
    step_addr(A)
    for k in range(8): A(f'v_mov_b64 {v(ACC+2*k,2)}, 0')
    wait_flag(A, 5, 's46', 's20', [TM[1]+k for k in range(4)], fail, 1)
    poll_mem(A, [TM[1], TM[2]], fail)
    Q = Lds(A)
    slot = {}
    free = [0, 1, 2, 3]
    nxt = [0]
    def rd():
        p = nxt[0]
        if p > 13 or not free: return
        sl = free.pop(0); slot[p] = sl; nxt[0] += 1
        Q.op(('r', p), f'ds_read_b128 {v(SL[sl],4)}, v8 offset:{p*512}')
    def ldsw(p):
        t = TM[p % 3]
        Q.op(('wa', p), f'ds_read_b128 {v(t,4)}, v11 offset:{(p-7)*2048}')
        Q.op(('wb', p), f'ds_read_b128 {v(t+4,4)}, v11 offset:{(p-7)*2048+1024}')
    for _ in range(4): rd()
    A(f's_add_u32 s23, s36, {14*4096}')
    uq = []
    for hpl in range(2):
        for j in range(4):
            uq.append(f'buffer_load_dwordx4 {v(UB+hpl*16+j*4,4)}, v12, s[4:7], {"s23" if hpl else "s36"} offen offset:{j*1024}')
    for p in range(14):
        Q.need(('r', p))
        for ti in range(3):
            smf(A, ACC+4*ti, SL[slot[p]], VW(ti, p))
            if ti == 0 and p == 2:
                A('s_waitcnt vmcnt(0)')
            if ti == 1 and 2 <= p < 6: A(uq.pop(0)); A(uq.pop(0))
            if ti == 0 and 3 <= p < 6: ldsw(p+4)
        if p < 7: smf(A, ACC+12, SL[slot[p]], VW(3, p))
        else:
            Q.need(('wb', p))
            smf(A, ACC+12, SL[slot[p]], TM[p % 3])
            if p+3 < 14: ldsw(p+3)
        free.append(slot[p]); rd()
    if not DBG_U0: A(f's_add_u32 s36, s36, {16*28*1024}')
    A.nop(8)
    for ct in range(2):
        for hp in range(2):
            d = ACC + 4*(hp*2+ct)
            A(f'v_cvt_pk_bf16_f32 {v(YP+4*ct+2*hp)}, {v(d)}, {v(d+1)}')
            A(f'v_cvt_pk_bf16_f32 {v(YP+4*ct+2*hp+1)}, {v(d+2)}, {v(d+3)}')
    stamp(A, 2)
    D = [ACC, ACC+4]
    PMs = [PM, PM2]; PXs = [PM+4, PM2+4]
    wait_flag(A, 7, 's47', 's44', [PXs[0]+k for k in range(4)], fail, 1)
    stamp(A, 6)
    if PROFILE: A('s_mov_b32 s64, 0')
    def issue(k):
        so = 's26' if k == 0 else 's45'
        for hpl in range(2):
            A(f'buffer_load_dwordx4 {v(PXs[k]+4*hpl,4)}, v9, s[4:7], {so} offen offset:{hpl*1024} sc1')
        A('s_mov_b64 exec, s[34:35]')
        A(f'buffer_load_dwordx4 {v(PMs[k],4)}, v10, s[4:7], {so} offen sc1')
        A('s_mov_b64 exec, -1')
    L = A.newlabel('pp'); Lf = A.newlabel('ppf')
    def attempt(k):
        for kk in range(4): A(f'v_mov_b64 {v(ACC+2*kk,2)}, 0')
        A('s_nop 0')
        A('s_waitcnt vmcnt(3)')
        if PROFILE: A('s_add_u32 s64, s64, 1')
        b = PMs[k]
        chk = [f'v_or3_b32 v0, {v(b)}, {v(b+1)}, {v(b+2)}', f'v_or3_b32 v1, {v(b+3)}, {v(b+4)}, {v(b+5)}',
               f'v_or3_b32 v0, v0, {v(b+6)}, {v(b+7)}', f'v_or3_b32 v1, v1, {v(b+8)}, {v(b+9)}',
               f'v_or3_b32 v0, v0, {v(b+10)}, {v(b+11)}', 'v_or_b32 v0, v0, v1', 'v_and_b32 v0, 0x80008000, v0', 'v_cmp_ne_u32 vcc, 0, v0']
        for ct in range(2):
            A(f'v_mfma_f32_16x16x32_bf16 {v(D[ct],4)}, {v(b,4)}, {v(YP+4*ct,4)}, {v(D[ct],4)}')
            A(chk.pop(0)); A(chk.pop(0))
        for hpl in range(2):
            for ct in range(2):
                smf(A, D[ct], PXs[k]+4*hpl, UB+hpl*16+ct*8)
                A(chk.pop(0))
        A(f's_cbranch_vccz {Lf}')
        A('s_nop 1')
    A(f's_mov_b32 s30, {SPIN}')
    issue(0)
    A.nop(STAG)
    A.label(L)
    issue(1); attempt(0)
    issue(0); attempt(1)
    A('s_sub_u32 s30, s30, 1')
    A('s_cmp_lg_u32 s30, 0')
    A(f's_cbranch_scc1 {L}')
    A(f's_branch {fail}')
    A.label(Lf)
    stamp(A, 3)
    if EWM_POS == 0:
        Lsf = A.newlabel('sf'); A('s_cmp_lg_u32 s3, 0'); A(f's_cbranch_scc1 {Lsf}')
        store_flag(A, 6, 's40', st, 0); A.label(Lsf)
    A.nop(6)
    for rr in range(4): A(f'v_permlane32_swap_b32 {v(D[0]+rr)}, {v(D[1]+rr)}')
    for rr in range(4):
        A(f'v_add_f32 {v(D[0]+rr)}, {v(D[0]+rr)}, {v(D[1]+rr)}')
        A(f'ds_write_b32 v13, {v(D[0]+rr)} offset:{128*rr}')
    A('s_waitcnt lgkmcnt(0)')
    A('s_barrier')
    stamp(A, 4)
    Lnx = A.newlabel('vnx')
    A('s_cmp_lg_u32 s3, 0')
    A(f's_cbranch_scc1 {Lnx}')
    R4 = [ACC, ACC+4, ACC+8, ACC+12]
    for w in range(4):
        A(f'ds_read_b128 {v(R4[w],4)}, v14 offset:{w*1024}')
    if EWM_POS == 1: store_flag(A, 6, 's40', st, 0)
    A('s_waitcnt lgkmcnt(2)')
    A(f'v_pk_add_f32 {v(R4[0],2)}, {v(R4[0],2)}, {v(R4[1],2)}')
    A(f'v_pk_add_f32 {v(R4[0]+2,2)}, {v(R4[0]+2,2)}, {v(R4[1]+2,2)}')
    A('s_waitcnt lgkmcnt(0)')
    A(f'v_pk_add_f32 {v(R4[2],2)}, {v(R4[2],2)}, {v(R4[3],2)}')
    A(f'v_pk_add_f32 {v(R4[2]+2,2)}, {v(R4[2]+2,2)}, {v(R4[3]+2,2)}')
    A(f'v_pk_add_f32 {v(R4[0],2)}, {v(R4[0],2)}, {v(R4[2],2)}')
    A(f'v_pk_add_f32 {v(R4[0]+2,2)}, {v(R4[0]+2,2)}, {v(R4[2]+2,2)}')
    A(f'v_cvt_pk_bf16_f32 {v(R4[1])}, {v(R4[0])}, {v(R4[0]+1)}')
    A(f'v_cvt_pk_bf16_f32 {v(R4[1]+1)}, {v(R4[0]+2)}, {v(R4[0]+3)}')
    A(f'v_min_u32 {v(R4[1])}, 0xfffffffe, {v(R4[1])}')
    A(f'buffer_store_dwordx2 {v(R4[1],2)}, v15, s[4:7], s28 offen{st}')
    A('s_add_u32 s28, s28, 8192')
    A(f'buffer_store_dwordx2 {v(R4[1],2)}, v15, s[4:7], s28 offen{st}')
    if EWM_POS == 2: store_flag(A, 6, 's40', st, 0)
    stamp(A, 5)
    A(f'v_mov_b64 {v(R4[2],2)}, -1')
    A(f'buffer_store_dwordx2 {v(R4[2],2)}, v15, s[4:7], s29 offen{st}')
    A('s_add_u32 s29, s29, 8192')
    A(f'buffer_store_dwordx2 {v(R4[2],2)}, v15, s[4:7], s29 offen{st}')
    A(f'buffer_store_dwordx2 {v(R4[1],2)}, v15, s[4:7], s39 offen{st}')
    A.label(Lnx)
    stamp_flush(A, 8, 0, 1)
    A('s_add_u32 s39, s39, 8192')
    A('s_add_u32 s20, s20, 1')
    A(f's_cmp_lt_u32 s20, {NSTEP}')
    A(f's_cbranch_scc1 {Lloop}')
    A(f's_branch {done}')

def value_setup(A):
    TS = 14*1024; HS = 28*TS
    A(f's_mul_i32 s18, s3, {4*HS}')
    A(f's_mul_i32 s22, s17, {2*TS}')
    A('s_add_u32 s18, s18, s22')
    A(f's_add_u32 s18, s18, {NC}')
    A('v_lshlrev_b32 v12, 4, v0')
    load_tiles(A, [((lambda p: V_W0 + (p-7)*8), 2*HS+TS, 3*HS+TS, range(7, 14))])
    A(f's_mul_i32 s23, s3, {14*1024}')
    A(f's_add_u32 s23, s23, {WL}')
    A('v_add_u32 v11, s23, v12')
    for i in range(14):
        A(f'ds_write_b128 v11, {v(V_W0+4*i,4)} offset:{i*1024}')
    A('s_waitcnt lgkmcnt(0)')
    tl = []
    for ti in range(4):
        hp, ct = ti >> 1, ti & 1
        tl.append(((lambda p, ti=ti: VW(ti, p)), (2*hp)*HS+ct*TS, (2*hp+1)*HS+ct*TS, range(14) if ti < 3 else range(7)))
    load_tiles(A, tl)
    A('s_lshl_b32 s23, s3, 11'); A('v_add_u32 v9, s23, v12')
    A('s_lshl_b32 s23, s3, 9'); A('s_add_u32 s23, s23, 8192'); A('v_add_u32 v10, s23, v8')
    A('v_and_b32 v11, 16, v0'); A('v_lshlrev_b32 v13, 5, v11')
    A('v_and_b32 v11, 15, v0'); A('v_lshl_add_u32 v13, v11, 3, v13')
    A('v_lshlrev_b32 v7, 2, v11')
    A('v_lshrrev_b32 v11, 5, v0'); A('v_lshl_add_u32 v13, v11, 2, v13')
    A('s_lshl_b32 s23, s3, 10'); A(f's_add_u32 s23, s23, {RED}'); A('v_add_u32 v13, s23, v13')
    A('v_and_b32 v11, 14, v0'); A('v_lshlrev_b32 v14, 6, v11')
    A('v_lshrrev_b32 v11, 4, v0'); A('v_lshl_add_u32 v14, v11, 5, v14')
    A('v_and_b32 v11, 1, v0'); A('v_lshl_add_u32 v14, v11, 4, v14')
    A(f'v_add_u32 v14, {RED}, v14')
    A('v_lshlrev_b32 v15, 3, v0'); A('s_lshl_b32 s23, s17, 9'); A('v_add_u32 v15, s23, v15')
    A('s_lshl_b32 s23, s17, 2'); A('v_lshlrev_b32 v6, 7, v0'); A('v_add_u32 v6, s23, v6')
    A('s_mov_b32 s34, 0x00ff00ff'); A('s_mov_b32 s35, 0x00ff00ff')
    A(f's_mul_i32 s36, s3, {2*14*4096}')
    A('s_lshl_b32 s23, s17, 12')
    A('s_add_u32 s36, s36, s23')
    A(f's_add_u32 s36, s36, {UF}')
    A(f's_mov_b32 s39, {MEMG+8192}')

def value_setup2(A):
    A(f's_mul_i32 s23, s3, {14*1024}')
    A(f's_add_u32 s23, s23, {WL}')
    A('v_add_u32 v11, s23, v12')

def mode_exchange(A):
    srd(A, 8, 96, 256)
    A('s_getreg_b32 s12, hwreg(HW_REG_XCC_ID)')
    A('s_and_b32 s12, s12, 15')
    A('s_add_u32 s12, s12, 1')
    A('v_mov_b32 v8, s12')
    A('s_lshl_b32 s13, s15, 2')
    A('v_mov_b32 v9, s13')
    A('s_waitcnt lgkmcnt(0)')
    A('buffer_store_dword v8, v9, s[8:11], 0 offen sc1')

def mode_gather(A, fail):
    A(f'v_min_u32 v1, {NROLE-1}, v0')
    A('v_lshlrev_b32 v1, 2, v1')
    L = A.newlabel('mg')
    A(f's_mov_b32 s30, {SPIN}')
    A.label(L)
    A('buffer_load_dword v11, v1, s[8:11], 0 offen sc1')
    A('s_sub_u32 s30, s30, 1')
    A('s_cmp_eq_u32 s30, 0')
    A(f's_cbranch_scc1 {fail}')
    A('s_waitcnt vmcnt(0)')
    A('v_cmp_eq_u32 vcc, 0, v11')
    A(f's_cbranch_vccnz {L}')
    A('v_cmp_ne_u32 vcc, s12, v11')
    A('s_cmp_eq_u64 vcc, 0')
    A('s_cselect_b32 s14, 1, 0')

def gen_forwarders(A, fail, done):
    A('s_sub_u32 s17, s15, 30'); A('s_lshl_b32 s17, s17, 2'); A('s_add_u32 s17, s17, s3')
    A('v_lshlrev_b32 v6, 7, v0')
    A('v_lshlrev_b32 v12, 4, v0')
    A('s_cmp_lg_u32 s17, 0')
    A(f's_cbranch_scc1 {done}')
    A('s_mov_b32 s20, 1')
    A(f's_mov_b32 s22, {HINT}')
    A.label('fw_m_loop')
    A('s_lshl_b32 s24, s20, 13'); A(f's_add_u32 s26, s24, {MEMG2}'); A(f's_add_u32 s24, s24, {MEMG}')
    A('s_add_u32 s25, s24, 4096'); A('s_add_u32 s27, s26, 4096')
    A(f's_mov_b32 s30, {SPIN*4}')
    A.label('fw_m_poll')
    for j in range(7):
        A(f'buffer_load_dwordx4 {v(16+4*j,4)}, v12, s[4:7], {"s24" if j < 4 else "s25"} offen offset:{(j%4)*1024} sc1')
    A('s_sub_u32 s30, s30, 1'); A('s_cmp_eq_u32 s30, 0'); A(f's_cbranch_scc1 {fail}')
    A('s_waitcnt vmcnt(0)')
    A('v_max_u32 v1, v16, v18')
    for j in range(1, 7): A(f'v_max3_u32 v1, v1, {v(16+4*j)}, {v(18+4*j)}')
    A('v_cmp_eq_u32 vcc, -1, v1')
    A('s_cbranch_vccz fw_m_ok')
    A('s_sleep 2')
    A('s_branch fw_m_poll')
    A.label('fw_m_ok')
    for j in range(7):
        A(f'buffer_store_dwordx4 {v(16+4*j,4)}, v12, s[4:7], {"s26" if j < 4 else "s27"} offen offset:{(j%4)*1024} sc1')
    A('s_waitcnt vmcnt(0)')
    A('v_mov_b32 v1, s20'); A('s_mov_b64 exec, 0xffff')
    A('buffer_store_dword v1, v6, s[4:7], s22 offen sc1'); A('s_mov_b64 exec, -1')
    A('s_add_u32 s20, s20, 1'); A('s_cmp_lt_u32 s20, 64'); A('s_cbranch_scc1 fw_m_loop')
    A(f's_branch {done}')

def gen_chain_body(A, fail, done, merged=False, wait_u=None):
    ystore = ' sc1' if merged and not DBG_PLAIN else ''
    mode_exchange(A)
    common_setup(A)
    stamp_init(A)
    if merged:
        A('s_cmp_lt_u32 s15, 30'); A('s_cbranch_scc1 ch_main')
        gen_forwarders(A, fail, done)
        A.label('ch_main')
    A('s_cmp_ge_u32 s15, 16')
    A('s_cbranch_scc1 ch_value')
    A('s_mov_b32 s17, s15')
    score_weights(A)
    x_addrs(A)
    tstamp(A, 1, 12, 13)
    mode_gather(A, fail)
    A('s_cmp_eq_u32 s14, 0')
    A('s_cbranch_scc1 ch_score_slow')
    gen_score(A, '', 'f', fail, done)
    A.label('ch_score_slow')
    gen_score(A, ' sc1', 's', fail, done)
    A.label('ch_value')
    A('s_sub_u32 s17, s15, 16')
    value_setup(A)
    tstamp(A, 1, 48, 49)
    mode_gather(A, fail)
    value_setup2(A)
    if wait_u: wait_u()
    tstamp(A, 2, 48, 49)
    A('s_cmp_eq_u32 s14, 0')
    A('s_cbranch_scc1 ch_value_slow')
    gen_value(A, '', 'f', fail, done, ystore)
    A.label('ch_value_slow')
    gen_value(A, ' sc1', 's', fail, done, ystore)

def gen_k3(A):
    A.label('k3_kernel')
    A('s_and_b32 s15, s2, 7')
    A('s_cmp_lg_u32 s15, 0')
    A('s_cbranch_scc1 k3_end')
    A('s_lshr_b32 s15, s2, 3')
    A('s_cmp_ge_u32 s15, 30')
    A('s_cbranch_scc1 k3_end')
    prologue(A)
    gen_chain_body(A, 'k3_end', 'k3_end')
    A.label('k3_end')
    A('s_endpgm')
    return dict(name='k3_kernel', grid=256, block=256, lds=CHAIN_LDS, vgpr=256, sgpr=72, agpr=256)
```

```python
from asmlib import *
from layout import *

def magic(div, maxv):
    for sh in range(8, 31):
        m = -(-(1 << sh) // div)
        if (maxv - 1) * m >= (1 << 32): continue
        if all(((x * m) >> sh) == x // div for x in range(maxv)):
            return m, sh
    raise Exception('no magic')

def sdivmod(A, q, rem, x, div, maxv):
    m, sh = magic(div, maxv)
    A(f's_mul_i32 {s(q)}, {s(x)}, {m}')
    A(f's_lshr_b32 {s(q)}, {s(q)}, {sh}')
    A(f's_mul_i32 {s(rem)}, {s(q)}, {div}')
    A(f's_sub_u32 {s(rem)}, {s(x)}, {s(rem)}')

def srd(A, d, karg_off, size):
    A(f's_load_dwordx2 {s(d,2)}, s[0:1], {karg_off}')
    A(f's_mov_b32 {s(d+2)}, {size}')
    A(f's_mov_b32 {s(d+3)}, 0x00020000')

SZ_X = 2048*448*2
SZ_MEM0 = 8*448*2
SZ_W = 448*16*256*2
SZ_F = 448*1792*2

K1_LN0, K1_M0, K1_N0, K1_R0, K1_I0 = 0, 32, 228, 424, 498
K1_NWG = 499

def gen_k1(A):
    A.label('k1_kernel')
    Lend = 'k1_end'
    A(f's_cmp_ge_u32 s2, {K1_NWG}')
    A(f's_cbranch_scc1 {Lend}')
    srd(A, 4, 104, WS_END)
    A('v_lshrrev_b32 v1, 6, v0')
    A('v_and_b32 v0, 63, v0')
    A('v_readfirstlane_b32 s3, v1')
    A('v_lshrrev_b32 v2, 4, v0')
    A('v_and_b32 v3, 15, v0')
    A('v_lshlrev_b32 v4, 4, v0')
    A('s_mov_b32 s20, 0x05040100')
    A('s_mov_b32 s21, 0x07060302')
    A(f's_cmp_ge_u32 s2, {K1_I0}')
    A('s_cbranch_scc1 k1_init')
    A(f's_cmp_ge_u32 s2, {K1_R0}')
    A('s_cbranch_scc1 k1_reformat')
    A(f's_cmp_ge_u32 s2, {K1_N0}')
    A('s_cbranch_scc1 k1_N')
    A(f's_cmp_ge_u32 s2, {K1_M0}')
    A('s_cbranch_scc1 k1_M')
    srd(A, 8, 0, SZ_X)
    A('s_lshl_b32 s16, s2, 2')
    A('s_add_u32 s16, s16, s3')
    A('s_mul_i32 s17, s16, %d' % (16*896))
    A('v_mul_u32_u24 v5, 896, v3')
    A('v_lshl_add_u32 v5, v2, 4, v5')
    A('s_waitcnt lgkmcnt(0)')
    RAW, XF = 8, 64
    for kk in range(14):
        A(f'buffer_load_dwordx4 {v(RAW+4*kk,4)}, v5, s[8:11], s17 offen offset:{64*kk}')
    A('v_mov_b32 v6, 0')
    A('v_mov_b32 v7, 0')
    for kk in range(14):
        A(f's_waitcnt vmcnt({13-kk})')
        for d in range(4):
            i = 4*kk+d
            A(f'v_lshlrev_b32 {v(XF+2*i)}, 16, {v(RAW+i)}')
            A(f'v_and_b32 {v(XF+2*i+1)}, 0xffff0000, {v(RAW+i)}')
            A(f'v_add_f32 v6, v6, {v(XF+2*i)}')
            A(f'v_add_f32 v7, v7, {v(XF+2*i+1)}')
    def allred(reg, tmp):
        A(f'v_mov_b32 {v(tmp)}, {v(reg)}')
        A('s_nop 1')
        A(f'v_permlane16_swap_b32 {v(reg)}, {v(tmp)}')
        A('s_nop 1')
        A(f'v_add_f32 {v(reg)}, {v(reg)}, {v(tmp)}')
        A(f'v_mov_b32 {v(tmp)}, {v(reg)}')
        A('s_nop 1')
        A(f'v_permlane32_swap_b32 {v(reg)}, {v(tmp)}')
        A('s_nop 1')
        A(f'v_add_f32 {v(reg)}, {v(reg)}, {v(tmp)}')
    A('v_add_f32 v6, v6, v7')
    allred(6, 7)
    import struct
    f2u = lambda f: struct.unpack('<I', struct.pack('<f', f))[0]
    A(f'v_mul_f32 v6, 0x{f2u(1.0/448):08x}, v6')
    A('v_mov_b32 v176, 0')
    A('v_mov_b32 v177, 0')
    for i in range(56):
        A(f'v_sub_f32 v178, {v(XF+2*i)}, v6')
        A(f'v_sub_f32 v179, {v(XF+2*i+1)}, v6')
        A('v_fmac_f32 v176, v178, v178')
        A('v_fmac_f32 v177, v179, v179')
    A('v_add_f32 v176, v176, v177')
    allred(176, 177)
    A(f'v_mul_f32 v176, 0x{f2u(1.0/448):08x}, v176')
    A('v_cvt_pk_bf16_f32 v6, v6, v176')
    A('v_and_b32 v176, 0xffff0000, v6')
    A('v_lshlrev_b32 v6, 16, v6')
    A(f'v_add_f32 v176, 0x{f2u(1e-5):08x}, v176')
    A('v_cvt_pk_bf16_f32 v176, v176, v176')
    A('v_and_b32 v176, 0xffff0000, v176')
    A('v_sqrt_f32 v176, v176')
    A('s_nop 0')
    A('v_cvt_pk_bf16_f32 v176, v176, v176')
    A('v_and_b32 v176, 0xffff0000, v176')
    A('v_rcp_f32 v177, v176')
    A('s_nop 0')
    A('v_fma_f32 v178, -v176, v177, 1.0')
    A('v_fma_f32 v177, v178, v177, v177')
    for i in range(56):
        A(f'v_sub_f32 v178, {v(XF+2*i)}, v6')
        A(f'v_sub_f32 v179, {v(XF+2*i+1)}, v6')
        A('v_cvt_pk_bf16_f32 v178, v178, v179')
        A('v_and_b32 v179, 0xffff0000, v178')
        A('v_lshlrev_b32 v178, 16, v178')
        A('v_mul_f32 v178, v178, v177')
        A('v_mul_f32 v179, v179, v177')
        A(f'v_cvt_pk_bf16_f32 {v(RAW+i)}, v178, v179')
    A('s_mul_i32 s17, s16, %d' % (14*1024))
    A(f's_add_u32 s18, s17, {XNP}')
    if XNF: A(f's_add_u32 s17, s17, {XNF}')
    A('v_and_b32 v5, 1, v2'); A('v_lshlrev_b32 v5, 9, v5')
    A('v_lshrrev_b32 v6, 1, v2'); A('v_lshl_add_u32 v5, v6, 8, v5')
    A('v_lshrrev_b32 v6, 1, v3'); A('v_lshl_add_u32 v6, v6, 4, v5')
    A('v_and_b32 v7, 1, v3'); A('v_lshl_add_u32 v6, v7, 10, v6')
    A('v_cmp_eq_u32 s[22:23], 1, v7')
    A('v_lshl_add_u32 v5, v3, 4, v5')
    A('s_lshr_b32 s19, s16, 1'); A(f's_mul_i32 s19, s19, {28*1024}')
    A('s_and_b32 s24, s16, 1'); A('s_lshl_b32 s24, s24, 7')
    A('s_add_u32 s19, s19, s24'); A(f's_add_u32 s19, s19, {XNS}')
    for kk in range(14):
        if kk % 4 == 0 and kk:
            A('s_add_u32 s17, s17, 4096')
            A('s_add_u32 s18, s18, 4096')
        if kk % 2 == 0 and kk: A('s_add_u32 s19, s19, 4096')
        b = RAW+4*kk
        A(f'buffer_store_dwordx4 {v(b,4)}, v4, s[4:7], s17 offen offset:{(kk%4)*1024}')
        t = XF + 8*kk
        for d in range(4): A(f'v_mov_b32 {v(t+d)}, {v(b+d)}')
        A('s_nop 1')
        A(f'v_permlane32_swap_b32 {v(t)}, {v(t+2)}')
        A(f'v_permlane32_swap_b32 {v(t+1)}, {v(t+3)}')
        A('s_nop 1')
        A(f'buffer_store_dwordx4 {v(t,4)}, v5, s[4:7], s18 offen offset:{(kk%4)*1024}')
        A(f'v_cndmask_b32 v178, {v(t+2)}, {v(t)}, s[22:23]')
        A(f'v_cndmask_b32 v179, {v(t+3)}, {v(t+1)}, s[22:23]')
        A('s_nop 1')
        A('v_mov_b32_dpp v180, v178 quad_perm:[1,0,3,2] row_mask:0xf bank_mask:0xf')
        A('v_mov_b32_dpp v181, v179 quad_perm:[1,0,3,2] row_mask:0xf bank_mask:0xf')
        A(f'v_cndmask_b32 {v(t+4)}, {v(t)}, v180, s[22:23]')
        A(f'v_cndmask_b32 {v(t+5)}, v180, {v(t+2)}, s[22:23]')
        A(f'v_cndmask_b32 {v(t+6)}, {v(t+1)}, v181, s[22:23]')
        A(f'v_cndmask_b32 {v(t+7)}, v181, {v(t+3)}, s[22:23]')
        A(f'buffer_store_dwordx4 {v(t+4,4)}, v6, s[4:7], s19 offen offset:{(kk%2)*2048}')
    A('s_endpgm')

    ACC = 8
    BUF = [72, 136]
    TMP = 200
    def common(first_wg, offA, offB):
        srd(A, 8, offA, SZ_W)
        srd(A, 12, offB, SZ_W)
        A(f's_sub_u32 s16, s2, {first_wg}')
        A('s_lshl_b32 s16, s16, 2')
        A('s_add_u32 s16, s16, s3')
        sdivmod(A, 17, 18, 16, 49, 784)
        sdivmod(A, 19, 22, 18, 7, 49)
        A('v_lshlrev_b32 v5, 13, v3')
        A('v_lshl_add_u32 v5, v2, 4, v5')
        A('s_lshl_b32 s23, s17, 9')
        A('s_lshl_b32 s24, s19, 19')
        A('s_add_u32 s24, s24, s23')
        for t4 in range(4):
            u, ab = t4 >> 1, t4 & 1
            if t4: A(f's_add_u32 {s(24+t4)}, s24, {(32*u+16*ab)*8192}')
        for i in range(64):
            A(f'v_mov_b32 {v(ACC+i)}, 0')
    def loadA(buf, ks2, ks):
        for t4 in range(4):
            A(f'buffer_load_dwordx4 {v(buf+32*ks2+4*t4,4)}, v5, s[8:11], {s(24+t4)} offen offset:{64*ks}')
    def mfmas(abase, bregs):
        for t4 in range(4):
            for tt in range(4):
                d = ACC + (t4*4+tt)*4
                A(f'v_mfma_f32_16x16x32_bf16 {v(d,4)}, {v(abase+4*t4,4)}, {v(bregs[tt],4)}, {v(d,4)}')
    def epilogue(base, isM):
        A.nop(10)
        A('s_mul_i32 s28, s17, 28')
        A('s_lshl_b32 s29, s22, 2')
        A('s_add_u32 s28, s28, s29')
        A('s_mul_i32 s28, s28, 7')
        A('s_add_u32 s28, s28, s19')
        A('s_lshl_b32 s28, s28, 11')
        A(f's_add_u32 s28, s28, {base}')
        if not isM:
            A('v_lshrrev_b32 v4, 3, v3'); A(f'v_mul_u32_u24 v4, {2*14336}, v4')
            A('v_lshl_add_u32 v4, v2, 8, v4')
            A('v_and_b32 v5, 7, v3'); A('v_lshl_add_u32 v4, v5, 5, v4')
            A('s_add_u32 s29, s28, 14336')
        for tt in range(4):
            for u in range(2):
                o = BUF[0] + (tt*2+u)*4
                for ab in range(2):
                    d = ACC + ((u*2+ab)*4+tt)*4
                    if isM:
                        for rr in range(4):
                            A(f'v_mul_f32 {v(d+rr)}, 0x3d800000, {v(d+rr)}')
                    A(f'v_cvt_pk_bf16_f32 {v(o+2*ab)}, {v(d)}, {v(d+1)}')
                    A(f'v_cvt_pk_bf16_f32 {v(o+2*ab+1)}, {v(d+2)}, {v(d+3)}')
                if isM: A(f'buffer_store_dwordx4 {v(o,4)}, v4, s[4:7], s28 offen offset:{u*1024}')
                else: A(f'buffer_store_dwordx4 {v(o,4)}, v4, s[4:7], {"s29" if tt&1 else "s28"} offen offset:{u*1024+(tt>>1)*16}')
            if tt < 3 and isM: A(f's_add_u32 s28, s28, {7*2048}')
        A('s_endpgm')

    A.label('k1_M')
    common(K1_M0, 16, 24)
    A('v_lshlrev_b32 v6, 14, v3')
    A('v_lshl_add_u32 v6, v2, 4, v6')
    A('s_lshl_b32 s28, s22, 19')
    A('s_add_u32 s28, s28, s23')
    for tt in range(1, 4):
        A(f's_add_u32 {s(28+tt)}, s28, {(32*(tt>>1)+(tt&1))*8192}')
    A('s_waitcnt lgkmcnt(0)')
    def loadM(bi, batch):
        for ks2 in range(2):
            ks = 2*batch+ks2
            loadA(BUF[bi], ks2, ks)
            for tt in range(4):
                A(f'buffer_load_dwordx4 {v(BUF[bi]+32*ks2+16+4*tt,4)}, v6, s[12:15], {s(28+tt)} offen offset:{64*ks}')
    loadM(0, 0); loadM(1, 1)
    for batch in range(4):
        bi = batch & 1
        A(f's_waitcnt vmcnt({16 if batch < 3 else 0})')
        for ks2 in range(2):
            mfmas(BUF[bi]+32*ks2, [BUF[bi]+32*ks2+16+4*tt for tt in range(4)])
        if batch+2 < 4: loadM(bi, batch+2)
    epilogue(MC, True)

    A.label('k1_N')
    common(K1_N0, 32, 40)
    A(f'v_mul_u32_u24 v6, {8*896}, v2')
    A('v_lshl_add_u32 v6, v3, 3, v6')
    A(f'v_add_u32 v7, {4*896}, v6')
    A('s_mul_i32 s28, s17, 229376')
    A('s_lshl_b32 s29, s22, 7')
    A('s_add_u32 s28, s28, s29')
    A('s_waitcnt lgkmcnt(0)')
    def loadN(bi, batch):
        for ks2 in range(2):
            ks = 2*batch+ks2
            loadA(BUF[bi], ks2, ks)
            A(f's_add_u32 s29, s28, {ks*32*896}')
            for ee in range(8):
                A(f'buffer_load_dwordx2 {v(BUF[bi]+32*ks2+16+2*ee,2)}, {"v6" if ee<4 else "v7"}, s[12:15], s29 offen offset:{(ee&3)*896}')
    loadN(0, 0); loadN(1, 1)
    for batch in range(4):
        bi = batch & 1
        A(f's_waitcnt vmcnt({24 if batch < 3 else 0})')
        for ks2 in range(2):
            L = BUF[bi]+32*ks2+16
            for j in range(4):
                for m in range(4):
                    A(f'v_perm_b32 {v(TMP+4*j+m)}, {v(L+2*(2*m+1)+(j>>1))}, {v(L+2*(2*m)+(j>>1))}, {"s21" if j&1 else "s20"}')
            A('s_nop 1')
            mfmas(BUF[bi]+32*ks2, [TMP+4*j for j in range(4)])
        if batch+2 < 4: loadN(bi, batch+2)
    epilogue(NC, False)

    A.label('k1_reformat')
    A(f's_sub_u32 s16, s2, {K1_R0}')
    A('s_lshl_b32 s16, s16, 2')
    A('s_add_u32 s16, s16, s3')
    A('s_cmp_ge_u32 s16, 294')
    A(f's_cbranch_scc1 {Lend}')
    sdivmod(A, 17, 18, 16, 98, 296)
    A('s_lshl_b32 s19, s17, 3')
    A('s_add_u32 s19, s19, 64')
    A('s_load_dwordx2 s[8:9], s[0:1], s19')
    A(f's_mov_b32 s10, {SZ_F}')
    A('s_mov_b32 s11, 0x00020000')
    A('s_cmp_eq_u32 s17, 2')
    A('s_cbranch_scc1 k1_rw2')
    sdivmod(A, 19, 22, 18, 7, 98)
    A('v_lshrrev_b32 v5, 5, v0')
    A('v_and_b32 v6, 31, v0')
    A(f'v_mul_u32_u24 v7, {8*3584}, v5')
    A('v_lshl_add_u32 v7, v6, 4, v7')
    A(f's_mul_i32 s23, s19, {32*3584}')
    A('s_lshl_b32 s24, s22, 9')
    A('s_add_u32 s23, s23, s24')
    A('s_waitcnt lgkmcnt(0)')
    R0, R1, T0 = 8, 40, 72
    for jj in range(2):
        for ee in range(8):
            A(f's_add_u32 s24, s23, {(jj*16+ee)*3584}')
            A(f'buffer_load_dwordx4 {v((R0,R1)[jj]+4*ee,4)}, v7, s[8:11], s24 offen')
    A('v_lshrrev_b32 v8, 2, v6') if False else None
    A('v_lshrrev_b32 v1, 2, v6')
    A(f'v_mul_u32_u24 v1, {2*2*14*1024}, v1')
    A('v_and_b32 v6, 3, v6')
    A('v_lshl_add_u32 v1, v6, 6, v1')
    A('v_lshl_add_u32 v1, v5, 8, v1')
    A(f's_mul_i32 s24, s22, {8*2*2*14*1024}')
    A(f's_mul_i32 s25, s17, {14*1024}')
    A('s_add_u32 s24, s24, s25')
    A('s_lshl_b32 s25, s19, 10')
    A('s_add_u32 s24, s24, s25')
    A(f's_add_u32 s24, s24, {W13}')
    A(f's_add_u32 s25, s24, {2*14*1024}')
    for jj in range(2):
        A(f's_waitcnt vmcnt({8 if jj==0 else 8})')
        R = (R0, R1)[jj]
        T = T0 + 32*jj
        for col in range(8):
            m, o = col >> 1, col & 1
            for k in range(4):
                A(f'v_perm_b32 {v(T+4*col+k)}, {v(R+4*(2*k+1)+m)}, {v(R+4*(2*k)+m)}, {"s21" if o else "s20"}')
        for col in range(8):
            ab, rr = col >> 2, col & 3
            A(f'buffer_store_dwordx4 {v(T+4*col,4)}, v1, s[4:7], {"s25" if ab else "s24"} offen offset:{jj*512+rr*16}')
    A('s_endpgm')
    A.label('k1_rw2')
    sdivmod(A, 19, 22, 18, 7, 98)
    A('v_lshrrev_b32 v5, 3, v0')
    A('v_and_b32 v6, 7, v0')
    A(f'v_mul_u32_u24 v7, {8*896}, v5')
    A('v_lshl_add_u32 v7, v6, 4, v7')
    A(f's_mul_i32 s23, s19, {128*896}')
    A('s_lshl_b32 s24, s22, 7')
    A('s_add_u32 s23, s23, s24')
    A('s_waitcnt lgkmcnt(0)')
    for jj in range(2):
        for ee in range(8):
            A(f's_add_u32 s24, s23, {(jj*64+ee)*896}')
            A(f'buffer_load_dwordx4 {v((R0,R1)[jj]+4*ee,4)}, v7, s[8:11], s24 offen')
    A('v_lshrrev_b32 v1, 2, v5')
    A('v_lshlrev_b32 v1, 10, v1')
    A('v_and_b32 v5, 3, v5')
    A('v_lshl_add_u32 v1, v5, 8, v1')
    A('v_and_b32 v5, 3, v6')
    A('v_lshl_add_u32 v1, v5, 6, v1')
    A('v_lshrrev_b32 v5, 2, v6')
    A(f'v_mul_u32_u24 v5, {2*56*1024}, v5')
    A('v_add_u32 v1, v1, v5')
    A(f's_mul_i32 s24, s22, {4*56*1024}')
    A('s_lshl_b32 s25, s19, 12')
    A('s_add_u32 s24, s24, s25')
    A(f's_add_u32 s24, s24, {W2F}')
    A(f's_add_u32 s25, s24, {56*1024}')
    for jj in range(2):
        A('s_waitcnt vmcnt(8)')
        R = (R0, R1)[jj]
        T = T0 + 32*jj
        for col in range(8):
            m, o = col >> 1, col & 1
            for k in range(4):
                A(f'v_perm_b32 {v(T+4*col+k)}, {v(R+4*(2*k+1)+m)}, {v(R+4*(2*k)+m)}, {"s21" if o else "s20"}')
        for col in range(8):
            A(f'buffer_store_dwordx4 {v(T+4*col,4)}, v1, s[4:7], {s(24+(col&1))} offen offset:{jj*2048+(col>>1)*16}')
    A('s_endpgm')

    A.label('k1_init')
    srd(A, 8, 8, SZ_MEM0)
    A('s_lshl_b32 s16, s3, 6')
    A('v_add_u32 v5, s16, v0')
    A('v_mov_b32 v8, -1'); A('v_mov_b32 v9, -1'); A('v_mov_b32 v10, -1'); A('v_mov_b32 v11, -1')
    A('v_lshlrev_b32 v6, 4, v5')
    start = MEMR + KC*8192
    nbytes = FLAGS - start
    assert nbytes % 4096 == 0
    A(f's_mov_b32 s17, {start}')
    A('s_waitcnt lgkmcnt(0)')
    A.label('k1_fill')
    A('buffer_store_dwordx4 v[8:11], v6, s[4:7], s17 offen')
    A('s_add_u32 s17, s17, 4096')
    A(f's_cmp_lt_u32 s17, {FLAGS}')
    A('s_cbranch_scc1 k1_fill')
    A(f's_mov_b32 s18, {MEMG+8192}')
    A.label('k1_fill3')
    A('buffer_store_dwordx4 v[8:11], v6, s[4:7], s18 offen')
    A('s_add_u32 s18, s18, 4096')
    A(f's_cmp_lt_u32 s18, {MEMG+64*8192}')
    A('s_cbranch_scc1 k1_fill3')
    A('v_mov_b32 v12, 0'); A('v_mov_b32 v13, 0'); A('v_mov_b32 v14, 0'); A('v_mov_b32 v15, 0')
    A.label('k1_fill2')
    A('buffer_store_dwordx4 v[12:15], v6, s[4:7], s17 offen')
    A('s_add_u32 s17, s17, 4096')
    A(f's_cmp_lt_u32 s17, {PROF}')
    A('s_cbranch_scc1 k1_fill2')
    for it in range(2):
        A(f'v_add_u32 v7, {256*it}, v5')
        A('v_and_b32 v16, 7, v7')
        A('v_mul_u32_u24 v16, 896, v16')
        A('v_lshrrev_b32 v17, 3, v7')
        A('v_lshl_add_u32 v16, v17, 4, v16')
        A('v_lshlrev_b32 v17, 4, v7')
        A('v_cmp_gt_u32 vcc, 448, v7')
        A('s_and_saveexec_b64 s[18:19], vcc')
        Ls = A.newlabel('k1_skip')
        A(f's_cbranch_execz {Ls}')
        A('buffer_load_dwordx4 v[20:23], v16, s[8:11], 0 offen')
        A('s_waitcnt vmcnt(0)')
        for d in range(4):
            A(f'v_min_u32 {v(20+d)}, 0xfffffffe, {v(20+d)}')
        for cp in range(KC):
            A(f's_mov_b32 s17, {MEMR + cp*8192}')
            A('buffer_store_dwordx4 v[20:23], v17, s[4:7], s17 offen')
        A(f's_mov_b32 s17, {MEMG}')
        A('buffer_store_dwordx4 v[20:23], v17, s[4:7], s17 offen')
        A(f's_mov_b32 s17, {MEMG2}')
        A('buffer_store_dwordx4 v[20:23], v17, s[4:7], s17 offen')
        A('s_waitcnt vmcnt(0)')
        A.label(Ls)
        A('s_mov_b64 exec, s[18:19]')
    A.label(Lend)
    A('s_endpgm')
    return dict(name='k1_kernel', grid=K1_NWG, block=256, lds=0, vgpr=216, sgpr=40, agpr=0)
```

```python
KB=1024
XNF = 0
XNP = XNF + 128*14*KB
XNS = XNP + 128*14*KB
MC  = XNS + 64*14*2*KB
NC  = MC + 16*28*14*KB
W13 = NC + 16*28*14*KB
W2F = W13 + 56*2*2*14*KB
UF  = W2F + 28*56*KB
HF  = UF + 64*16*28*KB
GF  = HF + 128*56*KB
MEMG= GF + 2048*KB
MEMG2 = MEMG + 64*8192
YG  = MEMG2 + 64*8192
PXX = YG + 64*14*4*2*KB
PXM = PXX + 64*2*16*KB
KC = 2
MEMR= PXM + 64*2*8*KB
PR  = MEMR + 4*KC*8192
FLAGS = PR + 4*KC*16384
EWP = FLAGS
EWM = FLAGS + 8192
PFL = FLAGS + 16384
FFL = FLAGS + 20480
WFL = FLAGS + 24576
HINT = FLAGS + 32768
YFL = FLAGS + 36864
UFL = FLAGS + 65536
LNF = UFL + 28672
MNF = UFL + 28672 + 4096
EW2 = MNF + 32768
PROF = EW2 + 32768
WS_END = PROF + 256*4*64*64
WS_SIZE = 268435456
if __name__=='__main__':
    for k,val in list(globals().items()):
        if isinstance(val,int): print(k,val,hex(val))
```

```python
from asmlib import *
from layout import *
from k1 import sdivmod, srd, SZ_X
from wk import prologue, wsgemm, tstamp
import chain, wk2
from wk2 import spin_wait, phase_f2, phase_s, phase_o, phase_yw

def set_flag(A, ph):
    A('s_waitcnt vmcnt(0)')
    A('s_barrier')
    A('v_mov_b32 v2, 1')
    A('s_lshl_b32 s16, s96, 2'); A(f's_add_u32 s16, s16, {WFL + ph*1024}')
    A('v_mov_b32 v3, 0')
    A('s_mov_b64 exec, 1')
    A('buffer_store_dword v2, v3, s[4:7], s16 offen sc1')
    A('s_mov_b64 exec, -1')

def wait_flags(A, ph, fail, vt=2, sleep=8):
    A(f'v_mbcnt_lo_u32_b32 {v(vt)}, -1, 0'); A(f'v_mbcnt_hi_u32_b32 {v(vt)}, -1, {v(vt)}')
    A(f'v_min_u32 {v(vt)}, 55, {v(vt)}'); A(f'v_lshlrev_b32 {v(vt)}, 4, {v(vt)}')
    A(f's_mov_b32 s16, {WFL + ph*1024}')
    d = vt + 2 if (vt + 2) % 2 == 0 else vt + 1
    def chk():
        A(f'v_min3_u32 {v(vt+1) if d != vt+1 else v(d)}, {v(d)}, {v(d+1)}, {v(d+2)}') if False else None
        A(f'v_min_u32 {v(d)}, {v(d)}, {v(d+1)}'); A(f'v_min3_u32 {v(d)}, {v(d)}, {v(d+2)}, {v(d+3)}')
        A(f'v_cmp_eq_u32 vcc, 0, {v(d)}')
    spin_wait(A, lambda: A(f'buffer_load_dwordx4 {v(d,4)}, {v(vt)}, s[4:7], s16 offen sc1'), chk, fail, sleep=sleep)

def gen_k2(A):
    A.label('k2_kernel')
    A('s_cmp_ge_u32 s2, 256')
    A('s_cbranch_scc1 k2_end')
    prologue(A)
    tstamp(A, 0, 2, 3)
    A('s_and_b32 s16, s2, 7')
    A('s_lshr_b32 s15, s2, 3')
    A('s_cmp_lg_u32 s16, 0')
    A('s_cbranch_scc1 k2_worker')
    chain.NROLE = 31
    chain.gen_chain_body(A, 'k2_end', 'k2_end', merged=True, wait_u=lambda: wait_flags(A, 0, 'k2_end', vt=48))
    A.label('k2_worker')
    A('s_mul_i32 s96, s15, 7'); A('s_add_u32 s96, s96, s16'); A('s_sub_u32 s96, s96, 1')
    srd(A, 8, 0, SZ_X); srd(A, 12, 88, SZ_X)
    wsgemm(A, 'U', wid=96, st_flags=' sc1')
    set_flag(A, 0)
    tstamp(A, 1, 2, 3)
    wsgemm(A, 'F1', wid=96, st_flags=' sc1')
    set_flag(A, 1)
    tstamp(A, 2, 2, 3)
    wait_flags(A, 1, 'k2_end')
    tstamp(A, 3, 2, 3)
    phase_f2(A, 96, st=' sc1')
    set_flag(A, 2)
    tstamp(A, 4, 2, 3)
    A('s_cmp_lt_u32 s96, 196')
    A('s_cbranch_scc1 k2_so')
    A('s_sub_u32 s32, s96, 196')
    if not chain.DBG_NOYW: phase_yw(A, 32, 'k2_end')
    A('s_branch k2_end')
    A.label('k2_so')
    wait_flags(A, 2, 'k2_end')
    tstamp(A, 5, 2, 3)
    A('s_mov_b32 s93, 0')
    if chain.DBG_NOITEM: A('s_branch k2_end')
    A('s_mov_b32 s97, s96')
    A.label('k2_item')
    sdivmod(A, 33, 32, 97, 44, 704)
    A('s_cmp_ge_u32 s32, 16')
    A('s_cbranch_scc1 k2_o')
    phase_s(A, 32, 33, 'k2_end', True)
    A('s_branch k2_next')
    A.label('k2_o')
    A('s_sub_u32 s32, s32, 16')
    sdivmod(A, 34, 35, 32, 7, 28)
    A('s_lshl_b32 s33, s33, 2'); A('s_add_u32 s34, s34, s33')
    phase_o(A, 34, 35, 'k2_end', True)
    A.label('k2_next')
    tstamp(A, 6, 2, 3, sreg=93)
    A('s_add_u32 s93, s93, 1')
    A('s_add_u32 s97, s97, 196')
    A('s_cmp_lt_u32 s97, 704')
    A('s_cbranch_scc1 k2_item')
    A.label('k2_end')
    A('s_endpgm')
    return dict(name='k2_kernel', grid=256, block=256, lds=wk2.W_LDS, vgpr=256, sgpr=100, agpr=256)
```

```python
from asmlib import *
from layout import *
from k1 import sdivmod, srd, SZ_X
import struct
f2u = lambda f: struct.unpack('<I', struct.pack('<f', f))[0]
LOG2E = 1.4426950408889634

def prologue(A):
    srd(A, 4, 104, WS_END)
    A('v_lshrrev_b32 v1, 6, v0')
    A('v_and_b32 v0, 63, v0')
    A('v_readfirstlane_b32 s3, v1')
    A('v_lshlrev_b32 v1, 4, v0')
    A('s_waitcnt lgkmcnt(0)')

TS = False
def tstamp(A, slot, va=254, vb=255, sreg=None):
    if not TS: return
    A('s_memrealtime s[98:99]')
    A('s_lshl_b32 s94, s2, 2'); A('s_add_u32 s94, s94, s3'); A('s_lshl_b32 s94, s94, 12'); A(f's_add_u32 s94, s94, {PROF + slot*4}')
    if sreg is not None:
        A(f's_lshl_b32 s95, {s(sreg)}, 2'); A('s_add_u32 s94, s94, s95')
    A('s_waitcnt lgkmcnt(0)')
    A(f'v_mov_b32 {v(va)}, s98'); A(f'v_mov_b32 {v(vb)}, 0')
    A(f'buffer_store_dword {v(va)}, {v(vb)}, s[4:7], s94 offen')

def load_frags(A, regs, soff, tmp_s, flags=''):
    for i, rg in enumerate(regs):
        if i % 4 == 0:
            if i == 0: A(f's_mov_b32 {s(tmp_s)}, {s(soff)}')
            else: A(f's_add_u32 {s(tmp_s)}, {s(tmp_s)}, 4096')
        A(f'buffer_load_dwordx4 {r(rg,4)}, v1, s[4:7], {s(tmp_s)} offen offset:{(i%4)*1024}{flags}')

def silu_bf(A, x, t):
    A(f'v_mul_f32 {v(t)}, 0x{f2u(-LOG2E):08x}, {v(x)}')
    A(f'v_exp_f32 {v(t)}, {v(t)}')
    A('s_nop 0')
    A(f'v_add_f32 {v(t)}, 1.0, {v(t)}')
    A(f'v_rcp_f32 {v(t)}, {v(t)}')
    A('s_nop 0')
    A(f'v_mul_f32 {v(x)}, {v(x)}, {v(t)}')

def wsgemm(A, kind, wid=2, st_flags=''):
    W = [256 + 4*i for i in range(56)]
    ACC, OUT = 16, 48
    XB = [[64 + 4*i for i in range(28)], [176 + 4*i for i in range(20)] + [480 + 4*i for i in range(8)]]
    ncls, nseg = (8, 8) if kind == 'U' else (16, 4)
    sh = 3 if kind == 'U' else 4
    A(f's_and_b32 s16, {s(wid)}, {ncls-1}')
    A(f's_lshr_b32 s17, {s(wid)}, {sh}')
    A('s_lshl_b32 s17, s17, 2')
    A('s_add_u32 s17, s17, s3')
    if kind == 'U':
        sdivmod(A, 22, 23, 17, 14, 112)
        A(f's_mul_i32 s18, s22, {2*28*14*1024}')
        A(f's_mul_i32 s23, s23, {2*14*1024}')
        A('s_add_u32 s18, s18, s23')
        A(f's_add_u32 s18, s18, {NC}')
        A(f's_add_u32 s24, s18, {28*14*1024}')
    else:
        A(f's_mul_i32 s18, s17, {56*1024}')
        A(f's_add_u32 s18, s18, {W13}')
        A(f's_add_u32 s24, s18, {28*1024}')
    xbase = XNP if kind == 'U' else XNF
    A(f's_mul_i32 s19, s16, {28*1024}')
    A(f's_add_u32 s19, s19, {xbase}')
    load_frags(A, XB[0], 19, 20)
    load_frags(A, W[:28], 18, 20)
    load_frags(A, W[28:], 24, 20)
    if kind == 'U':
        A(f's_mul_i32 s21, s16, {16*28*1024}')
        A('s_lshl_b32 s22, s17, 12')
        A('s_add_u32 s21, s21, s22')
        A(f's_add_u32 s21, s21, {UF}')
        dstep = ncls*16*28*1024
    else:
        A(f's_mul_i32 s21, s16, {2*56*1024}')
        A('s_lshl_b32 s22, s17, 10')
        A('s_add_u32 s21, s21, s22')
        A(f's_add_u32 s21, s21, {HF}')
        dstep = ncls*2*56*1024
    nst = 4 if kind == 'U' else 2
    for it in range(nseg):
        xb = XB[it & 1]
        if it+1 < nseg:
            A(f's_add_u32 s19, s19, {ncls*28*1024}')
            load_frags(A, XB[(it+1) & 1], 19, 20)
            A(f's_waitcnt vmcnt(28)')
        else:
            A('s_waitcnt vmcnt(0)')
        for kk in range(14):
            for tl in range(4):
                for tt in range(2):
                    d = ACC + (tl*2+tt)*4
                    c = '0' if kk == 0 else v(d, 4)
                    xw, ww = r(xb[tt*14+kk], 4), r(W[tl*14+kk], 4)
                    if kind == 'U': A(f'v_mfma_f32_16x16x32_bf16 {v(d,4)}, {xw}, {ww}, {c}')
                    else: A(f'v_mfma_f32_16x16x32_bf16 {v(d,4)}, {ww}, {xw}, {c}')
        A.nop(8)
        if kind == 'U':
            for ct in range(2):
                for tt in range(2):
                    o = OUT + 4*(ct*2+tt)
                    da = ACC + ((ct)*2+tt)*4
                    db = ACC + ((2+ct)*2+tt)*4
                    A(f'v_cvt_pk_bf16_f32 {v(o)}, {v(da)}, {v(da+1)}')
                    A(f'v_cvt_pk_bf16_f32 {v(o+1)}, {v(db)}, {v(db+1)}')
                    A(f'v_cvt_pk_bf16_f32 {v(o+2)}, {v(da+2)}, {v(da+3)}')
                    A(f'v_cvt_pk_bf16_f32 {v(o+3)}, {v(db+2)}, {v(db+3)}')
                    A(f'buffer_store_dwordx4 {v(o,4)}, v1, s[4:7], s21 offen offset:{(ct*2+tt)*1024}{st_flags}')
        else:
            for tt in range(2):
                o = OUT + 4*tt
                for ab in range(2):
                    gd = ACC + ((ab*2+0)*2+tt)*4
                    ud = ACC + ((ab*2+1)*2+tt)*4
                    for p in range(2):
                        g0, g1, u0, u1 = gd+2*p, gd+2*p+1, ud+2*p, ud+2*p+1
                        A(f'v_cvt_pk_bf16_f32 v8, {v(g0)}, {v(g1)}')
                        A(f'v_cvt_pk_bf16_f32 v9, {v(u0)}, {v(u1)}')
                        A(f'v_lshlrev_b32 {v(g0)}, 16, v8')
                        A(f'v_and_b32 {v(g1)}, 0xffff0000, v8')
                        A(f'v_lshlrev_b32 {v(u0)}, 16, v9')
                        A(f'v_and_b32 {v(u1)}, 0xffff0000, v9')
                        silu_bf(A, g0, 10); silu_bf(A, g1, 11)
                        A(f'v_cvt_pk_bf16_f32 v8, {v(g0)}, {v(g1)}')
                        A(f'v_lshlrev_b32 {v(g0)}, 16, v8')
                        A(f'v_and_b32 {v(g1)}, 0xffff0000, v8')
                        A(f'v_mul_f32 {v(g0)}, {v(g0)}, {v(u0)}')
                        A(f'v_mul_f32 {v(g1)}, {v(g1)}, {v(u1)}')
                        A(f'v_cvt_pk_bf16_f32 {v(o+2*ab+p)}, {v(g0)}, {v(g1)}')
                if tt: A(f's_add_u32 s22, s21, {56*1024}')
                A(f'buffer_store_dwordx4 {v(o,4)}, v1, s[4:7], {"s22" if tt else "s21"} offen{st_flags}')
        if it+1 < nseg:
            A(f's_add_u32 s21, s21, {dstep}')

def gen_k2(A):
    A.label('k2_kernel')
    A('s_cmp_ge_u32 s2, 224')
    A('s_cbranch_scc1 k2_end')
    prologue(A)
    wsgemm(A, 'U')
    wsgemm(A, 'F1')
    A.label('k2_end')
    A('s_endpgm')
    return dict(name='k2_kernel', grid=224, block=256, lds=0, vgpr=256, sgpr=40, agpr=256)
```

```python
from asmlib import *
from layout import *
from k1 import sdivmod, srd, SZ_X
from wk import prologue, load_frags, silu_bf, f2u, LOG2E, tstamp

RS = 272
SPIN = 400000

def spin_wait(A, issue, ok_cmp, fail, sleep=2, backoff=None):
    L = A.newlabel('sw'); Lok = A.newlabel('swo')
    A(f's_mov_b32 s30, {SPIN}')
    A.label(L)
    issue()
    A('s_waitcnt vmcnt(0)')
    ok_cmp()
    A(f's_cbranch_vccz {Lok}')
    if sleep: A(f's_sleep {sleep}')
    if backoff:
        Lb = A.newlabel('swb')
        A(f's_cmp_gt_u32 s30, {SPIN-backoff[0]}'); A(f's_cbranch_scc1 {Lb}')
        A(f's_sleep {backoff[1]}')
        A.label(Lb)
    A('s_sub_u32 s30, s30, 1')
    A('s_cmp_lg_u32 s30, 0')
    A(f's_cbranch_scc1 {L}')
    A(f's_branch {fail}')
    A.label(Lok)

def wait_hint(A, need, fail, base=HINT, bsel=None):
    L = A.newlabel('wh'); Lok = A.newlabel('who'); Lsh = A.newlabel('whs')
    A('s_and_b32 s28, s96, 15'); A('s_lshl_b32 s28, s28, 7'); A(f's_add_u32 s28, s28, {base}')
    if bsel is not None: A(f's_lshl_b32 s29, {s(bsel)}, 11'); A('s_add_u32 s28, s28, s29')
    A('v_mov_b32 v5, 0')
    A(f's_mov_b32 s30, {SPIN}')
    A.label(L)
    A('s_mov_b64 exec, 1')
    A('buffer_load_dword v4, v5, s[4:7], s28 offen sc1')
    A('s_mov_b64 exec, -1')
    A('s_waitcnt vmcnt(0)')
    A('v_readfirstlane_b32 s29, v4')
    A(f's_cmp_ge_u32 s29, {s(need)}')
    A(f's_cbranch_scc1 {Lok}')
    A('s_add_u32 s29, s29, 2')
    A(f's_cmp_ge_u32 s29, {s(need)}')
    A(f's_cbranch_scc1 {Lsh}')
    A('s_sleep 48')
    A.label(Lsh)
    A('s_sleep 6')
    A('s_sub_u32 s30, s30, 1')
    A('s_cmp_lg_u32 s30, 0')
    A(f's_cbranch_scc1 {L}')
    A(f's_branch {fail}')
    A.label(Lok)

def phase_f2(A, item, st=''):
    sdivmod(A, 16, 17, item, 7, 224)
    ACC = 0
    ACC = 192
    HA = [[(8 + (rt*14+k)*4) if (8+(rt*14+k)*4) < 192 else None for k in range(14)] for rt in range(4)]
    AFR = lambda rt, k: 256 + (rt*14+k)*4
    BFR = lambda T, k: (8 + (T*7+k)*4)
    BF2 = lambda T, k: (120 + (T*7+k)*4) if (120+(T*7+k)*4) < 192 else (480 + (T*7+k-18)*4 if (T*7+k-18) < 8 else None)
    K1_, K2_ = 8, 6
    K1_, K2_ = 9, 5
    A(f's_mul_i32 s18, s16, {4*56*1024}')
    A(f's_mul_i32 s19, s3, {14*1024}')
    A('s_add_u32 s18, s18, s19')
    A(f's_add_u32 s18, s18, {HF}')
    A(f's_mul_i32 s21, s17, {4*56*1024}')
    A('s_add_u32 s21, s21, s19')
    A(f's_add_u32 s21, s21, {W2F}')
    BA = lambda T, k: 8 + (T*7+k)*4
    def BB(T, k):
        i = T*7+k
        return 120 + 4*i if i < 18 else (480 + 4*(i-18) if i < 26 else 8 + 4*(i-26))
    for T in range(4):
        A(f's_add_u32 s22, s21, {T*56*1024}')
        load_frags(A, [BA(T, k) for k in range(7)], 22, 20)
    for rt in range(4):
        A(f's_add_u32 s22, s18, {rt*56*1024}')
        load_frags(A, [AFR(rt, k) for k in range(14)], 22, 20)
    late = []
    for T in range(4):
        A(f's_add_u32 s22, s21, {T*56*1024+7*1024}')
        regs = [BB(T, k) for k in range(7)]
        if T == 3: regs = regs[:5]
        load_frags(A, regs, 22, 20)
    A('s_waitcnt vmcnt(26)')
    for k in range(7):
        for rt in range(4):
            for T in range(4):
                d = ACC + (rt*4+T)*4
                A(f'v_mfma_f32_16x16x32_bf16 {v(d,4)}, {r(AFR(rt,k),4)}, {r(BA(T,k),4)}, {"0" if k == 0 else v(d,4)}')
        if k == 2:
            A(f's_add_u32 s22, s21, {3*56*1024+12*1024}')
            load_frags(A, [BB(3, 5), BB(3, 6)], 22, 20)
    A('s_waitcnt vmcnt(0)')
    for k in range(7):
        for rt in range(4):
            for T in range(4):
                d = ACC + (rt*4+T)*4
                A(f'v_mfma_f32_16x16x32_bf16 {v(d,4)}, {r(AFR(rt,k+7),4)}, {r(BB(T,k),4)}, {v(d,4)}')
    A.nop(8)
    A('v_lshrrev_b32 v2, 4, v0'); A(f'v_mul_u32_u24 v2, {4*RS}, v2')
    A('v_and_b32 v3, 15, v0'); A('v_lshl_add_u32 v2, v3, 3, v2')
    A(f's_mul_i32 s22, s3, {64*RS}'); A('v_add_u32 v2, s22, v2')
    A('s_barrier')
    for rt in range(4):
        A(f'v_add_u32 v3, {rt*16*RS}, v2')
        for rr in range(4):
            for m in range(2):
                d0 = ACC + (rt*4+2*m)*4 + rr; d1 = d0 + 4
                o = (rr*RS + m*128)//4
                A(f'ds_write2_b32 v3, {v(d0)}, {v(d1)} offset0:{o} offset1:{o+1}')
    A('s_waitcnt lgkmcnt(0)')
    A('s_barrier')
    A('s_lshl_b32 s22, s3, 4')
    A('v_lshrrev_b32 v2, 2, v0'); A('v_add_u32 v2, s22, v2')
    A('v_and_b32 v3, 3, v0')
    A(f'v_mul_u32_u24 v4, {RS}, v2'); A('v_lshl_add_u32 v4, v3, 6, v4')
    for w in range(4):
        if w: A(f'v_add_u32 v4, {64*RS}, v4')
        for j in range(4): A(f'ds_read_b128 {v(8+16*w+4*j,4)}, v4 offset:{16*j}')
    A('v_mul_u32_u24 v5, 896, v2'); A('v_lshl_add_u32 v5, v3, 5, v5')
    A(f's_mul_i32 s22, s16, {64*896}'); A('s_lshl_b32 s23, s17, 7'); A('s_add_u32 s22, s22, s23'); A(f's_add_u32 s22, s22, {GF}')
    A('s_waitcnt lgkmcnt(0)')
    for j in range(8):
        A(f'v_pk_add_f32 {v(8+2*j,2)}, {v(8+2*j,2)}, {v(24+2*j,2)}')
        A(f'v_pk_add_f32 {v(40+2*j,2)}, {v(40+2*j,2)}, {v(56+2*j,2)}')
        A(f'v_pk_add_f32 {v(8+2*j,2)}, {v(8+2*j,2)}, {v(40+2*j,2)}')
    for j in range(8):
        a_, b_ = 8+2*j, 9+2*j
        A(f'v_cvt_pk_bf16_f32 v6, {v(a_)}, {v(b_)}')
        A(f'v_lshlrev_b32 {v(a_)}, 16, v6'); A(f'v_and_b32 {v(b_)}, 0xffff0000, v6')
        silu_bf(A, a_, 72); silu_bf(A, b_, 73)
        A(f'v_cvt_pk_bf16_f32 {v(80+j)}, {v(a_)}, {v(b_)}')
    A(f'buffer_store_dwordx4 v[80:83], v5, s[4:7], s22 offen{st}')
    A(f'buffer_store_dwordx4 v[84:87], v5, s[4:7], s22 offen offset:16{st}')

S_STG = 28*1024
def phase_s(A, h_s, qs_s, fail, sync):
    st = ' sc1' if sync else ''
    XP = lambda tt, kk: 256 + (tt*14+kk)*4
    XN = lambda kt, kk: 368 + (kt*14+kk)*4
    TF = lambda P, tt: 144 + (P*2+tt)*4
    DT = 16
    DS = {(0, 0): 32, (0, 1): 36, (1, 1): 40}
    DM = [44, 48]
    WB = [56 + 4*i for i in range(14)]
    A(f's_lshl_b32 s16, {s(qs_s)}, 2'); A('s_add_u32 s16, s16, s3')
    A(f's_mul_i32 s17, s16, {28*1024}')
    A(f's_add_u32 s18, s17, {XNP}')
    if XNF: A(f's_add_u32 s17, s17, {XNF}')
    A(f's_mul_i32 s19, {s(h_s)}, {28*14*1024}')
    A(f's_mul_i32 s21, s3, {7*1024}')
    A('s_add_u32 s19, s19, s21')
    A(f's_add_u32 s19, s19, {MC}')
    NB = 4
    def dma(P):
        for half in range(2):
            A(f's_add_u32 s22, s21, {(P % NB)*S_STG + half*4096}')
            A('s_mov_b32 m0, s22')
            A(f's_add_u32 s23, s19, {P*S_STG + half*4096}')
            for j in range(4 if half == 0 else 3):
                A(f'buffer_load_dwordx4 v1, s[4:7], s23 offen offset:{j*1024} lds')
    A('s_barrier')
    for P in range(3): dma(P)
    load_frags(A, [XP(tt, kk) for tt in range(2) for kk in range(14)], 18, 20)
    load_frags(A, [XN(kt, kk) for kt in range(2) for kk in range(14)], 17, 20)
    for P in range(14):
        if P == 0: A('s_waitcnt vmcnt(0)')
        else:
            later = sum(7 for x in range(P+1, min(P+3, 14)) if x >= 3)
            A(f's_waitcnt vmcnt({later if P >= 3 else 63})') if P >= 3 else None
        A('s_barrier')
        if P+3 < 14: dma(P+3)
        base = (P % NB)*S_STG
        if base >= 32768:
            A(f'v_add_u32 v2, {base}, v1'); ar, ab = 'v2', 0
        else: ar, ab = 'v1', base
        for e in range(2):
            for kk in range(14):
                A(f'ds_read_b128 {v(WB[kk],4)}, {ar} offset:{ab + (e*14+kk)*1024}')
            for kk in range(14):
                A(f's_waitcnt lgkmcnt({13-kk})')
                for tt in range(2):
                    d = DT + (e*2+tt)*4
                    A(f'v_mfma_f32_16x16x32_bf16 {v(d,4)}, {v(WB[kk],4)}, {r(XP(tt,kk),4)}, {"0" if kk == 0 else v(d,4)}')
        A.nop(8)
        for tt in range(2):
            for rr in range(4):
                A(f'v_cvt_pk_bf16_f32 {v(TF(P,tt)+rr)}, {v(DT+tt*4+rr)}, {v(DT+8+tt*4+rr)}')
        A('s_nop 1')
        for (kt, tt), d in DS.items():
            A(f'v_mfma_f32_16x16x32_bf16 {v(d,4)}, {r(XN(kt,P),4)}, {v(TF(P,tt),4)}, {"0" if P == 0 else v(d,4)}')
    A('v_lshrrev_b32 v3, 4, v0'); A('v_lshlrev_b32 v2, 7, v3')
    A('v_and_b32 v4, 7, v0'); A('v_lshl_add_u32 v2, v4, 4, v2')
    A('s_lshl_b32 s17, s16, 13'); A(f's_add_u32 s17, s17, {MEMG2 if sync else MEMG}'); A('s_add_u32 s18, s17, 4096')
    def issue():
        for kk in range(14):
            A(f'buffer_load_dwordx4 {v(WB[kk],4)}, v2, s[4:7], {"s17" if kk < 8 else "s18"} offen offset:{(kk%8)*512}')
    tstamp(A, 100, 4, 5, sreg=93)
    if sync: wait_hint(A, 16, fail)
    tstamp(A, 110, 4, 5, sreg=93)
    issue(); A('s_waitcnt vmcnt(0)')
    tstamp(A, 120, 4, 5, sreg=93)
    for kk in range(14):
        for tt in range(2):
            A(f'v_mfma_f32_16x16x32_bf16 {v(DM[tt],4)}, {v(WB[kk],4)}, {v(TF(kk,tt),4)}, {"0" if kk == 0 else v(DM[tt],4)}')
    A('v_and_b32 v4, 15, v0'); A('v_lshlrev_b32 v5, 2, v3'); A('v_sub_u32 v4, v4, v5')
    A('v_mov_b32 v5, 0xff800000')
    A.nop(6)
    for tt in range(2):
        d = DS[(tt, tt)]
        for rr in range(4):
            A(f'v_cmp_le_i32 vcc, {rr}, v4')
            A('s_nop 1')
            A(f'v_cndmask_b32 {v(d+rr)}, v5, {v(d+rr)}, vcc')
    A(f's_mov_b32 s31, 0x{f2u(LOG2E):08x}')
    def xred(reg, tmp, op):
        for sw in ('v_permlane16_swap_b32', 'v_permlane32_swap_b32'):
            A(f'v_mov_b32 {v(tmp)}, {v(reg)}'); A('s_nop 1')
            A(f'{sw} {v(reg)}, {v(tmp)}'); A('s_nop 0')
            A(f'{op} {v(reg)}, {v(reg)}, {v(tmp)}')
    A('v_and_b32 v6, 8, v0'); A('v_lshlrev_b32 v6, 7, v6')
    A('v_and_b32 v7, 7, v0'); A('v_lshl_add_u32 v6, v7, 4, v6')
    A('v_lshrrev_b32 v7, 1, v6') ; A('v_and_b32 v7, 0x200, v7'); A('v_and_b32 v8, 0x70, v6'); A('v_or_b32 v7, v7, v8')
    A('v_and_b32 v8, 1, v3'); A('v_lshl_add_u32 v7, v8, 7, v7')
    A('v_lshl_add_u32 v6, v8, 3, v6')
    A('v_lshrrev_b32 v8, 1, v3'); A('v_lshl_add_u32 v6, v8, 8, v6')
    A(f's_lshr_b32 s17, {s(h_s)}, 1'); A('s_lshl_b32 s18, s16, 3'); A('s_add_u32 s17, s17, s18'); A('s_lshl_b32 s17, s17, 12')
    A(f's_and_b32 s18, {s(h_s)}, 1'); A('s_lshl_b32 s19, s18, 7'); A('s_add_u32 s17, s17, s19'); A(f's_add_u32 s17, s17, {PXX}')
    A(f's_lshr_b32 s19, {s(h_s)}, 2'); A('s_lshl_b32 s21, s16, 2'); A('s_add_u32 s19, s19, s21'); A('s_lshl_b32 s19, s19, 11')
    A('s_lshl_b32 s18, s18, 3'); A('s_add_u32 s19, s19, s18')
    A(f's_and_b32 s18, {s(h_s)}, 2'); A('s_lshl_b32 s18, s18, 7'); A('s_add_u32 s19, s19, s18'); A(f's_add_u32 s19, s19, {PXM}')
    for tt in range(2):
        xs = [DS[(0, tt)]] + ([DS[(1, 1)]] if tt else [])
        vals = [DM[tt]+rr for rr in range(4)] + [d+rr for d in xs for rr in range(4)]
        A(f'v_max3_f32 v9, {v(vals[0])}, {v(vals[1])}, {v(vals[2])}')
        i = 3
        while i < len(vals):
            if i+1 < len(vals): A(f'v_max3_f32 v9, v9, {v(vals[i])}, {v(vals[i+1])}'); i += 2
            else: A(f'v_max_f32 v9, v9, {v(vals[i])}'); i += 1
        xred(9, 10, 'v_max_f32')
        A(f'v_mul_f32 v9, 0x{f2u(-LOG2E):08x}, v9')
        for x in vals: A(f'v_fma_f32 {v(x)}, {v(x)}, s31, v9')
        for x in vals: A(f'v_exp_f32 {v(x)}, {v(x)}')
        A('s_nop 0')
        A(f'v_add_f32 v9, {v(vals[0])}, {v(vals[1])}'); A(f'v_add_f32 v10, {v(vals[2])}, {v(vals[3])}')
        A('v_add_f32 v9, v9, v10'); A('v_mul_f32 v9, 0.5, v9')
        for x in vals[4:]: A(f'v_add_f32 v9, v9, {v(x)}')
        xred(9, 10, 'v_add_f32')
        A('v_rcp_f32 v9, v9'); A('s_nop 0')
        for x in vals: A(f'v_mul_f32 {v(x)}, {v(x)}, v9')
        for kt in range(2):
            if kt < len(xs):
                d = xs[kt]
                A(f'v_cvt_pk_bf16_f32 v12, {v(d)}, {v(d+1)}'); A(f'v_cvt_pk_bf16_f32 v13, {v(d+2)}, {v(d+3)}')
            else:
                A('v_mov_b32 v12, 0'); A('v_mov_b32 v13, 0')
            A(f'buffer_store_dwordx2 v[12:13], v6, s[4:7], s17 offen offset:{tt*2048+kt*512}{st}')
            A('s_nop 1')
        d = DM[tt]
        A(f'v_cvt_pk_bf16_f32 v14, {v(d)}, {v(d+1)}'); A(f'v_cvt_pk_bf16_f32 v15, {v(d+2)}, {v(d+3)}')
        A('s_mov_b32 exec_hi, 0')
        A(f'buffer_store_dwordx2 v[14:15], v7, s[4:7], s19 offen offset:{tt*1024}{st}')
        A('s_mov_b32 exec_hi, -1')
        A('s_nop 1')
    if sync:
        A('s_waitcnt vmcnt(0)')
        A('v_mov_b32 v12, 1')
        A('s_lshl_b32 s17, s16, 6'); A(f's_lshl_b32 s18, {s(h_s)}, 2'); A('s_add_u32 s17, s17, s18'); A(f's_add_u32 s17, s17, {PFL}')
        A('v_mov_b32 v13, 0')
        A('buffer_store_dword v12, v13, s[4:7], s17 offen sc1')

def phase_o(A, seg_s, b_s, fail, sync):
    ld = ''
    UB = lambda ml, hpl, ct: 16 + ((ml*2+hpl)*2+ct)*8
    YB = lambda ml, ct: 80 + (ml*2+ct)*4
    PX = lambda oc, hpl: 96 + (oc*2+hpl)*4
    PMr = lambda oc: 128 + oc*4
    ACC = lambda oc, ml, ct: 144 + ((oc*2+ml)*2+ct)*4
    XG = 208
    A('v_and_b32 v3, 8, v0'); A('v_cmp_eq_u32 vcc, 0, v3')
    A('v_mov_b32 v2, 0xeeee'); A('v_mov_b32 v3, 0x4444'); A('v_cndmask_b32 v2, v2, v3, vcc')
    A(f's_lshl_b32 s16, {s(seg_s)}, 3'); A('s_lshl_b32 s17, s3, 1'); A('s_add_u32 s16, s16, s17')
    A('s_mul_i32 s18, s16, 14'); A(f's_lshl_b32 s17, {s(b_s)}, 1'); A('s_add_u32 s18, s18, s17'); A('s_lshl_b32 s18, s18, 12')
    A(f's_add_u32 s18, s18, {UF}')
    for hpl in range(2):
        for ml in range(2):
            A(f's_add_u32 s19, s18, {(hpl*14+ml)*4096}')
            for j in range(4):
                A(f'buffer_load_dwordx4 {v(UB(ml,hpl,0)+4*j,4)}, v1, s[4:7], s19 offen offset:{j*1024}{ld}')
    A('s_lshl_b32 s22, s3, 3')
    A('v_lshrrev_b32 v4, 3, v0'); A('v_add_u32 v4, s22, v4')
    A('v_and_b32 v5, 7, v0')
    A('v_mul_u32_u24 v6, 896, v4'); A('v_lshl_add_u32 v6, v5, 4, v6')
    A(f's_mul_i32 s22, {s(seg_s)}, {32*896}'); A(f's_lshl_b32 s23, {s(b_s)}, 7'); A('s_add_u32 s22, s22, s23')
    A(f's_add_u32 s23, s22, {GF}')
    A(f'buffer_load_dwordx4 {v(XG,4)}, v6, s[8:11], s22 offen')
    A(f'buffer_load_dwordx4 {v(XG+4,4)}, v6, s[4:7], s23 offen{ld}')
    for k in range(32): A(f'v_mov_b64 {v(144+2*k,2)}, 0')
    for k in range(8): A(f'v_mov_b64 {v(128+2*k,2)}, 0')
    if sync:
        Lw = A.newlabel('ow')
        A('s_cmp_lg_u32 s3, 0'); A(f's_cbranch_scc1 {Lw}')
        A('v_mov_b32 v11, v4'); A('v_mov_b32 v12, v5')
        A(f's_or_b32 s27, {s(seg_s)}, 1')
        wait_hint(A, 27, fail)
        A('v_mov_b32 v4, v11'); A('v_mov_b32 v5, v12')
        A('v_and_b32 v7, 15, v0'); A('v_lshlrev_b32 v7, 2, v7')
        A(f's_lshl_b32 s19, {s(seg_s)}, 6'); A(f's_add_u32 s19, s19, {PFL}'); A('v_add_u32 v7, s19, v7')
        A('v_mov_b32 v8, 1')
        A(f's_lshr_b32 s19, {s(seg_s)}, 1'); A('s_mul_i32 s19, s19, 7'); A(f's_add_u32 s19, s19, {s(b_s)}'); A('s_lshl_b32 s19, s19, 7')
        A(f's_add_u32 s19, s19, {YFL}')
        A('v_and_b32 v9, 15, v0'); A('v_lshlrev_b32 v9, 2, v9'); A('v_add_u32 v9, s19, v9')
        import chain
        A(f'v_cmp_lt_u32 vcc, {63 if chain.DBG_NOYF else 15}, v0'); A('s_nop 1')
        A('v_cndmask_b32 v7, v7, v9, vcc')
        A('s_mov_b32 exec_hi, 0')
        A('s_mov_b64 vcc, 0')
        spin_wait(A, lambda: A('buffer_load_dword v9, v7, s[4:7], 0 offen sc1'), lambda: A('v_cmp_gt_u32 vcc, v8, v9'), Lw+'f', sleep=6, backoff=(8, 100))
        A('s_mov_b32 exec_hi, -1')
        A(f's_branch {Lw}')
        A.label(Lw+'f')
        A('s_mov_b32 exec_hi, -1')
        A(f's_branch {fail}')
        A.label(Lw)
        A('s_barrier')
    A('s_lshl_b32 s18, s16, 12'); A(f's_add_u32 s18, s18, {PXX}'); A('s_add_u32 s19, s18, 4096')
    for hpl in range(2):
        for oc in range(4):
            A(f'buffer_load_dwordx4 {v(PX(oc,hpl),4)}, v1, s[4:7], {"s19" if hpl else "s18"} offen offset:{oc*1024}{ld}')
    A('v_lshrrev_b32 v7, 4, v0'); A('v_lshlrev_b32 v7, 7, v7'); A('v_and_b32 v8, 7, v0'); A('v_lshl_add_u32 v7, v8, 4, v7')
    A(f's_lshl_b32 s18, {s(seg_s)}, 2'); A('s_add_u32 s18, s18, s3'); A('s_lshl_b32 s18, s18, 11'); A(f's_add_u32 s18, s18, {PXM}')
    A('s_mov_b32 exec_lo, 0x00ff00ff'); A('s_mov_b32 exec_hi, 0x00ff00ff')
    for oc in range(4):
        A(f'buffer_load_dwordx4 {v(PMr(oc),4)}, v7, s[4:7], s18 offen offset:{oc*512}{ld}')
    A('s_mov_b64 exec, -1')
    A(f's_mul_i32 s18, {s(seg_s)}, 14'); A('s_add_u32 s18, s18, s17'); A('s_lshl_b32 s18, s18, 2'); A('s_add_u32 s18, s18, s3'); A('s_lshl_b32 s18, s18, 11')
    A(f's_add_u32 s18, s18, {YG}'); A('s_add_u32 s19, s18, 8192')
    for ml in range(2):
        for ct in range(2):
            A(f'buffer_load_dwordx4 {v(YB(ml,ct),4)}, v1, s[4:7], {"s19" if ml else "s18"} offen offset:{ct*1024}{ld}')
    A('s_waitcnt vmcnt(8)')
    for oc in range(4):
        for hpl in range(2):
            for ml in range(2):
                for ct in range(2):
                    A(f'v_smfmac_f32_16x16x64_bf16 {v(ACC(oc,ml,ct),4)}, {v(PX(oc,hpl),4)}, {v(UB(ml,hpl,ct),8)}, v2')
    A('s_waitcnt vmcnt(0)')
    for oc in range(4):
        for ml in range(2):
            for ct in range(2):
                d = ACC(oc, ml, ct)
                A(f'v_mfma_f32_16x16x32_bf16 {v(d,4)}, {v(PMr(oc),4)}, {v(YB(ml,ct),4)}, {v(d,4)}')
    A('v_lshrrev_b32 v7, 5, v0'); A(f'v_mul_u32_u24 v7, {32*RS}, v7')
    A('v_and_b32 v8, 16, v0'); A(f'v_mul_u32_u24 v8, {RS//4}, v8'); A('v_add_u32 v7, v7, v8')
    A('v_and_b32 v8, 15, v0'); A('v_lshl_add_u32 v7, v8, 3, v7')
    A(f's_mul_i32 s18, s3, {64*RS}'); A('v_add_u32 v7, s18, v7')
    A('s_barrier')
    for oc in range(4):
        A(f'v_add_u32 v8, {oc*8*RS}, v7')
        for rr in range(4):
            for ml in range(2):
                o = (rr*RS + ml*128)//4
                A(f'ds_write2_b32 v8, {v(ACC(oc,ml,0)+rr)}, {v(ACC(oc,ml,1)+rr)} offset0:{o} offset1:{o+1}')
    A('s_waitcnt lgkmcnt(0)')
    A('s_barrier')
    A(f'v_mul_u32_u24 v7, {RS}, v4'); A('v_lshl_add_u32 v7, v5, 5, v7')
    for sl in range(8):
        if sl and sl % 2 == 0: A(f'v_add_u32 v7, {64*RS}, v7')
        for j in range(2): A(f'ds_read_b128 {v(16+8*sl+4*j,4)}, v7 offset:{(sl&1)*32*RS+16*j}')
    A('s_waitcnt lgkmcnt(0)')
    for step in (1, 2, 4):
        for sl in range(0, 8, 2*step):
            for j in range(4):
                A(f'v_pk_add_f32 {v(16+8*sl+2*j,2)}, {v(16+8*sl+2*j,2)}, {v(16+8*(sl+step)+2*j,2)}')
    for j in range(4):
        a_, b_ = 16+2*j, 17+2*j
        A(f'v_cvt_pk_bf16_f32 v8, {v(a_)}, {v(b_)}')
        A(f'v_lshlrev_b32 {v(a_)}, 16, v8'); A(f'v_and_b32 {v(b_)}, 0xffff0000, v8')
        A(f'v_lshlrev_b32 v9, 16, {v(XG+4+j)}'); A(f'v_and_b32 v10, 0xffff0000, {v(XG+4+j)}')
        A(f'v_mul_f32 {v(a_)}, {v(a_)}, v9'); A(f'v_mul_f32 {v(b_)}, {v(b_)}, v10')
        A(f'v_cvt_pk_bf16_f32 v8, {v(a_)}, {v(b_)}')
        A(f'v_lshlrev_b32 {v(a_)}, 16, v8'); A(f'v_and_b32 {v(b_)}, 0xffff0000, v8')
        A(f'v_lshlrev_b32 v9, 16, {v(XG+j)}'); A(f'v_and_b32 v10, 0xffff0000, {v(XG+j)}')
        A(f'v_add_f32 {v(a_)}, {v(a_)}, v9'); A(f'v_add_f32 {v(b_)}, {v(b_)}, v10')
        A(f'v_cvt_pk_bf16_f32 {v(24+j)}, {v(a_)}, {v(b_)}')
    A('buffer_store_dwordx4 v[24:27], v6, s[12:15], s22 offen')

def phase_yw(A, gq, fail, sync=True):
    W = [256 + 4*i for i in range(56)]
    AFr = [16 + 4*k for k in range(14)]
    ACC = 80; OUT = 96
    A(f's_lshl_b32 s17, {s(gq)}, 2'); A('s_add_u32 s17, s17, s3')
    sdivmod(A, 22, 23, 17, 14, 112)
    A(f's_mul_i32 s18, s22, {2*28*14*1024}'); A(f's_mul_i32 s19, s23, {2*14*1024}')
    A('s_add_u32 s18, s18, s19'); A(f's_add_u32 s18, s18, {NC}'); A(f's_add_u32 s24, s18, {28*14*1024}')
    load_frags(A, W[:28], 18, 20); load_frags(A, W[28:], 24, 20)
    A('v_and_b32 v2, 8, v0'); A('v_lshlrev_b32 v2, 10, v2')
    A('v_and_b32 v3, 7, v0'); A('v_lshl_add_u32 v2, v3, 4, v2')
    A('v_lshrrev_b32 v3, 5, v0'); A('v_lshl_add_u32 v2, v3, 7, v2')
    A('v_and_b32 v6, 16, v0'); A('v_lshrrev_b32 v6, 1, v6'); A('v_add_u32 v2, v2, v6')
    A(f'v_mul_u32_u24 v3, {14*8192}, v3')
    A('v_and_b32 v6, 31, v0'); A('v_lshl_add_u32 v3, v6, 4, v3')
    A('s_lshl_b32 s21, s23, 2'); A('s_lshr_b32 s19, s22, 1'); A('s_add_u32 s21, s21, s19'); A('s_lshl_b32 s21, s21, 11')
    A('s_and_b32 s19, s22, 1'); A('s_lshl_b32 s19, s19, 9'); A('s_add_u32 s21, s21, s19'); A(f's_add_u32 s21, s21, {YG}')
    A('s_lshr_b32 s26, s23, 1'); A('s_lshl_b32 s26, s26, 7'); A('s_lshl_b32 s19, s22, 3'); A('s_add_u32 s26, s26, s19')
    A('s_and_b32 s19, s23, 1'); A('s_lshl_b32 s19, s19, 2'); A('s_add_u32 s26, s26, s19'); A(f's_add_u32 s26, s26, {YFL}')
    A(f's_mov_b32 s24, {MEMG2 if sync else MEMG}')
    A('s_mov_b32 s27, 1')
    A('s_mov_b32 s31, 0')
    A('s_mov_b32 s23, 0')
    A('v_mov_b32 v7, 0')
    def flag():
        A('v_mov_b32 v6, s23'); A('s_mov_b64 exec, 1')
        A('buffer_store_dword v6, v7, s[4:7], s26 offen sc1'); A('s_mov_b64 exec, -1')
        A('s_mov_b32 s23, 0'); A('s_add_u32 s26, s26, 896')
    L = A.newlabel('yw'); Lh = A.newlabel('ywh'); Lnf = A.newlabel('ywn'); Ld = A.newlabel('ywd')
    A.label(L)
    if sync:
        A('s_cmp_ge_u32 s31, s27'); A(f's_cbranch_scc1 {Lh}')
        wait_hint(A, 27, fail)
        A('s_mov_b32 s31, s29')
        A.label(Lh)
    A('s_add_u32 s25, s24, 4096')
    for kk in range(14):
        for pc in range(2):
            A(f'buffer_load_dwordx2 {v(AFr[kk]+2*pc,2)}, v2, s[4:7], {"s24" if kk < 8 else "s25"} offen offset:{(kk%8)*512+pc*256}')
    for kk in range(14):
        A(f's_waitcnt vmcnt({2*(13-kk)})')
        for tl in range(4):
            d = ACC + 4*tl
            A(f'v_mfma_f32_16x16x32_bf16 {v(d,4)}, {v(AFr[kk],4)}, {r(W[tl*14+kk],4)}, {"0" if kk == 0 else v(d,4)}')
    if sync:
        A('s_cmp_eq_u32 s23, 0'); A(f's_cbranch_scc1 {Lnf}')
        flag()
        A.label(Lnf)
    A.nop(8)
    for ct in range(2):
        o = OUT + 4*ct
        for hs in range(2):
            d = ACC + 4*(hs*2+ct)
            A(f'v_cvt_pk_bf16_f32 {v(o+2*hs)}, {v(d)}, {v(d+1)}'); A(f'v_cvt_pk_bf16_f32 {v(o+2*hs+1)}, {v(d+2)}, {v(d+3)}')
        A(f'buffer_store_dwordx4 {v(o,4)}, v3, s[4:7], s21 offen offset:{ct*1024}{" sc1" if sync else ""}')
    A('s_add_u32 s24, s24, 16384')
    A(f's_add_u32 s21, s21, {2*14*8192}')
    A('s_add_u32 s27, s27, 2')
    if sync:
        A('s_lshr_b32 s23, s27, 1')
        A('s_cmp_ge_u32 s31, s27'); A(f's_cbranch_scc1 {Ld}')
        A('s_waitcnt vmcnt(0)')
        flag()
        A.label(Ld)
    tstamp(A, 16, 8, 9, sreg=27)
    A('s_cmp_lt_u32 s27, 64')
    A(f's_cbranch_scc1 {L}')

W_LDS = 4*S_STG
def gen_k4(A):
    A.label('k4_kernel'); A('s_cmp_ge_u32 s2, 224'); A('s_cbranch_scc1 k4_end')
    prologue(A); phase_f2(A, 2)
    A.label('k4_end'); A('s_endpgm')
    return dict(name='k4_kernel', grid=224, block=256, lds=W_LDS, vgpr=256, sgpr=48, agpr=256)
def gen_k5(A):
    A.label('k5_kernel'); A('s_cmp_ge_u32 s2, 256'); A('s_cbranch_scc1 k5_end')
    prologue(A)
    A('s_and_b32 s32, s2, 15'); A('s_lshr_b32 s33, s2, 4')
    phase_s(A, 32, 33, 'k5_end', False)
    A.label('k5_end'); A('s_endpgm')
    return dict(name='k5_kernel', grid=256, block=256, lds=W_LDS, vgpr=256, sgpr=48, agpr=256)
def gen_k6(A):
    A.label('k6_kernel'); A('s_cmp_ge_u32 s2, 448'); A('s_cbranch_scc1 k6_end')
    srd(A, 8, 0, SZ_X); srd(A, 12, 88, SZ_X)
    prologue(A)
    sdivmod(A, 32, 33, 2, 7, 448)
    phase_o(A, 32, 33, 'k6_end', False)
    A.label('k6_end'); A('s_endpgm')
    return dict(name='k6_kernel', grid=448, block=256, lds=W_LDS, vgpr=256, sgpr=48, agpr=0)
```

```python
import sys
from gen import build
from k1 import gen_k1
import chain, mega, wk
for kv in sys.argv[2:]:
    k,val=kv.split('=')
    if k=='TS': wk.TS=True
    else: setattr(chain,k,eval(val))
build([mega.gen_k2] if mega.FUSED else [gen_k1, mega.gen_k2], sys.argv[1])
```

```python
from asmlib import *
from layout import *
from k1 import sdivmod, srd
from wk import prologue, load_frags, f2u, LOG2E, tstamp

STG, XB, XS_ = 0, 8192, 576
RED, WL = 8192, 16384
CHAIN_LDS = WL + 4*14*1024
SPIN = 200000
NSTEP = 63
PROFILE = False
EWPOS = 0
QUICK = False
DBG_NOYW = 0
DBG_NOYF = 0
WBSTEP = 4
WBLAST = 2
NROLE = 30
DBG_NOITEM = DBG_PLAIN = 0
DBG_U0 = DBG_X0 = DBG_NOY = 0
BDEL = 8
STAG = 24
EWM_POS = 0

def stamp(A, i):
    if PROFILE: A(f's_memrealtime {s(50+2*i,2)}')
def stamp_flush(A, n, tmp, tmp2):
    if not PROFILE: return
    A('s_waitcnt lgkmcnt(0)')
    for i in range(n): A(f'v_writelane_b32 {v(tmp)}, {s(50+2*i)}, {i}')
    A(f'v_mbcnt_lo_u32_b32 {v(tmp2)}, -1, 0')
    A(f'v_lshlrev_b32 {v(tmp2)}, 2, {v(tmp2)}')
    A('s_lshl_b32 s48, s20, 6')
    A('s_add_u32 s48, s48, s49')
    A('s_mov_b64 s[68:69], exec')
    A('s_mov_b64 exec, 0xffff')
    A(f'buffer_store_dword {v(tmp)}, {v(tmp2)}, s[4:7], s48 offen')
    A('s_mov_b64 exec, s[68:69]')
def stamp_init(A):
    if not PROFILE: return
    A('s_lshl_b32 s49, s15, 2'); A('s_add_u32 s49, s49, s3'); A('s_lshl_b32 s49, s49, 12')
    A(f's_add_u32 s49, s49, {PROF}')

class Lds:
    def __init__(self, A): self.A = A; self.q = []
    def op(self, name, ins): self.A(ins); self.q.append(name)
    def need(self, name):
        if name not in self.q: return
        i = self.q.index(name)
        n = len(self.q) - 1 - i
        self.A(f's_waitcnt lgkmcnt({min(n,15)})')
        self.q = self.q[i+1:] if n <= 15 else self.q
    def drain(self):
        self.A('s_waitcnt lgkmcnt(0)'); self.q = []

def smf(A, d, a_, b):
    A(f'v_smfmac_f32_16x16x64_bf16 {v(d,4)}, {r(a_,4)}, {r(b,8)}, v2')

NF = 2
def common_setup(A):
    A('v_and_b32 v11, 8, v0')
    A('v_cmp_eq_u32 vcc, 0, v11')
    A('v_mov_b32 v2, 0xeeee')
    A('v_mov_b32 v11, 0x4444')
    A('v_cndmask_b32 v2, v2, v11, vcc')
    A('v_lshrrev_b32 v11, 4, v0'); A('v_lshlrev_b32 v8, 7, v11')
    A('v_and_b32 v11, 7, v0'); A('v_lshl_add_u32 v8, v11, 4, v8')
    A('s_mul_i32 s16, s3, 112')
    A('v_add_u32 v3, s16, v0'); A('v_lshlrev_b32 v3, 4, v3')
    A('v_min_u32 v4, 47, v0'); A('v_add_u32 v4, s16, v4'); A('v_add_u32 v4, 64, v4'); A('v_lshlrev_b32 v4, 4, v4')
    A('v_min_u32 v5, 13, v0'); A('v_lshlrev_b32 v5, 2, v5')
    A(f's_mov_b32 s40, {EWM}')
    A(f's_mov_b32 s41, {EWP}')
    A('s_lshl_b32 s16, s15, 8')
    A('s_add_u32 s46, s40, s16')
    A('s_add_u32 s47, s41, s16')
    A('s_mov_b64 s[42:43], 0xffff')

def step_addr(A):
    A('s_and_b32 s21, s20, 3')
    A(f's_lshl_b32 s24, s21, 14')
    A(f's_add_u32 s24, s24, {MEMR}')
    A('s_add_u32 s25, s24, 8192')
    A(f's_lshl_b32 s26, s21, 15')
    A(f's_add_u32 s26, s26, {PR}')
    A('s_add_u32 s45, s26, 16384')
    A('s_xor_b32 s22, s21, 2')
    A(f's_lshl_b32 s27, s22, 15')
    A(f's_add_u32 s27, s27, {PR}')
    A('s_add_u32 s44, s20, 1')
    A('s_and_b32 s22, s44, 3')
    A(f's_lshl_b32 s28, s22, 14')
    A(f's_add_u32 s28, s28, {MEMR}')
    A('s_xor_b32 s22, s22, 2')
    A(f's_lshl_b32 s29, s22, 14')
    A(f's_add_u32 s29, s29, {MEMR}')

def store_flag(A, voff, base, st, tmp):
    A(f'v_mov_b32 {v(tmp)}, s44')
    if base == 's41': A('s_mov_b32 exec_lo, 0')
    A(f'buffer_store_dword {v(tmp)}, {v(voff)}, s[4:7], {base} offen{st}')
    if base == 's41': A('s_mov_b32 exec_lo, -1')

def wait_flag(A, voff, base, want, regs, fail, poller):
    nf = NF
    Lb = A.newlabel('wfb')
    if poller is not None:
        L = A.newlabel('wf'); Lok = A.newlabel('wfo')
        A(f's_cmp_lg_u32 s3, {poller}')
        A(f's_cbranch_scc1 {Lb}')
        A(f's_mov_b32 s30, {SPIN}')
        A('s_mov_b64 exec, s[42:43]')
        def issue(k): A(f'buffer_load_dword {v(regs[k])}, {v(voff)}, s[4:7], {base} offen offset:{k*128} sc1')
        for k in range(nf-1):
            issue(k); A.nop(52//nf)
        A.label(L)
        for k in range(nf):
            issue((k+nf-1) % nf)
            A(f's_waitcnt vmcnt({nf-1})')
            A(f'v_cmp_gt_u32 vcc, {want}, {v(regs[k])}')
            A(f's_cbranch_vccz {Lok}')
        A('s_sub_u32 s30, s30, 1')
        A('s_cmp_lg_u32 s30, 0')
        A(f's_cbranch_scc1 {L}')
        A('s_mov_b64 exec, -1')
        A(f's_branch {fail}')
        A.label(Lok)
        A('s_mov_b64 exec, -1')
    A.label(Lb)
    A('s_barrier')

def poll_mem(A, sets, fail):
    L = A.newlabel('pm'); Lok = A.newlabel('pmo')
    def issue(k):
        so = 's24' if k == 0 else 's25'
        A(f'buffer_load_dwordx4 {v(sets[k],4)}, v3, s[4:7], {so} offen sc1')
        A(f'buffer_load_dwordx4 {v(sets[k]+4,4)}, v4, s[4:7], {so} offen sc1')
    def check(k):
        b = sets[k]
        A(f'ds_write_b128 v3, {v(b,4)}')
        A(f'ds_write_b128 v4, {v(b+4,4)}')
        A(f'v_max3_u32 v0, {v(b)}, {v(b+2)}, {v(b+4)}')
        A(f'v_max_u32 v0, v0, {v(b+6)}')
        A('v_cmp_eq_u32 vcc, -1, v0')
        A(f's_cbranch_vccz {Lok}')
    A(f's_mov_b32 s30, {SPIN}')
    if len(sets) == 1:
        A.label(L)
        issue(0); A('s_waitcnt vmcnt(0)'); check(0)
    else:
        issue(0)
        A.nop(STAG)
        A.label(L)
        issue(1); A('s_waitcnt vmcnt(2)'); check(0)
        issue(0); A('s_waitcnt vmcnt(2)'); check(1)
    A('s_sub_u32 s30, s30, 1')
    A('s_cmp_lg_u32 s30, 0')
    A(f's_cbranch_scc1 {L}')
    A(f's_branch {fail}')
    A.label(Lok)
    stamp(A, 0)
    A('s_waitcnt lgkmcnt(0)')
    A('s_barrier')
    stamp(A, 1)

def post_paired(d0, d1, xreg, xoff, t):
    I = [f'v_cvt_pk_bf16_f32 {v(t+rr)}, {v(d0+rr)}, {v(d1+rr)}' for rr in range(4)]
    W = [f'ds_write_b32 {v(xreg)}, {v(t+rr)} offset:{xoff+16*rr}' for rr in range(4)]
    return I, W
def post_single(d, xreg, xoff):
    I = [f'v_permlane32_swap_b32 {v(d)}, {v(d+1)}', f'v_permlane32_swap_b32 {v(d+2)}, {v(d+3)}',
         f'v_cvt_pk_bf16_f32 {v(d)}, {v(d)}, {v(d+1)}', f'v_cvt_pk_bf16_f32 {v(d+2)}, {v(d+2)}, {v(d+3)}']
    W = [f'ds_write_b32 {v(xreg)}, {v(d)} offset:{xoff}', f'ds_write_b32 {v(xreg)}, {v(d+2)} offset:{xoff+32}']
    return I, W

def x_addrs(A):
    A('v_and_b32 v11, 12, v0'); A('v_mul_u32_u24 v9, 36, v11')
    A('v_and_b32 v11, 3, v0');  A('v_lshl_add_u32 v9, v11, 2, v9')
    A('v_and_b32 v11, 16, v0'); A('v_lshl_add_u32 v9, v11, 2, v9')
    A(f's_mul_i32 s16, s3, {2*XS_}'); A(f's_add_u32 s16, s16, {XB}')
    A('v_add_u32 v9, s16, v9')
    A('v_lshrrev_b32 v11, 5, v0')
    A('v_lshl_add_u32 v10, v11, 4, v9')
    A(f'v_mul_u32_u24 v11, {XS_}, v11')
    A('v_add_u32 v9, v9, v11')

def gen_score(A, st, tag, fail, done):
    Lfin = f'sc_fin_{tag}'
    A('s_cmp_eq_u32 s3, 3')
    A(f's_cbranch_scc1 {Lfin}')
    ACC = [12, 16, 20, 24]
    SL = [28 + 4*i for i in range(9)]
    W = lambda tl, p: 64 + (tl*14+p)*8
    Lloop = f'sc_loop_{tag}'
    A('s_mov_b32 s20, 0')
    A.label(Lloop)
    step_addr(A)
    for k in range(8): A(f'v_mov_b64 {v(12+2*k,2)}, 0')
    wait_flag(A, 5, 's46', 's20', [SL[0]+k for k in range(4)], fail, 0)
    poll_mem(A, [SL[0], SL[2]], fail)
    Q = Lds(A)
    def rd(Q, p, slot):
        Q.op(('r', p), f'ds_read_b128 {v(SL[slot],4)}, v8 offset:{p*512}')
    slot = {}
    for p in range(5): slot[p] = 4+p; rd(Q, p, 4+p)
    for p in range(14):
        Q.need(('r', p))
        smf(A, ACC[0], SL[slot[p]], W(0, p)); smf(A, ACC[1], SL[slot[p]], W(1, p))
        if p == 1:
            A('s_waitcnt vmcnt(0)')
            for pp in range(5, 9): slot[pp] = pp-5; rd(Q, pp, pp-5)
        if 1 <= p < 6: slot[p+8] = slot.pop(p-1); rd(Q, p+8, slot[p+8])
    def phase(tl, order, rer, I, Wr):
        fill = [('v', x) for x in I] + [('w', x) for x in Wr] + [('n', None)]*BDEL + [('b', None)]
        rer = list(rer)
        for n, p in enumerate(order):
            Q.need(('r', p))
            smf(A, ACC[tl], SL[slot[p]], W(tl, p))
            if rer:
                pn = rer.pop(0); slot[pn] = slot.pop(p); rd(Q, pn, slot[pn])
            if n >= 4:
                for _ in range(2):
                    if not fill: break
                    kind, x = fill.pop(0)
                    if kind == 'v': A(x)
                    elif kind == 'w': Q.op('w', x)
                    elif kind == 'n': pass
                    else: Q.drain(); A('s_barrier')
        assert not fill, fill
    I, Wr = post_paired(ACC[0], ACC[1], 9, 0, ACC[0])
    phase(2, [5, 6, 7, 8, 9, 10, 11, 12, 13, 0, 1, 2, 3, 4], [0, 1, 2, 3, 4], I, Wr)
    stamp(A, 2)
    I, Wr = post_single(ACC[2], 10, 8*XS_)
    phase(3, [10, 11, 12, 13, 0, 1, 2, 3, 4, 5, 6, 7, 8, 9], [5, 6, 7, 8, 9], I, Wr)
    stamp(A, 3)
    A.nop(8)
    I, Wr = post_single(ACC[3], 10, 9*XS_)
    for x in I + Wr: A(x)
    A('s_waitcnt lgkmcnt(0)')
    A('s_barrier')
    stamp(A, 4); stamp_flush(A, 5, 0, 1)
    A('s_add_u32 s20, s20, 1')
    A(f's_cmp_lt_u32 s20, {NSTEP}')
    A(f's_cbranch_scc1 {Lloop}')
    A(f's_branch {done}')

    A.label(Lfin)
    ACC = [16, 20]; DX, DM = 24, 28
    PS = [32, 48]
    AF = [64 + 4*p for p in range(14)]
    A2 = [120 + 4*i for i in range(4)]
    T = 136
    XSR = [144 + 8*kk for kk in range(14)]
    W = lambda tl, p: 256 + (tl*14+p)*8
    posof = lambda kk: kk
    A('v_lshlrev_b32 v12, 4, v0')
    A('v_and_b32 v11, 16, v0'); A('v_lshlrev_b32 v1, 2, v11')
    A('v_lshrrev_b32 v11, 5, v0'); A('v_lshl_add_u32 v1, v11, 4, v1')
    A('v_and_b32 v11, 12, v0'); A('v_lshl_add_u32 v13, v11, 6, v1')
    A('v_and_b32 v11, 3, v0'); A('v_lshl_add_u32 v13, v11, 2, v13')
    A('s_lshr_b32 s16, s17, 1'); A('s_lshl_b32 s16, s16, 10')
    A('s_and_b32 s18, s17, 1'); A('s_lshl_b32 s19, s18, 7'); A('s_add_u32 s16, s16, s19')
    A('v_add_u32 v13, s16, v13')
    A('v_and_b32 v11, 8, v0');  A('v_lshl_add_u32 v14, v11, 2, v1')
    A('v_cmp_ne_u32 s[34:35], 0, v11')
    A('v_and_b32 v11, 3, v0');  A('v_lshl_add_u32 v14, v11, 1, v14')
    A('v_and_b32 v11, 4, v0');  A('v_lshl_add_u32 v14, v11, 5, v14')
    A('s_lshr_b32 s16, s17, 2'); A('s_lshl_b32 s16, s16, 9')
    A('s_lshl_b32 s19, s18, 8'); A('s_add_u32 s16, s16, s19')
    A('s_and_b32 s19, s17, 2'); A('s_lshl_b32 s19, s19, 2'); A('s_add_u32 s16, s16, s19')
    A('s_add_u32 s16, s16, 8192'); A('v_add_u32 v14, s16, v14')
    A('s_lshl_b32 s16, s17, 2'); A('v_lshlrev_b32 v6, 7, v0'); A('v_add_u32 v6, s16, v6')
    A('v_lshrrev_b32 v11, 4, v0'); A('v_mul_u32_u24 v15, 144, v11')
    A('v_and_b32 v11, 7, v0'); A('v_lshl_add_u32 v15, v11, 4, v15')
    A(f'v_add_u32 v15, {XB}, v15')
    A(f's_mov_b32 s31, 0x{f2u(LOG2E):08x}')
    A('s_mov_b32 s33, 0x7fff7fff')
    def load_xs():
        for i in range(28):
            if i % 4 == 0:
                if i == 0: A('s_mov_b32 s23, s32')
                else: A('s_add_u32 s23, s23, 4096')
            A(f'buffer_load_dwordx4 {v(XSR[0]+4*i,4)}, v12, s[4:7], s23 offen offset:{(i%4)*1024}')
    A(f's_mov_b32 s32, {XNS}')
    load_xs()
    Lloop = f'sf_loop_{tag}'
    A('s_mov_b32 s20, 0')
    A.label(Lloop)
    if QUICK:
        Lq = A.newlabel('q')
        A('s_cmp_lg_u32 s20, 2'); A(f's_cbranch_scc1 {Lq}'); A('s_memrealtime s[64:65]'); A('s_memtime s[60:61]'); A.label(Lq)
    step_addr(A)
    for k in range(8): A(f'v_mov_b64 {v(16+2*k,2)}, 0')
    wait_flag(A, 5, 's46', 's20', None, fail, None)
    poll_mem(A, PS, fail)
    Q = Lds(A)
    for p in range(14):
        Q.op(('r', p), f'ds_read_b128 {v(AF[p],4)}, v8 offset:{p*512}')
    for p in range(14):
        Q.need(('r', p))
        smf(A, ACC[0], AF[p], W(0, p)); smf(A, ACC[1], AF[p], W(1, p))
    A.nop(8)
    I, Wr = post_paired(ACC[0], ACC[1], 9, 0, ACC[0])
    for x in I: A(x)
    for x in Wr: Q.op('w', x)
    nb = [0]
    def rd2(kk2):
        Q.op(('x', kk2), f'ds_read_b128 {v(A2[nb[0]%4],4)}, v15 offset:{kk2*XS_}')
        buf[kk2] = A2[nb[0] % 4]; nb[0] += 1
    buf = {}
    def second(kk2):
        Q.need(('x', kk2))
        smf(A, DX, buf[kk2], XSR[kk2])
        A(f'v_mfma_f32_16x16x32_bf16 {v(DM,4)}, {v(buf[kk2],4)}, {v(AF[posof(kk2)],4)}, {v(DM,4)}')
    rd2(6); rd2(7)
    second(6); second(7)
    A('s_barrier')
    stamp(A, 2)
    for kk2 in range(4): rd2(kk2)
    second(0); rd2(4); second(1); rd2(5); second(2); second(3)
    A('s_barrier')
    rd2(8); rd2(10)
    second(4); rd2(12); second(5); second(8); second(10); second(12)
    A('s_barrier')
    stamp(A, 3)
    rd2(9); rd2(11); rd2(13)
    if EWPOS == -1: store_flag(A, 6, 's41', st, T+7)
    second(9); second(11); second(13)
    if EWPOS == 0: store_flag(A, 6, 's41', st, T+7)
    A.nop(8)
    stamp(A, 4)
    for d in (DX, DM):
        A(f'v_permlane32_swap_b32 {v(d)}, {v(d+1)}')
        A(f'v_permlane32_swap_b32 {v(d+2)}, {v(d+3)}')
    mx = [T, T+1]; sm = [T+2, T+3]
    el = lambda t: (DX+2*t, DX+2*t+1, DM+2*t)
    for t in range(2):
        A(f'v_max3_f32 {v(mx[t])}, {v(el(t)[0])}, {v(el(t)[1])}, {v(el(t)[2])}')
    for ror in (8, 4, 2, 1):
        A('s_nop 0')
        for t in range(2):
            A(f'v_max_f32_dpp {v(mx[t])}, {v(mx[t])}, {v(mx[t])} row_ror:{ror} row_mask:0xf bank_mask:0xf')
    if EWPOS == 1: store_flag(A, 6, 's41', st, T+7)
    for t in range(2):
        A(f'v_mul_f32 {v(mx[t])}, 0x{f2u(-LOG2E):08x}, {v(mx[t])}')
    for j in range(3):
        for t in range(2):
            A(f'v_fma_f32 {v(el(t)[j])}, {v(el(t)[j])}, s31, {v(mx[t])}')
    for j in (2, 0, 1):
        for t in range(2):
            A(f'v_exp_f32 {v(el(t)[j])}, {v(el(t)[j])}')
    if EWPOS == 2: store_flag(A, 6, 's41', st, T+7)
    for t in range(2):
        A(f'v_fma_f32 {v(sm[t])}, {v(el(t)[2])}, 0.5, {v(el(t)[0])}')
    for t in range(2):
        A(f'v_add_f32 {v(sm[t])}, {v(sm[t])}, {v(el(t)[1])}')
    for ror in (8, 4, 2, 1):
        A('s_nop 0')
        for t in range(2):
            A(f'v_add_f32_dpp {v(sm[t])}, {v(sm[t])}, {v(sm[t])} row_ror:{ror} row_mask:0xf bank_mask:0xf')
    if EWPOS == 3: store_flag(A, 6, 's41', st, T+7)
    for t in range(2):
        A(f'v_rcp_f32 {v(sm[t])}, {v(sm[t])}')
    A(f'v_cndmask_b32 {v(T+6)}, {v(DM)}, {v(DM+2)}, s[34:35]')
    for j in range(2):
        for t in range(2):
            A(f'v_mul_f32 {v(el(t)[j])}, {v(el(t)[j])}, {v(sm[t])}')
    A(f'v_cndmask_b32 {v(T+7)}, {v(sm[0])}, {v(sm[1])}, s[34:35]')
    for t in range(2):
        A(f'v_cvt_pk_bf16_f32 {v(T+4+t)}, {v(el(t)[0])}, {v(el(t)[1])}')
    A(f'v_mul_f32 {v(T+6)}, {v(T+6)}, {v(T+7)}')
    for t in range(2):
        A(f'v_and_b32 {v(T+4+t)}, s33, {v(T+4+t)}')
    A(f'v_cvt_pk_bf16_f32 {v(T+6)}, {v(T+6)}, {v(T+6)}')
    for t in range(2):
        A(f'buffer_store_dword {v(T+4+t)}, v13, s[4:7], s26 offen offset:{32*t}{st}')
    A(f'v_and_b32 {v(T+6)}, s33, {v(T+6)}')
    A(f'buffer_store_short {v(T+6)}, v14, s[4:7], s26 offen{st}')
    for t in range(2):
        A(f'buffer_store_dword {v(T+4+t)}, v13, s[4:7], s45 offen offset:{32*t}{st}')
    A(f'buffer_store_short {v(T+6)}, v14, s[4:7], s45 offen{st}')
    if EWPOS == 4: store_flag(A, 6, 's41', st, T+7)
    stamp(A, 5)
    A(f'v_mov_b32 {v(T+7)}, -1')
    for cp in range(KC):
        if cp: A('s_add_u32 s27, s27, 16384')
        for t in range(2):
            A(f'buffer_store_dword {v(T+7)}, v13, s[4:7], s27 offen offset:{32*t}{st}')
        A(f'buffer_store_short {v(T+7)}, v14, s[4:7], s27 offen{st}')
    tstamp(A, 16, 0, 1, sreg=20)
    if not DBG_X0: A('s_add_u32 s32, s32, 28672')
    load_xs()
    stamp_flush(A, 6, 0, 1)
    A('s_add_u32 s20, s20, 1')
    A(f's_cmp_lt_u32 s20, {NSTEP}')
    A(f's_cbranch_scc1 {Lloop}')
    if QUICK:
        A('s_memrealtime s[66:67]'); A('s_memtime s[62:63]'); A('s_waitcnt lgkmcnt(0)')
        A('s_sub_u32 s62, s62, s60'); A('v_mov_b32 v0, s62'); A('s_lshl_b32 s16, s17, 2'); A('s_add_u32 s16, s16, 192'); A('v_mov_b32 v1, s16')
        A('buffer_store_dword v0, v1, s[8:11], 0 offen')
        A('s_sub_u32 s66, s66, s64'); A('v_mov_b32 v0, s66'); A('s_lshl_b32 s16, s17, 2'); A('s_add_u32 s16, s16, 128'); A('v_mov_b32 v1, s16')
        A('buffer_store_dword v0, v1, s[8:11], 0 offen')
    A(f's_branch {done}')

def load_ctile(A, dst, offa, offb, plist=range(14)):
    out = []
    for p in plist:
        if p % 4 == 0 or p == plist[0]:
            A(f's_add_u32 s22, s18, {offa+(p//4)*4096}')
            A(f's_add_u32 s23, s18, {offb+(p//4)*4096}')
        im = (p % 4)*1024
        A(f'buffer_load_dwordx4 {r(dst(p),4)}, v1, s[4:7], s22 offen offset:{im}')
        A(f'buffer_load_dwordx4 {r(dst(p)+4,4)}, v1, s[4:7], s23 offen offset:{im}')
        out.append(dst(p))
    return out

def interleave(A, g):
    if g < 256:
        A(f'v_swap_b32 {v(g+1)}, {v(g+4)}')
        A(f'v_swap_b32 {v(g+2)}, {v(g+4)}')
        A(f'v_swap_b32 {v(g+3)}, {v(g+5)}')
        A(f'v_swap_b32 {v(g+5)}, {v(g+6)}')
    else:
        q = g - 256
        A(f'v_accvgpr_read_b32 v11, {a(q+1)}')
        A(f'v_accvgpr_mov_b32 {a(q+1)}, {a(q+4)}')
        A(f'v_accvgpr_mov_b32 {a(q+4)}, {a(q+2)}')
        A(f'v_accvgpr_write_b32 {a(q+2)}, v11')
        A(f'v_accvgpr_read_b32 v11, {a(q+3)}')
        A(f'v_accvgpr_mov_b32 {a(q+3)}, {a(q+5)}')
        A(f'v_accvgpr_mov_b32 {a(q+5)}, {a(q+6)}')
        A(f'v_accvgpr_write_b32 {a(q+6)}, v11')

def load_tiles(A, tiles):
    pend = []
    for i, (dst, oa, ob, pl) in enumerate(tiles):
        g = load_ctile(A, dst, oa, ob, pl)
        if pend:
            A(f's_waitcnt vmcnt({2*len(g)})')
            for x in pend: interleave(A, x)
        pend = g
    A('s_waitcnt vmcnt(0)')
    for x in pend: interleave(A, x)

def score_weights(A):
    TS = 14*1024
    Lw3 = A.newlabel('w3'); Ld = A.newlabel('wd')
    A(f's_mul_i32 s18, s17, {28*TS}')
    A(f's_add_u32 s18, s18, {MC}')
    A(f's_mul_i32 s19, s3, {4*TS}')
    A('s_add_u32 s18, s18, s19')
    A('s_cmp_eq_u32 s3, 3')
    A(f's_cbranch_scc1 {Lw3}')
    W = lambda tl: (lambda p: 64 + (tl*14+p)*8)
    load_tiles(A, [(W(0), 0, 2*TS, range(14)), (W(1), TS, 3*TS, range(14)),
                   (W(2), 16*TS, 17*TS, range(14)), (W(3), 18*TS, 19*TS, range(14))])
    A(f's_branch {Ld}')
    A.label(Lw3)
    W = lambda tl: (lambda p: 256 + (tl*14+p)*8)
    load_tiles(A, [(W(0), 0, 2*TS, range(14)), (W(1), TS, 3*TS, range(14))])
    A.label(Ld)

V_W0 = 120
def VW(ti, p): return V_W0 + (ti*14+p)*8
def gen_value(A, st, tag, fail, done, merged_u=False):
    UB, ACC, YP = 16, 48, 64
    PM = 72
    SL = [76 + 4*i for i in range(4)]
    PM2 = 92
    TM = [96, 104, 112]
    Lloop = f'va_loop_{tag}'
    for k in range(4): A(f'v_mov_b32 {v(PM+k)}, 0'); A(f'v_mov_b32 {v(PM2+k)}, 0')
    A('s_mov_b32 s20, 0')
    A.label(Lloop)
    step_addr(A)
    for k in range(8): A(f'v_mov_b64 {v(ACC+2*k,2)}, 0')
    if merged_u:
        Lr = A.newlabel('ur'); Lro = A.newlabel('uro')
        A('s_cmp_lt_u32 s20, s33'); A(f's_cbranch_scc1 {Lro}')
        A(f's_mov_b32 s30, {SPIN}')
        A.label(Lr)
        A(f'v_lshrrev_b32 v1, 2, v12')
        A(f'buffer_load_dword {v(TM[1])}, v1, s[4:7], s37 offen sc1')
        A(f'buffer_load_dword {v(TM[1]+1)}, v1, s[4:7], s37 offen offset:{14*256} sc1')
        A('s_sub_u32 s30, s30, 1'); A('s_cmp_eq_u32 s30, 0'); A(f's_cbranch_scc1 {fail}')
        A('s_waitcnt vmcnt(0)')
        A(f'v_and_b32 v0, {v(TM[1])}, {v(TM[1]+1)}')
        A('v_cmp_eq_u32 vcc, 0, v0')
        A('s_or_b32 s22, vcc_lo, vcc_hi')
        A('s_lshr_b32 s23, s22, 16'); A('s_or_b32 s22, s22, s23')
        A('s_lshr_b32 s23, s22, 8'); A('s_or_b32 s22, s22, s23')
        A('s_and_b32 s22, s22, 0xff'); A('s_or_b32 s22, s22, 0x100')
        A('s_ff1_i32_b32 s22, s22')
        A('s_lshl_b32 s33, s22, 3')
        A('s_cmp_lt_u32 s20, s33'); A(f's_cbranch_scc1 {Lro}')
        A('s_sleep 8')
        A(f's_branch {Lr}')
        A.label(Lro)
    wait_flag(A, 5, 's46', 's20', [TM[1]+k for k in range(4)], fail, 1)
    poll_mem(A, [TM[1], TM[2]], fail)
    Q = Lds(A)
    slot = {}
    free = [0, 1, 2, 3]
    nxt = [0]
    def rd():
        p = nxt[0]
        if p > 13 or not free: return
        sl = free.pop(0); slot[p] = sl; nxt[0] += 1
        Q.op(('r', p), f'ds_read_b128 {v(SL[sl],4)}, v8 offset:{p*512}')
    def ldsw(p):
        t = TM[p % 3]
        Q.op(('wa', p), f'ds_read_b128 {v(t,4)}, v11 offset:{(p-7)*2048}')
        Q.op(('wb', p), f'ds_read_b128 {v(t+4,4)}, v11 offset:{(p-7)*2048+1024}')
    for _ in range(4): rd()
    A(f's_add_u32 s23, s36, {14*4096}')
    uq = []
    for hpl in range(2):
        for j in range(4):
            uq.append(f'buffer_load_dwordx4 {v(UB+hpl*16+j*4,4)}, v12, s[4:7], {"s23" if hpl else "s36"} offen offset:{j*1024}')
    for p in range(14):
        Q.need(('r', p))
        for ti in range(3):
            smf(A, ACC+4*ti, SL[slot[p]], VW(ti, p))
            if ti == 0 and p == 2:
                A('s_waitcnt vmcnt(0)')
            if ti == 1 and 2 <= p < 6: A(uq.pop(0)); A(uq.pop(0))
            if ti == 0 and 3 <= p < 6: ldsw(p+4)
        if p < 7: smf(A, ACC+12, SL[slot[p]], VW(3, p))
        else:
            Q.need(('wb', p))
            smf(A, ACC+12, SL[slot[p]], TM[p % 3])
            if p+3 < 14: ldsw(p+3)
        free.append(slot[p]); rd()
    if not DBG_U0: A(f's_add_u32 s36, s36, {16*28*1024}')
    A.nop(8)
    for ct in range(2):
        for hp in range(2):
            d = ACC + 4*(hp*2+ct)
            A(f'v_cvt_pk_bf16_f32 {v(YP+4*ct+2*hp)}, {v(d)}, {v(d+1)}')
            A(f'v_cvt_pk_bf16_f32 {v(YP+4*ct+2*hp+1)}, {v(d+2)}, {v(d+3)}')
    stamp(A, 2)
    D = [ACC, ACC+4]
    PMs = [PM, PM2]; PXs = [PM+4, PM2+4]
    wait_flag(A, 7, 's47', 's44', [PXs[0]+k for k in range(4)], fail, 1)
    stamp(A, 6)
    if PROFILE: A('s_mov_b32 s64, 0')
    def issue(k):
        so = 's26' if k == 0 else 's45'
        for hpl in range(2):
            A(f'buffer_load_dwordx4 {v(PXs[k]+4*hpl,4)}, v9, s[4:7], {so} offen offset:{hpl*1024} sc1')
        A('s_mov_b64 exec, s[34:35]')
        A(f'buffer_load_dwordx4 {v(PMs[k],4)}, v10, s[4:7], {so} offen sc1')
        A('s_mov_b64 exec, -1')
    L = A.newlabel('pp'); Lf = A.newlabel('ppf')
    def attempt(k):
        for kk in range(4): A(f'v_mov_b64 {v(ACC+2*kk,2)}, 0')
        A('s_nop 0')
        A('s_waitcnt vmcnt(3)')
        if PROFILE: A('s_add_u32 s64, s64, 1')
        b = PMs[k]
        chk = [f'v_or3_b32 v0, {v(b)}, {v(b+1)}, {v(b+2)}', f'v_or3_b32 v1, {v(b+3)}, {v(b+4)}, {v(b+5)}',
               f'v_or3_b32 v0, v0, {v(b+6)}, {v(b+7)}', f'v_or3_b32 v1, v1, {v(b+8)}, {v(b+9)}',
               f'v_or3_b32 v0, v0, {v(b+10)}, {v(b+11)}', 'v_or_b32 v0, v0, v1', 'v_and_b32 v0, 0x80008000, v0', 'v_cmp_ne_u32 vcc, 0, v0']
        for ct in range(2):
            A(f'v_mfma_f32_16x16x32_bf16 {v(D[ct],4)}, {v(b,4)}, {v(YP+4*ct,4)}, {v(D[ct],4)}')
            A(chk.pop(0)); A(chk.pop(0))
        for hpl in range(2):
            for ct in range(2):
                smf(A, D[ct], PXs[k]+4*hpl, UB+hpl*16+ct*8)
                A(chk.pop(0))
        A(f's_cbranch_vccz {Lf}')
        A('s_nop 1')
    A(f's_mov_b32 s30, {SPIN}')
    issue(0)
    A.nop(STAG)
    A.label(L)
    issue(1); attempt(0)
    issue(0); attempt(1)
    A('s_sub_u32 s30, s30, 1')
    A('s_cmp_lg_u32 s30, 0')
    A(f's_cbranch_scc1 {L}')
    A(f's_branch {fail}')
    A.label(Lf)
    stamp(A, 3)
    if EWM_POS == 0:
        Lsf = A.newlabel('sf'); A('s_cmp_lg_u32 s3, 0'); A(f's_cbranch_scc1 {Lsf}')
        store_flag(A, 6, 's40', st, 0); A.label(Lsf)
    A.nop(6)
    for rr in range(4): A(f'v_permlane32_swap_b32 {v(D[0]+rr)}, {v(D[1]+rr)}')
    for rr in range(4):
        A(f'v_add_f32 {v(D[0]+rr)}, {v(D[0]+rr)}, {v(D[1]+rr)}')
        A(f'ds_write_b32 v13, {v(D[0]+rr)} offset:{128*rr}')
    A('s_waitcnt lgkmcnt(0)')
    A('s_barrier')
    stamp(A, 4)
    Lnx = A.newlabel('vnx')
    A('s_cmp_lg_u32 s3, 0')
    A(f's_cbranch_scc1 {Lnx}')
    R4 = [ACC, ACC+4, ACC+8, ACC+12]
    for w in range(4):
        A(f'ds_read_b128 {v(R4[w],4)}, v14 offset:{w*1024}')
    if EWM_POS == 1: store_flag(A, 6, 's40', st, 0)
    A('s_waitcnt lgkmcnt(2)')
    A(f'v_pk_add_f32 {v(R4[0],2)}, {v(R4[0],2)}, {v(R4[1],2)}')
    A(f'v_pk_add_f32 {v(R4[0]+2,2)}, {v(R4[0]+2,2)}, {v(R4[1]+2,2)}')
    A('s_waitcnt lgkmcnt(0)')
    A(f'v_pk_add_f32 {v(R4[2],2)}, {v(R4[2],2)}, {v(R4[3],2)}')
    A(f'v_pk_add_f32 {v(R4[2]+2,2)}, {v(R4[2]+2,2)}, {v(R4[3]+2,2)}')
    A(f'v_pk_add_f32 {v(R4[0],2)}, {v(R4[0],2)}, {v(R4[2],2)}')
    A(f'v_pk_add_f32 {v(R4[0]+2,2)}, {v(R4[0]+2,2)}, {v(R4[2]+2,2)}')
    A(f'v_cvt_pk_bf16_f32 {v(R4[1])}, {v(R4[0])}, {v(R4[0]+1)}')
    A(f'v_cvt_pk_bf16_f32 {v(R4[1]+1)}, {v(R4[0]+2)}, {v(R4[0]+3)}')
    A(f'v_min_u32 {v(R4[1])}, 0xfffffffe, {v(R4[1])}')
    A(f'buffer_store_dwordx2 {v(R4[1],2)}, v15, s[4:7], s28 offen{st}')
    A('s_add_u32 s28, s28, 8192')
    A(f'buffer_store_dwordx2 {v(R4[1],2)}, v15, s[4:7], s28 offen{st}')
    if EWM_POS == 2: store_flag(A, 6, 's40', st, 0)
    stamp(A, 5)
    A(f'v_mov_b64 {v(R4[2],2)}, -1')
    A(f'buffer_store_dwordx2 {v(R4[2],2)}, v15, s[4:7], s29 offen{st}')
    A('s_add_u32 s29, s29, 8192')
    A(f'buffer_store_dwordx2 {v(R4[2],2)}, v15, s[4:7], s29 offen{st}')
    A(f'buffer_store_dwordx2 {v(R4[1],2)}, v15, s[4:7], s39 offen{st}')
    A.label(Lnx)
    stamp_flush(A, 8, 0, 1)
    A('s_add_u32 s39, s39, 8192')
    A('s_add_u32 s20, s20, 1')
    A(f's_cmp_lt_u32 s20, {NSTEP}')
    A(f's_cbranch_scc1 {Lloop}')
    A(f's_branch {done}')

def value_setup(A):
    TS = 14*1024; HS = 28*TS
    A(f's_mul_i32 s18, s3, {4*HS}')
    A(f's_mul_i32 s22, s17, {2*TS}')
    A('s_add_u32 s18, s18, s22')
    A(f's_add_u32 s18, s18, {NC}')
    A('v_lshlrev_b32 v12, 4, v0')
    load_tiles(A, [((lambda p: V_W0 + (p-7)*8), 2*HS+TS, 3*HS+TS, range(7, 14))])
    A(f's_mul_i32 s23, s3, {14*1024}')
    A(f's_add_u32 s23, s23, {WL}')
    A('v_add_u32 v11, s23, v12')
    for i in range(14):
        A(f'ds_write_b128 v11, {v(V_W0+4*i,4)} offset:{i*1024}')
    A('s_waitcnt lgkmcnt(0)')
    tl = []
    for ti in range(4):
        hp, ct = ti >> 1, ti & 1
        tl.append(((lambda p, ti=ti: VW(ti, p)), (2*hp)*HS+ct*TS, (2*hp+1)*HS+ct*TS, range(14) if ti < 3 else range(7)))
    load_tiles(A, tl)
    A('s_lshl_b32 s23, s3, 11'); A('v_add_u32 v9, s23, v12')
    A('s_lshl_b32 s23, s3, 9'); A('s_add_u32 s23, s23, 8192'); A('v_add_u32 v10, s23, v8')
    A('v_and_b32 v11, 16, v0'); A('v_lshlrev_b32 v13, 5, v11')
    A('v_and_b32 v11, 15, v0'); A('v_lshl_add_u32 v13, v11, 3, v13')
    A('v_lshlrev_b32 v7, 2, v11')
    A('v_lshrrev_b32 v11, 5, v0'); A('v_lshl_add_u32 v13, v11, 2, v13')
    A('s_lshl_b32 s23, s3, 10'); A(f's_add_u32 s23, s23, {RED}'); A('v_add_u32 v13, s23, v13')
    A('v_and_b32 v11, 14, v0'); A('v_lshlrev_b32 v14, 6, v11')
    A('v_lshrrev_b32 v11, 4, v0'); A('v_lshl_add_u32 v14, v11, 5, v14')
    A('v_and_b32 v11, 1, v0'); A('v_lshl_add_u32 v14, v11, 4, v14')
    A(f'v_add_u32 v14, {RED}, v14')
    A('v_lshlrev_b32 v15, 3, v0'); A('s_lshl_b32 s23, s17, 9'); A('v_add_u32 v15, s23, v15')
    A('s_lshl_b32 s23, s17, 2'); A('v_lshlrev_b32 v6, 7, v0'); A('v_add_u32 v6, s23, v6')
    A('s_mov_b32 s34, 0x00ff00ff'); A('s_mov_b32 s35, 0x00ff00ff')
    A(f's_mul_i32 s36, s3, {2*14*4096}')
    A('s_lshl_b32 s23, s17, 12')
    A('s_add_u32 s36, s36, s23')
    A(f's_add_u32 s36, s36, {UF}')
    A(f's_mov_b32 s39, {MEMG+8192}')

def value_setup2(A):
    A('s_mov_b32 s33, 0')
    A('s_mul_i32 s37, s3, 28'); A('s_add_u32 s37, s37, s17'); A('s_lshl_b32 s37, s37, 8'); A(f's_add_u32 s37, s37, {UFL}')
    A(f's_mul_i32 s23, s3, {14*1024}')
    A(f's_add_u32 s23, s23, {WL}')
    A('v_add_u32 v11, s23, v12')

def mode_exchange(A):
    srd(A, 8, 96, 256)
    A('s_getreg_b32 s12, hwreg(HW_REG_XCC_ID)')
    A('s_and_b32 s12, s12, 15')
    A('s_add_u32 s12, s12, 1')
    A('v_mov_b32 v8, s12')
    A('s_lshl_b32 s13, s15, 2')
    A('v_mov_b32 v9, s13')
    A('s_waitcnt lgkmcnt(0)')
    A('buffer_store_dword v8, v9, s[8:11], 0 offen sc1')

def mode_gather(A, fail):
    A(f'v_min_u32 v1, {NROLE-1}, v0')
    A('v_lshlrev_b32 v1, 2, v1')
    L = A.newlabel('mg')
    A(f's_mov_b32 s30, {SPIN}')
    A.label(L)
    A('buffer_load_dword v11, v1, s[8:11], 0 offen sc1')
    A('s_sub_u32 s30, s30, 1')
    A('s_cmp_eq_u32 s30, 0')
    A(f's_cbranch_scc1 {fail}')
    A('s_waitcnt vmcnt(0)')
    A('v_cmp_eq_u32 vcc, 0, v11')
    A(f's_cbranch_vccnz {L}')
    A('v_cmp_ne_u32 vcc, s12, v11')
    A('s_cmp_eq_u64 vcc, 0')
    A('s_cselect_b32 s14, 1, 0')

def gen_forwarders(A, fail, done):
    A('s_sub_u32 s17, s15, 30'); A('s_lshl_b32 s17, s17, 2'); A('s_add_u32 s17, s17, s3')
    A('v_lshlrev_b32 v6, 7, v0')
    A('v_lshlrev_b32 v12, 4, v0')
    A('s_cmp_lg_u32 s17, 0')
    A(f's_cbranch_scc1 {done}')
    A('s_mov_b32 s20, 1')
    A(f's_mov_b32 s22, {HINT}')
    A.label('fw_m_loop')
    A('s_lshl_b32 s24, s20, 13'); A(f's_add_u32 s26, s24, {MEMG2}'); A(f's_add_u32 s24, s24, {MEMG}')
    A('s_add_u32 s25, s24, 4096'); A('s_add_u32 s27, s26, 4096')
    A(f's_mov_b32 s30, {SPIN*4}')
    A.label('fw_m_poll')
    for j in range(7):
        A(f'buffer_load_dwordx4 {v(16+4*j,4)}, v12, s[4:7], {"s24" if j < 4 else "s25"} offen offset:{(j%4)*1024} sc1')
    A('s_sub_u32 s30, s30, 1'); A('s_cmp_eq_u32 s30, 0'); A(f's_cbranch_scc1 {fail}')
    A('s_waitcnt vmcnt(0)')
    A('v_max_u32 v1, v16, v18')
    for j in range(1, 7): A(f'v_max3_u32 v1, v1, {v(16+4*j)}, {v(18+4*j)}')
    A('v_cmp_eq_u32 vcc, -1, v1')
    A('s_cbranch_vccz fw_m_ok')
    A('s_sleep 2')
    A('s_branch fw_m_poll')
    A.label('fw_m_ok')
    for j in range(7):
        A(f'buffer_store_dwordx4 {v(16+4*j,4)}, v12, s[4:7], {"s26" if j < 4 else "s27"} offen offset:{(j%4)*1024} sc1')
    A('s_waitcnt vmcnt(0)')
    A('v_mov_b32 v1, s20'); A('s_mov_b64 exec, 0xffff')
    A('buffer_store_dword v1, v6, s[4:7], s22 offen sc1'); A('s_mov_b64 exec, -1')
    A('s_add_u32 s20, s20, 1'); A('s_cmp_lt_u32 s20, 64'); A('s_cbranch_scc1 fw_m_loop')
    A(f's_branch {done}')

def gen_chain_body(A, fail, done, merged=False, wait_u=None):
    ystore = ' sc1' if merged and not DBG_PLAIN else ''
    mode_exchange(A)
    common_setup(A)
    stamp_init(A)
    if merged:
        A('s_cmp_lt_u32 s15, 30'); A('s_cbranch_scc1 ch_main')
        gen_forwarders(A, fail, done)
        A.label('ch_main')
    A('s_cmp_ge_u32 s15, 16')
    A('s_cbranch_scc1 ch_value')
    A('s_mov_b32 s17, s15')
    score_weights(A)
    x_addrs(A)
    tstamp(A, 1, 12, 13)
    mode_gather(A, fail)
    A('s_cmp_eq_u32 s14, 0')
    A('s_cbranch_scc1 ch_score_slow')
    gen_score(A, '', 'f', fail, done)
    A.label('ch_score_slow')
    gen_score(A, ' sc1', 's', fail, done)
    A.label('ch_value')
    A('s_sub_u32 s17, s15, 16')
    value_setup(A)
    tstamp(A, 1, 48, 49)
    mode_gather(A, fail)
    value_setup2(A)
    tstamp(A, 2, 48, 49)
    A('s_cmp_eq_u32 s14, 0')
    A('s_cbranch_scc1 ch_value_slow')
    gen_value(A, '', 'f', fail, done, merged)
    A.label('ch_value_slow')
    gen_value(A, ' sc1', 's', fail, done, merged)

def gen_k3(A):
    A.label('k3_kernel')
    A('s_and_b32 s15, s2, 7')
    A('s_cmp_lg_u32 s15, 0')
    A('s_cbranch_scc1 k3_end')
    A('s_lshr_b32 s15, s2, 3')
    A('s_cmp_ge_u32 s15, 30')
    A('s_cbranch_scc1 k3_end')
    prologue(A)
    gen_chain_body(A, 'k3_end', 'k3_end')
    A.label('k3_end')
    A('s_endpgm')
    return dict(name='k3_kernel', grid=256, block=256, lds=CHAIN_LDS, vgpr=256, sgpr=72, agpr=256)
```

```python
from asmlib import *
from layout import *

def magic(div, maxv):
    for sh in range(8, 31):
        m = -(-(1 << sh) // div)
        if (maxv - 1) * m >= (1 << 32): continue
        if all(((x * m) >> sh) == x // div for x in range(maxv)):
            return m, sh
    raise Exception('no magic')

def sdivmod(A, q, rem, x, div, maxv):
    m, sh = magic(div, maxv)
    A(f's_mul_i32 {s(q)}, {s(x)}, {m}')
    A(f's_lshr_b32 {s(q)}, {s(q)}, {sh}')
    A(f's_mul_i32 {s(rem)}, {s(q)}, {div}')
    A(f's_sub_u32 {s(rem)}, {s(x)}, {s(rem)}')

def srd(A, d, karg_off, size):
    A(f's_load_dwordx2 {s(d,2)}, s[0:1], {karg_off}')
    A(f's_mov_b32 {s(d+2)}, {size}')
    A(f's_mov_b32 {s(d+3)}, 0x00020000')

SZ_X = 2048*448*2
SZ_MEM0 = 8*448*2
SZ_W = 448*16*256*2
SZ_F = 448*1792*2

K1_M0, K1_LN0 = 0, 224
K1_NI = 32
K1_NWG = 256
K1_I0 = K1_LN0

def reformat(A, wid, st=''):
    Lend = 'rf_end'
    A('s_mov_b32 s20, 0x05040100')
    A('s_mov_b32 s21, 0x07060302')
    A(f's_lshl_b32 s16, {s(wid)}, 2')
    A('s_add_u32 s16, s16, s3')
    A('s_cmp_ge_u32 s16, 294')
    A(f's_cbranch_scc1 {Lend}')
    sdivmod(A, 17, 18, 16, 98, 296)
    A('s_lshl_b32 s19, s17, 3')
    A('s_add_u32 s19, s19, 64')
    A('s_load_dwordx2 s[36:37], s[0:1], s19')
    A(f's_mov_b32 s38, {SZ_F}')
    A('s_mov_b32 s39, 0x00020000')
    A('s_cmp_eq_u32 s17, 2')
    A('s_cbranch_scc1 k1_rw2')
    sdivmod(A, 19, 22, 18, 7, 98)
    A('v_lshrrev_b32 v5, 5, v0')
    A('v_and_b32 v6, 31, v0')
    A(f'v_mul_u32_u24 v7, {4*3584}, v5')
    A('v_lshl_add_u32 v7, v6, 4, v7')
    A(f's_mul_i32 s23, s19, {32*3584}')
    A('s_lshl_b32 s24, s22, 9')
    A('s_add_u32 s23, s23, s24')
    A('s_waitcnt lgkmcnt(0)')
    R0, R1, T0 = 8, 40, 72
    for jj in range(2):
        for ee in range(8):
            A(f's_add_u32 s24, s23, {(jj*8+(ee&3)+16*(ee>>2))*3584}')
            A(f'buffer_load_dwordx4 {v((R0,R1)[jj]+4*ee,4)}, v7, s[36:39], s24 offen')
    A('v_lshrrev_b32 v8, 2, v6') if False else None
    A('v_lshrrev_b32 v1, 2, v6')
    A(f'v_mul_u32_u24 v1, {2*2*14*1024}, v1')
    A('v_and_b32 v6, 3, v6')
    A('v_lshl_add_u32 v1, v6, 6, v1')
    A('v_lshl_add_u32 v1, v5, 8, v1')
    A(f's_mul_i32 s24, s22, {8*2*2*14*1024}')
    A(f's_mul_i32 s25, s17, {14*1024}')
    A('s_add_u32 s24, s24, s25')
    A('s_lshl_b32 s25, s19, 10')
    A('s_add_u32 s24, s24, s25')
    A(f's_add_u32 s24, s24, {W13}')
    A(f's_add_u32 s25, s24, {2*14*1024}')
    for jj in range(2):
        A(f's_waitcnt vmcnt({8 if jj==0 else 8})')
        R = (R0, R1)[jj]
        T = T0 + 32*jj
        for col in range(8):
            m, o = col >> 1, col & 1
            for k in range(4):
                A(f'v_perm_b32 {v(T+4*col+k)}, {v(R+4*(2*k+1)+m)}, {v(R+4*(2*k)+m)}, {"s21" if o else "s20"}')
        for col in range(8):
            ab, rr = col >> 2, col & 3
            A(f'buffer_store_dwordx4 {v(T+4*col,4)}, v1, s[4:7], {"s25" if ab else "s24"} offen offset:{jj*512+rr*16}{st}')
    A(f's_branch {Lend}')
    A.label('k1_rw2')
    sdivmod(A, 19, 22, 18, 7, 98)
    A('v_lshrrev_b32 v5, 3, v0')
    A('v_and_b32 v6, 7, v0')
    A(f'v_mul_u32_u24 v7, {8*896}, v5')
    A('v_lshl_add_u32 v7, v6, 4, v7')
    A(f's_mul_i32 s23, s19, {128*896}')
    A('s_lshl_b32 s24, s22, 7')
    A('s_add_u32 s23, s23, s24')
    A('s_waitcnt lgkmcnt(0)')
    for jj in range(2):
        for ee in range(8):
            A(f's_add_u32 s24, s23, {(jj*64+ee)*896}')
            A(f'buffer_load_dwordx4 {v((R0,R1)[jj]+4*ee,4)}, v7, s[36:39], s24 offen')
    A('v_lshrrev_b32 v1, 2, v5')
    A('v_lshlrev_b32 v1, 10, v1')
    A('v_and_b32 v5, 3, v5')
    A('v_lshl_add_u32 v1, v5, 8, v1')
    A('v_and_b32 v5, 3, v6')
    A('v_lshl_add_u32 v1, v5, 6, v1')
    A('v_lshrrev_b32 v5, 2, v6')
    A(f'v_mul_u32_u24 v5, {2*56*1024}, v5')
    A('v_add_u32 v1, v1, v5')
    A(f's_mul_i32 s24, s22, {4*56*1024}')
    A('s_lshl_b32 s25, s19, 12')
    A('s_add_u32 s24, s24, s25')
    A(f's_add_u32 s24, s24, {W2F}')
    A(f's_add_u32 s25, s24, {56*1024}')
    for jj in range(2):
        A('s_waitcnt vmcnt(8)')
        R = (R0, R1)[jj]
        T = T0 + 32*jj
        for col in range(8):
            m, o = col >> 1, col & 1
            for k in range(4):
                A(f'v_perm_b32 {v(T+4*col+k)}, {v(R+4*(2*k+1)+m)}, {v(R+4*(2*k)+m)}, {"s21" if o else "s20"}')
        for col in range(8):
            A(f'buffer_store_dwordx4 {v(T+4*col,4)}, v1, s[4:7], {s(24+(col&1))} offen offset:{jj*2048+(col>>1)*16}{st}')
    A.label(Lend)
    A('v_lshlrev_b32 v1, 4, v0')


K1TS = False
K1ONLY = None
def k1stamp(A, slot):
    if not K1TS: return
    A('s_waitcnt vmcnt(0)')
    A('s_memrealtime s[36:37]')
    A('s_lshl_b32 s34, s2, 2'); A('s_add_u32 s34, s34, s3'); A('s_lshl_b32 s34, s34, 4'); A(f's_add_u32 s34, s34, {PROF + slot*4}')
    A('s_waitcnt lgkmcnt(0)')
    A('v_mov_b32 v214, s36'); A('v_mov_b32 v215, 0')
    A('buffer_store_dword v214, v215, s[4:7], s34 offen')

def gen_k1(A):
    A.label('k1_kernel')
    Lend = 'k1_end'
    A(f's_cmp_ge_u32 s2, {K1_NWG}')
    A(f's_cbranch_scc1 {Lend}')
    srd(A, 4, 104, WS_END)
    A('v_lshrrev_b32 v1, 6, v0')
    A('v_and_b32 v0, 63, v0')
    A('v_readfirstlane_b32 s3, v1')
    A('v_lshrrev_b32 v2, 4, v0')
    A('v_and_b32 v3, 15, v0')
    A('v_lshlrev_b32 v4, 4, v0')
    A('s_mov_b32 s20, 0x05040100')
    A('s_mov_b32 s21, 0x07060302')
    k1stamp(A, 0)
    A(f's_cmp_ge_u32 s2, {K1_LN0}')
    A('s_cbranch_scc1 k1_init')
    A('s_lshr_b32 s16, s2, 3')
    sdivmod(A, 17, 19, 16, 7, 32)
    A('s_and_b32 s16, s2, 6'); A('s_lshl_b32 s16, s16, 1'); A('s_add_u32 s17, s17, s16')
    A('s_branch k1_MN')
    A.label('k1_LN')
    if K1ONLY and 'L' not in K1ONLY: A('s_endpgm')
    srd(A, 8, 0, SZ_X)
    A(f's_sub_u32 s16, s2, {K1_LN0}')
    A('s_lshl_b32 s16, s16, 2')
    A('s_add_u32 s16, s16, s3')
    A('s_mul_i32 s17, s16, %d' % (16*896))
    A('v_mul_u32_u24 v5, 896, v3')
    A('v_lshl_add_u32 v5, v2, 4, v5')
    A('s_waitcnt lgkmcnt(0)')
    RAW, XF = 8, 64
    for kk in range(14):
        A(f'buffer_load_dwordx4 {v(RAW+4*kk,4)}, v5, s[8:11], s17 offen offset:{64*kk}')
    A('v_mov_b32 v6, 0')
    A('v_mov_b32 v7, 0')
    for kk in range(14):
        A(f's_waitcnt vmcnt({13-kk})')
        for d in range(4):
            i = 4*kk+d
            A(f'v_lshlrev_b32 {v(XF+2*i)}, 16, {v(RAW+i)}')
            A(f'v_and_b32 {v(XF+2*i+1)}, 0xffff0000, {v(RAW+i)}')
            A(f'v_add_f32 v6, v6, {v(XF+2*i)}')
            A(f'v_add_f32 v7, v7, {v(XF+2*i+1)}')
    def allred(reg, tmp):
        A(f'v_mov_b32 {v(tmp)}, {v(reg)}')
        A('s_nop 1')
        A(f'v_permlane16_swap_b32 {v(reg)}, {v(tmp)}')
        A('s_nop 1')
        A(f'v_add_f32 {v(reg)}, {v(reg)}, {v(tmp)}')
        A(f'v_mov_b32 {v(tmp)}, {v(reg)}')
        A('s_nop 1')
        A(f'v_permlane32_swap_b32 {v(reg)}, {v(tmp)}')
        A('s_nop 1')
        A(f'v_add_f32 {v(reg)}, {v(reg)}, {v(tmp)}')
    A('v_add_f32 v6, v6, v7')
    allred(6, 7)
    import struct
    f2u = lambda f: struct.unpack('<I', struct.pack('<f', f))[0]
    A(f'v_mul_f32 v6, 0x{f2u(1.0/448):08x}, v6')
    A('v_mov_b32 v176, 0')
    A('v_mov_b32 v177, 0')
    for i in range(56):
        A(f'v_sub_f32 v178, {v(XF+2*i)}, v6')
        A(f'v_sub_f32 v179, {v(XF+2*i+1)}, v6')
        A('v_fmac_f32 v176, v178, v178')
        A('v_fmac_f32 v177, v179, v179')
    A('v_add_f32 v176, v176, v177')
    allred(176, 177)
    A(f'v_mul_f32 v176, 0x{f2u(1.0/448):08x}, v176')
    A('v_cvt_pk_bf16_f32 v6, v6, v176')
    A('v_and_b32 v176, 0xffff0000, v6')
    A('v_lshlrev_b32 v6, 16, v6')
    A(f'v_add_f32 v176, 0x{f2u(1e-5):08x}, v176')
    A('v_cvt_pk_bf16_f32 v176, v176, v176')
    A('v_and_b32 v176, 0xffff0000, v176')
    A('v_sqrt_f32 v176, v176')
    A('s_nop 0')
    A('v_cvt_pk_bf16_f32 v176, v176, v176')
    A('v_and_b32 v176, 0xffff0000, v176')
    A('v_rcp_f32 v177, v176')
    A('s_nop 0')
    A('v_fma_f32 v178, -v176, v177, 1.0')
    A('v_fma_f32 v177, v178, v177, v177')
    for i in range(56):
        A(f'v_sub_f32 v178, {v(XF+2*i)}, v6')
        A(f'v_sub_f32 v179, {v(XF+2*i+1)}, v6')
        A('v_cvt_pk_bf16_f32 v178, v178, v179')
        A('v_and_b32 v179, 0xffff0000, v178')
        A('v_lshlrev_b32 v178, 16, v178')
        A('v_mul_f32 v178, v178, v177')
        A('v_mul_f32 v179, v179, v177')
        A(f'v_cvt_pk_bf16_f32 {v(RAW+i)}, v178, v179')
    A('s_mul_i32 s17, s16, %d' % (14*1024))
    A(f's_add_u32 s18, s17, {XNP}')
    if XNF: A(f's_add_u32 s17, s17, {XNF}')
    A('v_and_b32 v5, 1, v2'); A('v_lshlrev_b32 v5, 9, v5')
    A('v_lshrrev_b32 v6, 1, v2'); A('v_lshl_add_u32 v5, v6, 8, v5')
    A('v_lshrrev_b32 v6, 1, v3'); A('v_lshl_add_u32 v6, v6, 4, v5')
    A('v_and_b32 v7, 1, v3'); A('v_lshl_add_u32 v6, v7, 10, v6')
    A('v_cmp_eq_u32 s[22:23], 1, v7')
    A('v_lshl_add_u32 v5, v3, 4, v5')
    A('s_lshr_b32 s19, s16, 1'); A(f's_mul_i32 s19, s19, {28*1024}')
    A('s_and_b32 s24, s16, 1'); A('s_lshl_b32 s24, s24, 7')
    A('s_add_u32 s19, s19, s24'); A(f's_add_u32 s19, s19, {XNS}')
    for kk in range(14):
        if kk % 4 == 0 and kk:
            A('s_add_u32 s17, s17, 4096')
            A('s_add_u32 s18, s18, 4096')
        if kk % 2 == 0 and kk: A('s_add_u32 s19, s19, 4096')
        b = RAW+4*kk
        A(f'buffer_store_dwordx4 {v(b,4)}, v4, s[4:7], s17 offen offset:{(kk%4)*1024}')
        t = XF + 8*kk
        for d in range(4): A(f'v_mov_b32 {v(t+d)}, {v(b+d)}')
        A('s_nop 1')
        A(f'v_permlane32_swap_b32 {v(t)}, {v(t+2)}')
        A(f'v_permlane32_swap_b32 {v(t+1)}, {v(t+3)}')
        A('s_nop 1')
        A(f'buffer_store_dwordx4 {v(t,4)}, v5, s[4:7], s18 offen offset:{(kk%4)*1024}')
        A(f'v_cndmask_b32 v178, {v(t+2)}, {v(t)}, s[22:23]')
        A(f'v_cndmask_b32 v179, {v(t+3)}, {v(t+1)}, s[22:23]')
        A('s_nop 1')
        A('v_mov_b32_dpp v180, v178 quad_perm:[1,0,3,2] row_mask:0xf bank_mask:0xf')
        A('v_mov_b32_dpp v181, v179 quad_perm:[1,0,3,2] row_mask:0xf bank_mask:0xf')
        A(f'v_cndmask_b32 {v(t+4)}, {v(t)}, v180, s[22:23]')
        A(f'v_cndmask_b32 {v(t+5)}, v180, {v(t+2)}, s[22:23]')
        A(f'v_cndmask_b32 {v(t+6)}, {v(t+1)}, v181, s[22:23]')
        A(f'v_cndmask_b32 {v(t+7)}, v181, {v(t+3)}, s[22:23]')
        A(f'buffer_store_dwordx4 {v(t+4,4)}, v6, s[4:7], s19 offen offset:{(kk%2)*2048}')
    k1stamp(A, 1)
    A('s_endpgm')

    A.label('k1_MN')
    ACC, RB, TMP, OUTR = 16, 80, 208, 224
    AFR = lambda t4, ks: 256 + (t4*8+ks)*4
    A('s_and_b32 s16, s2, 1'); A('s_lshl_b32 s16, s16, 4'); A('s_add_u32 s16, s16, 16')
    A('s_load_dwordx2 s[8:9], s[0:1], s16')
    A('s_add_u32 s16, s16, 8')
    A('s_load_dwordx2 s[12:13], s[0:1], s16')
    A(f's_mov_b32 s10, {SZ_W}'); A('s_mov_b32 s11, 0x00020000')
    A(f's_mov_b32 s14, {SZ_W}'); A('s_mov_b32 s15, 0x00020000')
    A('s_lshl_b32 s23, s17, 9')
    A('v_lshrrev_b32 v7, 5, v0'); A('v_and_b32 v6, 31, v0')
    A('v_xor_b32 v5, v6, v7'); A('v_lshlrev_b32 v5, 4, v5'); A('v_lshl_add_u32 v5, v7, 13, v5')
    A('v_lshlrev_b32 v6, 4, v6'); A('v_lshl_add_u32 v6, v7, 13, v6')
    A('v_xor_b32 v7, v2, v3'); A('v_lshlrev_b32 v7, 4, v7')
    A('s_lshl_b32 s24, s3, 15'); A('s_add_u32 s24, s24, 32768')
    for q in range(4):
        A(f'v_xor_b32 {v(8+q)}, {64*q}, v7')
        A(f'v_lshl_add_u32 {v(12+q)}, v3, 10, {v(8+q)}'); A(f'v_add_u32 {v(12+q)}, s24, {v(12+q)}')
        A(f'v_lshl_add_u32 {v(8+q)}, v3, 9, {v(8+q)}')
    A('s_waitcnt lgkmcnt(0)')
    A('s_lshl_b32 s25, s19, 19'); A('s_lshl_b32 s26, s3, 17'); A('s_add_u32 s25, s25, s26'); A('s_add_u32 s25, s25, s23')
    A('s_lshl_b32 s26, s3, 13'); A('s_mov_b32 m0, s26')
    for j in range(8):
        A(f'v_xor_b32 v1, {32*j}, v5')
        A('buffer_load_dwordx4 v1, s[8:11], s25 offen lds')
        A('s_add_u32 s25, s25, 16384'); A('s_add_u32 m0, m0, 1024')
    A('s_mov_b32 s22, s3')
    A('s_bitcmp1_b32 s2, 0')
    A('s_cbranch_scc1 k1_N')
    def readA():
        A('s_barrier')
        for t4 in range(4):
            for ks in range(8):
                A(f'ds_read_b128 {r(AFR(t4,ks),4)}, {v(8+(ks&3))} offset:{t4*8192+(ks>>2)*256}')
    def mfmas(ks, bregs):
        for t4 in range(4):
            for tt in range(4):
                d = ACC + (t4*4+tt)*4
                A(f'v_mfma_f32_16x16x32_bf16 {v(d,4)}, {r(AFR(t4,ks),4)}, {v(bregs[tt],4)}, {"0" if ks == 0 else v(d,4)}')
    def epilogue(base, isM):
        A.nop(10)
        A('s_mul_i32 s28, s17, 28'); A('s_lshl_b32 s29, s22, 2'); A('s_add_u32 s28, s28, s29')
        A('s_mul_i32 s28, s28, 7'); A('s_add_u32 s28, s28, s19'); A('s_lshl_b32 s28, s28, 11')
        A(f's_add_u32 s28, s28, {base}')
        if not isM: A('s_add_u32 s29, s28, 14336')
        for tt in range(4):
            for u in range(2):
                o = OUTR + (tt*2+u)*4
                for ab in range(2):
                    d = ACC + ((u*2+ab)*4+tt)*4
                    if isM:
                        for rr in range(0, 4, 2):
                            A(f'v_pk_mul_f32 {v(d+rr,2)}, {v(d+rr,2)}, s[30:31]')
                    A(f'v_cvt_pk_bf16_f32 {v(o+2*ab)}, {v(d)}, {v(d+1)}')
                    A(f'v_cvt_pk_bf16_f32 {v(o+2*ab+1)}, {v(d+2)}, {v(d+3)}')
                if isM: A(f'buffer_store_dwordx4 {v(o,4)}, v4, s[4:7], s28 offen offset:{u*1024}')
                else: A(f'buffer_store_dwordx4 {v(o,4)}, v4, s[4:7], {"s29" if tt&1 else "s28"} offen offset:{u*1024+(tt>>1)*16}')
            if tt < 3 and isM: A(f's_add_u32 s28, s28, {7*2048}')
    A('s_mov_b32 s30, 0x3d800000'); A('s_mov_b32 s31, 0x3d800000')
    def dmaB(blk_add):
        A(f's_add_u32 s25, s22, {blk_add}'); A('s_lshl_b32 s25, s25, 19'); A('s_add_u32 s25, s25, s23')
        A('s_mov_b32 m0, s24')
        for j in range(32):
            A(f'v_xor_b32 v1, {16*(j&15)}, v6')
            A('buffer_load_dwordx4 v1, s[12:15], s25 offen lds')
            A('s_add_u32 s25, s25, 16384'); A('s_add_u32 m0, m0, 1024')
    def readB():
        for ks in range(8):
            for tt in range(4):
                A(f'ds_read_b128 {v(RB+(ks*4+tt)*4,4)}, {v(12+(ks&3))} offset:{(tt>>1)*16384+(tt&1)*512+(ks>>2)*256}')
    dmaB(0)
    A('s_waitcnt vmcnt(32)')
    readA()
    A('s_waitcnt vmcnt(0)')
    readB()
    A('s_waitcnt lgkmcnt(0)')
    A('s_cmp_eq_u32 s3, 3'); A('s_cbranch_scc1 k1_M1')
    dmaB(4)
    A.label('k1_M1')
    for ks in range(8): mfmas(ks, [RB+(ks*4+tt)*4 for tt in range(4)])
    A('s_cmp_eq_u32 s3, 3'); A('s_cbranch_scc1 k1_M2')
    A('s_waitcnt vmcnt(0)')
    readB()
    epilogue(MC, True)
    A('s_add_u32 s22, s22, 4')
    A('s_waitcnt lgkmcnt(0)')
    for ks in range(8): mfmas(ks, [RB+(ks*4+tt)*4 for tt in range(4)])
    A.label('k1_M2')
    epilogue(MC, True)
    k1stamp(A, 1)
    A('s_endpgm')
    A.label('k1_N')
    A(f'v_mul_u32_u24 v6, {8*896}, v2'); A('v_lshl_add_u32 v6, v3, 3, v6'); A(f'v_add_u32 v7, {4*896}, v6')
    A('v_lshrrev_b32 v4, 3, v3'); A(f'v_mul_u32_u24 v4, {2*14336}, v4'); A('v_lshl_add_u32 v4, v2, 8, v4')
    A('v_and_b32 v5, 7, v3'); A('v_lshl_add_u32 v4, v5, 5, v4')
    A('s_mul_i32 s26, s17, 229376'); A('s_lshl_b32 s27, s22, 7'); A('s_add_u32 s26, s26, s27')
    def loadW(ks, add):
        A(f's_add_u32 s27, s26, {ks*32*896+add}')
        for ee in range(8):
            A(f'buffer_load_dwordx2 {v(RB+16*ks+2*ee,2)}, {"v6" if ee<4 else "v7"}, s[12:15], s27 offen offset:{(ee&3)*896}')
    for ks in range(6): loadW(ks, 0)
    A('s_waitcnt vmcnt(48)')
    for ks in range(6, 8): loadW(ks, 0)
    readA()
    A('s_waitcnt lgkmcnt(0)')
    def nblock(reload):
        for ks in range(8):
            A(f's_waitcnt vmcnt({min(63, 8*(7-ks) + (8*ks if reload else 0))})')
            L = RB+16*ks
            for j in range(4):
                for m in range(4):
                    A(f'v_perm_b32 {v(TMP+4*j+m)}, {v(L+2*(2*m+1)+(j>>1))}, {v(L+2*(2*m)+(j>>1))}, {"s21" if j&1 else "s20"}')
            if reload: loadW(ks, 512)
            else: A('s_nop 1')
            mfmas(ks, [TMP+4*j for j in range(4)])
    A('s_cmp_eq_u32 s3, 3'); A('s_cbranch_scc1 k1_N2')
    nblock(True)
    A('s_waitcnt vmcnt(0)')
    epilogue(NC, False)
    A('s_add_u32 s22, s22, 4')
    A('s_waitcnt vmcnt(0)')
    A.label('k1_N2')
    nblock(False)
    epilogue(NC, False)
    k1stamp(A, 1)
    A('s_endpgm')

    A.label('k1_init')
    if K1ONLY and 'I' not in K1ONLY: A('s_endpgm')
    srd(A, 8, 8, SZ_MEM0)
    A('s_lshl_b32 s16, s3, 6')
    A('v_add_u32 v5, s16, v0')
    A('v_mov_b32 v8, -1'); A('v_mov_b32 v9, -1'); A('v_mov_b32 v10, -1'); A('v_mov_b32 v11, -1')
    A('v_lshlrev_b32 v6, 4, v5')
    A(f's_sub_u32 s22, s2, {K1_I0}'); A('s_lshl_b32 s23, s22, 12')
    A('v_mov_b32 v12, 0'); A('v_mov_b32 v13, 0'); A('v_mov_b32 v14, 0'); A('v_mov_b32 v15, 0')
    A('s_waitcnt lgkmcnt(0)')
    for nm, lo, hi, reg in (('a', MEMR + KC*8192, FLAGS, 8), ('b', MEMG+8192, MEMG+64*8192, 8), ('c', FLAGS, PROF, 12)):
        assert (hi-lo) % 4096 == 0
        A(f's_add_u32 s17, s23, {lo}')
        A.label('k1_fill'+nm)
        A(f's_cmp_ge_u32 s17, {hi}')
        A('s_cbranch_scc1 k1_fille'+nm)
        A(f'buffer_store_dwordx4 {v(reg,4)}, v6, s[4:7], s17 offen')
        A(f's_add_u32 s17, s17, {4096*K1_NI}')
        A('s_branch k1_fill'+nm)
        A.label('k1_fille'+nm)
    A('s_cmp_lg_u32 s22, 0')
    A('s_cbranch_scc1 k1_iend')
    for it in range(2):
        A(f'v_add_u32 v7, {256*it}, v5')
        A('v_and_b32 v16, 7, v7')
        A('v_mul_u32_u24 v16, 896, v16')
        A('v_lshrrev_b32 v17, 3, v7')
        A('v_lshl_add_u32 v16, v17, 4, v16')
        A('v_lshlrev_b32 v17, 4, v7')
        A('v_cmp_gt_u32 vcc, 448, v7')
        A('s_and_saveexec_b64 s[18:19], vcc')
        Ls = A.newlabel('k1_skip')
        A(f's_cbranch_execz {Ls}')
        A('buffer_load_dwordx4 v[20:23], v16, s[8:11], 0 offen')
        A('s_waitcnt vmcnt(0)')
        for d in range(4):
            A(f'v_min_u32 {v(20+d)}, 0xfffffffe, {v(20+d)}')
        for cp in range(KC):
            A(f's_mov_b32 s17, {MEMR + cp*8192}')
            A('buffer_store_dwordx4 v[20:23], v17, s[4:7], s17 offen')
        A(f's_mov_b32 s17, {MEMG}')
        A('buffer_store_dwordx4 v[20:23], v17, s[4:7], s17 offen')
        A(f's_mov_b32 s17, {MEMG2}')
        A('buffer_store_dwordx4 v[20:23], v17, s[4:7], s17 offen')
        A('s_waitcnt vmcnt(0)')
        A.label(Ls)
        A('s_mov_b64 exec, s[18:19]')
    A.label('k1_iend')
    A('s_branch k1_LN')
    A.label(Lend)
    A('s_endpgm')
    return dict(name='k1_kernel', grid=K1_NWG, block=256, lds=163840, vgpr=256, sgpr=40, agpr=128)
```

```python
from asmlib import *
from layout import *
from k1 import sdivmod, srd, SZ_X, reformat
from wk import prologue, wsgemm, tstamp
import chain, wk2
from wk2 import spin_wait, phase_f2, phase_s, phase_o, phase_yw

NS = 128
def set_flag(A, ph, release=False):
    A('s_waitcnt vmcnt(0)')
    A('s_barrier')
    Ls = A.newlabel('sf')
    A('s_cmp_lg_u32 s3, 0'); A(f's_cbranch_scc1 {Ls}')
    if release:
        Lr = A.newlabel('sfr')
        A('s_cmp_ge_u32 s96, 74'); A(f's_cbranch_scc1 {Lr}')
        A('buffer_wbl2 sc1'); A('s_waitcnt vmcnt(0)')
        A.label(Lr)
    A('v_mov_b32 v2, 1')
    A('s_lshl_b32 s16, s96, 2'); A(f's_add_u32 s16, s16, {WFL + ph*1024}')
    A('v_mov_b32 v3, 0')
    A('s_mov_b64 exec, 1')
    A('buffer_store_dword v2, v3, s[4:7], s16 offen sc1')
    A('s_mov_b64 exec, -1')
    A.label(Ls)

def wait_flags(A, ph, fail, vt=2, sleep=16):
    Lw = A.newlabel('wfl')
    A('s_cmp_lg_u32 s3, 0'); A(f's_cbranch_scc1 {Lw}')
    A(f'v_mbcnt_lo_u32_b32 {v(vt)}, -1, 0'); A(f'v_mbcnt_hi_u32_b32 {v(vt)}, -1, {v(vt)}')
    A(f'v_min_u32 {v(vt)}, 55, {v(vt)}'); A(f'v_lshlrev_b32 {v(vt)}, 4, {v(vt)}')
    A(f's_mov_b32 s16, {WFL + ph*1024}')
    d = vt + 2 if (vt + 2) % 2 == 0 else vt + 1
    def chk():
        A(f'v_min3_u32 {v(vt+1) if d != vt+1 else v(d)}, {v(d)}, {v(d+1)}, {v(d+2)}') if False else None
        A(f'v_min_u32 {v(d)}, {v(d)}, {v(d+1)}'); A(f'v_min3_u32 {v(d)}, {v(d)}, {v(d+2)}, {v(d+3)}')
        A(f'v_cmp_eq_u32 vcc, 0, {v(d)}')
    spin_wait(A, lambda: A(f'buffer_load_dwordx4 {v(d,4)}, {v(vt)}, s[4:7], s16 offen sc1'), chk, fail, sleep=sleep)
    A.label(Lw)
    A('s_barrier')

def gen_k2(A):
    A.label('k2_kernel')
    A('s_cmp_ge_u32 s2, 256')
    A('s_cbranch_scc1 k2_end')
    prologue(A)
    tstamp(A, 0, 2, 3)
    A('s_and_b32 s16, s2, 7')
    A('s_lshr_b32 s15, s2, 3')
    A('s_cmp_lg_u32 s16, 0')
    A('s_cbranch_scc1 k2_worker')
    chain.NROLE = 31
    chain.gen_chain_body(A, 'k2_end', 'k2_end', merged=True)
    A.label('k2_worker')
    A('s_mul_i32 s96, s15, 7'); A('s_add_u32 s96, s96, s16'); A('s_sub_u32 s96, s96, 1')
    A('s_sub_u32 s91, s16, 1'); A('s_mov_b32 s92, s15')
    srd(A, 8, 0, SZ_X); srd(A, 12, 88, SZ_X)
    wsgemm(A, 'U', wid=96, st_flags=' sc1')
    reformat(A, 96, '')
    set_flag(A, 3, release=True)
    tstamp(A, 1, 2, 3)
    wait_flags(A, 3, 'k2_end')
    wsgemm(A, 'F1', wid=96, st_flags=' sc1')
    set_flag(A, 1)
    tstamp(A, 2, 2, 3)
    wait_flags(A, 1, 'k2_end')
    tstamp(A, 3, 2, 3)
    phase_f2(A, 96, st=' sc1')
    set_flag(A, 2)
    tstamp(A, 4, 2, 3)
    A('s_mov_b32 s93, 0')
    if chain.DBG_NOITEM: A('s_branch k2_end')
    A('s_cmp_lt_u32 s92, 28')
    A('s_cbranch_scc1 k2_so')
    A('s_sub_u32 s32, s92, 28'); A('s_lshl_b32 s33, s91, 2'); A('s_add_u32 s32, s32, s33')
    phase_yw(A, 32, 'k2_end')
    A('s_branch k2_end')
    A.label('k2_so')
    A('s_cmp_ge_u32 s92, 19')
    A('s_cbranch_scc1 k2_ow')
    A('s_mul_i32 s97, s91, 19'); A('s_add_u32 s97, s97, s92')
    A('s_cmp_ge_u32 s97, 128'); A('s_cbranch_scc1 k2_end')
    A('s_lshr_b32 s32, s97, 3'); A('s_and_b32 s33, s97, 7')
    A.label('k2_sitem')
    phase_s(A, 32, 33, 'k2_end', True)
    tstamp(A, 6, 2, 3, sreg=93)
    A('s_add_u32 s93, s93, 1')
    A('s_add_u32 s33, s33, 8')
    A('s_cmp_lt_u32 s33, 16')
    A('s_cbranch_scc1 k2_sitem')
    A('s_branch k2_end')
    A.label('k2_ow')
    wait_flags(A, 2, 'k2_end')
    A('s_sub_u32 s34, s92, 19'); A('s_mov_b32 s35, s91')
    A.label('k2_oitem')
    phase_o(A, 34, 35, 'k2_end', True)
    tstamp(A, 6, 2, 3, sreg=93)
    A('s_add_u32 s93, s93, 1')
    A('s_add_u32 s34, s34, 9')
    A('s_cmp_lt_u32 s34, 64')
    A('s_cbranch_scc1 k2_oitem')
    A.label('k2_end')
    A('s_endpgm')
    return dict(name='k2_kernel', grid=256, block=256, lds=wk2.W_LDS, vgpr=256, sgpr=100, agpr=256)
```

```python
from asmlib import *
from layout import *
from k1 import sdivmod, srd, SZ_X
import struct
f2u = lambda f: struct.unpack('<I', struct.pack('<f', f))[0]
LOG2E = 1.4426950408889634

def prologue(A):
    srd(A, 4, 104, WS_END)
    A('v_lshrrev_b32 v1, 6, v0')
    A('v_and_b32 v0, 63, v0')
    A('v_readfirstlane_b32 s3, v1')
    A('v_lshlrev_b32 v1, 4, v0')
    A('s_waitcnt lgkmcnt(0)')

TS = False
def tstamp(A, slot, va=254, vb=255, sreg=None):
    if not TS: return
    A('s_memrealtime s[98:99]')
    A('s_lshl_b32 s94, s2, 2'); A('s_add_u32 s94, s94, s3'); A('s_lshl_b32 s94, s94, 12'); A(f's_add_u32 s94, s94, {PROF + slot*4}')
    if sreg is not None:
        A(f's_lshl_b32 s95, {s(sreg)}, 2'); A('s_add_u32 s94, s94, s95')
    A('s_waitcnt lgkmcnt(0)')
    A(f'v_mov_b32 {v(va)}, s98'); A(f'v_mov_b32 {v(vb)}, 0')
    A(f'buffer_store_dword {v(va)}, {v(vb)}, s[4:7], s94 offen')

def load_frags(A, regs, soff, tmp_s, flags=''):
    for i, rg in enumerate(regs):
        if i % 4 == 0:
            if i == 0: A(f's_mov_b32 {s(tmp_s)}, {s(soff)}')
            else: A(f's_add_u32 {s(tmp_s)}, {s(tmp_s)}, 4096')
        A(f'buffer_load_dwordx4 {r(rg,4)}, v1, s[4:7], {s(tmp_s)} offen offset:{(i%4)*1024}{flags}')

def silu_bf(A, x, t):
    A(f'v_mul_f32 {v(t)}, 0x{f2u(-LOG2E):08x}, {v(x)}')
    A(f'v_exp_f32 {v(t)}, {v(t)}')
    A('s_nop 0')
    A(f'v_add_f32 {v(t)}, 1.0, {v(t)}')
    A(f'v_rcp_f32 {v(t)}, {v(t)}')
    A('s_nop 0')
    A(f'v_mul_f32 {v(x)}, {v(x)}, {v(t)}')

def wsgemm(A, kind, wid=2, st_flags=''):
    W = lambda tl, kk: 256 + (tl*14+kk)*4
    ACCS, OUT = [16, 48], 80
    XR = [96 + 4*i for i in range(8)]
    ncls, nseg = (8, 8) if kind == 'U' else (16, 4)
    sh = 3 if kind == 'U' else 4
    NB, SB = 4, 28*1024
    A(f's_and_b32 s16, s92, {ncls-1}')
    A(f's_lshr_b32 s17, s92, {sh}')
    A(f's_lshl_b32 s18, s91, {5-sh}')
    A('s_add_u32 s17, s17, s18')
    A('s_lshl_b32 s17, s17, 2')
    A('s_add_u32 s17, s17, s3')
    if kind == 'U':
        sdivmod(A, 22, 23, 17, 14, 112)
        A(f's_mul_i32 s18, s22, {2*28*14*1024}')
        A(f's_mul_i32 s23, s23, {2*14*1024}')
        A('s_add_u32 s18, s18, s23')
        A(f's_add_u32 s18, s18, {NC}')
        toff = [0, 14*1024, 28*14*1024, 28*14*1024+14*1024]
    else:
        A(f's_mul_i32 s18, s17, {56*1024}')
        A(f's_add_u32 s18, s18, {W13}')
        toff = [0, 14*1024, 28*1024, 42*1024]
    xbase = XNP if kind == 'U' else XNF
    A(f's_mul_i32 s24, s3, {7*1024}')
    A(f's_mul_i32 s19, s16, {28*1024}')
    A('s_add_u32 s19, s19, s24')
    A(f's_add_u32 s19, s19, {xbase}')
    def dma(it):
        for half in range(2):
            A(f's_add_u32 s22, s24, {(it % NB)*SB + half*4096}')
            A('s_mov_b32 m0, s22')
            A(f's_add_u32 s23, s19, {it*ncls*28*1024 + half*4096}')
            for j in range(4 if half == 0 else 3):
                A(f'buffer_load_dwordx4 v1, s[4:7], s23 offen offset:{j*1024} lds')
    A('s_barrier')
    dma(0)
    for tl in range(4): A(f's_add_u32 {s(26+tl)}, s18, {toff[tl]}')
    for kc in range(4):
        for tl in range(4):
            for kk in range(4*kc, min(4*kc+4, 14)):
                A(f'buffer_load_dwordx4 {r(W(tl,kk),4)}, v1, s[4:7], {s(26+tl)} offen offset:{(kk%4)*1024}')
            if kc < 3: A(f's_add_u32 {s(26+tl)}, {s(26+tl)}, 4096')
    if kind == 'U':
        A(f's_mul_i32 s21, s16, {16*28*1024}'); A('s_lshl_b32 s22, s17, 12'); A('s_add_u32 s21, s21, s22'); A(f's_add_u32 s21, s21, {UF}')
        dstep = ncls*16*28*1024
    else:
        A(f's_mul_i32 s21, s16, {2*56*1024}'); A('s_lshl_b32 s22, s17, 10'); A('s_add_u32 s21, s21, s22'); A(f's_add_u32 s21, s21, {HF}')
        dstep = ncls*2*56*1024
    flags = kind == 'U' and st_flags
    def uflag(rnd):
        A('s_mov_b64 exec, 1')
        A(f'buffer_store_dword v2, v3, s[4:7], s25 offen offset:{rnd*4} sc1')
        A('s_mov_b64 exec, -1')
    if flags:
        A('s_lshl_b32 s25, s17, 3'); A('s_add_u32 s25, s25, s16'); A('s_lshl_b32 s25, s25, 5'); A(f's_add_u32 s25, s25, {UFL}')
        A('v_mov_b32 v2, 1'); A('v_mov_b32 v3, 0')
    A(f'v_add_u32 v4, {2*SB}, v1')
    vq = ['d0']*7 + [('w', kc) for kc in range(4) for _ in range(16 if kc < 3 else 8)]
    def vneed(name):
        if name not in vq: return
        i = len(vq) - 1 - vq[::-1].index(name)
        n = len(vq) - 1 - i
        A(f's_waitcnt vmcnt({min(n,63)})')
        assert n <= 63
        del vq[:i+1]
    def epilogue(it):
        ACC = ACCS[it & 1]; I = []
        if kind == 'U':
            for ct in range(2):
                for tt in range(2):
                    o = OUT + 4*(ct*2+tt)
                    da = ACC + ((ct)*2+tt)*4; db = ACC + ((2+ct)*2+tt)*4
                    I += [f'v_cvt_pk_bf16_f32 {v(o)}, {v(da)}, {v(da+1)}', f'v_cvt_pk_bf16_f32 {v(o+1)}, {v(db)}, {v(db+1)}',
                          f'v_cvt_pk_bf16_f32 {v(o+2)}, {v(da+2)}, {v(da+3)}', f'v_cvt_pk_bf16_f32 {v(o+3)}, {v(db+2)}, {v(db+3)}',
                          ('st', f'buffer_store_dwordx4 {v(o,4)}, v1, s[4:7], s21 offen offset:{(ct*2+tt)*1024}{st_flags}')]
        else:
            B_ = Asm()
            for tt in range(2):
                o = OUT + 4*tt
                for ab in range(2):
                    gd = ACC + ((ab*2+0)*2+tt)*4; ud = ACC + ((ab*2+1)*2+tt)*4
                    for p in range(2):
                        g0, g1, u0, u1 = gd+2*p, gd+2*p+1, ud+2*p, ud+2*p+1
                        B_(f'v_cvt_pk_bf16_f32 v8, {v(g0)}, {v(g1)}'); B_(f'v_cvt_pk_bf16_f32 v9, {v(u0)}, {v(u1)}')
                        B_(f'v_lshlrev_b32 {v(g0)}, 16, v8'); B_(f'v_and_b32 {v(g1)}, 0xffff0000, v8')
                        B_(f'v_lshlrev_b32 {v(u0)}, 16, v9'); B_(f'v_and_b32 {v(u1)}, 0xffff0000, v9')
                        silu_bf(B_, g0, 10); silu_bf(B_, g1, 11)
                        B_(f'v_cvt_pk_bf16_f32 v8, {v(g0)}, {v(g1)}')
                        B_(f'v_lshlrev_b32 {v(g0)}, 16, v8'); B_(f'v_and_b32 {v(g1)}, 0xffff0000, v8')
                        B_(f'v_mul_f32 {v(g0)}, {v(g0)}, {v(u0)}'); B_(f'v_mul_f32 {v(g1)}, {v(g1)}, {v(u1)}')
                        B_(f'v_cvt_pk_bf16_f32 {v(o+2*ab+p)}, {v(g0)}, {v(g1)}')
                if tt: B_(f's_add_u32 s22, s21, {56*1024}')
                B_.lines.append(('st', f'buffer_store_dwordx4 {v(o,4)}, v1, s[4:7], {"s22" if tt else "s21"} offen{st_flags}'))
            I = [x.strip() if isinstance(x, str) else x for x in B_.lines]
        I.append(f's_add_u32 s21, s21, {dstep}')
        return I
    def emit(x, it):
        if isinstance(x, tuple): A(x[1]); vq.append(('s', it))
        else: A(x)
    pend = []
    for it in range(nseg):
        ACC = ACCS[it & 1]
        vneed(f'd{it}')
        A('s_barrier')
        for nx in ([1, 2] if it == 0 else [it+2]):
            if nx < nseg: dma(nx); vq.extend([f'd{nx}']*7)
        base = (it % NB)*SB
        ar, ab_ = ('v1', base) if base < 2*SB else ('v4', base-2*SB)
        def rdx(kk):
            for tt in range(2): A(f'ds_read_b128 {v(XR[(kk%4)*2+tt],4)}, {ar} offset:{ab_+(tt*14+kk)*1024}')
        for kk in range(3): rdx(kk)
        per = (len(pend) + 95) // 96
        n = 0
        for kk in range(14):
            if it == 0 and kk % 4 == 0: vneed(('w', kk//4))
            if kk+3 < 14: rdx(kk+3)
            A(f's_waitcnt lgkmcnt({2*min(3, 13-kk)})')
            for tl in range(4):
                for tt in range(2):
                    d = ACC + (tl*2+tt)*4
                    c = '0' if kk == 0 else v(d, 4)
                    xw, ww = v(XR[(kk%4)*2+tt], 4), r(W(tl, kk), 4)
                    if kind == 'U': A(f'v_mfma_f32_16x16x32_bf16 {v(d,4)}, {xw}, {ww}, {c}')
                    else: A(f'v_mfma_f32_16x16x32_bf16 {v(d,4)}, {ww}, {xw}, {c}')
                    n += 1
                    if n > 8:
                        for _ in range(per):
                            if pend: emit(pend.pop(0), it-1)
            if flags and kk == 13 and it > 0:
                vneed(('s', it-1)); uflag(it-1); vq.append('f')
        assert not pend
        if TS and kind == 'U':
            A(f's_memrealtime {s(70+2*it,2)}')
        pend = epilogue(it)
    A.nop(8)
    for x in pend: emit(x, nseg-1)
    if flags:
        A('s_waitcnt vmcnt(0)')
        uflag(nseg-1)
    if TS and kind == 'U':
        A('s_lshl_b32 s94, s2, 2'); A('s_add_u32 s94, s94, s3'); A('s_lshl_b32 s94, s94, 12'); A(f's_add_u32 s94, s94, {PROF + 200*4}')
        A('s_waitcnt lgkmcnt(0)')
        for it in range(8):
            A(f'v_mov_b32 v8, {s(70+2*it)}'); A('v_mov_b32 v9, 0')
            A(f'buffer_store_dword v8, v9, s[4:7], s94 offen offset:{4*it}')

def gen_k2(A):
    A.label('k2_kernel')
    A('s_cmp_ge_u32 s2, 224')
    A('s_cbranch_scc1 k2_end')
    prologue(A)
    wsgemm(A, 'U')
    wsgemm(A, 'F1')
    A.label('k2_end')
    A('s_endpgm')
    return dict(name='k2_kernel', grid=224, block=256, lds=0, vgpr=256, sgpr=40, agpr=256)
```

```python
from asmlib import *
from layout import *
from k1 import sdivmod, srd
from wk import prologue, load_frags, f2u, LOG2E, tstamp, wait_words, mnf_addr

STG, XB, XS_ = 0, 8192, 576
RED, WL = 8192, 16384
CHAIN_LDS = WL + 4*14*1024
SPIN = 200000
NSTEP = 63
PROFILE = False
EWPOS = 0
QUICK = False
UEARLY = 1
PFS = 128
VFLAG = 0
LAT = 0
PREF = 0
POLLALL = 1
DBG_NOYW = 0
DBG_NOYF = 0
WBSTEP = 4
WBLAST = 2
NROLE = 30
DBG_NOITEM = DBG_PLAIN = 0
DBG_U0 = DBG_X0 = DBG_NOY = 0
BDEL = 8
STAG = 24
EWM_POS = 0

def stamp(A, i):
    if PROFILE and not LAT: A(f's_memrealtime {s(50+2*i,2)}')
def stamp_flush(A, n, tmp, tmp2):
    if not PROFILE: return
    A('s_waitcnt lgkmcnt(0)')
    for i in range(n): A(f'v_writelane_b32 {v(tmp)}, {s(50+2*i)}, {i}')
    A(f'v_mbcnt_lo_u32_b32 {v(tmp2)}, -1, 0')
    A(f'v_lshlrev_b32 {v(tmp2)}, 2, {v(tmp2)}')
    A('s_lshl_b32 s48, s20, 6')
    A('s_add_u32 s48, s48, s49')
    A('s_mov_b64 s[68:69], exec')
    A('s_mov_b64 exec, 0xffff')
    A(f'buffer_store_dword {v(tmp)}, {v(tmp2)}, s[4:7], s48 offen')
    A('s_mov_b64 exec, s[68:69]')
def stamp_init(A):
    if not PROFILE: return
    A('s_lshl_b32 s49, s15, 2'); A('s_add_u32 s49, s49, s3'); A('s_lshl_b32 s49, s49, 12')
    A(f's_add_u32 s49, s49, {PROF}')

class Lds:
    def __init__(self, A): self.A = A; self.q = []
    def op(self, name, ins): self.A(ins); self.q.append(name)
    def need(self, name):
        if name not in self.q: return
        i = self.q.index(name)
        n = len(self.q) - 1 - i
        self.A(f's_waitcnt lgkmcnt({min(n,15)})')
        self.q = self.q[i+1:] if n <= 15 else self.q
    def drain(self):
        self.A('s_waitcnt lgkmcnt(0)'); self.q = []

def smf(A, d, a_, b):
    A(f'v_smfmac_f32_16x16x64_bf16 {v(d,4)}, {r(a_,4)}, {r(b,8)}, v2')

NF = 2
def common_setup(A):
    A('v_and_b32 v11, 8, v0')
    A('v_cmp_eq_u32 vcc, 0, v11')
    A('v_mov_b32 v2, 0xeeee')
    A('v_mov_b32 v11, 0x4444')
    A('v_cndmask_b32 v2, v2, v11, vcc')
    A('v_lshrrev_b32 v11, 4, v0'); A('v_lshlrev_b32 v8, 7, v11')
    A('v_and_b32 v11, 7, v0'); A('v_lshl_add_u32 v8, v11, 4, v8')
    A('s_mul_i32 s16, s3, 112')
    A('v_add_u32 v3, s16, v0'); A('v_lshlrev_b32 v3, 4, v3')
    A('v_min_u32 v4, 47, v0'); A('v_add_u32 v4, s16, v4'); A('v_add_u32 v4, 64, v4'); A('v_lshlrev_b32 v4, 4, v4')
    A('v_min_u32 v5, 13, v0'); A('v_lshlrev_b32 v5, 2, v5')
    A(f's_mov_b32 s40, {EWM}')
    A(f's_mov_b32 s41, {EWP}')
    A('s_lshl_b32 s16, s15, 8')
    A('s_add_u32 s46, s40, s16')
    A('s_add_u32 s47, s41, s16')
    A('s_mov_b64 s[42:43], 0xffff')

def step_addr(A):
    A('s_and_b32 s21, s20, 3')
    A(f's_lshl_b32 s24, s21, 14')
    A(f's_add_u32 s24, s24, {MEMR}')
    A('s_add_u32 s25, s24, 8192')
    A(f's_lshl_b32 s26, s21, 15')
    A(f's_add_u32 s26, s26, {PR}')
    A('s_add_u32 s45, s26, 16384')
    A('s_xor_b32 s22, s21, 2')
    A(f's_lshl_b32 s27, s22, 15')
    A(f's_add_u32 s27, s27, {PR}')
    A('s_add_u32 s44, s20, 1')
    A('s_and_b32 s22, s44, 3')
    A(f's_lshl_b32 s28, s22, 14')
    A(f's_add_u32 s28, s28, {MEMR}')
    A('s_xor_b32 s22, s22, 2')
    A(f's_lshl_b32 s29, s22, 14')
    A(f's_add_u32 s29, s29, {MEMR}')

def store_flag(A, voff, base, st, tmp):
    A(f'v_mov_b32 {v(tmp)}, s44')
    if base == 's41': A('s_mov_b32 exec_lo, 0')
    A(f'buffer_store_dword {v(tmp)}, {v(voff)}, s[4:7], {base} offen{st}')
    if base == 's41': A('s_mov_b32 exec_lo, -1')

def wait_flag(A, voff, base, want, regs, fail, poller):
    nf = NF
    Lb = A.newlabel('wfb')
    if poller is not None or POLLALL:
        L = A.newlabel('wf'); Lok = A.newlabel('wfo')
        if not POLLALL:
            A(f's_cmp_lg_u32 s3, {poller}')
            A(f's_cbranch_scc1 {Lb}')
        A(f's_mov_b32 s30, {SPIN}')
        A('s_mov_b64 exec, s[42:43]')
        def issue(k): A(f'buffer_load_dword {v(regs[k])}, {v(voff)}, s[4:7], {base} offen offset:{k*128} sc1')
        for k in range(nf-1):
            issue(k); A.nop(52//nf)
        A.label(L)
        for k in range(nf):
            issue((k+nf-1) % nf)
            A(f's_waitcnt vmcnt({nf-1})')
            A(f'v_cmp_gt_u32 vcc, {want}, {v(regs[k])}')
            A(f's_cbranch_vccz {Lok}')
        A('s_sub_u32 s30, s30, 1')
        A('s_cmp_lg_u32 s30, 0')
        A(f's_cbranch_scc1 {L}')
        A('s_mov_b64 exec, -1')
        A(f's_branch {fail}')
        A.label(Lok)
        A('s_mov_b64 exec, -1')
    A.label(Lb)
    if not POLLALL: A('s_barrier')

def poll_mem(A, sets, fail):
    L = A.newlabel('pm'); Lok = A.newlabel('pmo')
    def issue(k):
        so = 's24' if k == 0 else 's25'
        A(f'buffer_load_dwordx4 {v(sets[k],4)}, v3, s[4:7], {so} offen sc1')
        A(f'buffer_load_dwordx4 {v(sets[k]+4,4)}, v4, s[4:7], {so} offen sc1')
    def check(k):
        b = sets[k]
        A(f'ds_write_b128 v3, {v(b,4)}')
        A(f'ds_write_b128 v4, {v(b+4,4)}')
        A(f'v_max3_u32 v0, {v(b)}, {v(b+2)}, {v(b+4)}')
        A(f'v_max_u32 v0, v0, {v(b+6)}')
        A('v_cmp_eq_u32 vcc, -1, v0')
        A(f's_cbranch_vccz {Lok}')
    A(f's_mov_b32 s30, {SPIN}')
    if len(sets) == 1:
        A.label(L)
        issue(0); A('s_waitcnt vmcnt(0)'); check(0)
    else:
        issue(0)
        A.nop(STAG)
        A.label(L)
        issue(1); A('s_waitcnt vmcnt(2)'); check(0)
        issue(0); A('s_waitcnt vmcnt(2)'); check(1)
    A('s_sub_u32 s30, s30, 1')
    A('s_cmp_lg_u32 s30, 0')
    A(f's_cbranch_scc1 {L}')
    A(f's_branch {fail}')
    A.label(Lok)
    stamp(A, 0)
    A('s_waitcnt lgkmcnt(0)')
    A('s_barrier')
    stamp(A, 1)

def post_paired(d0, d1, xreg, xoff, t):
    I = [f'v_cvt_pk_bf16_f32 {v(t+rr)}, {v(d0+rr)}, {v(d1+rr)}' for rr in range(4)]
    W = [f'ds_write_b32 {v(xreg)}, {v(t+rr)} offset:{xoff+16*rr}' for rr in range(4)]
    return I, W
def post_single(d, xreg, xoff):
    I = [f'v_permlane32_swap_b32 {v(d)}, {v(d+1)}', f'v_permlane32_swap_b32 {v(d+2)}, {v(d+3)}',
         f'v_cvt_pk_bf16_f32 {v(d)}, {v(d)}, {v(d+1)}', f'v_cvt_pk_bf16_f32 {v(d+2)}, {v(d+2)}, {v(d+3)}']
    W = [f'ds_write_b32 {v(xreg)}, {v(d)} offset:{xoff}', f'ds_write_b32 {v(xreg)}, {v(d+2)} offset:{xoff+32}']
    return I, W

def x_addrs(A):
    A('v_and_b32 v11, 12, v0'); A('v_mul_u32_u24 v9, 36, v11')
    A('v_and_b32 v11, 3, v0');  A('v_lshl_add_u32 v9, v11, 2, v9')
    A('v_and_b32 v11, 16, v0'); A('v_lshl_add_u32 v9, v11, 2, v9')
    A(f's_mul_i32 s16, s3, {2*XS_}'); A(f's_add_u32 s16, s16, {XB}')
    A('v_add_u32 v9, s16, v9')
    A('v_lshrrev_b32 v11, 5, v0')
    A('v_lshl_add_u32 v10, v11, 4, v9')
    A(f'v_mul_u32_u24 v11, {XS_}, v11')
    A('v_add_u32 v9, v9, v11')

def gen_score(A, st, tag, fail, done):
    Lfin = f'sc_fin_{tag}'
    A('s_cmp_eq_u32 s3, 3')
    A(f's_cbranch_scc1 {Lfin}')
    ACC = [12, 16, 20, 24]
    SL = [28 + 4*i for i in range(9)]
    W = lambda tl, p: 64 + (tl*14+p)*8
    Lloop = f'sc_loop_{tag}'
    A('s_mov_b32 s20, 0')
    A.label(Lloop)
    step_addr(A)
    for k in range(8): A(f'v_mov_b64 {v(12+2*k,2)}, 0')
    wait_flag(A, 5, 's46', 's20', [SL[0]+k for k in range(4)], fail, 0)
    poll_mem(A, [SL[0], SL[2]], fail)
    Q = Lds(A)
    def rd(Q, p, slot):
        Q.op(('r', p), f'ds_read_b128 {v(SL[slot],4)}, v8 offset:{p*512}')
    slot = {}
    for p in range(5): slot[p] = 4+p; rd(Q, p, 4+p)
    for p in range(14):
        Q.need(('r', p))
        smf(A, ACC[0], SL[slot[p]], W(0, p)); smf(A, ACC[1], SL[slot[p]], W(1, p))
        if p == 1:
            A('s_waitcnt vmcnt(0)')
            for pp in range(5, 9): slot[pp] = pp-5; rd(Q, pp, pp-5)
        if 1 <= p < 6: slot[p+8] = slot.pop(p-1); rd(Q, p+8, slot[p+8])
    def phase(tl, order, rer, I, Wr):
        fill = [('v', x) for x in I] + [('w', x) for x in Wr] + [('n', None)]*BDEL + [('b', None)]
        rer = list(rer)
        for n, p in enumerate(order):
            Q.need(('r', p))
            smf(A, ACC[tl], SL[slot[p]], W(tl, p))
            if rer:
                pn = rer.pop(0); slot[pn] = slot.pop(p); rd(Q, pn, slot[pn])
            if n >= 4:
                for _ in range(2):
                    if not fill: break
                    kind, x = fill.pop(0)
                    if kind == 'v': A(x)
                    elif kind == 'w': Q.op('w', x)
                    elif kind == 'n': pass
                    else: Q.drain(); A('s_barrier')
        assert not fill, fill
    I, Wr = post_paired(ACC[0], ACC[1], 9, 0, ACC[0])
    phase(2, [5, 6, 7, 8, 9, 10, 11, 12, 13, 0, 1, 2, 3, 4], [0, 1, 2, 3, 4], I, Wr)
    stamp(A, 2)
    I, Wr = post_single(ACC[2], 10, 8*XS_)
    phase(3, [10, 11, 12, 13, 0, 1, 2, 3, 4, 5, 6, 7, 8, 9], [5, 6, 7, 8, 9], I, Wr)
    stamp(A, 3)
    A.nop(8)
    I, Wr = post_single(ACC[3], 10, 9*XS_)
    for x in I + Wr: A(x)
    A('s_waitcnt lgkmcnt(0)')
    A('s_barrier')
    stamp(A, 4); stamp_flush(A, 5, 0, 1)
    A('s_add_u32 s20, s20, 1')
    A(f's_cmp_lt_u32 s20, {NSTEP}')
    A(f's_cbranch_scc1 {Lloop}')
    A(f's_branch {done}')

    A.label(Lfin)
    ACC = [16, 20]; DX, DM = 24, 28
    PS = [32, 48]
    AF = [64 + 4*p for p in range(14)]
    A2 = [120 + 4*i for i in range(4)]
    T = 136
    XSR = [144 + 8*kk for kk in range(14)]
    W = lambda tl, p: 256 + (tl*14+p)*8
    posof = lambda kk: kk
    A('v_lshlrev_b32 v12, 4, v0')
    A('v_and_b32 v11, 16, v0'); A('v_lshlrev_b32 v1, 2, v11')
    A('v_lshrrev_b32 v11, 5, v0'); A('v_lshl_add_u32 v1, v11, 4, v1')
    A('v_and_b32 v11, 12, v0'); A('v_lshl_add_u32 v13, v11, 6, v1')
    A('v_and_b32 v11, 3, v0'); A('v_lshl_add_u32 v13, v11, 2, v13')
    A('s_lshr_b32 s16, s17, 1'); A('s_lshl_b32 s16, s16, 10')
    A('s_and_b32 s18, s17, 1'); A('s_lshl_b32 s19, s18, 7'); A('s_add_u32 s16, s16, s19')
    A('v_add_u32 v13, s16, v13')
    A('v_and_b32 v11, 8, v0');  A('v_lshl_add_u32 v14, v11, 2, v1')
    A('v_cmp_ne_u32 s[34:35], 0, v11')
    A('v_and_b32 v11, 3, v0');  A('v_lshl_add_u32 v14, v11, 1, v14')
    A('v_and_b32 v11, 4, v0');  A('v_lshl_add_u32 v14, v11, 5, v14')
    A('s_lshr_b32 s16, s17, 2'); A('s_lshl_b32 s16, s16, 9')
    A('s_lshl_b32 s19, s18, 8'); A('s_add_u32 s16, s16, s19')
    A('s_and_b32 s19, s17, 2'); A('s_lshl_b32 s19, s19, 2'); A('s_add_u32 s16, s16, s19')
    A('s_add_u32 s16, s16, 8192'); A('v_add_u32 v14, s16, v14')
    A('s_lshl_b32 s16, s17, 2'); A('v_lshlrev_b32 v6, 7, v0'); A('v_add_u32 v6, s16, v6')
    A('v_lshrrev_b32 v11, 4, v0'); A('v_mul_u32_u24 v15, 144, v11')
    A('v_and_b32 v11, 7, v0'); A('v_lshl_add_u32 v15, v11, 4, v15')
    A(f'v_add_u32 v15, {XB}, v15')
    A(f's_mov_b32 s31, 0x{f2u(LOG2E):08x}')
    A('s_mov_b32 s33, 0x7fff7fff')
    def load_xs():
        for i in range(28):
            if i % 4 == 0:
                if i == 0: A('s_mov_b32 s23, s32')
                else: A('s_add_u32 s23, s23, 4096')
            A(f'buffer_load_dwordx4 {v(XSR[0]+4*i,4)}, v12, s[4:7], s23 offen offset:{(i%4)*1024}')
    A(f's_mov_b32 s32, {XNS}')
    load_xs()
    Lloop = f'sf_loop_{tag}'
    A('s_mov_b32 s20, 0')
    A.label(Lloop)
    if QUICK:
        Lq = A.newlabel('q')
        A('s_cmp_lg_u32 s20, 2'); A(f's_cbranch_scc1 {Lq}'); A('s_memrealtime s[64:65]'); A('s_memtime s[60:61]'); A.label(Lq)
    step_addr(A)
    for k in range(8): A(f'v_mov_b64 {v(16+2*k,2)}, 0')
    wait_flag(A, 5, 's46', 's20', [PS[0]+k for k in range(4)], fail, None)
    poll_mem(A, PS, fail)
    Q = Lds(A)
    for p in range(14):
        Q.op(('r', p), f'ds_read_b128 {v(AF[p],4)}, v8 offset:{p*512}')
    for p in range(14):
        Q.need(('r', p))
        smf(A, ACC[0], AF[p], W(0, p)); smf(A, ACC[1], AF[p], W(1, p))
    A.nop(8)
    I, Wr = post_paired(ACC[0], ACC[1], 9, 0, ACC[0])
    for x in I: A(x)
    for x in Wr: Q.op('w', x)
    nb = [0]
    def rd2(kk2):
        Q.op(('x', kk2), f'ds_read_b128 {v(A2[nb[0]%4],4)}, v15 offset:{kk2*XS_}')
        buf[kk2] = A2[nb[0] % 4]; nb[0] += 1
    buf = {}
    def second(kk2):
        Q.need(('x', kk2))
        smf(A, DX, buf[kk2], XSR[kk2])
        A(f'v_mfma_f32_16x16x32_bf16 {v(DM,4)}, {v(buf[kk2],4)}, {v(AF[posof(kk2)],4)}, {v(DM,4)}')
    rd2(6); rd2(7)
    second(6); second(7)
    A('s_barrier')
    stamp(A, 2)
    for kk2 in range(4): rd2(kk2)
    second(0); rd2(4); second(1); rd2(5); second(2); second(3)
    A('s_barrier')
    rd2(8); rd2(10)
    second(4); rd2(12); second(5); second(8); second(10); second(12)
    A('s_barrier')
    stamp(A, 3)
    rd2(9); rd2(11); rd2(13)
    if EWPOS == -1: store_flag(A, 6, 's41', st, T+7)
    second(9); second(11); second(13)
    if EWPOS == 0: store_flag(A, 6, 's41', st, T+7)
    A.nop(8)
    stamp(A, 4)
    for d in (DX, DM):
        A(f'v_permlane32_swap_b32 {v(d)}, {v(d+1)}')
        A(f'v_permlane32_swap_b32 {v(d+2)}, {v(d+3)}')
    mx = [T, T+1]; sm = [T+2, T+3]; ml = [T+4, T+5]
    el = lambda t: (DX+2*t, DX+2*t+1, DM+2*t)
    for t in range(2):
        A(f'v_max3_f32 {v(mx[t])}, {v(el(t)[0])}, {v(el(t)[1])}, {v(el(t)[2])}')
    for t in range(2):
        A(f'v_mul_f32 {v(ml[t])}, 0x{f2u(-LOG2E):08x}, {v(mx[t])}')
    fx = []
    for j in (2, 0, 1):
        for t in range(2): fx.append(f'v_fma_f32 {v(el(t)[j])}, {v(el(t)[j])}, s31, {v(ml[t])}')
    for j in (2, 0, 1):
        for t in range(2): fx.append(f'v_exp_f32 {v(el(t)[j])}, {v(el(t)[j])}')
    for ror in (8, 4, 2, 1):
        for t in range(2):
            A(f'v_max_f32_dpp {v(mx[t])}, {v(mx[t])}, {v(mx[t])} row_ror:{ror} row_mask:0xf bank_mask:0xf')
        for _ in range(3): A(fx.pop(0))
    if EWPOS == 1: store_flag(A, 6, 's41', st, T+7)
    for t in range(2):
        A(f'v_fma_f32 {v(ml[t])}, -{v(mx[t])}, s31, -{v(ml[t])}')
    for t in range(2):
        A(f'v_fma_f32 {v(sm[t])}, {v(el(t)[2])}, 0.5, {v(el(t)[0])}')
    for t in range(2):
        A(f'v_exp_f32 {v(ml[t])}, {v(ml[t])}')
    for t in range(2):
        A(f'v_add_f32 {v(sm[t])}, {v(sm[t])}, {v(el(t)[1])}')
    for t in range(2):
        A(f'v_mul_f32 {v(sm[t])}, {v(sm[t])}, {v(ml[t])}')
    if EWPOS == 2: store_flag(A, 6, 's41', st, T+7)
    pre = [f'v_mul_f32 {v(el(t)[j])}, {v(el(t)[j])}, {v(ml[t])}' for j in range(3) for t in range(2)]
    for ror in (8, 4, 2, 1):
        A(pre.pop(0))
        if ror in (8, 4): A(pre.pop(0))
        for t in range(2):
            A(f'v_add_f32_dpp {v(sm[t])}, {v(sm[t])}, {v(sm[t])} row_ror:{ror} row_mask:0xf bank_mask:0xf')
    if EWPOS == 3: store_flag(A, 6, 's41', st, T+7)
    for t in range(2):
        A(f'v_rcp_f32 {v(sm[t])}, {v(sm[t])}')
    A(f'v_cndmask_b32 {v(T+6)}, {v(DM)}, {v(DM+2)}, s[34:35]')
    for j in range(2):
        for t in range(2):
            A(f'v_mul_f32 {v(el(t)[j])}, {v(el(t)[j])}, {v(sm[t])}')
    A(f'v_cndmask_b32 {v(T+7)}, {v(sm[0])}, {v(sm[1])}, s[34:35]')
    for t in range(2):
        A(f'v_cvt_pk_bf16_f32 {v(T+4+t)}, {v(el(t)[0])}, {v(el(t)[1])}')
    A(f'v_mul_f32 {v(T+6)}, {v(T+6)}, {v(T+7)}')
    for t in range(2):
        A(f'v_and_b32 {v(T+4+t)}, s33, {v(T+4+t)}')
    A(f'v_cvt_pk_bf16_f32 {v(T+6)}, {v(T+6)}, {v(T+6)}')
    for t in range(2):
        A(f'buffer_store_dword {v(T+4+t)}, v13, s[4:7], s26 offen offset:{32*t}{st}')
    A(f'v_and_b32 {v(T+6)}, s33, {v(T+6)}')
    A(f'buffer_store_short {v(T+6)}, v14, s[4:7], s26 offen{st}')
    for t in range(2):
        A(f'buffer_store_dword {v(T+4+t)}, v13, s[4:7], s45 offen offset:{32*t}{st}')
    A(f'buffer_store_short {v(T+6)}, v14, s[4:7], s45 offen{st}')
    if EWPOS == 4: store_flag(A, 6, 's41', st, T+7)
    stamp(A, 5)
    A(f'v_mov_b32 {v(T+7)}, -1')
    for cp in range(KC):
        if cp: A('s_add_u32 s27, s27, 16384')
        for t in range(2):
            A(f'buffer_store_dword {v(T+7)}, v13, s[4:7], s27 offen offset:{32*t}{st}')
        A(f'buffer_store_short {v(T+7)}, v14, s[4:7], s27 offen{st}')
    tstamp(A, 16, 0, 1, sreg=20)
    if not DBG_X0: A('s_add_u32 s32, s32, 28672')
    load_xs()
    stamp_flush(A, 6, 0, 1)
    A('s_add_u32 s20, s20, 1')
    A(f's_cmp_lt_u32 s20, {NSTEP}')
    A(f's_cbranch_scc1 {Lloop}')
    if QUICK:
        A('s_memrealtime s[66:67]'); A('s_memtime s[62:63]'); A('s_waitcnt lgkmcnt(0)')
        A('s_sub_u32 s62, s62, s60'); A('v_mov_b32 v0, s62'); A('s_lshl_b32 s16, s17, 2'); A('s_add_u32 s16, s16, 192'); A('v_mov_b32 v1, s16')
        A('buffer_store_dword v0, v1, s[8:11], 0 offen')
        A('s_sub_u32 s66, s66, s64'); A('v_mov_b32 v0, s66'); A('s_lshl_b32 s16, s17, 2'); A('s_add_u32 s16, s16, 128'); A('v_mov_b32 v1, s16')
        A('buffer_store_dword v0, v1, s[8:11], 0 offen')
    A(f's_branch {done}')

def interleave(A, g):
    if g < 256:
        A(f'v_swap_b32 {v(g+1)}, {v(g+4)}')
        A(f'v_swap_b32 {v(g+2)}, {v(g+4)}')
        A(f'v_swap_b32 {v(g+3)}, {v(g+5)}')
        A(f'v_swap_b32 {v(g+5)}, {v(g+6)}')
    else:
        q = g - 256
        A(f'v_accvgpr_read_b32 v11, {a(q+1)}')
        A(f'v_accvgpr_mov_b32 {a(q+1)}, {a(q+4)}')
        A(f'v_accvgpr_mov_b32 {a(q+4)}, {a(q+2)}')
        A(f'v_accvgpr_write_b32 {a(q+2)}, v11')
        A(f'v_accvgpr_read_b32 v11, {a(q+3)}')
        A(f'v_accvgpr_mov_b32 {a(q+3)}, {a(q+5)}')
        A(f'v_accvgpr_mov_b32 {a(q+5)}, {a(q+6)}')
        A(f'v_accvgpr_write_b32 {a(q+6)}, v11')

def load_tiles(A, tiles, post=None, pre=None):
    WIN = 30
    q = []
    def retire(left):
        g = q.pop(0)
        A(f's_waitcnt vmcnt({2*left})')
        interleave(A, g)
        if post: post(g)
    for ti, (dst, offa, offb, plist) in enumerate(tiles):
        if pre: pre(ti)
        for p in plist:
            if p % 4 == 0 or p == plist[0]:
                A(f's_add_u32 s22, s18, {offa+(p//4)*4096}')
                A(f's_add_u32 s23, s18, {offb+(p//4)*4096}')
            im = (p % 4)*1024
            A(f'buffer_load_dwordx4 {r(dst(p),4)}, v1, s[4:7], s22 offen offset:{im}')
            A(f'buffer_load_dwordx4 {r(dst(p)+4,4)}, v1, s[4:7], s23 offen offset:{im}')
            q.append(dst(p))
            if len(q) > WIN: retire(len(q)-1)
    while q: retire(len(q)-1)

def score_weights(A, fail=None):
    TS = 14*1024
    Lw3 = A.newlabel('w3'); Ld = A.newlabel('wd')
    A(f's_mul_i32 s18, s17, {28*TS}')
    A(f's_add_u32 s18, s18, {MC}')
    A(f's_mul_i32 s19, s3, {4*TS}')
    A('s_add_u32 s18, s18, s19')
    A('s_cmp_eq_u32 s3, 3')
    A(f's_cbranch_scc1 {Lw3}')
    W = lambda tl: (lambda p: 64 + (tl*14+p)*8)
    def pre(ti):
        if fail and ti in (0, 2):
            A('s_lshl_b32 s19, s17, 3'); A('s_add_u32 s19, s19, s3'); A(f's_add_u32 s19, s19, {2*ti}'); A('s_lshl_b32 s19, s19, 5')
            mnf_addr(A, 13, None, 's19')
            wait_words(A, 13, 11, fail)
    load_tiles(A, [(W(0), 0, 2*TS, range(14)), (W(1), TS, 3*TS, range(14)),
                   (W(2), 16*TS, 17*TS, range(14)), (W(3), 18*TS, 19*TS, range(14))], pre=pre)
    A(f's_branch {Ld}')
    A.label(Lw3)
    W = lambda tl: (lambda p: 256 + (tl*14+p)*8)
    load_tiles(A, [(W(0), 0, 2*TS, range(14)), (W(1), TS, 3*TS, range(14))], pre=pre)
    A.label(Ld)

V_W0 = 120
def VW(ti, p): return V_W0 + (ti*14+p)*8
def gen_value(A, st, tag, fail, done, merged_u=False):
    UB, ACC, YP = 16, 48, 64
    PM = 72
    SL = [76 + 4*i for i in range(4)]
    PM2 = 92
    TM = [96, 104, 112]
    Lloop = f'va_loop_{tag}'
    for k in range(4): A(f'v_mov_b32 {v(PM+k)}, 0'); A(f'v_mov_b32 {v(PM2+k)}, 0')
    A('s_mov_b32 s20, 0')
    A.label(Lloop)
    step_addr(A)
    for k in range(8): A(f'v_mov_b64 {v(ACC+2*k,2)}, 0')
    if merged_u:
        Lr = A.newlabel('ur'); Lro = A.newlabel('uro')
        A('s_cmp_lt_u32 s20, s33'); A(f's_cbranch_scc1 {Lro}')
        A(f's_mov_b32 s30, {SPIN}')
        A.label(Lr)
        A(f'v_lshrrev_b32 v1, 2, v12')
        A(f'buffer_load_dword {v(TM[1])}, v1, s[4:7], s37 offen sc1')
        A(f'buffer_load_dword {v(TM[1]+1)}, v1, s[4:7], s37 offen offset:{14*256} sc1')
        A('s_sub_u32 s30, s30, 1'); A('s_cmp_eq_u32 s30, 0'); A(f's_cbranch_scc1 {fail}')
        A('s_waitcnt vmcnt(0)')
        A(f'v_and_b32 v0, {v(TM[1])}, {v(TM[1]+1)}')
        A('v_cmp_eq_u32 vcc, 0, v0')
        A('s_or_b32 s22, vcc_lo, vcc_hi')
        A('s_lshr_b32 s23, s22, 16'); A('s_or_b32 s22, s22, s23')
        A('s_lshr_b32 s23, s22, 8'); A('s_or_b32 s22, s22, s23')
        A('s_and_b32 s22, s22, 0xff'); A('s_or_b32 s22, s22, 0x100')
        A('s_ff1_i32_b32 s22, s22')
        A('s_lshl_b32 s33, s22, 3')
        A('s_cmp_lt_u32 s20, s33'); A(f's_cbranch_scc1 {Lro}')
        A('s_sleep 8')
        A(f's_branch {Lr}')
        A.label(Lro)
    if VFLAG: wait_flag(A, 5, 's46', 's20', [TM[1]+k for k in range(4)], fail, 1)
    poll_mem(A, [TM[1], TM[2]], fail)
    Q = Lds(A)
    slot = {}
    free = [0, 1, 2, 3]
    nxt = [0]
    def rd():
        p = nxt[0]
        if p > 13 or not free: return
        sl = free.pop(0); slot[p] = sl; nxt[0] += 1
        Q.op(('r', p), f'ds_read_b128 {v(SL[sl],4)}, v8 offset:{p*512}')
    def ldsw(p):
        t = TM[p % 3]
        Q.op(('wa', p), f'ds_read_b128 {v(t,4)}, v11 offset:{(p-7)*2048}')
        Q.op(('wb', p), f'ds_read_b128 {v(t+4,4)}, v11 offset:{(p-7)*2048+1024}')
    for _ in range(4): rd()
    A(f's_add_u32 s23, s36, {14*4096}')
    uq = []
    for hpl in range(2):
        for j in range(4):
            uq.append(f'buffer_load_dwordx4 {v(UB+hpl*16+j*4,4)}, v12, s[4:7], {"s23" if hpl else "s36"} offen offset:{j*1024}')
    if UEARLY:
        for x in uq: A(x)
    for p in range(14):
        Q.need(('r', p))
        for ti in range(3):
            smf(A, ACC+4*ti, SL[slot[p]], VW(ti, p))
            if ti == 0 and p == 2:
                A(f's_waitcnt vmcnt({8 if UEARLY else 0})')
            if ti == 1 and 2 <= p < 6 and not UEARLY: A(uq.pop(0)); A(uq.pop(0))
            if ti == 0 and 3 <= p < 6: ldsw(p+4)
        if p < 7: smf(A, ACC+12, SL[slot[p]], VW(3, p))
        else:
            Q.need(('wb', p))
            smf(A, ACC+12, SL[slot[p]], TM[p % 3])
            if p+3 < 14: ldsw(p+3)
        free.append(slot[p]); rd()
    if not DBG_U0: A(f's_add_u32 s36, s36, {16*28*1024}')
    A.nop(8)
    for ct in range(2):
        for hp in range(2):
            d = ACC + 4*(hp*2+ct)
            A(f'v_cvt_pk_bf16_f32 {v(YP+4*ct+2*hp)}, {v(d)}, {v(d+1)}')
            A(f'v_cvt_pk_bf16_f32 {v(YP+4*ct+2*hp+1)}, {v(d+2)}, {v(d+3)}')
    stamp(A, 2)
    D = [ACC, ACC+4]
    PMs = [PM, PM2]; PXs = [PM+4, PM2+4]
    if LAT:
        A('s_memtime s[50:51]'); A('s_waitcnt vmcnt(0)'); A('s_memtime s[52:53]')
        A('s_mov_b64 exec, s[42:43]')
        A(f'buffer_load_dword {v(PXs[0])}, v7, s[4:7], s47 offen sc1'); A('s_mov_b64 exec, -1')
        A('s_waitcnt vmcnt(0)'); A('s_memtime s[54:55]')
    wait_flag(A, 7, 's47', 's44', [PXs[0]+k for k in range(4)], fail, 1)
    if LAT:
        A('s_waitcnt vmcnt(0)')
        A('s_memtime s[56:57]')
        for hpl in range(2):
            A(f'buffer_load_dwordx4 {v(PXs[0]+4*hpl,4)}, v9, s[4:7], s26 offen offset:{hpl*1024} sc1')
        A('s_waitcnt vmcnt(1)'); A('s_memtime s[58:59]'); A('s_waitcnt vmcnt(0)'); A('s_memtime s[60:61]')
    stamp(A, 6)
    if PROFILE: A('s_mov_b32 s64, 0')
    def issue(k):
        so = 's26' if k == 0 else 's45'
        for hpl in range(2):
            A(f'buffer_load_dwordx4 {v(PXs[k]+4*hpl,4)}, v9, s[4:7], {so} offen offset:{hpl*1024} sc1')
        A('s_mov_b64 exec, s[34:35]')
        A(f'buffer_load_dwordx4 {v(PMs[k],4)}, v10, s[4:7], {so} offen sc1')
        A('s_mov_b64 exec, -1')
    L = A.newlabel('pp'); Lf = A.newlabel('ppf')
    def attempt(k):
        Lskip = A.newlabel('ps')
        b = PMs[k]; x0, x1 = PXs[k], PXs[k]+4
        A('s_waitcnt vmcnt(5)')
        if PROFILE: A('s_add_u32 s64, s64, 1')
        A(f'v_or3_b32 v0, {v(x0)}, {v(x0+1)}, {v(x0+2)}')
        A(f'v_or_b32 v0, v0, {v(x0+3)}')
        A('v_and_b32 v0, 0x80008000, v0')
        A('v_cmp_ne_u32 vcc, 0, v0')
        A(f's_cbranch_vccnz {Lskip}')
        smf(A, D[0], x0, UB); smf(A, D[1], x0, UB+8)
        A('s_waitcnt vmcnt(4)')
        smf(A, D[0], x1, UB+16)
        A(f'v_or3_b32 v0, {v(x1)}, {v(x1+1)}, {v(x1+2)}')
        smf(A, D[1], x1, UB+24)
        A('s_waitcnt vmcnt(3)')
        A(f'v_mfma_f32_16x16x32_bf16 {v(D[0],4)}, {v(b,4)}, {v(YP,4)}, {v(D[0],4)}')
        A(f'v_or3_b32 v0, v0, {v(x1+3)}, {v(b)}')
        A(f'v_or3_b32 v1, {v(b+1)}, {v(b+2)}, {v(b+3)}')
        A(f'v_mfma_f32_16x16x32_bf16 {v(D[1],4)}, {v(b,4)}, {v(YP+4,4)}, {v(D[1],4)}')
        A('v_or_b32 v0, v0, v1')
        A('v_and_b32 v0, 0x80008000, v0')
        A('v_cmp_ne_u32 vcc, 0, v0')
        A(f's_cbranch_vccz {Lf}')
        A.nop(6)
        for kk in range(4): A(f'v_mov_b64 {v(ACC+2*kk,2)}, 0')
        A.label(Lskip)
        A('s_waitcnt vmcnt(3)')
    for kk in range(4): A(f'v_mov_b64 {v(ACC+2*kk,2)}, 0')
    A(f's_mov_b32 s30, {SPIN}')
    issue(0)
    A.nop(STAG)
    A.label(L)
    issue(1); attempt(0)
    issue(0); attempt(1)
    A('s_sub_u32 s30, s30, 1')
    A('s_cmp_lg_u32 s30, 0')
    A(f's_cbranch_scc1 {L}')
    A(f's_branch {fail}')
    A.label(Lf)
    stamp(A, 3)
    if EWM_POS == 0:
        Lsf = A.newlabel('sf'); A('s_cmp_lg_u32 s3, 0'); A(f's_cbranch_scc1 {Lsf}')
        store_flag(A, 6, 's40', st, 0); A.label(Lsf)
    A.nop(4)
    for rr in range(4): A(f'v_permlane32_swap_b32 {v(D[0]+rr)}, {v(D[1]+rr)}')
    for rr in range(4):
        A(f'v_add_f32 {v(D[0]+rr)}, {v(D[0]+rr)}, {v(D[1]+rr)}')
        A(f'ds_write_b32 v13, {v(D[0]+rr)} offset:{128*rr}')
    A('s_waitcnt lgkmcnt(0)')
    A('s_barrier')
    stamp(A, 4)
    Lnx = A.newlabel('vnx')
    A('s_cmp_lg_u32 s3, 0')
    A(f's_cbranch_scc1 {Lnx}')
    R4 = [ACC, ACC+4, ACC+8, ACC+12]
    for w in range(4):
        A(f'ds_read_b128 {v(R4[w],4)}, v14 offset:{w*1024}')
    if EWM_POS == 1: store_flag(A, 6, 's40', st, 0)
    A('s_waitcnt lgkmcnt(2)')
    A(f'v_pk_add_f32 {v(R4[0],2)}, {v(R4[0],2)}, {v(R4[1],2)}')
    A(f'v_pk_add_f32 {v(R4[0]+2,2)}, {v(R4[0]+2,2)}, {v(R4[1]+2,2)}')
    A('s_waitcnt lgkmcnt(0)')
    A(f'v_pk_add_f32 {v(R4[2],2)}, {v(R4[2],2)}, {v(R4[3],2)}')
    A(f'v_pk_add_f32 {v(R4[2]+2,2)}, {v(R4[2]+2,2)}, {v(R4[3]+2,2)}')
    A(f'v_pk_add_f32 {v(R4[0],2)}, {v(R4[0],2)}, {v(R4[2],2)}')
    A(f'v_pk_add_f32 {v(R4[0]+2,2)}, {v(R4[0]+2,2)}, {v(R4[2]+2,2)}')
    A(f'v_cvt_pk_bf16_f32 {v(R4[1])}, {v(R4[0])}, {v(R4[0]+1)}')
    A(f'v_cvt_pk_bf16_f32 {v(R4[1]+1)}, {v(R4[0]+2)}, {v(R4[0]+3)}')
    A(f'v_min_u32 {v(R4[1])}, 0xfffffffe, {v(R4[1])}')
    A(f'buffer_store_dwordx2 {v(R4[1],2)}, v15, s[4:7], s28 offen{st}')
    A('s_add_u32 s28, s28, 8192')
    A(f'buffer_store_dwordx2 {v(R4[1],2)}, v15, s[4:7], s28 offen{st}')
    if EWM_POS == 2: store_flag(A, 6, 's40', st, 0)
    stamp(A, 5)
    A(f'v_mov_b64 {v(R4[2],2)}, -1')
    A(f'buffer_store_dwordx2 {v(R4[2],2)}, v15, s[4:7], s29 offen{st}')
    A('s_add_u32 s29, s29, 8192')
    A(f'buffer_store_dwordx2 {v(R4[2],2)}, v15, s[4:7], s29 offen{st}')
    A(f'buffer_store_dwordx2 {v(R4[1],2)}, v15, s[4:7], s39 offen{st}')
    A.label(Lnx)
    stamp_flush(A, 8, 0, 1)
    A('s_add_u32 s39, s39, 8192')
    A('s_add_u32 s20, s20, 1')
    A(f's_cmp_lt_u32 s20, {NSTEP}')
    A(f's_cbranch_scc1 {Lloop}')
    A(f's_branch {done}')

def value_setup(A, fail=None):
    TS = 14*1024; HS = 28*TS
    A(f's_mul_i32 s18, s3, {4*HS}')
    A(f's_mul_i32 s22, s17, {2*TS}')
    A('s_add_u32 s18, s18, s22')
    A(f's_add_u32 s18, s18, {NC}')
    A('v_lshlrev_b32 v12, 4, v0')
    A(f's_mul_i32 s23, s3, {14*1024}')
    A(f's_add_u32 s23, s23, {WL}')
    A('v_add_u32 v14, s23, v12')
    def post(g):
        if g < V_W0:
            i = (g-16)//8
            A(f'ds_write_b128 v14, {v(g,4)} offset:{i*2048}')
            A(f'ds_write_b128 v14, {v(g+4,4)} offset:{i*2048+1024}')
    tl = [((lambda p: 16 + (p-7)*8), 2*HS+TS, 3*HS+TS, range(7, 14))]
    for ti in range(4):
        hp, ct = ti >> 1, ti & 1
        tl.append(((lambda p, ti=ti: VW(ti, p)), (2*hp)*HS+ct*TS, (2*hp+1)*HS+ct*TS, range(14) if ti < 3 else range(7)))
    if fail:
        A('s_lshl_b32 s19, s3, 2'); A('s_add_u32 s19, s19, 16'); A('s_lshl_b32 s19, s19, 3'); A('s_lshr_b32 s22, s17, 1'); A('s_add_u32 s19, s19, s22'); A('s_lshl_b32 s19, s19, 5')
        A('v_bfe_u32 v11, v0, 3, 2')
        mnf_addr(A, 13, 11, 's19')
        wait_words(A, 13, 11, fail)
    load_tiles(A, tl, post)
    A('s_waitcnt lgkmcnt(0)')
    A('s_lshl_b32 s23, s3, 11'); A('v_add_u32 v9, s23, v12')
    A('s_lshl_b32 s23, s3, 9'); A('s_add_u32 s23, s23, 8192'); A('v_add_u32 v10, s23, v8')
    A('v_and_b32 v11, 16, v0'); A('v_lshlrev_b32 v13, 5, v11')
    A('v_and_b32 v11, 15, v0'); A('v_lshl_add_u32 v13, v11, 3, v13')
    A('v_lshlrev_b32 v7, 2, v11')
    A('v_lshrrev_b32 v11, 5, v0'); A('v_lshl_add_u32 v13, v11, 2, v13')
    A('s_lshl_b32 s23, s3, 10'); A(f's_add_u32 s23, s23, {RED}'); A('v_add_u32 v13, s23, v13')
    A('v_and_b32 v11, 14, v0'); A('v_lshlrev_b32 v14, 6, v11')
    A('v_lshrrev_b32 v11, 4, v0'); A('v_lshl_add_u32 v14, v11, 5, v14')
    A('v_and_b32 v11, 1, v0'); A('v_lshl_add_u32 v14, v11, 4, v14')
    A(f'v_add_u32 v14, {RED}, v14')
    A('v_lshlrev_b32 v15, 3, v0'); A('s_lshl_b32 s23, s17, 9'); A('v_add_u32 v15, s23, v15')
    A('s_lshl_b32 s23, s17, 2'); A('v_lshlrev_b32 v6, 7, v0'); A('v_add_u32 v6, s23, v6')
    A('s_mov_b32 s34, 0x00ff00ff'); A('s_mov_b32 s35, 0x00ff00ff')
    A(f's_mul_i32 s36, s3, {2*14*4096}')
    A('s_lshl_b32 s23, s17, 12')
    A('s_add_u32 s36, s36, s23')
    A(f's_add_u32 s36, s36, {UF}')
    A(f's_mov_b32 s39, {MEMG+8192}')

def value_setup2(A):
    A('s_mov_b32 s33, 0')
    A('s_mul_i32 s37, s3, 28'); A('s_add_u32 s37, s37, s17'); A('s_lshl_b32 s37, s37, 8'); A(f's_add_u32 s37, s37, {UFL}')
    A(f's_mul_i32 s23, s3, {14*1024}')
    A(f's_add_u32 s23, s23, {WL}')
    A('v_add_u32 v11, s23, v12')

def mode_exchange(A, va=8, vb=9):
    srd(A, 8, 96, 256)
    A('s_getreg_b32 s12, hwreg(HW_REG_XCC_ID)')
    A('s_and_b32 s12, s12, 15')
    A('s_add_u32 s12, s12, 1')
    A(f'v_mov_b32 {v(va)}, s12')
    A('s_lshl_b32 s13, s15, 2')
    A(f'v_mov_b32 {v(vb)}, s13')
    A('s_waitcnt lgkmcnt(0)')
    A(f'buffer_store_dword {v(va)}, {v(vb)}, s[8:11], 0 offen sc1')

def mode_gather(A, fail):
    A(f'v_min_u32 v1, {NROLE-1}, v0')
    A('v_lshlrev_b32 v1, 2, v1')
    L = A.newlabel('mg')
    A(f's_mov_b32 s30, {SPIN}')
    A.label(L)
    A('buffer_load_dword v11, v1, s[8:11], 0 offen sc1')
    A('s_sub_u32 s30, s30, 1')
    A('s_cmp_eq_u32 s30, 0')
    A(f's_cbranch_scc1 {fail}')
    A('s_waitcnt vmcnt(0)')
    A('v_cmp_eq_u32 vcc, 0, v11')
    A(f's_cbranch_vccnz {L}')
    A('v_cmp_ne_u32 vcc, s12, v11')
    A('s_cmp_eq_u64 vcc, 0')
    A('s_cselect_b32 s14, 1, 0')

def gen_forwarders(A, fail, done):
    A('s_sub_u32 s17, s15, 30'); A('s_lshl_b32 s17, s17, 2'); A('s_add_u32 s17, s17, s3')
    A('v_lshlrev_b32 v6, 7, v0')
    A('v_lshlrev_b32 v12, 4, v0')
    A('s_cmp_lg_u32 s17, 0')
    A('s_cbranch_scc1 fw_pf')
    A('s_mov_b32 s20, 1')
    A(f's_mov_b32 s22, {HINT}')
    A.label('fw_m_loop')
    A('s_lshl_b32 s24, s20, 13'); A(f's_add_u32 s26, s24, {MEMG2}'); A(f's_add_u32 s24, s24, {MEMG}')
    A('s_add_u32 s25, s24, 4096'); A('s_add_u32 s27, s26, 4096')
    A(f's_mov_b32 s30, {SPIN*4}')
    A.label('fw_m_poll')
    for j in range(7):
        A(f'buffer_load_dwordx4 {v(16+4*j,4)}, v12, s[4:7], {"s24" if j < 4 else "s25"} offen offset:{(j%4)*1024} sc1')
    A('s_sub_u32 s30, s30, 1'); A('s_cmp_eq_u32 s30, 0'); A(f's_cbranch_scc1 {fail}')
    A('s_waitcnt vmcnt(0)')
    A('v_max_u32 v1, v16, v18')
    for j in range(1, 7): A(f'v_max3_u32 v1, v1, {v(16+4*j)}, {v(18+4*j)}')
    A('v_cmp_eq_u32 vcc, -1, v1')
    A('s_cbranch_vccz fw_m_ok')
    A('s_sleep 2')
    A('s_branch fw_m_poll')
    A.label('fw_m_ok')
    for j in range(7):
        A(f'buffer_store_dwordx4 {v(16+4*j,4)}, v12, s[4:7], {"s26" if j < 4 else "s27"} offen offset:{(j%4)*1024} sc1')
    A('s_waitcnt vmcnt(0)')
    A('v_mov_b32 v1, s20'); A('s_mov_b64 exec, 0xffff')
    A('buffer_store_dword v1, v6, s[4:7], s22 offen sc1'); A('s_mov_b64 exec, -1')
    A('s_add_u32 s20, s20, 1'); A('s_cmp_lt_u32 s20, 64'); A('s_cbranch_scc1 fw_m_loop')
    A(f's_branch {done}')
    A.label('fw_pf')
    if not PREF: A(f's_branch {done}')
    A('s_sub_u32 s17, s17, 1')
    A('s_lshl_b32 s24, s17, 12'); A(f's_add_u32 s24, s24, {UFL}')
    A(f's_mov_b32 s30, {SPIN}')
    A.label('fw_pf_w')
    for j in range(4): A(f'buffer_load_dwordx4 {v(16+4*j,4)}, v12, s[4:7], s24 offen offset:{j*1024} sc1')
    A('s_sub_u32 s30, s30, 1'); A('s_cmp_eq_u32 s30, 0'); A(f's_cbranch_scc1 {done}')
    A('s_waitcnt vmcnt(0)')
    A('v_min_u32 v1, v16, v17')
    for j in range(2, 16, 2): A(f'v_min3_u32 v1, v1, {v(16+j)}, {v(17+j)}')
    A('v_cmp_eq_u32 vcc, 0, v1')
    A('s_cbranch_vccz fw_pf_go')
    A('s_sleep 32')
    A('s_branch fw_pf_w')
    A.label('fw_pf_go')
    A('s_mov_b32 s20, 0')
    A('v_mov_b32 v7, 0')
    A.label('fw_pf_loop')
    A('s_mov_b64 exec, 1')
    A('buffer_load_dword v16, v7, s[4:7], s46 offen sc1')
    A('s_mov_b64 exec, -1')
    A('s_waitcnt vmcnt(0)')
    A('v_readfirstlane_b32 s21, v16')
    A('s_add_u32 s22, s21, 1'); A('s_max_u32 s20, s20, s22')
    A('s_cmp_ge_u32 s20, 63'); A(f's_cbranch_scc1 {done}')
    A(f's_add_u32 s22, s21, {PREF}')
    A('s_cmp_gt_u32 s20, s22'); A('s_cbranch_scc1 fw_pf_idle')
    A(f's_mul_i32 s24, s20, {448*1024}'); A('s_lshl_b32 s25, s17, 16'); A('s_add_u32 s24, s24, s25'); A(f's_add_u32 s24, s24, {UF}')
    for j in range(8):
        for sub in range(0, 128, PFS):
            A(f'buffer_load_dword {v(16+j)}, v6, s[4:7], s24 offen offset:{sub}')
        A('s_add_u32 s24, s24, 8192')
    A('s_cmp_gt_u32 s17, 3'); A('s_cbranch_scc1 fw_pf_nx')
    A(f's_mul_i32 s24, s20, 28672'); A('s_lshl_b32 s25, s17, 13'); A('s_add_u32 s24, s24, s25'); A(f's_add_u32 s24, s24, {XNS}')
    A('buffer_load_dword v24, v6, s[4:7], s24 offen')
    A.label('fw_pf_nx')
    A('s_add_u32 s20, s20, 1')
    A('s_branch fw_pf_loop')
    A.label('fw_pf_idle')
    A('s_sleep 8')
    A('s_sub_u32 s30, s30, 1'); A('s_cmp_eq_u32 s30, 0'); A(f's_cbranch_scc1 {done}')
    A('s_branch fw_pf_loop')

def gen_chain_body(A, fail, done, merged=False, fused=False):
    if fused:
        import p0
        def after_flags():
            A('s_waitcnt vmcnt(0)'); A('s_barrier')
            mode_exchange(A, 16, 17)
        p0.ph_init(A, after_flags)
        A('s_waitcnt vmcnt(0)')
        A('s_barrier')
        A('v_mov_b32 v16, 1'); A('s_add_u32 s13, s13, 128'); A('v_mov_b32 v17, s13')
        A('buffer_store_dword v16, v17, s[8:11], 0 offen sc1')
        tstamp(A, 3, 12, 13)
        A('s_cmp_lg_u32 s3, 3'); A('s_cbranch_scc1 ch_noln')
        A('s_cmp_ge_u32 s15, 16'); A('s_cbranch_scc1 ch_noln')
        srd(A, 36, 0, 2048*448*2)
        A('s_add_u32 s32, s15, 112')
        def wi():
            A('v_and_b32 v5, 31, v0'); A('v_lshlrev_b32 v5, 2, v5')
            wait_words(A, 5, 1, fail, srd_='s[8:11]')
        p0.ph_ln(A, 32, wi, xsrd='s[36:39]', barrier=False)
        A.label('ch_noln')
    else: mode_exchange(A)
    common_setup(A)
    stamp_init(A)
    mode_gather(A, fail)
    A('v_lshlrev_b32 v1, 4, v0')
    def wait_ring(va, vd, ln=None):
        if not fused: return
        A(f'v_and_b32 {v(va)}, 31, v0'); A(f'v_lshlrev_b32 {v(va)}, 2, {v(va)}'); A(f'v_add_u32 {v(va)}, 128, {v(va)}')
        wait_words(A, va, vd, fail, srd_='s[8:11]', cnt='s30', ln=ln)
    if merged:
        A('s_cmp_lt_u32 s15, 30'); A('s_cbranch_scc1 ch_main')
        wait_ring(13, 11)
        gen_forwarders(A, fail, done)
        A.label('ch_main')
    A('s_cmp_ge_u32 s15, 16')
    A('s_cbranch_scc1 ch_value')
    A('s_mov_b32 s17, s15')
    score_weights(A, fail if fused else None)
    x_addrs(A)
    wait_ring(13, 11, ln=(12, 14))
    tstamp(A, 1, 12, 13)
    A('s_cmp_eq_u32 s14, 0')
    A('s_cbranch_scc1 ch_score_slow')
    gen_score(A, '', 'f', fail, done)
    A.label('ch_score_slow')
    gen_score(A, ' sc1', 's', fail, done)
    A.label('ch_value')
    A('s_sub_u32 s17, s15, 16')
    value_setup(A, fail if fused else None)
    wait_ring(48, 49)
    tstamp(A, 1, 48, 49)
    value_setup2(A)
    tstamp(A, 2, 48, 49)
    A('s_cmp_eq_u32 s14, 0')
    A('s_cbranch_scc1 ch_value_slow')
    gen_value(A, '', 'f', fail, done, merged)
    A.label('ch_value_slow')
    gen_value(A, ' sc1', 's', fail, done, merged)

def gen_k3(A):
    A.label('k3_kernel')
    A('s_and_b32 s15, s2, 7')
    A('s_cmp_lg_u32 s15, 0')
    A('s_cbranch_scc1 k3_end')
    A('s_lshr_b32 s15, s2, 3')
    A('s_cmp_ge_u32 s15, 30')
    A('s_cbranch_scc1 k3_end')
    prologue(A)
    gen_chain_body(A, 'k3_end', 'k3_end')
    A.label('k3_end')
    A('s_endpgm')
    return dict(name='k3_kernel', grid=256, block=256, lds=CHAIN_LDS, vgpr=256, sgpr=72, agpr=256)
```

```python
from asmlib import *
from layout import *
from k1 import sdivmod, srd, SZ_X, reformat
from wk import prologue, wsgemm, tstamp, wait_words
import p0
FUSED = True
KNAME = 'k2_kernel'
import chain, wk2
from wk2 import spin_wait, phase_f2, phase_s, phase_o, phase_yw

NS = 128
def set_flag(A, ph, release=False):
    A('s_waitcnt vmcnt(0)')
    A('s_barrier')
    Ls = A.newlabel('sf')
    A('s_cmp_lg_u32 s3, 0'); A(f's_cbranch_scc1 {Ls}')
    if release:
        Lr = A.newlabel('sfr')
        A('s_cmp_ge_u32 s96, 74'); A(f's_cbranch_scc1 {Lr}')
        A('buffer_wbl2 sc1'); A('s_waitcnt vmcnt(0)')
        A.label(Lr)
    A('v_mov_b32 v2, 1')
    A('s_lshl_b32 s16, s96, 2'); A(f's_add_u32 s16, s16, {WFL + ph*1024}')
    A('v_mov_b32 v3, 0')
    A('s_mov_b64 exec, 1')
    A('buffer_store_dword v2, v3, s[4:7], s16 offen sc1')
    A('s_mov_b64 exec, -1')
    A.label(Ls)

def wait_flags(A, ph, fail, vt=2, sleep=16):
    Lw = A.newlabel('wfl')
    A('s_cmp_lg_u32 s3, 0'); A(f's_cbranch_scc1 {Lw}')
    A(f'v_mbcnt_lo_u32_b32 {v(vt)}, -1, 0'); A(f'v_mbcnt_hi_u32_b32 {v(vt)}, -1, {v(vt)}')
    A(f'v_min_u32 {v(vt)}, 55, {v(vt)}'); A(f'v_lshlrev_b32 {v(vt)}, 4, {v(vt)}')
    A(f's_mov_b32 s16, {WFL + ph*1024}')
    d = vt + 2 if (vt + 2) % 2 == 0 else vt + 1
    def chk():
        A(f'v_min3_u32 {v(vt+1) if d != vt+1 else v(d)}, {v(d)}, {v(d+1)}, {v(d+2)}') if False else None
        A(f'v_min_u32 {v(d)}, {v(d)}, {v(d+1)}'); A(f'v_min3_u32 {v(d)}, {v(d)}, {v(d+2)}, {v(d+3)}')
        A(f'v_cmp_eq_u32 vcc, 0, {v(d)}')
    spin_wait(A, lambda: A(f'buffer_load_dwordx4 {v(d,4)}, {v(vt)}, s[4:7], s16 offen sc1'), chk, fail, sleep=sleep)
    A.label(Lw)
    A('s_barrier')

def gen_k2(A):
    A.label(KNAME)
    A('s_cmp_ge_u32 s2, 256')
    A('s_cbranch_scc1 k2_end')
    prologue(A)
    tstamp(A, 0, 2, 3)
    A('s_and_b32 s16, s2, 7')
    A('s_lshr_b32 s15, s2, 3')
    A('s_cmp_lg_u32 s16, 0')
    A('s_cbranch_scc1 k2_worker')
    chain.NROLE = 32
    chain.gen_chain_body(A, 'k2_end', 'k2_end', merged=True, fused=FUSED)
    A.label('k2_worker')
    A('s_mul_i32 s96, s15, 7'); A('s_add_u32 s96, s96, s16'); A('s_sub_u32 s96, s96, 1')
    A('s_sub_u32 s91, s16, 1'); A('s_mov_b32 s92, s15')
    srd(A, 8, 0, SZ_X); srd(A, 12, 88, SZ_X)
    if FUSED:
        srd(A, 44, 96, 256)
        def wait_init():
            A('v_and_b32 v5, 31, v0'); A('v_lshlrev_b32 v5, 2, v5')
            wait_words(A, 5, 1, 'k2_end', srd_='s[44:47]')
        A('s_cmp_lg_u32 s3, 3'); A('s_cbranch_scc1 k2_noln')
        p0.mn_decode(A)
        A('s_cmp_lg_u32 s33, 0'); A('s_cbranch_scc1 k2_bonly')
        A('s_mul_i32 s32, s17, 7'); A('s_add_u32 s32, s32, s19')
        p0.ph_ln(A, 32, wait_init)
        A('s_branch k2_noln')
        A.label('k2_bonly')
        A('s_barrier')
        A.label('k2_noln')
        p0.ph_mn(A, wait_init)
        tstamp(A, 5, 2, 3)
    wsgemm(A, 'U', wid=96, st_flags=' sc1', fail='k2_end' if FUSED else None)
    reformat(A, 96, '')
    set_flag(A, 3, release=True)
    tstamp(A, 1, 2, 3)
    wait_flags(A, 3, 'k2_end')
    wsgemm(A, 'F1', wid=96, st_flags=' sc1')
    set_flag(A, 1)
    tstamp(A, 2, 2, 3)
    wait_flags(A, 1, 'k2_end')
    tstamp(A, 3, 2, 3)
    phase_f2(A, 96, st=' sc1')
    set_flag(A, 2)
    tstamp(A, 4, 2, 3)
    A('s_mov_b32 s93, 0')
    if chain.DBG_NOITEM: A('s_branch k2_end')
    A('s_cmp_lt_u32 s92, 28')
    A('s_cbranch_scc1 k2_so')
    A('s_sub_u32 s32, s92, 28'); A('s_lshl_b32 s33, s91, 2'); A('s_add_u32 s32, s32, s33')
    phase_yw(A, 32, 'k2_end')
    A('s_branch k2_end')
    A.label('k2_so')
    A('s_cmp_ge_u32 s92, 19')
    A('s_cbranch_scc1 k2_ow')
    A('s_mul_i32 s97, s91, 19'); A('s_add_u32 s97, s97, s92')
    A('s_cmp_ge_u32 s97, 128'); A('s_cbranch_scc1 k2_end')
    A('s_lshr_b32 s32, s97, 3'); A('s_and_b32 s33, s97, 7')
    A.label('k2_sitem')
    phase_s(A, 32, 33, 'k2_end', True)
    tstamp(A, 6, 2, 3, sreg=93)
    A('s_add_u32 s93, s93, 1')
    A('s_add_u32 s33, s33, 8')
    A('s_cmp_lt_u32 s33, 16')
    A('s_cbranch_scc1 k2_sitem')
    A('s_branch k2_end')
    A.label('k2_ow')
    wait_flags(A, 2, 'k2_end')
    A('s_sub_u32 s34, s92, 19'); A('s_mov_b32 s35, s91')
    A.label('k2_oitem')
    phase_o(A, 34, 35, 'k2_end', True)
    tstamp(A, 6, 2, 3, sreg=93)
    A('s_add_u32 s93, s93, 1')
    A('s_add_u32 s34, s34, 9')
    A('s_cmp_lt_u32 s34, 64')
    A('s_cbranch_scc1 k2_oitem')
    A.label('k2_end')
    A('s_endpgm')
    return dict(name=KNAME, grid=256, block=256, lds=163840, vgpr=256, sgpr=100, agpr=256)
```

```python
from asmlib import *
from layout import *
from k1 import sdivmod, srd, SZ_X, SZ_MEM0, SZ_W
K1_NI = 32
def p0_common(A):
    A('v_lshrrev_b32 v2, 4, v0')
    A('v_and_b32 v3, 15, v0')
    A('v_lshlrev_b32 v4, 4, v0')
    A('s_mov_b32 s20, 0x05040100')
    A('s_mov_b32 s21, 0x07060302')

def ph_init(A, after_flags):
    p0_common(A)
    srd(A, 36, 8, SZ_MEM0)
    A('s_lshl_b32 s16, s3, 6')
    A('v_add_u32 v5, s16, v0')
    A('v_mov_b32 v8, -1'); A('v_mov_b32 v9, -1'); A('v_mov_b32 v10, -1'); A('v_mov_b32 v11, -1')
    A('v_lshlrev_b32 v6, 4, v5')
    A('s_mov_b32 s22, s15'); A('s_lshl_b32 s23, s22, 12')
    A('v_mov_b32 v12, 0'); A('v_mov_b32 v13, 0'); A('v_mov_b32 v14, 0'); A('v_mov_b32 v15, 0')
    A('s_waitcnt lgkmcnt(0)')
    for nm, lo, hi, reg in (('c', FLAGS, PROF, 12), ('a', MEMR + KC*8192, FLAGS, 8), ('b', MEMG+8192, MEMG+64*8192, 8)):
        assert (hi-lo) % 4096 == 0
        A(f's_add_u32 s17, s23, {lo}')
        A.label('k1_fill'+nm)
        A(f's_cmp_ge_u32 s17, {hi}')
        A('s_cbranch_scc1 k1_fille'+nm)
        A(f'buffer_store_dwordx4 {v(reg,4)}, v6, s[4:7], s17 offen sc1')
        A(f's_add_u32 s17, s17, {4096*K1_NI}')
        A('s_branch k1_fill'+nm)
        A.label('k1_fille'+nm)
        if nm == 'c': after_flags()
    A('s_cmp_lg_u32 s22, 0')
    A('s_cbranch_scc1 k1_iend')
    for it in range(2):
        A(f'v_add_u32 v7, {256*it}, v5')
        A('v_and_b32 v16, 7, v7')
        A('v_mul_u32_u24 v16, 896, v16')
        A('v_lshrrev_b32 v17, 3, v7')
        A('v_lshl_add_u32 v16, v17, 4, v16')
        A('v_lshlrev_b32 v17, 4, v7')
        A('v_cmp_gt_u32 vcc, 448, v7')
        A('s_and_saveexec_b64 s[18:19], vcc')
        Ls = A.newlabel('k1_skip')
        A(f's_cbranch_execz {Ls}')
        A('buffer_load_dwordx4 v[20:23], v16, s[36:39], 0 offen')
        A('s_waitcnt vmcnt(0)')
        for d in range(4):
            A(f'v_min_u32 {v(20+d)}, 0xfffffffe, {v(20+d)}')
        for cp in range(KC):
            A(f's_mov_b32 s17, {MEMR + cp*8192}')
            A('buffer_store_dwordx4 v[20:23], v17, s[4:7], s17 offen sc1')
        A(f's_mov_b32 s17, {MEMG}')
        A('buffer_store_dwordx4 v[20:23], v17, s[4:7], s17 offen sc1')
        A(f's_mov_b32 s17, {MEMG2}')
        A('buffer_store_dwordx4 v[20:23], v17, s[4:7], s17 offen sc1')
        A('s_waitcnt vmcnt(0)')
        A.label(Ls)
        A('s_mov_b64 exec, s[18:19]')
    A.label('k1_iend')
    A('v_lshlrev_b32 v1, 4, v0')

def ph_ln(A, rt, wait_init, xsrd='s[8:11]', barrier=True):
    p0_common(A)
    A(f's_mov_b32 s16, {s(rt)}')
    A('s_mul_i32 s17, s16, %d' % (16*896))
    A('v_mul_u32_u24 v5, 896, v3')
    A('v_lshl_add_u32 v5, v2, 4, v5')
    A('s_waitcnt lgkmcnt(0)')
    RAW, XF = 8, 64
    for kk in range(14):
        A(f'buffer_load_dwordx4 {v(RAW+4*kk,4)}, v5, {xsrd}, s17 offen offset:{64*kk}')
    A('v_mov_b32 v6, 0')
    A('v_mov_b32 v7, 0')
    if barrier: A('s_barrier')
    for kk in range(14):
        A(f's_waitcnt vmcnt({13-kk})')
        for d in range(4):
            i = 4*kk+d
            A(f'v_lshlrev_b32 {v(XF+2*i)}, 16, {v(RAW+i)}')
            A(f'v_and_b32 {v(XF+2*i+1)}, 0xffff0000, {v(RAW+i)}')
            A(f'v_add_f32 v6, v6, {v(XF+2*i)}')
            A(f'v_add_f32 v7, v7, {v(XF+2*i+1)}')
    def allred(reg, tmp):
        A(f'v_mov_b32 {v(tmp)}, {v(reg)}')
        A('s_nop 1')
        A(f'v_permlane16_swap_b32 {v(reg)}, {v(tmp)}')
        A('s_nop 1')
        A(f'v_add_f32 {v(reg)}, {v(reg)}, {v(tmp)}')
        A(f'v_mov_b32 {v(tmp)}, {v(reg)}')
        A('s_nop 1')
        A(f'v_permlane32_swap_b32 {v(reg)}, {v(tmp)}')
        A('s_nop 1')
        A(f'v_add_f32 {v(reg)}, {v(reg)}, {v(tmp)}')
    A('v_add_f32 v6, v6, v7')
    allred(6, 7)
    import struct
    f2u = lambda f: struct.unpack('<I', struct.pack('<f', f))[0]
    A(f'v_mul_f32 v6, 0x{f2u(1.0/448):08x}, v6')
    A('v_mov_b32 v176, 0')
    A('v_mov_b32 v177, 0')
    for i in range(56):
        A(f'v_sub_f32 v178, {v(XF+2*i)}, v6')
        A(f'v_sub_f32 v179, {v(XF+2*i+1)}, v6')
        A('v_fmac_f32 v176, v178, v178')
        A('v_fmac_f32 v177, v179, v179')
    A('v_add_f32 v176, v176, v177')
    allred(176, 177)
    A(f'v_mul_f32 v176, 0x{f2u(1.0/448):08x}, v176')
    A('v_cvt_pk_bf16_f32 v6, v6, v176')
    A('v_and_b32 v176, 0xffff0000, v6')
    A('v_lshlrev_b32 v6, 16, v6')
    A(f'v_add_f32 v176, 0x{f2u(1e-5):08x}, v176')
    A('v_cvt_pk_bf16_f32 v176, v176, v176')
    A('v_and_b32 v176, 0xffff0000, v176')
    A('v_sqrt_f32 v176, v176')
    A('s_nop 0')
    A('v_cvt_pk_bf16_f32 v176, v176, v176')
    A('v_and_b32 v176, 0xffff0000, v176')
    A('v_rcp_f32 v177, v176')
    A('s_nop 0')
    A('v_fma_f32 v178, -v176, v177, 1.0')
    A('v_fma_f32 v177, v178, v177, v177')
    for i in range(56):
        A(f'v_sub_f32 v178, {v(XF+2*i)}, v6')
        A(f'v_sub_f32 v179, {v(XF+2*i+1)}, v6')
        A('v_cvt_pk_bf16_f32 v178, v178, v179')
        A('v_and_b32 v179, 0xffff0000, v178')
        A('v_lshlrev_b32 v178, 16, v178')
        A('v_mul_f32 v178, v178, v177')
        A('v_mul_f32 v179, v179, v177')
        A(f'v_cvt_pk_bf16_f32 {v(RAW+i)}, v178, v179')
    A('s_mul_i32 s17, s16, %d' % (14*1024))
    A(f's_add_u32 s18, s17, {XNP}')
    if XNF: A(f's_add_u32 s17, s17, {XNF}')
    A('v_and_b32 v5, 1, v2'); A('v_lshlrev_b32 v5, 9, v5')
    A('v_lshrrev_b32 v6, 1, v2'); A('v_lshl_add_u32 v5, v6, 8, v5')
    A('v_lshrrev_b32 v6, 1, v3'); A('v_lshl_add_u32 v6, v6, 4, v5')
    A('v_and_b32 v7, 1, v3'); A('v_lshl_add_u32 v6, v7, 10, v6')
    A('v_cmp_eq_u32 s[22:23], 1, v7')
    A('v_lshl_add_u32 v5, v3, 4, v5')
    A('s_lshr_b32 s19, s16, 1'); A(f's_mul_i32 s19, s19, {28*1024}')
    A('s_and_b32 s24, s16, 1'); A('s_lshl_b32 s24, s24, 7')
    A('s_add_u32 s19, s19, s24'); A(f's_add_u32 s19, s19, {XNS}')
    for kk in range(14):
        if kk % 4 == 0 and kk:
            A('s_add_u32 s17, s17, 4096')
            A('s_add_u32 s18, s18, 4096')
        if kk % 2 == 0 and kk: A('s_add_u32 s19, s19, 4096')
        b = RAW+4*kk
        A(f'buffer_store_dwordx4 {v(b,4)}, v4, s[4:7], s17 offen offset:{(kk%4)*1024} sc1')
        t = XF + 8*kk
        for d in range(4): A(f'v_mov_b32 {v(t+d)}, {v(b+d)}')
        A('s_nop 1')
        A(f'v_permlane32_swap_b32 {v(t)}, {v(t+2)}')
        A(f'v_permlane32_swap_b32 {v(t+1)}, {v(t+3)}')
        A('s_nop 1')
        A(f'buffer_store_dwordx4 {v(t,4)}, v5, s[4:7], s18 offen offset:{(kk%4)*1024} sc1')
        A(f'v_cndmask_b32 v178, {v(t+2)}, {v(t)}, s[22:23]')
        A(f'v_cndmask_b32 v179, {v(t+3)}, {v(t+1)}, s[22:23]')
        A('s_nop 1')
        A('v_mov_b32_dpp v180, v178 quad_perm:[1,0,3,2] row_mask:0xf bank_mask:0xf')
        A('v_mov_b32_dpp v181, v179 quad_perm:[1,0,3,2] row_mask:0xf bank_mask:0xf')
        A(f'v_cndmask_b32 {v(t+4)}, {v(t)}, v180, s[22:23]')
        A(f'v_cndmask_b32 {v(t+5)}, v180, {v(t+2)}, s[22:23]')
        A(f'v_cndmask_b32 {v(t+6)}, {v(t+1)}, v181, s[22:23]')
        A(f'v_cndmask_b32 {v(t+7)}, v181, {v(t+3)}, s[22:23]')
        A(f'buffer_store_dwordx4 {v(t+4,4)}, v6, s[4:7], s19 offen offset:{(kk%2)*2048} sc1')
    wait_init()
    A('s_lshl_b32 s17, s16, 2'); A(f's_add_u32 s17, s17, {LNF}')
    A('v_mov_b32 v1, 1'); A('v_mov_b32 v5, 0'); A('s_mov_b64 exec, 1')
    A('buffer_store_dword v1, v5, s[4:7], s17 offen sc1'); A('s_mov_b64 exec, -1')
    A('v_lshlrev_b32 v1, 4, v0')

def mn_decode(A):
    A('s_lshl_b32 s16, s91, 5'); A('s_add_u32 s16, s16, s92')
    sdivmod(A, 32, 19, 16, 7, 224)
    A('s_lshr_b32 s17, s32, 3'); A('s_lshl_b32 s17, s17, 2'); A('s_and_b32 s16, s32, 3'); A('s_add_u32 s17, s17, s16')
    A('s_bfe_u32 s33, s32, 0x10002')

def ph_mn(A, wait_init):
    p0_common(A)
    mn_decode(A)
    A('s_mov_b32 s34, 0')
    def flag():
        L = A.newlabel('mf')
        A('s_cmp_lg_u32 s34, 0'); A(f's_cbranch_scc1 {L}')
        wait_init()
        A('s_mov_b32 s34, 1')
        A.label(L)
        A('s_waitcnt vmcnt(0)')
        A('s_lshl_b32 s28, s33, 4'); A('s_add_u32 s28, s28, s17'); A('s_lshl_b32 s28, s28, 3'); A('s_add_u32 s28, s28, s22')
        A('s_lshl_b32 s28, s28, 3'); A('s_add_u32 s28, s28, s19'); A('s_lshl_b32 s28, s28, 2'); A(f's_add_u32 s28, s28, {MNF}')
        A('v_mov_b32 v1, 1'); A('v_mov_b32 v5, 0'); A('s_mov_b64 exec, 1')
        A('buffer_store_dword v1, v5, s[4:7], s28 offen sc1'); A('s_mov_b64 exec, -1')
    ACC, RB, TMP, OUTR = 16, 80, 208, 224
    AFR = lambda t4, ks: 256 + (t4*8+ks)*4
    A('s_lshl_b32 s16, s33, 4'); A('s_add_u32 s16, s16, 16')
    A('s_load_dwordx2 s[36:37], s[0:1], s16')
    A('s_add_u32 s16, s16, 8')
    A('s_load_dwordx2 s[40:41], s[0:1], s16')
    A(f's_mov_b32 s38, {SZ_W}'); A('s_mov_b32 s39, 0x00020000')
    A(f's_mov_b32 s42, {SZ_W}'); A('s_mov_b32 s43, 0x00020000')
    A('s_lshl_b32 s23, s17, 9')
    A('v_lshrrev_b32 v7, 5, v0'); A('v_and_b32 v6, 31, v0')
    A('v_xor_b32 v5, v6, v7'); A('v_lshlrev_b32 v5, 4, v5'); A('v_lshl_add_u32 v5, v7, 13, v5')
    A('v_lshlrev_b32 v6, 4, v6'); A('v_lshl_add_u32 v6, v7, 13, v6')
    A('v_xor_b32 v7, v2, v3'); A('v_lshlrev_b32 v7, 4, v7')
    A('s_lshl_b32 s24, s3, 15'); A('s_add_u32 s24, s24, 32768')
    for q in range(4):
        A(f'v_xor_b32 {v(8+q)}, {64*q}, v7')
        A(f'v_lshl_add_u32 {v(12+q)}, v3, 10, {v(8+q)}'); A(f'v_add_u32 {v(12+q)}, s24, {v(12+q)}')
        A(f'v_lshl_add_u32 {v(8+q)}, v3, 9, {v(8+q)}')
    A('s_waitcnt lgkmcnt(0)')
    A('s_cmp_eq_u32 s3, 3'); A('s_cbranch_scc1 k1_noA')
    A('s_lshl_b32 s25, s19, 19'); A('s_add_u32 s25, s25, s23')
    for k in range(11):
        A(f's_add_u32 s26, s3, {3*k}'); A('s_min_u32 s26, s26, 31')
        A('s_lshl_b32 s27, s26, 10'); A('s_mov_b32 m0, s27')
        A('s_lshl_b32 s27, s26, 14'); A('s_add_u32 s27, s27, s25')
        A('s_and_b32 s26, s26, 7'); A('s_lshl_b32 s26, s26, 5')
        A('v_xor_b32 v1, s26, v5')
        A('buffer_load_dwordx4 v1, s[36:39], s27 offen lds')
    A.label('k1_noA')
    A('s_mov_b32 s22, s3')
    A('s_cmp_lg_u32 s33, 0')
    A('s_cbranch_scc1 k1_N')
    def readA():
        Lb = A.newlabel('ra')
        A('s_cmp_eq_u32 s3, 3'); A(f's_cbranch_scc1 {Lb}')
        A('s_barrier')
        A.label(Lb)
        for t4 in range(4):
            for ks in range(8):
                A(f'ds_read_b128 {r(AFR(t4,ks),4)}, {v(8+(ks&3))} offset:{t4*8192+(ks>>2)*256}')
    def mfmas(ks, bregs):
        for t4 in range(4):
            for tt in range(4):
                d = ACC + (t4*4+tt)*4
                A(f'v_mfma_f32_16x16x32_bf16 {v(d,4)}, {r(AFR(t4,ks),4)}, {v(bregs[tt],4)}, {"0" if ks == 0 else v(d,4)}')
    def epilogue(base, isM):
        A.nop(10)
        A('s_mul_i32 s28, s17, 28'); A('s_lshl_b32 s29, s22, 2'); A('s_add_u32 s28, s28, s29')
        A('s_mul_i32 s28, s28, 7'); A('s_add_u32 s28, s28, s19'); A('s_lshl_b32 s28, s28, 11')
        A(f's_add_u32 s28, s28, {base}')
        for tt in range(4):
            for u in range(2):
                o = OUTR + (tt*2+u)*4
                for ab in range(2):
                    d = ACC + ((u*2+ab)*4+tt)*4
                    if isM:
                        for rr in range(0, 4, 2):
                            A(f'v_pk_mul_f32 {v(d+rr,2)}, {v(d+rr,2)}, s[30:31]')
                    A(f'v_cvt_pk_bf16_f32 {v(o+2*ab)}, {v(d)}, {v(d+1)}')
                    A(f'v_cvt_pk_bf16_f32 {v(o+2*ab+1)}, {v(d+2)}, {v(d+3)}')
                if not isM: A(f'ds_write_b128 v12, {v(o,4)} offset:{(tt&1)*2048+u*1024+(tt>>1)*16}')
        if not isM:
            for k in range(8): A(f'ds_read_b128 {v(OUTR+4*k,4)}, v13 offset:{k*1024}')
            A('s_waitcnt lgkmcnt(0)')
        for tt in range(4):
            for u in range(2):
                A(f'buffer_store_dwordx4 {v(OUTR+(tt*2+u)*4,4)}, v4, s[4:7], s28 offen offset:{u*1024} sc1')
            if tt < 3: A(f's_add_u32 s28, s28, {7*2048}')
    A('s_mov_b32 s30, 0x3d800000'); A('s_mov_b32 s31, 0x3d800000')
    def dmaB(blk_add):
        A(f's_add_u32 s25, s22, {blk_add}'); A('s_lshl_b32 s25, s25, 19'); A('s_add_u32 s25, s25, s23')
        A('s_mov_b32 m0, s24')
        for j in range(32):
            A(f'v_xor_b32 v1, {16*(j&15)}, v6')
            A('buffer_load_dwordx4 v1, s[40:43], s25 offen lds')
            A('s_add_u32 s25, s25, 16384'); A('s_add_u32 m0, m0, 1024')
    def readB():
        for ks in range(8):
            for tt in range(4):
                A(f'ds_read_b128 {v(RB+(ks*4+tt)*4,4)}, {v(12+(ks&3))} offset:{(tt>>1)*16384+(tt&1)*512+(ks>>2)*256}')
    dmaB(0)
    A('s_waitcnt vmcnt(32)')
    readA()
    A('s_waitcnt vmcnt(0)')
    readB()
    A('s_waitcnt lgkmcnt(0)')
    A('s_cmp_eq_u32 s3, 3'); A('s_cbranch_scc1 k1_M1')
    dmaB(4)
    A.label('k1_M1')
    for ks in range(8): mfmas(ks, [RB+(ks*4+tt)*4 for tt in range(4)])
    A('s_cmp_eq_u32 s3, 3'); A('s_cbranch_scc1 k1_M2')
    A('s_waitcnt vmcnt(0)')
    readB()
    epilogue(MC, True)
    A('s_waitcnt lgkmcnt(0)')
    for ks in range(8):
        mfmas(ks, [RB+(ks*4+tt)*4 for tt in range(4)])
        if ks == 4: flag()
    A('s_add_u32 s22, s22, 4')
    A.label('k1_M2')
    epilogue(MC, True)
    flag()
    A('s_branch k1_MNend')
    A.label('k1_N')
    A(f'v_mul_u32_u24 v6, {8*896}, v2'); A('v_lshl_add_u32 v6, v3, 3, v6'); A(f'v_add_u32 v7, {4*896}, v6')
    A('v_lshrrev_b32 v12, 3, v3'); A('v_lshlrev_b32 v12, 12, v12'); A('v_lshl_add_u32 v12, v2, 8, v12')
    A('v_and_b32 v5, 7, v3'); A('v_lshl_add_u32 v12, v5, 5, v12'); A('v_add_u32 v12, s24, v12'); A('v_add_u32 v13, s24, v4')
    A('s_sub_u32 s27, 6, s22'); A('s_bitcmp1_b32 s17, 2')
    A('s_cselect_b32 s22, s27, s22'); A('s_cselect_b32 s30, -4, 4'); A('s_lshl_b32 s31, s30, 7')
    A('s_mul_i32 s26, s17, 229376'); A('s_lshl_b32 s27, s22, 7'); A('s_add_u32 s26, s26, s27')
    A('s_add_u32 s31, s31, s26')
    def loadW(ks, add):
        A(f's_add_u32 s27, {"s31" if add else "s26"}, {ks*32*896}')
        for ee in range(8):
            A(f'buffer_load_dwordx2 {v(RB+16*ks+2*ee,2)}, {"v6" if ee<4 else "v7"}, s[40:43], s27 offen offset:{(ee&3)*896}')
    for ks in range(6): loadW(ks, 0)
    A('s_waitcnt vmcnt(48)')
    for ks in range(6, 8): loadW(ks, 0)
    readA()
    A('s_waitcnt lgkmcnt(0)')
    def nblock(reload, loaded=False):
        for ks in range(8):
            if not loaded: A(f's_waitcnt vmcnt({min(63, 8*(7-ks) + (8*ks if reload else 0))})')
            if loaded and ks == 4: flag()
            L = RB+16*ks
            for j in range(4):
                for m in range(4):
                    A(f'v_perm_b32 {v(TMP+4*j+m)}, {v(L+2*(2*m+1)+(j>>1))}, {v(L+2*(2*m)+(j>>1))}, {"s21" if j&1 else "s20"}')
            if reload: loadW(ks, 512)
            else: A('s_nop 1')
            mfmas(ks, [TMP+4*j for j in range(4)])
    A('s_cmp_eq_u32 s3, 3'); A('s_cbranch_scc1 k1_N2')
    nblock(True)
    A('s_waitcnt vmcnt(0)')
    epilogue(NC, False)
    nblock(False, True)
    A('s_add_u32 s22, s22, s30')
    A('s_branch k1_N3')
    A.label('k1_N2')
    nblock(False)
    A.label('k1_N3')
    epilogue(NC, False)
    flag()
    A.label('k1_MNend')
    A('v_lshlrev_b32 v1, 4, v0')
```

```python
from asmlib import *
from layout import *
from k1 import sdivmod, srd, SZ_X
import struct
f2u = lambda f: struct.unpack('<I', struct.pack('<f', f))[0]
LOG2E = 1.4426950408889634

def prologue(A):
    srd(A, 4, 104, WS_END)
    A('v_lshrrev_b32 v1, 6, v0')
    A('v_and_b32 v0, 63, v0')
    A('v_readfirstlane_b32 s3, v1')
    A('v_lshlrev_b32 v1, 4, v0')
    A('s_waitcnt lgkmcnt(0)')

TS = False
def tstamp(A, slot, va=254, vb=255, sreg=None):
    if not TS: return
    A('s_memrealtime s[98:99]')
    A('s_lshl_b32 s94, s2, 2'); A('s_add_u32 s94, s94, s3'); A('s_lshl_b32 s94, s94, 12'); A(f's_add_u32 s94, s94, {PROF + slot*4}')
    if sreg is not None:
        A(f's_lshl_b32 s95, {s(sreg)}, 2'); A('s_add_u32 s94, s94, s95')
    A('s_waitcnt lgkmcnt(0)')
    A(f'v_mov_b32 {v(va)}, s98'); A(f'v_mov_b32 {v(vb)}, 0')
    A(f'buffer_store_dword {v(va)}, {v(vb)}, s[4:7], s94 offen')

def load_frags(A, regs, soff, tmp_s, flags=''):
    for i, rg in enumerate(regs):
        if i % 4 == 0:
            if i == 0: A(f's_mov_b32 {s(tmp_s)}, {s(soff)}')
            else: A(f's_add_u32 {s(tmp_s)}, {s(tmp_s)}, 4096')
        A(f'buffer_load_dwordx4 {r(rg,4)}, v1, s[4:7], {s(tmp_s)} offen offset:{(i%4)*1024}{flags}')

def silu_bf(A, x, t):
    A(f'v_mul_f32 {v(t)}, 0x{f2u(-LOG2E):08x}, {v(x)}')
    A(f'v_exp_f32 {v(t)}, {v(t)}')
    A('s_nop 0')
    A(f'v_add_f32 {v(t)}, 1.0, {v(t)}')
    A(f'v_rcp_f32 {v(t)}, {v(t)}')
    A('s_nop 0')
    A(f'v_mul_f32 {v(x)}, {v(x)}, {v(t)}')

def wait_words(A, va, vd, fail, srd_='s[4:7]', cnt='s35', sleep=4, ln=None):
    L = A.newlabel('ww'); Lok = A.newlabel('wwo')
    if ln: A(f'v_lshlrev_b32 {v(ln[0])}, 3, v0'); A(f'v_add_u32 {v(ln[0])}, {LNF}, {v(ln[0])}')
    A(f's_mov_b32 {cnt}, 400000')
    A.label(L)
    A(f'buffer_load_dword {v(vd)}, {v(va)}, {srd_}, 0 offen sc1')
    if ln: A(f'buffer_load_dwordx2 {v(ln[1],2)}, {v(ln[0])}, s[4:7], 0 offen sc1')
    A('s_waitcnt vmcnt(0)')
    if ln: A(f'v_min3_u32 {v(vd)}, {v(vd)}, {v(ln[1])}, {v(ln[1]+1)}')
    A(f'v_cmp_eq_u32 vcc, 0, {v(vd)}')
    A(f's_cbranch_vccz {Lok}')
    A(f's_sleep {sleep}')
    A(f's_sub_u32 {cnt}, {cnt}, 1'); A(f's_cmp_lg_u32 {cnt}, 0'); A(f's_cbranch_scc1 {L}')
    A(f's_branch {fail}')
    A.label(Lok)

def mnf_addr(A, va, vt, sbase):
    A(f'v_and_b32 {v(va)}, 7, v0'); A(f'v_min_u32 {v(va)}, 6, {v(va)}'); A(f'v_lshlrev_b32 {v(va)}, 2, {v(va)}')
    if vt is not None: A(f'v_lshl_add_u32 {v(va)}, {v(vt)}, 8, {v(va)}')
    A(f's_add_u32 {sbase}, {sbase}, {MNF}')
    A(f'v_add_u32 {v(va)}, {sbase}, {v(va)}')

def wsgemm(A, kind, wid=2, st_flags='', fail=None):
    W = lambda tl, kk: 256 + (tl*14+kk)*4
    ACCS, OUT = [16, 48], 80
    XR = [96 + 4*i for i in range(8)]
    ncls, nseg = (8, 8) if kind == 'U' else (16, 4)
    sh = 3 if kind == 'U' else 4
    NB, SB = 4, 28*1024
    A(f's_and_b32 s16, s92, {ncls-1}')
    A(f's_lshr_b32 s17, s92, {sh}')
    A(f's_lshl_b32 s18, s91, {5-sh}')
    A('s_add_u32 s17, s17, s18')
    A('s_lshl_b32 s17, s17, 2')
    A('s_add_u32 s17, s17, s3')
    if kind == 'U':
        sdivmod(A, 22, 23, 17, 14, 112)
        if fail:
            A('s_lshl_b32 s18, s22, 1'); A('s_add_u32 s18, s18, 16'); A('s_lshl_b32 s18, s18, 3'); A('s_lshr_b32 s19, s23, 1'); A('s_add_u32 s18, s18, s19'); A('s_lshl_b32 s18, s18, 5')
            A('v_bfe_u32 v3, v0, 3, 1')
            mnf_addr(A, 2, 3, 's18')
            wait_words(A, 2, 3, fail, ln=(4, 6), sleep=40)
        A(f's_mul_i32 s18, s22, {2*28*14*1024}')
        A(f's_mul_i32 s23, s23, {2*14*1024}')
        A('s_add_u32 s18, s18, s23')
        A(f's_add_u32 s18, s18, {NC}')
        toff = [0, 14*1024, 28*14*1024, 28*14*1024+14*1024]
    else:
        A(f's_mul_i32 s18, s17, {56*1024}')
        A(f's_add_u32 s18, s18, {W13}')
        toff = [0, 14*1024, 28*1024, 42*1024]
    xbase = XNP if kind == 'U' else XNF
    A(f's_mul_i32 s24, s3, {7*1024}')
    A(f's_mul_i32 s19, s16, {28*1024}')
    A('s_add_u32 s19, s19, s24')
    A(f's_add_u32 s19, s19, {xbase}')
    def dma(it):
        for half in range(2):
            A(f's_add_u32 s22, s24, {(it % NB)*SB + half*4096}')
            A('s_mov_b32 m0, s22')
            A(f's_add_u32 s23, s19, {it*ncls*28*1024 + half*4096}')
            for j in range(4 if half == 0 else 3):
                A(f'buffer_load_dwordx4 v1, s[4:7], s23 offen offset:{j*1024} lds')
    A('s_barrier')
    dma(0)
    for tl in range(4): A(f's_add_u32 {s(26+tl)}, s18, {toff[tl]}')
    for kc in range(4):
        for tl in range(4):
            for kk in range(4*kc, min(4*kc+4, 14)):
                A(f'buffer_load_dwordx4 {r(W(tl,kk),4)}, v1, s[4:7], {s(26+tl)} offen offset:{(kk%4)*1024}')
            if kc < 3: A(f's_add_u32 {s(26+tl)}, {s(26+tl)}, 4096')
    if kind == 'U':
        A(f's_mul_i32 s21, s16, {16*28*1024}'); A('s_lshl_b32 s22, s17, 12'); A('s_add_u32 s21, s21, s22'); A(f's_add_u32 s21, s21, {UF}')
        dstep = ncls*16*28*1024
    else:
        A(f's_mul_i32 s21, s16, {2*56*1024}'); A('s_lshl_b32 s22, s17, 10'); A('s_add_u32 s21, s21, s22'); A(f's_add_u32 s21, s21, {HF}')
        dstep = ncls*2*56*1024
    flags = kind == 'U' and st_flags
    def uflag(rnd):
        A('s_mov_b64 exec, 1')
        A(f'buffer_store_dword v2, v3, s[4:7], s25 offen offset:{rnd*4} sc1')
        A('s_mov_b64 exec, -1')
    if flags:
        A('s_lshl_b32 s25, s17, 3'); A('s_add_u32 s25, s25, s16'); A('s_lshl_b32 s25, s25, 5'); A(f's_add_u32 s25, s25, {UFL}')
        A('v_mov_b32 v2, 1'); A('v_mov_b32 v3, 0')
    A(f'v_add_u32 v4, {2*SB}, v1')
    vq = ['d0']*7 + [('w', kc) for kc in range(4) for _ in range(16 if kc < 3 else 8)]
    def vneed(name):
        if name not in vq: return
        i = len(vq) - 1 - vq[::-1].index(name)
        n = len(vq) - 1 - i
        A(f's_waitcnt vmcnt({min(n,63)})')
        assert n <= 63
        del vq[:i+1]
    def epilogue(it):
        ACC = ACCS[it & 1]; I = []
        if kind == 'U':
            for ct in range(2):
                for tt in range(2):
                    o = OUT + 4*(ct*2+tt)
                    da = ACC + ((ct)*2+tt)*4; db = ACC + ((2+ct)*2+tt)*4
                    I += [f'v_cvt_pk_bf16_f32 {v(o)}, {v(da)}, {v(da+1)}', f'v_cvt_pk_bf16_f32 {v(o+1)}, {v(db)}, {v(db+1)}',
                          f'v_cvt_pk_bf16_f32 {v(o+2)}, {v(da+2)}, {v(da+3)}', f'v_cvt_pk_bf16_f32 {v(o+3)}, {v(db+2)}, {v(db+3)}',
                          ('st', f'buffer_store_dwordx4 {v(o,4)}, v1, s[4:7], s21 offen offset:{(ct*2+tt)*1024}{st_flags}')]
        else:
            B_ = Asm()
            for tt in range(2):
                o = OUT + 4*tt
                for ab in range(2):
                    gd = ACC + ((ab*2+0)*2+tt)*4; ud = ACC + ((ab*2+1)*2+tt)*4
                    for p in range(2):
                        g0, g1, u0, u1 = gd+2*p, gd+2*p+1, ud+2*p, ud+2*p+1
                        B_(f'v_cvt_pk_bf16_f32 v8, {v(g0)}, {v(g1)}'); B_(f'v_cvt_pk_bf16_f32 v9, {v(u0)}, {v(u1)}')
                        B_(f'v_lshlrev_b32 {v(g0)}, 16, v8'); B_(f'v_and_b32 {v(g1)}, 0xffff0000, v8')
                        B_(f'v_lshlrev_b32 {v(u0)}, 16, v9'); B_(f'v_and_b32 {v(u1)}, 0xffff0000, v9')
                        silu_bf(B_, g0, 10); silu_bf(B_, g1, 11)
                        B_(f'v_cvt_pk_bf16_f32 v8, {v(g0)}, {v(g1)}')
                        B_(f'v_lshlrev_b32 {v(g0)}, 16, v8'); B_(f'v_and_b32 {v(g1)}, 0xffff0000, v8')
                        B_(f'v_mul_f32 {v(g0)}, {v(g0)}, {v(u0)}'); B_(f'v_mul_f32 {v(g1)}, {v(g1)}, {v(u1)}')
                        B_(f'v_cvt_pk_bf16_f32 {v(o+2*ab+p)}, {v(g0)}, {v(g1)}')
                if tt: B_(f's_add_u32 s22, s21, {56*1024}')
                B_.lines.append(('st', f'buffer_store_dwordx4 {v(o,4)}, v1, s[4:7], {"s22" if tt else "s21"} offen{st_flags}'))
            I = [x.strip() if isinstance(x, str) else x for x in B_.lines]
        I.append(f's_add_u32 s21, s21, {dstep}')
        return I
    def emit(x, it):
        if isinstance(x, tuple): A(x[1]); vq.append(('s', it))
        else: A(x)
    pend = []
    for it in range(nseg):
        ACC = ACCS[it & 1]
        vneed(f'd{it}')
        A('s_barrier')
        for nx in ([1, 2] if it == 0 else [it+2]):
            if nx < nseg: dma(nx); vq.extend([f'd{nx}']*7)
        base = (it % NB)*SB
        ar, ab_ = ('v1', base) if base < 2*SB else ('v4', base-2*SB)
        def rdx(kk):
            for tt in range(2): A(f'ds_read_b128 {v(XR[(kk%4)*2+tt],4)}, {ar} offset:{ab_+(tt*14+kk)*1024}')
        for kk in range(3): rdx(kk)
        per = (len(pend) + 95) // 96
        n = 0
        for kk in range(14):
            if it == 0 and kk % 4 == 0: vneed(('w', kk//4))
            if kk+3 < 14: rdx(kk+3)
            A(f's_waitcnt lgkmcnt({2*min(3, 13-kk)})')
            for tl in range(4):
                for tt in range(2):
                    d = ACC + (tl*2+tt)*4
                    c = '0' if kk == 0 else v(d, 4)
                    xw, ww = v(XR[(kk%4)*2+tt], 4), r(W(tl, kk), 4)
                    if kind == 'U': A(f'v_mfma_f32_16x16x32_bf16 {v(d,4)}, {xw}, {ww}, {c}')
                    else: A(f'v_mfma_f32_16x16x32_bf16 {v(d,4)}, {ww}, {xw}, {c}')
                    n += 1
                    if n > 8:
                        for _ in range(per):
                            if pend: emit(pend.pop(0), it-1)
            if flags and kk == (7 if it == 1 else 13) and it > 0:
                vneed(('s', it-1)); uflag(it-1); vq.append('f')
        assert not pend
        if TS and kind == 'U':
            A(f's_memrealtime {s(70+2*it,2)}')
        pend = epilogue(it)
    A.nop(8)
    for x in pend: emit(x, nseg-1)
    if flags:
        A('s_waitcnt vmcnt(0)')
        uflag(nseg-1)
    if TS and kind == 'U':
        A('s_lshl_b32 s94, s2, 2'); A('s_add_u32 s94, s94, s3'); A('s_lshl_b32 s94, s94, 12'); A(f's_add_u32 s94, s94, {PROF + 200*4}')
        A('s_waitcnt lgkmcnt(0)')
        for it in range(8):
            A(f'v_mov_b32 v8, {s(70+2*it)}'); A('v_mov_b32 v9, 0')
            A(f'buffer_store_dword v8, v9, s[4:7], s94 offen offset:{4*it}')

def gen_k2(A):
    A.label('k2_kernel')
    A('s_cmp_ge_u32 s2, 224')
    A('s_cbranch_scc1 k2_end')
    prologue(A)
    wsgemm(A, 'U')
    wsgemm(A, 'F1')
    A.label('k2_end')
    A('s_endpgm')
    return dict(name='k2_kernel', grid=224, block=256, lds=0, vgpr=256, sgpr=40, agpr=256)
```

```python
from asmlib import *
from layout import *
from k1 import sdivmod, srd
from wk import prologue, load_frags, f2u, LOG2E, tstamp, wait_words, mnf_addr

STG, XB, XS_ = 0, 8192, 576
RED, WL = 8192, 16384
CHAIN_LDS = WL + 4*14*1024
SPIN = 200000
NSTEP = 63
PROFILE = False
EWPOS = 0
QUICK = False
VDEL = 0
SSF = 0
PDEL = 40
MDEL = 0
MSRC = 0
EWW = 0
DYNF = 0
TAGC = 0
MSETS = 2
VMSETS = 2
TAGS = 0
TG = 16384
STAGP = 24
UEARLY = 1
PFS = 128
VFLAG = 0
LAT = 0
PREF = 0
POLLALL = 1
DBG_NOYW = 0
DBG_NOYF = 0
WBSTEP = 4
WBLAST = 2
NROLE = 30
DBG_NOITEM = DBG_PLAIN = 0
DBG_U0 = DBG_X0 = DBG_NOY = 0
BDEL = 8
STAG = 40
EWM_POS = 0

def stamp(A, i):
    if PROFILE and not LAT: A(f's_memrealtime {s(50+2*i,2)}')
def stamp_flush(A, n, tmp, tmp2):
    if not PROFILE: return
    A('s_waitcnt lgkmcnt(0)')
    for i in range(n): A(f'v_writelane_b32 {v(tmp)}, {s(50+2*i)}, {i}')
    A(f'v_mbcnt_lo_u32_b32 {v(tmp2)}, -1, 0')
    A(f'v_lshlrev_b32 {v(tmp2)}, 2, {v(tmp2)}')
    A('s_lshl_b32 s48, s20, 6')
    A('s_add_u32 s48, s48, s49')
    A('s_mov_b64 s[70:71], exec')
    A('s_mov_b64 exec, 0xffff')
    A(f'buffer_store_dword {v(tmp)}, {v(tmp2)}, s[4:7], s48 offen')
    A('s_mov_b64 exec, s[70:71]')
def stamp_init(A):
    if not PROFILE: return
    A('s_lshl_b32 s49, s15, 2'); A('s_add_u32 s49, s49, s3'); A('s_lshl_b32 s49, s49, 12')
    A(f's_add_u32 s49, s49, {PROF}')

class Lds:
    def __init__(self, A): self.A = A; self.q = []
    def op(self, name, ins): self.A(ins); self.q.append(name)
    def need(self, name):
        if name not in self.q: return
        i = self.q.index(name)
        n = len(self.q) - 1 - i
        self.A(f's_waitcnt lgkmcnt({min(n,15)})')
        self.q = self.q[i+1:] if n <= 15 else self.q
    def drain(self):
        self.A('s_waitcnt lgkmcnt(0)'); self.q = []

def smf(A, d, a_, b):
    A(f'v_smfmac_f32_16x16x64_bf16 {v(d,4)}, {r(a_,4)}, {r(b,8)}, v2')

NF = 2
def common_setup(A):
    A('v_and_b32 v11, 8, v0')
    A('v_cmp_eq_u32 vcc, 0, v11')
    A('v_mov_b32 v2, 0xeeee')
    A('v_mov_b32 v11, 0x4444')
    A('v_cndmask_b32 v2, v2, v11, vcc')
    A('v_lshrrev_b32 v11, 4, v0'); A('v_lshlrev_b32 v8, 7, v11')
    A('v_and_b32 v11, 7, v0'); A('v_lshl_add_u32 v8, v11, 4, v8')
    A('s_mul_i32 s16, s3, 112')
    A('v_add_u32 v3, s16, v0'); A('v_lshlrev_b32 v3, 4, v3')
    A('v_min_u32 v4, 47, v0'); A('v_add_u32 v4, s16, v4'); A('v_add_u32 v4, 64, v4'); A('v_lshlrev_b32 v4, 4, v4')
    A('v_min_u32 v5, 13, v0'); A('v_lshlrev_b32 v5, 2, v5')
    A(f's_mov_b32 s40, {EWM}')
    A(f's_mov_b32 s41, {EWP}')
    A('s_lshl_b32 s16, s15, 8')
    A('s_add_u32 s46, s40, s16')
    A('s_add_u32 s47, s41, s16')
    A('s_mov_b64 s[42:43], 0xffff')
    if SSF:
        A('s_lshl_b32 s16, s15, 2'); A('s_add_u32 s16, s16, s3'); A('s_lshl_b32 s16, s16, 8')
        A(f's_add_u32 s46, s16, {EW2}'); A('s_mov_b32 s47, s46')
        A('v_mov_b32 v5, 0'); A('s_mov_b64 s[42:43], 1')
        A(f's_mov_b32 s40, {EW2}'); A(f's_mov_b32 s41, {EW2+16384}')

def step_addr(A):
    A('s_and_b32 s21, s20, 3')
    A(f's_lshl_b32 s24, s21, 14')
    A(f's_add_u32 s24, s24, {MEMR}')
    A('s_add_u32 s25, s24, 8192')
    A(f's_lshl_b32 s26, s21, 15')
    A(f's_add_u32 s26, s26, {PR}')
    A('s_add_u32 s45, s26, 16384')
    A('s_xor_b32 s22, s21, 2')
    A(f's_lshl_b32 s27, s22, 15')
    A(f's_add_u32 s27, s27, {PR}')
    A('s_add_u32 s44, s20, 1')
    A('s_and_b32 s22, s44, 3')
    A(f's_lshl_b32 s28, s22, 14')
    A(f's_add_u32 s28, s28, {MEMR}')
    A('s_xor_b32 s22, s22, 2')
    A(f's_lshl_b32 s29, s22, 14')
    A(f's_add_u32 s29, s29, {MEMR}')

def store_flag(A, voff, base, st, tmp):
    if SSF: return
    A(f'v_mov_b32 {v(tmp)}, s44')
    if base == 's41': A('s_mov_b32 exec_lo, 0')
    A(f'buffer_store_dword {v(tmp)}, {v(voff)}, s[4:7], {base} offen{st}')
    if base == 's41': A('s_mov_b32 exec_lo, -1')

def ssf_store(A, base, st, t0, t1):
    A(f'v_mbcnt_lo_u32_b32 {v(t1)}, -1, 0'); A(f'v_mbcnt_hi_u32_b32 {v(t1)}, -1, {v(t1)}'); A(f'v_lshlrev_b32 {v(t1)}, 8, {v(t1)}')
    A(f'v_mov_b32 {v(t0)}, s44')
    A(f'buffer_store_dword {v(t0)}, {v(t1)}, s[4:7], {base} offen{st}')
    A(f'buffer_store_dword {v(t0)}, {v(t1)}, s[4:7], {base} offen offset:128{st}')

def wait_flag(A, voff, base, want, regs, fail, poller):
    nf = NF
    Lb = A.newlabel('wfb')
    if poller is not None or POLLALL:
        L = A.newlabel('wf'); Lok = A.newlabel('wfo')
        if not POLLALL:
            A(f's_cmp_lg_u32 s3, {poller}')
            A(f's_cbranch_scc1 {Lb}')
        A(f's_mov_b32 s30, {SPIN}')
        A('s_mov_b64 exec, s[42:43]')
        def issue(k): A(f'buffer_load_dword {v(regs[k])}, {v(voff)}, s[4:7], {base} offen offset:{k*128} sc1')
        for k in range(nf-1):
            issue(k); A.nop(52//nf)
        A.label(L)
        for k in range(nf):
            issue((k+nf-1) % nf)
            A(f's_waitcnt vmcnt({nf-1})')
            A(f'v_cmp_gt_u32 vcc, {want}, {v(regs[k])}')
            A(f's_cbranch_vccz {Lok}')
        A('s_sub_u32 s30, s30, 1')
        A('s_cmp_lg_u32 s30, 0')
        A(f's_cbranch_scc1 {L}')
        A('s_mov_b64 exec, -1')
        A(f's_branch {fail}')
        A.label(Lok)
        A('s_mov_b64 exec, -1')
    A.label(Lb)
    if not POLLALL: A('s_barrier')

def poll_mem(A, sets, fail):
    L = A.newlabel('pm'); Lok = A.newlabel('pmo')
    def issue(k):
        so = 's24' if k == 0 else 's25'
        A(f'buffer_load_dwordx4 {v(sets[k],4)}, v3, s[4:7], {so} offen sc1')
        A(f'buffer_load_dwordx4 {v(sets[k]+4,4)}, v4, s[4:7], {so} offen sc1')
    stamp(A, 8)
    if PROFILE: A('s_mov_b32 s68, 0')
    def check(k):
        b = sets[k]
        if PROFILE: A('s_add_u32 s68, s68, 1')
        A(f'ds_write_b128 v3, {v(b,4)}')
        A(f'ds_write_b128 v4, {v(b+4,4)}')
        A(f'v_max3_u32 v0, {v(b)}, {v(b+2)}, {v(b+4)}')
        A(f'v_max_u32 v0, v0, {v(b+6)}')
        A('v_cmp_eq_u32 vcc, -1, v0')
        A(f's_cbranch_vccz {Lok}')
    A(f's_mov_b32 s30, {SPIN}')
    if len(sets) == 1:
        A.label(L)
        issue(0); A('s_waitcnt vmcnt(0)'); check(0)
    else:
        issue(0)
        A.nop(STAG)
        A.label(L)
        issue(1); A('s_waitcnt vmcnt(2)'); check(0)
        issue(0); A('s_waitcnt vmcnt(2)'); check(1)
    A('s_sub_u32 s30, s30, 1')
    A('s_cmp_lg_u32 s30, 0')
    A(f's_cbranch_scc1 {L}')
    A(f's_branch {fail}')
    A.label(Lok)
    stamp(A, 0)
    A('s_waitcnt lgkmcnt(0)')
    A('s_barrier')
    stamp(A, 1)

def post_paired(d0, d1, xreg, xoff, t):
    I = [f'v_cvt_pk_bf16_f32 {v(t+rr)}, {v(d0+rr)}, {v(d1+rr)}' for rr in range(4)]
    W = [f'ds_write_b32 {v(xreg)}, {v(t+rr)} offset:{xoff+16*rr}' for rr in range(4)]
    return I, W
def post_single(d, xreg, xoff):
    I = [f'v_permlane32_swap_b32 {v(d)}, {v(d+1)}', f'v_permlane32_swap_b32 {v(d+2)}, {v(d+3)}',
         f'v_cvt_pk_bf16_f32 {v(d)}, {v(d)}, {v(d+1)}', f'v_cvt_pk_bf16_f32 {v(d+2)}, {v(d+2)}, {v(d+3)}']
    W = [f'ds_write_b32 {v(xreg)}, {v(d)} offset:{xoff}', f'ds_write_b32 {v(xreg)}, {v(d+2)} offset:{xoff+32}']
    return I, W

def x_addrs(A):
    A('v_and_b32 v11, 12, v0'); A('v_mul_u32_u24 v9, 36, v11')
    A('v_and_b32 v11, 3, v0');  A('v_lshl_add_u32 v9, v11, 2, v9')
    A('v_and_b32 v11, 16, v0'); A('v_lshl_add_u32 v9, v11, 2, v9')
    A(f's_mul_i32 s16, s3, {2*XS_}'); A(f's_add_u32 s16, s16, {XB}')
    A('v_add_u32 v9, s16, v9')
    A('v_lshrrev_b32 v11, 5, v0')
    A('v_lshl_add_u32 v10, v11, 4, v9')
    A(f'v_mul_u32_u24 v11, {XS_}, v11')
    A('v_add_u32 v9, v9, v11')

def gen_score(A, st, tag, fail, done):
    Lfin = f'sc_fin_{tag}'
    A('s_cmp_eq_u32 s3, 3')
    A(f's_cbranch_scc1 {Lfin}')
    ACC = [12, 16, 20, 24]
    SL = [28 + 4*i for i in range(9)]
    W = lambda tl, p: 64 + (tl*14+p)*8
    Lloop = f'sc_loop_{tag}'
    A('s_mov_b32 s20, 0')
    if TAGS or TAGC:
        A('v_lshlrev_b32 v6, 2, v0'); A('s_lshl_b32 s16, s3, 8'); A(f's_add_u32 s16, s16, {TG}'); A('v_add_u32 v6, s16, v6')
        A('v_mov_b32 v7, 0'); A('ds_write_b32 v6, v7')
    A.label(Lloop)
    step_addr(A)
    for k in range(8): A(f'v_mov_b64 {v(12+2*k,2)}, 0')
    wait_flag(A, 5, 's46', 's20', [SL[0]+k for k in range(4)], fail, 0)
    poll_mem(A, [SL[0], SL[2]][:MSETS], fail)
    Q = Lds(A)
    def rd(Q, p, slot):
        Q.op(('r', p), f'ds_read_b128 {v(SL[slot],4)}, v8 offset:{p*512}')
    slot = {}
    for p in range(5): slot[p] = 4+p; rd(Q, p, 4+p)
    for p in range(14):
        Q.need(('r', p))
        smf(A, ACC[0], SL[slot[p]], W(0, p)); smf(A, ACC[1], SL[slot[p]], W(1, p))
        if p == 1:
            A('s_waitcnt vmcnt(0)')
            for pp in range(5, 9): slot[pp] = pp-5; rd(Q, pp, pp-5)
        if 1 <= p < 6: slot[p+8] = slot.pop(p-1); rd(Q, p+8, slot[p+8])
    def phase(tl, order, rer, I, Wr):
        fill = [('v', x) for x in I] + [('w', x) for x in Wr] + [('n', None)]*BDEL + [('b', None)]
        if TAGS: fill = [('v', x) for x in I + ['v_add_u32 v7, 1, v7']] + [('w', x) for x in Wr + ['ds_write_b32 v6, v7']]
        rer = list(rer)
        for n, p in enumerate(order):
            Q.need(('r', p))
            smf(A, ACC[tl], SL[slot[p]], W(tl, p))
            if rer:
                pn = rer.pop(0); slot[pn] = slot.pop(p); rd(Q, pn, slot[pn])
            if n >= 4:
                for _ in range(2 if (not TAGS or n in (5, 6)) else 1):
                    if not fill: break
                    kind, x = fill.pop(0)
                    if kind == 'v': A(x)
                    elif kind == 'w': Q.op('w', x)
                    elif kind == 'n': pass
                    else: Q.drain(); A('s_barrier')
        assert not fill, fill
    I, Wr = post_paired(ACC[0], ACC[1], 9, 0, ACC[0])
    phase(2, [5, 6, 7, 8, 9, 10, 11, 12, 13, 0, 1, 2, 3, 4], [0, 1, 2, 3, 4], I, Wr)
    stamp(A, 2)
    I, Wr = post_single(ACC[2], 10, 8*XS_)
    phase(3, [10, 11, 12, 13, 0, 1, 2, 3, 4, 5, 6, 7, 8, 9], [5, 6, 7, 8, 9], I, Wr)
    stamp(A, 3)
    if TAGS or TAGC: A('v_add_u32 v7, 1, v7'); A.nop(7)
    else: A.nop(8)
    I, Wr = post_single(ACC[3], 10, 9*XS_)
    for x in I + Wr: A(x)
    if TAGS or TAGC: A('ds_write_b32 v6, v7')
    else:
        A('s_waitcnt lgkmcnt(0)')
        A('s_barrier')
    if SSF:
        Lq = A.newlabel('ssf'); A('s_or_b32 s22, s15, s3'); A('s_cmp_lg_u32 s22, 0'); A(f's_cbranch_scc1 {Lq}')
        A.nop(PDEL)
        ssf_store(A, 's41', st, 0, 1)
        A.label(Lq)
    stamp(A, 4); stamp_flush(A, 10, 0, 1)
    A('s_add_u32 s20, s20, 1')
    A(f's_cmp_lt_u32 s20, {NSTEP}')
    A(f's_cbranch_scc1 {Lloop}')
    A(f's_branch {done}')

    A.label(Lfin)
    ACC = [16, 20]; DX, DM = 24, 28
    PS = [32, 48]
    AF = [64 + 4*p for p in range(14)]
    A2 = [120 + 4*i for i in range(4)]
    T = 136
    XSR = [144 + 8*kk for kk in range(14)]
    W = lambda tl, p: 256 + (tl*14+p)*8
    posof = lambda kk: kk
    A('v_lshlrev_b32 v12, 4, v0')
    A('v_and_b32 v11, 16, v0'); A('v_lshlrev_b32 v1, 2, v11')
    A('v_lshrrev_b32 v11, 5, v0'); A('v_lshl_add_u32 v1, v11, 4, v1')
    A('v_and_b32 v11, 12, v0'); A('v_lshl_add_u32 v13, v11, 6, v1')
    A('v_and_b32 v11, 3, v0'); A('v_lshl_add_u32 v13, v11, 2, v13')
    A('s_lshr_b32 s16, s17, 1'); A('s_lshl_b32 s16, s16, 10')
    A('s_and_b32 s18, s17, 1'); A('s_lshl_b32 s19, s18, 7'); A('s_add_u32 s16, s16, s19')
    A('v_add_u32 v13, s16, v13')
    A('v_and_b32 v11, 8, v0');  A('v_lshl_add_u32 v14, v11, 2, v1')
    A('v_cmp_ne_u32 s[34:35], 0, v11')
    A('v_and_b32 v11, 3, v0');  A('v_lshl_add_u32 v14, v11, 1, v14')
    A('v_and_b32 v11, 4, v0');  A('v_lshl_add_u32 v14, v11, 5, v14')
    A('s_lshr_b32 s16, s17, 2'); A('s_lshl_b32 s16, s16, 9')
    A('s_lshl_b32 s19, s18, 8'); A('s_add_u32 s16, s16, s19')
    A('s_and_b32 s19, s17, 2'); A('s_lshl_b32 s19, s19, 2'); A('s_add_u32 s16, s16, s19')
    A('s_add_u32 s16, s16, 8192'); A('v_add_u32 v14, s16, v14')
    A('s_lshl_b32 s16, s17, 2'); A('v_lshlrev_b32 v6, 7, v0'); A('v_add_u32 v6, s16, v6')
    A('v_lshrrev_b32 v11, 4, v0'); A('v_mul_u32_u24 v15, 144, v11')
    A('v_and_b32 v11, 7, v0'); A('v_lshl_add_u32 v15, v11, 4, v15')
    A(f'v_add_u32 v15, {XB}, v15')
    A(f's_mov_b32 s31, 0x{f2u(LOG2E):08x}')
    A('s_mov_b32 s33, 0x7fff7fff')
    A('v_min_u32 v7, 2, v0'); A('v_lshlrev_b32 v7, 8, v7'); A(f'v_add_u32 v7, {TG}, v7')
    A('s_mov_b32 s36, 0')
    def load_xs():
        for i in range(28):
            if i % 4 == 0:
                if i == 0: A('s_mov_b32 s23, s32')
                else: A('s_add_u32 s23, s23, 4096')
            A(f'buffer_load_dwordx4 {v(XSR[0]+4*i,4)}, v12, s[4:7], s23 offen offset:{(i%4)*1024}')
    A(f's_mov_b32 s32, {XNS}')
    load_xs()
    Lloop = f'sf_loop_{tag}'
    A('s_mov_b32 s20, 0')
    A.label(Lloop)
    if QUICK:
        Lq = A.newlabel('q')
        A('s_cmp_lg_u32 s20, 2'); A(f's_cbranch_scc1 {Lq}'); A('s_memrealtime s[64:65]'); A('s_memtime s[60:61]'); A.label(Lq)
    step_addr(A)
    for k in range(8): A(f'v_mov_b64 {v(16+2*k,2)}, 0')
    wait_flag(A, 5, 's46', 's20', [PS[0]+k for k in range(4)], fail, None)
    poll_mem(A, PS[:MSETS], fail)
    Q = Lds(A)
    for p in range(14):
        Q.op(('r', p), f'ds_read_b128 {v(AF[p],4)}, v8 offset:{p*512}')
    for p in range(14):
        Q.need(('r', p))
        smf(A, ACC[0], AF[p], W(0, p)); smf(A, ACC[1], AF[p], W(1, p))
    A.nop(8)
    I, Wr = post_paired(ACC[0], ACC[1], 9, 0, ACC[0])
    for x in I: A(x)
    for x in Wr: Q.op('w', x)
    nb = [0]
    def rd2(kk2):
        Q.op(('x', kk2), f'ds_read_b128 {v(A2[nb[0]%4],4)}, v15 offset:{kk2*XS_}')
        buf[kk2] = A2[nb[0] % 4]; nb[0] += 1
    buf = {}
    def second(kk2):
        Q.need(('x', kk2))
        smf(A, DX, buf[kk2], XSR[kk2])
        A(f'v_mfma_f32_16x16x32_bf16 {v(DM,4)}, {v(buf[kk2],4)}, {v(AF[posof(kk2)],4)}, {v(DM,4)}')
    rd2(6); rd2(7)
    second(6); second(7)
    if True:
        def sync(kks):
            Ls = A.newlabel('ts')
            A('s_add_u32 s36, s36, 1')
            A(f's_mov_b32 s30, {SPIN*4}')
            n0 = nb[0]
            A.label(Ls)
            A('ds_read_b32 v0, v7')
            for kk2 in kks: rd2(kk2)
            A('s_sub_u32 s30, s30, 1'); A('s_cmp_eq_u32 s30, 0'); A(f's_cbranch_scc1 {fail}')
            A(f's_waitcnt lgkmcnt({len(kks)})')
            A('v_cmp_gt_u32 vcc, s36, v0')
            A(f's_cbranch_vccnz {Ls}')
    if TAGS:
        sync([0, 1, 2, 3])
        stamp(A, 2)
        second(0); rd2(4); second(1); rd2(5); second(2); second(3); second(4); second(5)
        sync([8, 10, 12])
        second(8); second(10); second(12)
        sync([9, 11, 13])
        stamp(A, 3)
    else:
        A('s_barrier')
        stamp(A, 2)
        for kk2 in range(4): rd2(kk2)
        second(0); rd2(4); second(1); rd2(5); second(2); second(3)
        A('s_barrier')
        rd2(8); rd2(10)
        second(4); rd2(12); second(5); second(8); second(10); second(12)
        if TAGC: sync([9, 11, 13]); stamp(A, 3)
        else:
            A('s_barrier')
            stamp(A, 3)
            rd2(9); rd2(11); rd2(13)
    if EWPOS == -1: store_flag(A, 6, 's41', st, T+7)
    second(9); second(11); second(13)
    if EWPOS == 0: store_flag(A, 6, 's41', st, T+7)
    A.nop(8)
    stamp(A, 4)
    for d in (DX, DM):
        A(f'v_permlane32_swap_b32 {v(d)}, {v(d+1)}')
        A(f'v_permlane32_swap_b32 {v(d+2)}, {v(d+3)}')
    if EWPOS == 10: store_flag(A, 6, 's41', st, T+7)
    mx = [T, T+1]; sm = [T+2, T+3]; ml = [T+4, T+5]
    el = lambda t: (DX+2*t, DX+2*t+1, DM+2*t)
    for t in range(2):
        A(f'v_max3_f32 {v(mx[t])}, {v(el(t)[0])}, {v(el(t)[1])}, {v(el(t)[2])}')
    for t in range(2):
        A(f'v_mul_f32 {v(ml[t])}, 0x{f2u(-LOG2E):08x}, {v(mx[t])}')
    fx = []
    for j in (2, 0, 1):
        for t in range(2): fx.append(f'v_fma_f32 {v(el(t)[j])}, {v(el(t)[j])}, s31, {v(ml[t])}')
    for j in (2, 0, 1):
        for t in range(2): fx.append(f'v_exp_f32 {v(el(t)[j])}, {v(el(t)[j])}')
    for ror in (8, 4, 2, 1):
        for t in range(2):
            A(f'v_max_f32_dpp {v(mx[t])}, {v(mx[t])}, {v(mx[t])} row_ror:{ror} row_mask:0xf bank_mask:0xf')
        for _ in range(3): A(fx.pop(0))
        if EWPOS == 11 and ror == 8: store_flag(A, 6, 's41', st, T+7)
        if EWPOS == 12 and ror == 4: store_flag(A, 6, 's41', st, T+7)
    if EWPOS == 1: store_flag(A, 6, 's41', st, T+7)
    for t in range(2):
        A(f'v_fma_f32 {v(ml[t])}, -{v(mx[t])}, s31, -{v(ml[t])}')
    for t in range(2):
        A(f'v_fma_f32 {v(sm[t])}, {v(el(t)[2])}, 0.5, {v(el(t)[0])}')
    for t in range(2):
        A(f'v_exp_f32 {v(ml[t])}, {v(ml[t])}')
    for t in range(2):
        A(f'v_add_f32 {v(sm[t])}, {v(sm[t])}, {v(el(t)[1])}')
    for t in range(2):
        A(f'v_mul_f32 {v(sm[t])}, {v(sm[t])}, {v(ml[t])}')
    if EWPOS == 2: store_flag(A, 6, 's41', st, T+7)
    pre = [f'v_mul_f32 {v(el(t)[j])}, {v(el(t)[j])}, {v(ml[t])}' for j in range(3) for t in range(2)]
    for ror in (8, 4, 2, 1):
        A(pre.pop(0))
        if ror in (8, 4): A(pre.pop(0))
        for t in range(2):
            A(f'v_add_f32_dpp {v(sm[t])}, {v(sm[t])}, {v(sm[t])} row_ror:{ror} row_mask:0xf bank_mask:0xf')
    if EWPOS == 3: store_flag(A, 6, 's41', st, T+7)
    for t in range(2):
        A(f'v_rcp_f32 {v(sm[t])}, {v(sm[t])}')
    A(f'v_cndmask_b32 {v(T+6)}, {v(DM)}, {v(DM+2)}, s[34:35]')
    for j in range(2):
        for t in range(2):
            A(f'v_mul_f32 {v(el(t)[j])}, {v(el(t)[j])}, {v(sm[t])}')
    A(f'v_cndmask_b32 {v(T+7)}, {v(sm[0])}, {v(sm[1])}, s[34:35]')
    for t in range(2):
        A(f'v_cvt_pk_bf16_f32 {v(T+4+t)}, {v(el(t)[0])}, {v(el(t)[1])}')
    A(f'v_mul_f32 {v(T+6)}, {v(T+6)}, {v(T+7)}')
    for t in range(2):
        A(f'v_and_b32 {v(T+4+t)}, s33, {v(T+4+t)}')
    A(f'v_cvt_pk_bf16_f32 {v(T+6)}, {v(T+6)}, {v(T+6)}')
    for t in range(2):
        A(f'buffer_store_dword {v(T+4+t)}, v13, s[4:7], s26 offen offset:{32*t}{st}')
    A(f'v_and_b32 {v(T+6)}, s33, {v(T+6)}')
    A(f'buffer_store_short {v(T+6)}, v14, s[4:7], s26 offen{st}')
    for t in range(2):
        A(f'buffer_store_dword {v(T+4+t)}, v13, s[4:7], s45 offen offset:{32*t}{st}')
    A(f'buffer_store_short {v(T+6)}, v14, s[4:7], s45 offen{st}')
    if EWPOS == 4: store_flag(A, 6, 's41', st, T+7)
    stamp(A, 5)
    A(f'v_mov_b32 {v(T+7)}, -1')
    for cp in range(KC):
        if cp: A('s_add_u32 s27, s27, 16384')
        for t in range(2):
            A(f'buffer_store_dword {v(T+7)}, v13, s[4:7], s27 offen offset:{32*t}{st}')
        A(f'buffer_store_short {v(T+7)}, v14, s[4:7], s27 offen{st}')
    tstamp(A, 16, 0, 1, sreg=20)
    if not DBG_X0: A('s_add_u32 s32, s32, 28672')
    load_xs()
    stamp_flush(A, 10, 0, 1)
    A('s_add_u32 s20, s20, 1')
    A(f's_cmp_lt_u32 s20, {NSTEP}')
    A(f's_cbranch_scc1 {Lloop}')
    if QUICK:
        A('s_memrealtime s[66:67]'); A('s_memtime s[62:63]'); A('s_waitcnt lgkmcnt(0)')
        A('s_sub_u32 s62, s62, s60'); A('v_mov_b32 v0, s62'); A('s_lshl_b32 s16, s17, 2'); A('s_add_u32 s16, s16, 192'); A('v_mov_b32 v1, s16')
        A('buffer_store_dword v0, v1, s[8:11], 0 offen')
        A('s_sub_u32 s66, s66, s64'); A('v_mov_b32 v0, s66'); A('s_lshl_b32 s16, s17, 2'); A('s_add_u32 s16, s16, 128'); A('v_mov_b32 v1, s16')
        A('buffer_store_dword v0, v1, s[8:11], 0 offen')
    A(f's_branch {done}')

def interleave(A, g):
    if g < 256:
        A(f'v_swap_b32 {v(g+1)}, {v(g+4)}')
        A(f'v_swap_b32 {v(g+2)}, {v(g+4)}')
        A(f'v_swap_b32 {v(g+3)}, {v(g+5)}')
        A(f'v_swap_b32 {v(g+5)}, {v(g+6)}')
    else:
        q = g - 256
        A(f'v_accvgpr_read_b32 v11, {a(q+1)}')
        A(f'v_accvgpr_mov_b32 {a(q+1)}, {a(q+4)}')
        A(f'v_accvgpr_mov_b32 {a(q+4)}, {a(q+2)}')
        A(f'v_accvgpr_write_b32 {a(q+2)}, v11')
        A(f'v_accvgpr_read_b32 v11, {a(q+3)}')
        A(f'v_accvgpr_mov_b32 {a(q+3)}, {a(q+5)}')
        A(f'v_accvgpr_mov_b32 {a(q+5)}, {a(q+6)}')
        A(f'v_accvgpr_write_b32 {a(q+6)}, v11')

def load_tiles(A, tiles, post=None, pre=None):
    WIN = 30
    q = []
    def retire(left):
        g = q.pop(0)
        A(f's_waitcnt vmcnt({2*left})')
        interleave(A, g)
        if post: post(g)
    for ti, (dst, offa, offb, plist) in enumerate(tiles):
        if pre: pre(ti)
        for p in plist:
            if p % 4 == 0 or p == plist[0]:
                A(f's_add_u32 s22, s18, {offa+(p//4)*4096}')
                A(f's_add_u32 s23, s18, {offb+(p//4)*4096}')
            im = (p % 4)*1024
            A(f'buffer_load_dwordx4 {r(dst(p),4)}, v1, s[4:7], s22 offen offset:{im}')
            A(f'buffer_load_dwordx4 {r(dst(p)+4,4)}, v1, s[4:7], s23 offen offset:{im}')
            q.append(dst(p))
            if len(q) > WIN: retire(len(q)-1)
    while q: retire(len(q)-1)

def score_weights(A, fail=None):
    TS = 14*1024
    Lw3 = A.newlabel('w3'); Ld = A.newlabel('wd')
    A(f's_mul_i32 s18, s17, {28*TS}')
    A(f's_add_u32 s18, s18, {MC}')
    A(f's_mul_i32 s19, s3, {4*TS}')
    A('s_add_u32 s18, s18, s19')
    A('s_cmp_eq_u32 s3, 3')
    A(f's_cbranch_scc1 {Lw3}')
    W = lambda tl: (lambda p: 64 + (tl*14+p)*8)
    def pre(ti):
        if fail and ti in (0, 2):
            A('s_lshl_b32 s19, s17, 3'); A('s_add_u32 s19, s19, s3'); A(f's_add_u32 s19, s19, {2*ti}'); A('s_lshl_b32 s19, s19, 5')
            mnf_addr(A, 13, None, 's19')
            wait_words(A, 13, 11, fail, sleep=16)
    load_tiles(A, [(W(0), 0, 2*TS, range(14)), (W(1), TS, 3*TS, range(14)),
                   (W(2), 16*TS, 17*TS, range(14)), (W(3), 18*TS, 19*TS, range(14))], pre=pre)
    A(f's_branch {Ld}')
    A.label(Lw3)
    W = lambda tl: (lambda p: 256 + (tl*14+p)*8)
    load_tiles(A, [(W(0), 0, 2*TS, range(14)), (W(1), TS, 3*TS, range(14))], pre=pre)
    A.label(Ld)

V_W0 = 120
def VW(ti, p): return V_W0 + (ti*14+p)*8
def gen_value(A, st, tag, fail, done, merged_u=False):
    UB, ACC, YP = 16, 48, 64
    PM = 72
    SL = [76 + 4*i for i in range(4)]
    PM2 = 92
    TM = [96, 104, 112]
    Lloop = f'va_loop_{tag}'
    for k in range(4): A(f'v_mov_b32 {v(PM+k)}, 0'); A(f'v_mov_b32 {v(PM2+k)}, 0')
    A('v_lshrrev_b32 v0, 2, v12'); A('s_lshl_b32 s22, s3, 8'); A(f's_add_u32 s22, s22, {RED+4096}'); A('v_add_u32 v0, s22, v0')
    A(f'ds_write_b32 v0, {v(PM)}')
    A('s_mov_b32 s20, 0')
    A.label(Lloop)
    step_addr(A)
    for k in range(8): A(f'v_mov_b64 {v(ACC+2*k,2)}, 0')
    if merged_u:
        Lr = A.newlabel('ur'); Lro = A.newlabel('uro')
        A('s_cmp_lt_u32 s20, s33'); A(f's_cbranch_scc1 {Lro}')
        A(f's_mov_b32 s30, {SPIN}')
        A.label(Lr)
        A(f'v_lshrrev_b32 v1, 2, v12')
        A(f'buffer_load_dword {v(TM[1])}, v1, s[4:7], s37 offen sc1')
        A(f'buffer_load_dword {v(TM[1]+1)}, v1, s[4:7], s37 offen offset:{14*256} sc1')
        A('s_sub_u32 s30, s30, 1'); A('s_cmp_eq_u32 s30, 0'); A(f's_cbranch_scc1 {fail}')
        A('s_waitcnt vmcnt(0)')
        A(f'v_and_b32 v0, {v(TM[1])}, {v(TM[1]+1)}')
        A('v_cmp_eq_u32 vcc, 0, v0')
        A('s_or_b32 s22, vcc_lo, vcc_hi')
        A('s_lshr_b32 s23, s22, 16'); A('s_or_b32 s22, s22, s23')
        A('s_lshr_b32 s23, s22, 8'); A('s_or_b32 s22, s22, s23')
        A('s_and_b32 s22, s22, 0xff'); A('s_or_b32 s22, s22, 0x100')
        A('s_ff1_i32_b32 s22, s22')
        A('s_lshl_b32 s33, s22, 3')
        A('s_cmp_lt_u32 s20, s33'); A(f's_cbranch_scc1 {Lro}')
        A('s_sleep 8')
        A(f's_branch {Lr}')
        A.label(Lro)
    if VFLAG: wait_flag(A, 5, 's46', 's20', [TM[1]+k for k in range(4)], fail, 1)
    if VDEL: A(f's_sleep {VDEL}')
    poll_mem(A, [TM[1], TM[2]][:VMSETS], fail)
    Q = Lds(A)
    slot = {}
    free = [0, 1, 2, 3]
    nxt = [0]
    def rd():
        p = nxt[0]
        if p > 13 or not free: return
        sl = free.pop(0); slot[p] = sl; nxt[0] += 1
        Q.op(('r', p), f'ds_read_b128 {v(SL[sl],4)}, v8 offset:{p*512}')
    def ldsw(p):
        t = TM[p % 3]
        Q.op(('wa', p), f'ds_read_b128 {v(t,4)}, v11 offset:{(p-7)*2048}')
        Q.op(('wb', p), f'ds_read_b128 {v(t+4,4)}, v11 offset:{(p-7)*2048+1024}')
    for _ in range(4): rd()
    A(f's_add_u32 s23, s36, {14*4096}')
    uq = []
    for hpl in range(2):
        for j in range(4):
            uq.append(f'buffer_load_dwordx4 {v(UB+hpl*16+j*4,4)}, v12, s[4:7], {"s23" if hpl else "s36"} offen offset:{j*1024}')
    if UEARLY:
        for x in uq: A(x)
    for p in range(14):
        Q.need(('r', p))
        for ti in range(3):
            smf(A, ACC+4*ti, SL[slot[p]], VW(ti, p))
            if ti == 0 and p == 2:
                A(f's_waitcnt vmcnt({8 if UEARLY else 0})')
            if ti == 1 and 2 <= p < 6 and not UEARLY: A(uq.pop(0)); A(uq.pop(0))
            if ti == 0 and 3 <= p < 6: ldsw(p+4)
        if p < 7: smf(A, ACC+12, SL[slot[p]], VW(3, p))
        else:
            Q.need(('wb', p))
            smf(A, ACC+12, SL[slot[p]], TM[p % 3])
            if p+3 < 14: ldsw(p+3)
        free.append(slot[p]); rd()
    if not DBG_U0: A(f's_add_u32 s36, s36, {16*28*1024}')
    A.nop(8)
    for ct in range(2):
        for hp in range(2):
            d = ACC + 4*(hp*2+ct)
            A(f'v_cvt_pk_bf16_f32 {v(YP+4*ct+2*hp)}, {v(d)}, {v(d+1)}')
            A(f'v_cvt_pk_bf16_f32 {v(YP+4*ct+2*hp+1)}, {v(d+2)}, {v(d+3)}')
    stamp(A, 2)
    D = [ACC, ACC+4]
    PMs = [PM, PM2]; PXs = [PM+4, PM2+4]
    TA = SL[2]
    if DYNF:
        A(f'v_lshrrev_b32 {v(TA)}, 2, v12'); A('s_lshl_b32 s22, s3, 8'); A(f's_add_u32 s22, s22, {RED+4096}'); A(f'v_add_u32 {v(TA)}, s22, {v(TA)}')
        A(f'v_and_b32 {v(TA+1)}, 48, v12'); A(f'v_lshlrev_b32 {v(TA+1)}, 4, {v(TA+1)}'); A(f'v_add_u32 {v(TA+1)}, {RED+4096}, {v(TA+1)}')
        A(f'v_mov_b32 {v(TA+2)}, s44')
    if LAT:
        A('s_memtime s[50:51]'); A('s_waitcnt vmcnt(0)'); A('s_memtime s[52:53]')
        A('s_mov_b64 exec, s[42:43]')
        A(f'buffer_load_dword {v(PXs[0])}, v7, s[4:7], s47 offen sc1'); A('s_mov_b64 exec, -1')
        A('s_waitcnt vmcnt(0)'); A('s_memtime s[54:55]')
    wait_flag(A, 7, 's47', 's44', [PXs[0]+k for k in range(4)], fail, 1)
    if LAT:
        A('s_waitcnt vmcnt(0)')
        A('s_memtime s[56:57]')
        for hpl in range(2):
            A(f'buffer_load_dwordx4 {v(PXs[0]+4*hpl,4)}, v9, s[4:7], s26 offen offset:{hpl*1024} sc1')
        A('s_waitcnt vmcnt(1)'); A('s_memtime s[58:59]'); A('s_waitcnt vmcnt(0)'); A('s_memtime s[60:61]')
    stamp(A, 6)
    if PROFILE: A('s_mov_b32 s64, 0')
    def issue(k):
        so = 's26' if k == 0 else 's45'
        for hpl in range(2):
            A(f'buffer_load_dwordx4 {v(PXs[k]+4*hpl,4)}, v9, s[4:7], {so} offen offset:{hpl*1024} sc1')
        A('s_mov_b64 exec, s[34:35]')
        A(f'buffer_load_dwordx4 {v(PMs[k],4)}, v10, s[4:7], {so} offen sc1')
        A('s_mov_b64 exec, -1')
    L = A.newlabel('pp'); Lf = A.newlabel('ppf')
    def attempt(k):
        Lskip = A.newlabel('ps')
        b = PMs[k]; x0, x1 = PXs[k], PXs[k]+4
        A('s_waitcnt vmcnt(5)')
        if PROFILE: A('s_add_u32 s64, s64, 1')
        A(f'v_or3_b32 v0, {v(x0)}, {v(x0+1)}, {v(x0+2)}')
        A(f'v_or_b32 v0, v0, {v(x0+3)}')
        A('v_and_b32 v0, 0x80008000, v0')
        A('v_cmp_ne_u32 vcc, 0, v0')
        A(f's_cbranch_vccnz {Lskip}')
        smf(A, D[0], x0, UB)
        if EWM_POS == -1:
            Lsf = A.newlabel('sf'); A(f's_cmp_lg_u32 s3, {EWW}'); A(f's_cbranch_scc1 {Lsf}')
            store_flag(A, 6, 's40', st, 1); A.label(Lsf)
        smf(A, D[1], x0, UB+8)
        A('s_waitcnt vmcnt(4)')
        smf(A, D[0], x1, UB+16)
        A(f'v_or3_b32 v0, {v(x1)}, {v(x1+1)}, {v(x1+2)}')
        smf(A, D[1], x1, UB+24)
        A('s_waitcnt vmcnt(3)')
        A(f'v_mfma_f32_16x16x32_bf16 {v(D[0],4)}, {v(b,4)}, {v(YP,4)}, {v(D[0],4)}')
        A(f'v_or3_b32 v0, v0, {v(x1+3)}, {v(b)}')
        A(f'v_or3_b32 v1, {v(b+1)}, {v(b+2)}, {v(b+3)}')
        A(f'v_mfma_f32_16x16x32_bf16 {v(D[1],4)}, {v(b,4)}, {v(YP+4,4)}, {v(D[1],4)}')
        A('v_or_b32 v0, v0, v1')
        A('v_and_b32 v0, 0x80008000, v0')
        A('v_cmp_ne_u32 vcc, 0, v0')
        A(f's_cbranch_vccz {Lf}')
        A.nop(6)
        for kk in range(4): A(f'v_mov_b64 {v(ACC+2*kk,2)}, 0')
        A.label(Lskip)
        A('s_waitcnt vmcnt(3)')
    for kk in range(4): A(f'v_mov_b64 {v(ACC+2*kk,2)}, 0')
    A(f's_mov_b32 s30, {SPIN}')
    def ewm():
        Lsf = A.newlabel('sf'); A('s_cmp_lg_u32 s3, 0'); A(f's_cbranch_scc1 {Lsf}')
        store_flag(A, 6, 's40', st, 0); A.label(Lsf)
    if EWM_POS == -2: ewm()
    issue(0)
    A.nop(STAGP)
    A.label(L)
    issue(1); attempt(0)
    issue(0); attempt(1)
    A('s_sub_u32 s30, s30, 1')
    A('s_cmp_lg_u32 s30, 0')
    A(f's_cbranch_scc1 {L}')
    A(f's_branch {fail}')
    A.label(Lf)
    stamp(A, 3)
    if EWM_POS == 0:
        Lsf = A.newlabel('sf'); A('s_cmp_lg_u32 s3, 0'); A(f's_cbranch_scc1 {Lsf}')
        store_flag(A, 6, 's40', st, 0); A.label(Lsf)
    A.nop(4)
    for rr in range(4): A(f'v_permlane32_swap_b32 {v(D[0]+rr)}, {v(D[1]+rr)}')
    for rr in range(4):
        A(f'v_add_f32 {v(D[0]+rr)}, {v(D[0]+rr)}, {v(D[1]+rr)}')
        A(f'ds_write_b32 v13, {v(D[0]+rr)} offset:{128*rr}')
    Lnx = A.newlabel('vnx')
    R4 = [ACC, ACC+4, ACC+8, ACC+12]
    def mflag():
        Lq = A.newlabel('ssf'); A('s_lshl_b32 s22, s17, 2'); A('s_add_u32 s22, s22, s3'); A('s_cmp_lg_u32 s22, 3'); A(f's_cbranch_scc1 {Lq}')
        if MDEL: A.nop(MDEL)
        ssf_store(A, 's40', st, 0, 1)
        A.label(Lq)
    if SSF and MSRC == 0: mflag()
    if DYNF:
        A(f'ds_write_b32 {v(TA)}, {v(TA+2)}')
        A(f'ds_read_b32 v0, {v(TA+1)}')
        for w in range(4):
            A(f'ds_read_b128 {v(R4[w],4)}, v14 offset:{w*1024}')
        A('s_waitcnt lgkmcnt(4)')
        A('v_cmp_ne_u32 vcc, s44, v0')
        A(f's_cbranch_vccnz {Lnx}')
        stamp(A, 4)
    else:
        A('s_waitcnt lgkmcnt(0)')
        A('s_barrier')
        stamp(A, 4)
        A('s_cmp_lg_u32 s3, 0')
        A(f's_cbranch_scc1 {Lnx}')
        for w in range(4):
            A(f'ds_read_b128 {v(R4[w],4)}, v14 offset:{w*1024}')
    if EWM_POS == 1: store_flag(A, 6, 's40', st, 0)
    A('s_waitcnt lgkmcnt(2)')
    A(f'v_pk_add_f32 {v(R4[0],2)}, {v(R4[0],2)}, {v(R4[1],2)}')
    A(f'v_pk_add_f32 {v(R4[0]+2,2)}, {v(R4[0]+2,2)}, {v(R4[1]+2,2)}')
    A('s_waitcnt lgkmcnt(0)')
    A(f'v_pk_add_f32 {v(R4[2],2)}, {v(R4[2],2)}, {v(R4[3],2)}')
    A(f'v_pk_add_f32 {v(R4[2]+2,2)}, {v(R4[2]+2,2)}, {v(R4[3]+2,2)}')
    A(f'v_pk_add_f32 {v(R4[0],2)}, {v(R4[0],2)}, {v(R4[2],2)}')
    A(f'v_pk_add_f32 {v(R4[0]+2,2)}, {v(R4[0]+2,2)}, {v(R4[2]+2,2)}')
    A(f'v_cvt_pk_bf16_f32 {v(R4[1])}, {v(R4[0])}, {v(R4[0]+1)}')
    A(f'v_cvt_pk_bf16_f32 {v(R4[1]+1)}, {v(R4[0]+2)}, {v(R4[0]+3)}')
    A(f'v_min_u32 {v(R4[1])}, 0xfffffffe, {v(R4[1])}')
    A(f'buffer_store_dwordx2 {v(R4[1],2)}, v15, s[4:7], s28 offen{st}')
    A('s_add_u32 s28, s28, 8192')
    A(f'buffer_store_dwordx2 {v(R4[1],2)}, v15, s[4:7], s28 offen{st}')
    if EWM_POS == 2: store_flag(A, 6, 's40', st, 0)
    stamp(A, 5)
    A(f'v_mov_b64 {v(R4[2],2)}, -1')
    A(f'buffer_store_dwordx2 {v(R4[2],2)}, v15, s[4:7], s29 offen{st}')
    A('s_add_u32 s29, s29, 8192')
    A(f'buffer_store_dwordx2 {v(R4[2],2)}, v15, s[4:7], s29 offen{st}')
    A(f'buffer_store_dwordx2 {v(R4[1],2)}, v15, s[4:7], s39 offen{st}')
    if merged_u:
        A(f's_cmp_lg_u32 s20, {NSTEP-1}'); A(f's_cbranch_scc1 {Lnx}')
        A(f's_mov_b32 s22, {MEMG2+63*8192}')
        A(f'buffer_store_dwordx2 {v(R4[1],2)}, v15, s[4:7], s22 offen sc1')
    A.label(Lnx)
    if DYNF: A('s_waitcnt lgkmcnt(0)'); A('s_barrier')
    stamp_flush(A, 8, 0, 1)
    A('s_add_u32 s39, s39, 8192')
    A('s_add_u32 s20, s20, 1')
    A(f's_cmp_lt_u32 s20, {NSTEP}')
    A(f's_cbranch_scc1 {Lloop}')
    A(f's_branch {done}')

def value_setup(A, fail=None):
    TS = 14*1024; HS = 28*TS
    A(f's_mul_i32 s18, s3, {4*HS}')
    A(f's_mul_i32 s22, s17, {2*TS}')
    A('s_add_u32 s18, s18, s22')
    A(f's_add_u32 s18, s18, {NC}')
    A('v_lshlrev_b32 v12, 4, v0')
    A(f's_mul_i32 s23, s3, {14*1024}')
    A(f's_add_u32 s23, s23, {WL}')
    A('v_add_u32 v14, s23, v12')
    def post(g):
        if g < V_W0:
            i = (g-16)//8
            A(f'ds_write_b128 v14, {v(g,4)} offset:{i*2048}')
            A(f'ds_write_b128 v14, {v(g+4,4)} offset:{i*2048+1024}')
    tl = [((lambda p: 16 + (p-7)*8), 2*HS+TS, 3*HS+TS, range(7, 14))]
    for ti in range(4):
        hp, ct = ti >> 1, ti & 1
        tl.append(((lambda p, ti=ti: VW(ti, p)), (2*hp)*HS+ct*TS, (2*hp+1)*HS+ct*TS, range(14) if ti < 3 else range(7)))
    if fail:
        A('s_lshl_b32 s19, s3, 2'); A('s_add_u32 s19, s19, 16'); A('s_lshl_b32 s19, s19, 3'); A('s_lshr_b32 s22, s17, 1'); A('s_add_u32 s19, s19, s22'); A('s_lshl_b32 s19, s19, 5')
        A('v_bfe_u32 v11, v0, 3, 2')
        mnf_addr(A, 13, 11, 's19')
        wait_words(A, 13, 11, fail, sleep=16)
    load_tiles(A, tl, post)
    A('s_waitcnt lgkmcnt(0)')
    A('s_lshl_b32 s23, s3, 11'); A('v_add_u32 v9, s23, v12')
    A('s_lshl_b32 s23, s3, 9'); A('s_add_u32 s23, s23, 8192'); A('v_add_u32 v10, s23, v8')
    A('v_and_b32 v11, 16, v0'); A('v_lshlrev_b32 v13, 5, v11')
    A('v_and_b32 v11, 15, v0'); A('v_lshl_add_u32 v13, v11, 3, v13')
    A('v_lshlrev_b32 v7, 2, v11')
    if SSF: A('v_mov_b32 v7, 0')
    A('v_lshrrev_b32 v11, 5, v0'); A('v_lshl_add_u32 v13, v11, 2, v13')
    A('s_lshl_b32 s23, s3, 10'); A(f's_add_u32 s23, s23, {RED}'); A('v_add_u32 v13, s23, v13')
    A('v_and_b32 v11, 14, v0'); A('v_lshlrev_b32 v14, 6, v11')
    A('v_lshrrev_b32 v11, 4, v0'); A('v_lshl_add_u32 v14, v11, 5, v14')
    A('v_and_b32 v11, 1, v0'); A('v_lshl_add_u32 v14, v11, 4, v14')
    A(f'v_add_u32 v14, {RED}, v14')
    A('v_lshlrev_b32 v15, 3, v0'); A('s_lshl_b32 s23, s17, 9'); A('v_add_u32 v15, s23, v15')
    A('s_lshl_b32 s23, s17, 2'); A('v_lshlrev_b32 v6, 7, v0'); A('v_add_u32 v6, s23, v6')
    A('s_mov_b32 s34, 0x00ff00ff'); A('s_mov_b32 s35, 0x00ff00ff')
    A(f's_mul_i32 s36, s3, {2*14*4096}')
    A('s_lshl_b32 s23, s17, 12')
    A('s_add_u32 s36, s36, s23')
    A(f's_add_u32 s36, s36, {UF}')
    A(f's_mov_b32 s39, {MEMG+8192}')

def value_setup2(A):
    A('s_mov_b32 s33, 0')
    A('s_mul_i32 s37, s3, 28'); A('s_add_u32 s37, s37, s17'); A('s_lshl_b32 s37, s37, 8'); A(f's_add_u32 s37, s37, {UFL}')
    A(f's_mul_i32 s23, s3, {14*1024}')
    A(f's_add_u32 s23, s23, {WL}')
    A('v_add_u32 v11, s23, v12')

def mode_exchange(A, va=8, vb=9):
    srd(A, 8, 96, 256)
    A('s_getreg_b32 s12, hwreg(HW_REG_XCC_ID)')
    A('s_and_b32 s12, s12, 15')
    A('s_add_u32 s12, s12, 1')
    A(f'v_mov_b32 {v(va)}, s12')
    A('s_lshl_b32 s13, s15, 2')
    A(f'v_mov_b32 {v(vb)}, s13')
    A('s_waitcnt lgkmcnt(0)')
    A(f'buffer_store_dword {v(va)}, {v(vb)}, s[8:11], 0 offen sc1')

def mode_gather(A, fail):
    A(f'v_min_u32 v1, {NROLE-1}, v0')
    A('v_lshlrev_b32 v1, 2, v1')
    L = A.newlabel('mg')
    A(f's_mov_b32 s30, {SPIN}')
    A.label(L)
    A('buffer_load_dword v11, v1, s[8:11], 0 offen sc1')
    A('s_sub_u32 s30, s30, 1')
    A('s_cmp_eq_u32 s30, 0')
    A(f's_cbranch_scc1 {fail}')
    A('s_waitcnt vmcnt(0)')
    A('v_cmp_eq_u32 vcc, 0, v11')
    A(f's_cbranch_vccnz {L}')
    A('v_cmp_ne_u32 vcc, s12, v11')
    A('s_cmp_eq_u64 vcc, 0')
    A('s_cselect_b32 s14, 1, 0')

def gen_forwarders(A, fail, done):
    A('s_sub_u32 s17, s15, 30'); A('s_lshl_b32 s17, s17, 2'); A('s_add_u32 s17, s17, s3')
    A('v_lshlrev_b32 v6, 7, v0')
    A('v_lshlrev_b32 v12, 4, v0')
    A('s_cmp_lg_u32 s17, 0')
    A('s_cbranch_scc1 fw_pf')
    A('s_mov_b32 s20, 1')
    A(f's_mov_b32 s22, {HINT}')
    A.label('fw_m_loop')
    A('s_lshl_b32 s24, s20, 13'); A(f's_add_u32 s26, s24, {MEMG2}'); A(f's_add_u32 s24, s24, {MEMG}')
    A('s_add_u32 s25, s24, 4096'); A('s_add_u32 s27, s26, 4096')
    A(f's_mov_b32 s30, {SPIN*4}')
    A.label('fw_m_poll')
    for j in range(7):
        A(f'buffer_load_dwordx4 {v(16+4*j,4)}, v12, s[4:7], {"s24" if j < 4 else "s25"} offen offset:{(j%4)*1024} sc1')
    A('s_sub_u32 s30, s30, 1'); A('s_cmp_eq_u32 s30, 0'); A(f's_cbranch_scc1 {fail}')
    A('s_waitcnt vmcnt(0)')
    A('v_max_u32 v1, v16, v18')
    for j in range(1, 7): A(f'v_max3_u32 v1, v1, {v(16+4*j)}, {v(18+4*j)}')
    A('v_cmp_eq_u32 vcc, -1, v1')
    A('s_cbranch_vccz fw_m_ok')
    A('s_sleep 2')
    A('s_branch fw_m_poll')
    A.label('fw_m_ok')
    for j in range(7):
        A(f'buffer_store_dwordx4 {v(16+4*j,4)}, v12, s[4:7], {"s26" if j < 4 else "s27"} offen offset:{(j%4)*1024} sc1')
    A('s_waitcnt vmcnt(0)')
    A('v_mov_b32 v1, s20'); A('s_mov_b64 exec, 0xffff')
    A('buffer_store_dword v1, v6, s[4:7], s22 offen sc1'); A('s_mov_b64 exec, -1')
    A('s_add_u32 s20, s20, 1'); A('s_cmp_lt_u32 s20, 64'); A('s_cbranch_scc1 fw_m_loop')
    A(f's_branch {done}')
    A.label('fw_pf')
    if not PREF: A(f's_branch {done}')
    A('s_sub_u32 s17, s17, 1')
    A('s_lshl_b32 s24, s17, 12'); A(f's_add_u32 s24, s24, {UFL}')
    A(f's_mov_b32 s30, {SPIN}')
    A.label('fw_pf_w')
    for j in range(4): A(f'buffer_load_dwordx4 {v(16+4*j,4)}, v12, s[4:7], s24 offen offset:{j*1024} sc1')
    A('s_sub_u32 s30, s30, 1'); A('s_cmp_eq_u32 s30, 0'); A(f's_cbranch_scc1 {done}')
    A('s_waitcnt vmcnt(0)')
    A('v_min_u32 v1, v16, v17')
    for j in range(2, 16, 2): A(f'v_min3_u32 v1, v1, {v(16+j)}, {v(17+j)}')
    A('v_cmp_eq_u32 vcc, 0, v1')
    A('s_cbranch_vccz fw_pf_go')
    A('s_sleep 32')
    A('s_branch fw_pf_w')
    A.label('fw_pf_go')
    A('s_mov_b32 s20, 0')
    A('v_mov_b32 v7, 0')
    A.label('fw_pf_loop')
    A('s_mov_b64 exec, 1')
    A('buffer_load_dword v16, v7, s[4:7], s46 offen sc1')
    A('s_mov_b64 exec, -1')
    A('s_waitcnt vmcnt(0)')
    A('v_readfirstlane_b32 s21, v16')
    A('s_add_u32 s22, s21, 1'); A('s_max_u32 s20, s20, s22')
    A('s_cmp_ge_u32 s20, 63'); A(f's_cbranch_scc1 {done}')
    A(f's_add_u32 s22, s21, {PREF}')
    A('s_cmp_gt_u32 s20, s22'); A('s_cbranch_scc1 fw_pf_idle')
    A(f's_mul_i32 s24, s20, {448*1024}'); A('s_lshl_b32 s25, s17, 16'); A('s_add_u32 s24, s24, s25'); A(f's_add_u32 s24, s24, {UF}')
    for j in range(8):
        for sub in range(0, 128, PFS):
            A(f'buffer_load_dword {v(16+j)}, v6, s[4:7], s24 offen offset:{sub}')
        A('s_add_u32 s24, s24, 8192')
    A('s_cmp_gt_u32 s17, 3'); A('s_cbranch_scc1 fw_pf_nx')
    A(f's_mul_i32 s24, s20, 28672'); A('s_lshl_b32 s25, s17, 13'); A('s_add_u32 s24, s24, s25'); A(f's_add_u32 s24, s24, {XNS}')
    A('buffer_load_dword v24, v6, s[4:7], s24 offen')
    A.label('fw_pf_nx')
    A('s_add_u32 s20, s20, 1')
    A('s_branch fw_pf_loop')
    A.label('fw_pf_idle')
    A('s_sleep 8')
    A('s_sub_u32 s30, s30, 1'); A('s_cmp_eq_u32 s30, 0'); A(f's_cbranch_scc1 {done}')
    A('s_branch fw_pf_loop')

def gen_chain_body(A, fail, done, merged=False, fused=False):
    if fused:
        import p0
        def after_flags():
            A('s_waitcnt vmcnt(0)'); A('s_barrier')
            mode_exchange(A, 16, 17)
        p0.ph_init(A, after_flags)
        A('s_waitcnt vmcnt(0)')
        A('s_barrier')
        A('v_mov_b32 v16, 1'); A('s_add_u32 s13, s13, 128'); A('v_mov_b32 v17, s13')
        A('buffer_store_dword v16, v17, s[8:11], 0 offen sc1')
        tstamp(A, 3, 12, 13)
        A('s_cmp_lg_u32 s3, 3'); A('s_cbranch_scc1 ch_noln')
        A('s_cmp_ge_u32 s15, 16'); A('s_cbranch_scc1 ch_noln')
        srd(A, 36, 0, 2048*448*2)
        A('s_add_u32 s32, s15, 112')
        def wi():
            A('v_and_b32 v5, 31, v0'); A('v_lshlrev_b32 v5, 2, v5')
            wait_words(A, 5, 1, fail, srd_='s[8:11]')
        p0.ph_ln(A, 32, wi, xsrd='s[36:39]', barrier=False)
        A.label('ch_noln')
    else: mode_exchange(A)
    common_setup(A)
    stamp_init(A)
    mode_gather(A, fail)
    A('v_lshlrev_b32 v1, 4, v0')
    def wait_ring(va, vd, ln=None):
        if not fused: return
        A(f'v_and_b32 {v(va)}, 31, v0'); A(f'v_lshlrev_b32 {v(va)}, 2, {v(va)}'); A(f'v_add_u32 {v(va)}, 128, {v(va)}')
        wait_words(A, va, vd, fail, srd_='s[8:11]', cnt='s30', ln=ln)
    if merged:
        A('s_cmp_lt_u32 s15, 30'); A('s_cbranch_scc1 ch_main')
        wait_ring(13, 11)
        gen_forwarders(A, fail, done)
        A.label('ch_main')
    A('s_cmp_ge_u32 s15, 16')
    A('s_cbranch_scc1 ch_value')
    A('s_mov_b32 s17, s15')
    score_weights(A, fail if fused else None)
    x_addrs(A)
    wait_ring(13, 11, ln=(12, 14))
    tstamp(A, 1, 12, 13)
    A('s_cmp_eq_u32 s14, 0')
    A('s_cbranch_scc1 ch_score_slow')
    gen_score(A, '', 'f', fail, done)
    A.label('ch_score_slow')
    gen_score(A, ' sc1', 's', fail, done)
    A.label('ch_value')
    A('s_sub_u32 s17, s15, 16')
    value_setup(A, fail if fused else None)
    wait_ring(48, 49)
    tstamp(A, 1, 48, 49)
    value_setup2(A)
    tstamp(A, 2, 48, 49)
    A('s_cmp_eq_u32 s14, 0')
    A('s_cbranch_scc1 ch_value_slow')
    gen_value(A, '', 'f', fail, done, merged)
    A.label('ch_value_slow')
    gen_value(A, ' sc1', 's', fail, done, merged)

def gen_k3(A):
    A.label('k3_kernel')
    A('s_and_b32 s15, s2, 7')
    A('s_cmp_lg_u32 s15, 0')
    A('s_cbranch_scc1 k3_end')
    A('s_lshr_b32 s15, s2, 3')
    A('s_cmp_ge_u32 s15, 30')
    A('s_cbranch_scc1 k3_end')
    prologue(A)
    gen_chain_body(A, 'k3_end', 'k3_end')
    A.label('k3_end')
    A('s_endpgm')
    return dict(name='k3_kernel', grid=256, block=256, lds=CHAIN_LDS, vgpr=256, sgpr=72, agpr=256)
```

```python
from asmlib import *
from layout import *
from k1 import sdivmod, srd, SZ_X, SZ_MEM0, SZ_W
import wk
def mst(A, i):
    if wk.TS: A(f's_memrealtime {s(70+2*i,2)}')
K1_NI = 32
def p0_common(A):
    A('v_lshrrev_b32 v2, 4, v0')
    A('v_and_b32 v3, 15, v0')
    A('v_lshlrev_b32 v4, 4, v0')
    A('s_mov_b32 s20, 0x05040100')
    A('s_mov_b32 s21, 0x07060302')

def ph_init(A, after_flags):
    p0_common(A)
    srd(A, 36, 8, SZ_MEM0)
    A('s_lshl_b32 s16, s3, 6')
    A('v_add_u32 v5, s16, v0')
    A('v_mov_b32 v8, -1'); A('v_mov_b32 v9, -1'); A('v_mov_b32 v10, -1'); A('v_mov_b32 v11, -1')
    A('v_lshlrev_b32 v6, 4, v5')
    A('s_mov_b32 s22, s15'); A('s_lshl_b32 s23, s22, 12')
    A('v_mov_b32 v12, 0'); A('v_mov_b32 v13, 0'); A('v_mov_b32 v14, 0'); A('v_mov_b32 v15, 0')
    A('s_waitcnt lgkmcnt(0)')
    for nm, lo, hi, reg in (('c', FLAGS, PROF, 12), ('a', MEMR + KC*8192, FLAGS, 8), ('b', MEMG+8192, MEMG+64*8192, 8), ('d', MEMG2+8192, MEMG2+64*8192, 8)):
        assert (hi-lo) % 4096 == 0
        A(f's_add_u32 s17, s23, {lo}')
        A.label('k1_fill'+nm)
        A(f's_cmp_ge_u32 s17, {hi}')
        A('s_cbranch_scc1 k1_fille'+nm)
        A(f'buffer_store_dwordx4 {v(reg,4)}, v6, s[4:7], s17 offen sc1')
        A(f's_add_u32 s17, s17, {4096*K1_NI}')
        A('s_branch k1_fill'+nm)
        A.label('k1_fille'+nm)
        if nm == 'c': after_flags()
    A('s_cmp_lg_u32 s22, 0')
    A('s_cbranch_scc1 k1_iend')
    for it in range(2):
        A(f'v_add_u32 v7, {256*it}, v5')
        A('v_and_b32 v16, 7, v7')
        A('v_mul_u32_u24 v16, 896, v16')
        A('v_lshrrev_b32 v17, 3, v7')
        A('v_lshl_add_u32 v16, v17, 4, v16')
        A('v_lshlrev_b32 v17, 4, v7')
        A('v_cmp_gt_u32 vcc, 448, v7')
        A('s_and_saveexec_b64 s[18:19], vcc')
        Ls = A.newlabel('k1_skip')
        A(f's_cbranch_execz {Ls}')
        A('buffer_load_dwordx4 v[20:23], v16, s[36:39], 0 offen')
        A('s_waitcnt vmcnt(0)')
        for d in range(4):
            A(f'v_min_u32 {v(20+d)}, 0xfffffffe, {v(20+d)}')
        for cp in range(KC):
            A(f's_mov_b32 s17, {MEMR + cp*8192}')
            A('buffer_store_dwordx4 v[20:23], v17, s[4:7], s17 offen sc1')
        A(f's_mov_b32 s17, {MEMG}')
        A('buffer_store_dwordx4 v[20:23], v17, s[4:7], s17 offen sc1')
        A(f's_mov_b32 s17, {MEMG2}')
        A('buffer_store_dwordx4 v[20:23], v17, s[4:7], s17 offen sc1')
        A('s_waitcnt vmcnt(0)')
        A.label(Ls)
        A('s_mov_b64 exec, s[18:19]')
    A.label('k1_iend')
    A('v_lshlrev_b32 v1, 4, v0')

def ph_ln(A, rt, wait_init, xsrd='s[8:11]', barrier=True):
    p0_common(A)
    A(f's_mov_b32 s16, {s(rt)}')
    A('s_mul_i32 s17, s16, %d' % (16*896))
    A('v_mul_u32_u24 v5, 896, v3')
    A('v_lshl_add_u32 v5, v2, 4, v5')
    A('s_waitcnt lgkmcnt(0)')
    RAW, XF = 8, 64
    for kk in range(14):
        A(f'buffer_load_dwordx4 {v(RAW+4*kk,4)}, v5, {xsrd}, s17 offen offset:{64*kk}')
    A('v_mov_b32 v6, 0')
    A('v_mov_b32 v7, 0')
    if barrier: A('s_barrier')
    for kk in range(14):
        A(f's_waitcnt vmcnt({13-kk})')
        for d in range(4):
            i = 4*kk+d
            A(f'v_lshlrev_b32 {v(XF+2*i)}, 16, {v(RAW+i)}')
            A(f'v_and_b32 {v(XF+2*i+1)}, 0xffff0000, {v(RAW+i)}')
            A(f'v_add_f32 v6, v6, {v(XF+2*i)}')
            A(f'v_add_f32 v7, v7, {v(XF+2*i+1)}')
    def allred(reg, tmp):
        A(f'v_mov_b32 {v(tmp)}, {v(reg)}')
        A('s_nop 1')
        A(f'v_permlane16_swap_b32 {v(reg)}, {v(tmp)}')
        A('s_nop 1')
        A(f'v_add_f32 {v(reg)}, {v(reg)}, {v(tmp)}')
        A(f'v_mov_b32 {v(tmp)}, {v(reg)}')
        A('s_nop 1')
        A(f'v_permlane32_swap_b32 {v(reg)}, {v(tmp)}')
        A('s_nop 1')
        A(f'v_add_f32 {v(reg)}, {v(reg)}, {v(tmp)}')
    A('v_add_f32 v6, v6, v7')
    allred(6, 7)
    import struct
    f2u = lambda f: struct.unpack('<I', struct.pack('<f', f))[0]
    A(f'v_mul_f32 v6, 0x{f2u(1.0/448):08x}, v6')
    A('v_mov_b32 v176, 0')
    A('v_mov_b32 v177, 0')
    for i in range(56):
        A(f'v_sub_f32 v178, {v(XF+2*i)}, v6')
        A(f'v_sub_f32 v179, {v(XF+2*i+1)}, v6')
        A('v_fmac_f32 v176, v178, v178')
        A('v_fmac_f32 v177, v179, v179')
    A('v_add_f32 v176, v176, v177')
    allred(176, 177)
    A(f'v_mul_f32 v176, 0x{f2u(1.0/448):08x}, v176')
    A('v_cvt_pk_bf16_f32 v6, v6, v176')
    A('v_and_b32 v176, 0xffff0000, v6')
    A('v_lshlrev_b32 v6, 16, v6')
    A(f'v_add_f32 v176, 0x{f2u(1e-5):08x}, v176')
    A('v_cvt_pk_bf16_f32 v176, v176, v176')
    A('v_and_b32 v176, 0xffff0000, v176')
    A('v_sqrt_f32 v176, v176')
    A('s_nop 0')
    A('v_cvt_pk_bf16_f32 v176, v176, v176')
    A('v_and_b32 v176, 0xffff0000, v176')
    A('v_rcp_f32 v177, v176')
    A('s_nop 0')
    A('v_fma_f32 v178, -v176, v177, 1.0')
    A('v_fma_f32 v177, v178, v177, v177')
    for i in range(56):
        A(f'v_sub_f32 v178, {v(XF+2*i)}, v6')
        A(f'v_sub_f32 v179, {v(XF+2*i+1)}, v6')
        A('v_cvt_pk_bf16_f32 v178, v178, v179')
        A('v_and_b32 v179, 0xffff0000, v178')
        A('v_lshlrev_b32 v178, 16, v178')
        A('v_mul_f32 v178, v178, v177')
        A('v_mul_f32 v179, v179, v177')
        A(f'v_cvt_pk_bf16_f32 {v(RAW+i)}, v178, v179')
    A('s_mul_i32 s17, s16, %d' % (14*1024))
    A(f's_add_u32 s18, s17, {XNP}')
    if XNF: A(f's_add_u32 s17, s17, {XNF}')
    A('v_and_b32 v5, 1, v2'); A('v_lshlrev_b32 v5, 9, v5')
    A('v_lshrrev_b32 v6, 1, v2'); A('v_lshl_add_u32 v5, v6, 8, v5')
    A('v_lshrrev_b32 v6, 1, v3'); A('v_lshl_add_u32 v6, v6, 4, v5')
    A('v_and_b32 v7, 1, v3'); A('v_lshl_add_u32 v6, v7, 10, v6')
    A('v_cmp_eq_u32 s[22:23], 1, v7')
    A('v_lshl_add_u32 v5, v3, 4, v5')
    A('s_lshr_b32 s19, s16, 1'); A(f's_mul_i32 s19, s19, {28*1024}')
    A('s_and_b32 s24, s16, 1'); A('s_lshl_b32 s24, s24, 7')
    A('s_add_u32 s19, s19, s24'); A(f's_add_u32 s19, s19, {XNS}')
    for kk in range(14):
        if kk % 4 == 0 and kk:
            A('s_add_u32 s17, s17, 4096')
            A('s_add_u32 s18, s18, 4096')
        if kk % 2 == 0 and kk: A('s_add_u32 s19, s19, 4096')
        b = RAW+4*kk
        A(f'buffer_store_dwordx4 {v(b,4)}, v4, s[4:7], s17 offen offset:{(kk%4)*1024} sc1')
        t = XF + 8*kk
        for d in range(4): A(f'v_mov_b32 {v(t+d)}, {v(b+d)}')
        A('s_nop 1')
        A(f'v_permlane32_swap_b32 {v(t)}, {v(t+2)}')
        A(f'v_permlane32_swap_b32 {v(t+1)}, {v(t+3)}')
        A('s_nop 1')
        A(f'buffer_store_dwordx4 {v(t,4)}, v5, s[4:7], s18 offen offset:{(kk%4)*1024} sc1')
        A(f'v_cndmask_b32 v178, {v(t+2)}, {v(t)}, s[22:23]')
        A(f'v_cndmask_b32 v179, {v(t+3)}, {v(t+1)}, s[22:23]')
        A('s_nop 1')
        A('v_mov_b32_dpp v180, v178 quad_perm:[1,0,3,2] row_mask:0xf bank_mask:0xf')
        A('v_mov_b32_dpp v181, v179 quad_perm:[1,0,3,2] row_mask:0xf bank_mask:0xf')
        A(f'v_cndmask_b32 {v(t+4)}, {v(t)}, v180, s[22:23]')
        A(f'v_cndmask_b32 {v(t+5)}, v180, {v(t+2)}, s[22:23]')
        A(f'v_cndmask_b32 {v(t+6)}, {v(t+1)}, v181, s[22:23]')
        A(f'v_cndmask_b32 {v(t+7)}, v181, {v(t+3)}, s[22:23]')
        A(f'buffer_store_dwordx4 {v(t+4,4)}, v6, s[4:7], s19 offen offset:{(kk%2)*2048} sc1')
    wait_init()
    A('s_lshl_b32 s17, s16, 2'); A(f's_add_u32 s17, s17, {LNF}')
    A('v_mov_b32 v1, 1'); A('v_mov_b32 v5, 0'); A('s_mov_b64 exec, 1')
    A('buffer_store_dword v1, v5, s[4:7], s17 offen sc1'); A('s_mov_b64 exec, -1')
    A('v_lshlrev_b32 v1, 4, v0')

def mn_decode(A):
    A('s_lshl_b32 s16, s91, 5'); A('s_add_u32 s16, s16, s92')
    sdivmod(A, 32, 19, 16, 7, 224)
    A('s_lshr_b32 s17, s32, 3'); A('s_lshl_b32 s17, s17, 2'); A('s_and_b32 s16, s32, 3'); A('s_add_u32 s17, s17, s16')
    A('s_bfe_u32 s33, s32, 0x10002')

def ph_mn(A, wait_init):
    p0_common(A)
    mn_decode(A)
    A('s_mov_b32 s34, 0')
    def early_init():
        A('v_and_b32 v5, 31, v0'); A('v_lshlrev_b32 v5, 2, v5')
        A('buffer_load_dword v1, v5, s[44:47], 0 offen sc1')
        A('s_waitcnt vmcnt(0)')
        A('v_cmp_eq_u32 vcc, 0, v1')
        A('s_cmp_eq_u64 vcc, 0'); A('s_cselect_b32 s34, 1, 0')
    def flag():
        L = A.newlabel('mf')
        A('s_cmp_lg_u32 s34, 0'); A(f's_cbranch_scc1 {L}')
        wait_init()
        A('s_mov_b32 s34, 1')
        A.label(L)
        A('s_waitcnt vmcnt(0)')
        A('s_lshl_b32 s28, s33, 4'); A('s_add_u32 s28, s28, s17'); A('s_lshl_b32 s28, s28, 3'); A('s_add_u32 s28, s28, s22')
        A('s_lshl_b32 s28, s28, 3'); A('s_add_u32 s28, s28, s19'); A('s_lshl_b32 s28, s28, 2'); A(f's_add_u32 s28, s28, {MNF}')
        A('v_mov_b32 v1, 1'); A('v_mov_b32 v5, 0'); A('s_mov_b64 exec, 1')
        A('buffer_store_dword v1, v5, s[4:7], s28 offen sc1'); A('s_mov_b64 exec, -1')
    ACC, RB, TMP, OUTR = 16, 80, 208, 224
    AFR = lambda t4, ks: 256 + (t4*8+ks)*4
    A('s_lshl_b32 s16, s33, 4'); A('s_add_u32 s16, s16, 16')
    A('s_load_dwordx2 s[36:37], s[0:1], s16')
    A('s_add_u32 s16, s16, 8')
    A('s_load_dwordx2 s[40:41], s[0:1], s16')
    A(f's_mov_b32 s38, {SZ_W}'); A('s_mov_b32 s39, 0x00020000')
    A(f's_mov_b32 s42, {SZ_W}'); A('s_mov_b32 s43, 0x00020000')
    A('s_lshl_b32 s23, s17, 9')
    A('v_lshrrev_b32 v7, 5, v0'); A('v_and_b32 v6, 31, v0')
    A('v_xor_b32 v5, v6, v7'); A('v_lshlrev_b32 v5, 4, v5'); A('v_lshl_add_u32 v5, v7, 13, v5')
    A('v_lshlrev_b32 v6, 4, v6'); A('v_lshl_add_u32 v6, v7, 13, v6')
    A('v_xor_b32 v7, v2, v3'); A('v_lshlrev_b32 v7, 4, v7')
    A('s_lshl_b32 s24, s3, 15'); A('s_add_u32 s24, s24, 32768')
    for q in range(4):
        A(f'v_xor_b32 {v(8+q)}, {64*q}, v7')
        A(f'v_lshl_add_u32 {v(12+q)}, v3, 10, {v(8+q)}'); A(f'v_add_u32 {v(12+q)}, s24, {v(12+q)}')
        A(f'v_lshl_add_u32 {v(8+q)}, v3, 9, {v(8+q)}')
    A('s_waitcnt lgkmcnt(0)')
    mst(A, 6)
    A('s_cmp_eq_u32 s3, 3'); A('s_cbranch_scc1 k1_noA')
    A('s_lshl_b32 s25, s19, 19'); A('s_add_u32 s25, s25, s23')
    for k in range(11):
        A(f's_add_u32 s26, s3, {3*k}'); A('s_min_u32 s26, s26, 31')
        A('s_lshl_b32 s27, s26, 10'); A('s_mov_b32 m0, s27')
        A('s_lshl_b32 s27, s26, 14'); A('s_add_u32 s27, s27, s25')
        A('s_and_b32 s26, s26, 7'); A('s_lshl_b32 s26, s26, 5')
        A('v_xor_b32 v1, s26, v5')
        A('buffer_load_dwordx4 v1, s[36:39], s27 offen lds')
    A.label('k1_noA')
    A('s_mov_b32 s22, s3')
    A('s_cmp_lg_u32 s33, 0')
    A('s_cbranch_scc1 k1_N')
    def readA():
        Lb = A.newlabel('ra')
        A('s_cmp_eq_u32 s3, 3'); A(f's_cbranch_scc1 {Lb}')
        A('s_barrier')
        A.label(Lb)
        mst(A, 0)
        for t4 in range(4):
            for ks in range(8):
                A(f'ds_read_b128 {r(AFR(t4,ks),4)}, {v(8+(ks&3))} offset:{t4*8192+(ks>>2)*256}')
    def mfmas(ks, bregs, fill=None):
        for t4 in range(4):
            for tt in range(4):
                d = ACC + (t4*4+tt)*4
                A(f'v_mfma_f32_16x16x32_bf16 {v(d,4)}, {r(AFR(t4,ks),4)}, {v(bregs[tt],4)}, {"0" if ks == 0 else v(d,4)}')
                if fill and tt % 2 == 1:
                    for x in fill.pop(0) if fill else []: A(x)
    def epilogue(base, isM):
        A.nop(10)
        A('s_mul_i32 s28, s17, 28'); A('s_lshl_b32 s29, s22, 2'); A('s_add_u32 s28, s28, s29')
        A('s_mul_i32 s28, s28, 7'); A('s_add_u32 s28, s28, s19'); A('s_lshl_b32 s28, s28, 11')
        A(f's_add_u32 s28, s28, {base}')
        for tt in range(4):
            for u in range(2):
                o = OUTR + (tt*2+u)*4
                for ab in range(2):
                    d = ACC + ((u*2+ab)*4+tt)*4
                    if isM:
                        for rr in range(0, 4, 2):
                            A(f'v_pk_mul_f32 {v(d+rr,2)}, {v(d+rr,2)}, s[30:31]')
                    A(f'v_cvt_pk_bf16_f32 {v(o+2*ab)}, {v(d)}, {v(d+1)}')
                    A(f'v_cvt_pk_bf16_f32 {v(o+2*ab+1)}, {v(d+2)}, {v(d+3)}')
                if not isM: A(f'ds_write_b128 v12, {v(o,4)} offset:{(tt&1)*2048+u*1024+(tt>>1)*16}')
        if not isM:
            for k in range(8): A(f'ds_read_b128 {v(OUTR+4*k,4)}, v13 offset:{k*1024}')
            A('s_waitcnt lgkmcnt(0)')
        for tt in range(4):
            for u in range(2):
                A(f'buffer_store_dwordx4 {v(OUTR+(tt*2+u)*4,4)}, v4, s[4:7], s28 offen offset:{u*1024} sc1')
            if tt < 3: A(f's_add_u32 s28, s28, {7*2048}')
    A('s_mov_b32 s30, 0x3d800000'); A('s_mov_b32 s31, 0x3d800000')
    def dmaB(blk_add):
        A(f's_add_u32 s25, s22, {blk_add}'); A('s_lshl_b32 s25, s25, 19'); A('s_add_u32 s25, s25, s23')
        A('s_mov_b32 m0, s24')
        for j in range(32):
            A(f'v_xor_b32 v1, {16*(j&15)}, v6')
            A('buffer_load_dwordx4 v1, s[40:43], s25 offen lds')
            A('s_add_u32 s25, s25, 16384'); A('s_add_u32 m0, m0, 1024')
    def readB():
        for ks in range(8):
            for tt in range(4):
                A(f'ds_read_b128 {v(RB+(ks*4+tt)*4,4)}, {v(12+(ks&3))} offset:{(tt>>1)*16384+(tt&1)*512+(ks>>2)*256}')
    dmaB(0)
    A('s_mul_i32 s25, s19, 110'); A('s_lshl_b32 s26, s3, 5'); A('s_add_u32 s25, s25, s26')
    A('v_and_b32 v1, 31, v0'); A('v_add_u32 v1, s25, v1'); A('v_min_u32 v1, 767, v1')
    A('v_and_b32 v7, 3, v1'); A('v_lshrrev_b32 v1, 2, v1'); A('v_lshlrev_b32 v1, 13, v1'); A('v_lshl_add_u32 v1, v7, 7, v1')
    A(f's_add_u32 s25, s23, {256*8192}')
    A(f'buffer_load_dword {v(TMP)}, v1, s[40:43], s25 offen')
    mst(A, 7)
    A('s_waitcnt vmcnt(33)')
    readA()
    early_init()
    mst(A, 1)
    readB()
    A('s_waitcnt lgkmcnt(0)')
    A('s_cmp_eq_u32 s3, 3'); A('s_cbranch_scc1 k1_M1')
    A('s_add_u32 s25, s22, 4'); A('s_lshl_b32 s25, s25, 19'); A('s_add_u32 s25, s25, s23')
    A('s_mov_b32 m0, s24')
    fill = [[f'v_xor_b32 v1, {16*(j&15)}, v6', 'buffer_load_dwordx4 v1, s[40:43], s25 offen lds', 's_add_u32 s25, s25, 16384', 's_add_u32 m0, m0, 1024'] for j in range(32)]
    for ks in range(8): mfmas(ks, [RB+(ks*4+tt)*4 for tt in range(4)], fill)
    A('s_branch k1_M1b')
    A.label('k1_M1')
    for ks in range(8): mfmas(ks, [RB+(ks*4+tt)*4 for tt in range(4)])
    A('s_branch k1_M2')
    A.label('k1_M1b')
    mst(A, 2)
    epilogue(MC, True)
    A('s_waitcnt vmcnt(8)')
    mst(A, 3)
    readB()
    A('s_waitcnt lgkmcnt(0)')
    for ks in range(8):
        mfmas(ks, [RB+(ks*4+tt)*4 for tt in range(4)])
        if ks == 1: flag(); mst(A, 4)
    A('s_add_u32 s22, s22, 4')
    A.label('k1_M2')
    epilogue(MC, True)
    flag()
    A('s_branch k1_MNend')
    A.label('k1_N')
    A(f'v_mul_u32_u24 v6, {8*896}, v2'); A('v_lshl_add_u32 v6, v3, 3, v6'); A(f'v_add_u32 v7, {4*896}, v6')
    A('v_lshrrev_b32 v12, 3, v3'); A('v_lshlrev_b32 v12, 12, v12'); A('v_lshl_add_u32 v12, v2, 8, v12')
    A('v_and_b32 v5, 7, v3'); A('v_lshl_add_u32 v12, v5, 5, v12'); A('v_add_u32 v12, s24, v12'); A('v_add_u32 v13, s24, v4')
    A('s_sub_u32 s27, 6, s22'); A('s_bitcmp1_b32 s17, 2')
    A('s_cselect_b32 s22, s27, s22'); A('s_cselect_b32 s30, -4, 4'); A('s_lshl_b32 s31, s30, 7')
    A('s_mul_i32 s26, s17, 229376'); A('s_lshl_b32 s27, s22, 7'); A('s_add_u32 s26, s26, s27')
    A('s_add_u32 s31, s31, s26')
    def loadW(ks, add):
        A(f's_add_u32 s27, {"s31" if add else "s26"}, {ks*32*896}')
        for ee in range(8):
            A(f'buffer_load_dwordx2 {v(RB+16*ks+2*ee,2)}, {"v6" if ee<4 else "v7"}, s[40:43], s27 offen offset:{(ee&3)*896}')
    A('s_mul_i32 s25, s19, 110'); A('s_lshl_b32 s27, s3, 5'); A('s_add_u32 s25, s25, s27')
    A('v_and_b32 v1, 31, v0'); A('v_add_u32 v1, s25, v1'); A('v_min_u32 v1, 767, v1')
    A('v_mul_u32_u24 v5, 0x5556, v1'); A('v_lshrrev_b32 v5, 16, v5')
    A('v_mul_u32_u24 v14, 3, v5'); A('v_sub_u32 v1, v1, v14'); A('v_lshlrev_b32 v1, 7, v1')
    A('v_mul_u32_u24 v5, 896, v5'); A('v_add_u32 v1, v1, v5')
    A('s_mul_i32 s25, s17, 229376'); A('s_add_u32 s27, s25, 512'); A('s_bitcmp1_b32 s17, 2'); A('s_cselect_b32 s25, s25, s27')
    for ks in range(6): loadW(ks, 0)
    A(f'buffer_load_dword {v(OUTR)}, v1, s[40:43], s25 offen')
    mst(A, 7)
    A('s_waitcnt vmcnt(49)')
    for ks in range(6, 8): loadW(ks, 0)
    readA()
    A('s_waitcnt lgkmcnt(0)')
    def nblock(reload, loaded=False):
        for ks in range(8):
            if not loaded: A(f's_waitcnt vmcnt({min(63, 8*(7-ks) + (8*ks if reload else 0))})')
            if loaded and ks == 2: flag(); mst(A, 4)
            L = RB+16*ks
            for j in range(4):
                for m in range(4):
                    A(f'v_perm_b32 {v(TMP+4*j+m)}, {v(L+2*(2*m+1)+(j>>1))}, {v(L+2*(2*m)+(j>>1))}, {"s21" if j&1 else "s20"}')
            if reload: loadW(ks, 512)
            else: A('s_nop 1')
            mfmas(ks, [TMP+4*j for j in range(4)])
    A('s_cmp_eq_u32 s3, 3'); A('s_cbranch_scc1 k1_N2')
    mst(A, 1)
    nblock(True)
    mst(A, 2)
    epilogue(NC, False)
    A('s_waitcnt vmcnt(8)')
    mst(A, 3)
    nblock(False, True)
    A('s_add_u32 s22, s22, s30')
    A('s_branch k1_N3')
    A.label('k1_N2')
    nblock(False)
    A.label('k1_N3')
    epilogue(NC, False)
    flag()
    A.label('k1_MNend')
    if wk.TS:
        mst(A, 5)
        A('s_lshl_b32 s94, s2, 2'); A('s_add_u32 s94, s94, s3'); A('s_lshl_b32 s94, s94, 12'); A(f's_add_u32 s94, s94, {PROF + 220*4}')
        A('s_waitcnt lgkmcnt(0)')
        for it in range(8):
            A(f'v_mov_b32 v8, {s(70+2*it)}'); A('v_mov_b32 v9, 0')
            A(f'buffer_store_dword v8, v9, s[4:7], s94 offen offset:{4*it}')
        A('v_mov_b32 v8, s33'); A('buffer_store_dword v8, v9, s[4:7], s94 offen offset:32')
    A('v_lshlrev_b32 v1, 4, v0')
```

```python
from asmlib import *
from layout import *
from k1 import sdivmod, srd, SZ_X
from wk import prologue, load_frags, silu_bf, f2u, LOG2E, tstamp

RS = 272
SPIN = 400000

def spin_wait(A, issue, ok_cmp, fail, sleep=2, backoff=None):
    L = A.newlabel('sw'); Lok = A.newlabel('swo')
    A(f's_mov_b32 s30, {SPIN}')
    A.label(L)
    issue()
    A('s_waitcnt vmcnt(0)')
    ok_cmp()
    A(f's_cbranch_vccz {Lok}')
    if sleep: A(f's_sleep {sleep}')
    if backoff:
        Lb = A.newlabel('swb')
        A(f's_cmp_gt_u32 s30, {SPIN-backoff[0]}'); A(f's_cbranch_scc1 {Lb}')
        A(f's_sleep {backoff[1]}')
        A.label(Lb)
    A('s_sub_u32 s30, s30, 1')
    A('s_cmp_lg_u32 s30, 0')
    A(f's_cbranch_scc1 {L}')
    A(f's_branch {fail}')
    A.label(Lok)

def wait_hint(A, need, fail, base=HINT, bsel=None):
    L = A.newlabel('wh'); Lok = A.newlabel('who'); Lsh = A.newlabel('whs')
    A('s_and_b32 s28, s96, 15'); A('s_lshl_b32 s28, s28, 7'); A(f's_add_u32 s28, s28, {base}')
    if bsel is not None: A(f's_lshl_b32 s29, {s(bsel)}, 11'); A('s_add_u32 s28, s28, s29')
    A('v_mov_b32 v5, 0')
    A(f's_mov_b32 s30, {SPIN}')
    A.label(L)
    A('s_mov_b64 exec, 1')
    A('buffer_load_dword v4, v5, s[4:7], s28 offen sc1')
    A('s_mov_b64 exec, -1')
    A('s_waitcnt vmcnt(0)')
    A('v_readfirstlane_b32 s29, v4')
    A(f's_cmp_ge_u32 s29, {s(need)}')
    A(f's_cbranch_scc1 {Lok}')
    A('s_add_u32 s29, s29, 2')
    A(f's_cmp_ge_u32 s29, {s(need)}')
    A(f's_cbranch_scc1 {Lsh}')
    A('s_sleep 48')
    A.label(Lsh)
    A('s_sleep 6')
    A('s_sub_u32 s30, s30, 1')
    A('s_cmp_lg_u32 s30, 0')
    A(f's_cbranch_scc1 {L}')
    A(f's_branch {fail}')
    A.label(Lok)

def phase_f2(A, item, st=''):
    sdivmod(A, 16, 17, item, 7, 224)
    ACC = 0
    ACC = 192
    HA = [[(8 + (rt*14+k)*4) if (8+(rt*14+k)*4) < 192 else None for k in range(14)] for rt in range(4)]
    AFR = lambda rt, k: 256 + (rt*14+k)*4
    BFR = lambda T, k: (8 + (T*7+k)*4)
    BF2 = lambda T, k: (120 + (T*7+k)*4) if (120+(T*7+k)*4) < 192 else (480 + (T*7+k-18)*4 if (T*7+k-18) < 8 else None)
    K1_, K2_ = 8, 6
    K1_, K2_ = 9, 5
    A(f's_mul_i32 s18, s16, {4*56*1024}')
    A(f's_mul_i32 s19, s3, {14*1024}')
    A('s_add_u32 s18, s18, s19')
    A(f's_add_u32 s18, s18, {HF}')
    A(f's_mul_i32 s21, s17, {4*56*1024}')
    A('s_add_u32 s21, s21, s19')
    A(f's_add_u32 s21, s21, {W2F}')
    BA = lambda T, k: 8 + (T*7+k)*4
    def BB(T, k):
        i = T*7+k
        return 120 + 4*i if i < 18 else (480 + 4*(i-18) if i < 26 else 8 + 4*(i-26))
    for T in range(4):
        A(f's_add_u32 s22, s21, {T*56*1024}')
        load_frags(A, [BA(T, k) for k in range(7)], 22, 20)
    for rt in range(4):
        A(f's_add_u32 s22, s18, {rt*56*1024}')
        load_frags(A, [AFR(rt, k) for k in range(14)], 22, 20)
    late = []
    for T in range(4):
        A(f's_add_u32 s22, s21, {T*56*1024+7*1024}')
        regs = [BB(T, k) for k in range(7)]
        if T == 3: regs = regs[:5]
        load_frags(A, regs, 22, 20)
    A('s_waitcnt vmcnt(26)')
    for k in range(7):
        for rt in range(4):
            for T in range(4):
                d = ACC + (rt*4+T)*4
                A(f'v_mfma_f32_16x16x32_bf16 {v(d,4)}, {r(AFR(rt,k),4)}, {r(BA(T,k),4)}, {"0" if k == 0 else v(d,4)}')
        if k == 2:
            A(f's_add_u32 s22, s21, {3*56*1024+12*1024}')
            load_frags(A, [BB(3, 5), BB(3, 6)], 22, 20)
    A('s_waitcnt vmcnt(0)')
    for k in range(7):
        for rt in range(4):
            for T in range(4):
                d = ACC + (rt*4+T)*4
                A(f'v_mfma_f32_16x16x32_bf16 {v(d,4)}, {r(AFR(rt,k+7),4)}, {r(BB(T,k),4)}, {v(d,4)}')
    A.nop(8)
    A('v_lshrrev_b32 v2, 4, v0'); A(f'v_mul_u32_u24 v2, {4*RS}, v2')
    A('v_and_b32 v3, 15, v0'); A('v_lshl_add_u32 v2, v3, 3, v2')
    A(f's_mul_i32 s22, s3, {64*RS}'); A('v_add_u32 v2, s22, v2')
    A('s_barrier')
    for rt in range(4):
        A(f'v_add_u32 v3, {rt*16*RS}, v2')
        for rr in range(4):
            for m in range(2):
                d0 = ACC + (rt*4+2*m)*4 + rr; d1 = d0 + 4
                o = (rr*RS + m*128)//4
                A(f'ds_write2_b32 v3, {v(d0)}, {v(d1)} offset0:{o} offset1:{o+1}')
    A('s_waitcnt lgkmcnt(0)')
    A('s_barrier')
    A('s_lshl_b32 s22, s3, 4')
    A('v_lshrrev_b32 v2, 2, v0'); A('v_add_u32 v2, s22, v2')
    A('v_and_b32 v3, 3, v0')
    A(f'v_mul_u32_u24 v4, {RS}, v2'); A('v_lshl_add_u32 v4, v3, 6, v4')
    for w in range(4):
        if w: A(f'v_add_u32 v4, {64*RS}, v4')
        for j in range(4): A(f'ds_read_b128 {v(8+16*w+4*j,4)}, v4 offset:{16*j}')
    A('v_mul_u32_u24 v5, 896, v2'); A('v_lshl_add_u32 v5, v3, 5, v5')
    A(f's_mul_i32 s22, s16, {64*896}'); A('s_lshl_b32 s23, s17, 7'); A('s_add_u32 s22, s22, s23'); A(f's_add_u32 s22, s22, {GF}')
    A('s_waitcnt lgkmcnt(0)')
    for j in range(8):
        A(f'v_pk_add_f32 {v(8+2*j,2)}, {v(8+2*j,2)}, {v(24+2*j,2)}')
        A(f'v_pk_add_f32 {v(40+2*j,2)}, {v(40+2*j,2)}, {v(56+2*j,2)}')
        A(f'v_pk_add_f32 {v(8+2*j,2)}, {v(8+2*j,2)}, {v(40+2*j,2)}')
    for j in range(8):
        a_, b_ = 8+2*j, 9+2*j
        A(f'v_cvt_pk_bf16_f32 v6, {v(a_)}, {v(b_)}')
        A(f'v_lshlrev_b32 {v(a_)}, 16, v6'); A(f'v_and_b32 {v(b_)}, 0xffff0000, v6')
        silu_bf(A, a_, 72); silu_bf(A, b_, 73)
        A(f'v_cvt_pk_bf16_f32 {v(80+j)}, {v(a_)}, {v(b_)}')
    A(f'buffer_store_dwordx4 v[80:83], v5, s[4:7], s22 offen{st}')
    A(f'buffer_store_dwordx4 v[84:87], v5, s[4:7], s22 offen offset:16{st}')

S_STG = 28*1024
def phase_s(A, h_s, qs_s, fail, sync):
    st = ' sc1' if sync else ''
    XP = lambda tt, kk: 256 + (tt*14+kk)*4
    XN = lambda kt, kk: 368 + (kt*14+kk)*4
    TF = lambda P, tt: 144 + (P*2+tt)*4
    DT = 16
    DS = {(0, 0): 32, (0, 1): 36, (1, 1): 40}
    DM = [44, 48]
    WB = [56 + 4*i for i in range(14)]
    A(f's_lshl_b32 s16, {s(qs_s)}, 2'); A('s_add_u32 s16, s16, s3')
    A(f's_mul_i32 s17, s16, {28*1024}')
    A(f's_add_u32 s18, s17, {XNP}')
    if XNF: A(f's_add_u32 s17, s17, {XNF}')
    A(f's_mul_i32 s19, {s(h_s)}, {28*14*1024}')
    A(f's_mul_i32 s21, s3, {7*1024}')
    A('s_add_u32 s19, s19, s21')
    A(f's_add_u32 s19, s19, {MC}')
    NB = 4
    def dma(P):
        for half in range(2):
            A(f's_add_u32 s22, s21, {(P % NB)*S_STG + half*4096}')
            A('s_mov_b32 m0, s22')
            A(f's_add_u32 s23, s19, {P*S_STG + half*4096}')
            for j in range(4 if half == 0 else 3):
                A(f'buffer_load_dwordx4 v1, s[4:7], s23 offen offset:{j*1024} lds')
    A('s_barrier')
    for P in range(3): dma(P)
    load_frags(A, [XP(tt, kk) for tt in range(2) for kk in range(14)], 18, 20)
    load_frags(A, [XN(kt, kk) for kt in range(2) for kk in range(14)], 17, 20)
    for P in range(14):
        if P == 0: A('s_waitcnt vmcnt(0)')
        else:
            later = sum(7 for x in range(P+1, min(P+3, 14)) if x >= 3)
            A(f's_waitcnt vmcnt({later if P >= 3 else 63})') if P >= 3 else None
        A('s_barrier')
        if P+3 < 14: dma(P+3)
        base = (P % NB)*S_STG
        if base >= 32768:
            A(f'v_add_u32 v2, {base}, v1'); ar, ab = 'v2', 0
        else: ar, ab = 'v1', base
        for e in range(2):
            for kk in range(14):
                A(f'ds_read_b128 {v(WB[kk],4)}, {ar} offset:{ab + (e*14+kk)*1024}')
            for kk in range(14):
                A(f's_waitcnt lgkmcnt({13-kk})')
                for tt in range(2):
                    d = DT + (e*2+tt)*4
                    A(f'v_mfma_f32_16x16x32_bf16 {v(d,4)}, {v(WB[kk],4)}, {r(XP(tt,kk),4)}, {"0" if kk == 0 else v(d,4)}')
        A.nop(8)
        for tt in range(2):
            for rr in range(4):
                A(f'v_cvt_pk_bf16_f32 {v(TF(P,tt)+rr)}, {v(DT+tt*4+rr)}, {v(DT+8+tt*4+rr)}')
        A('s_nop 1')
        for (kt, tt), d in DS.items():
            A(f'v_mfma_f32_16x16x32_bf16 {v(d,4)}, {r(XN(kt,P),4)}, {v(TF(P,tt),4)}, {"0" if P == 0 else v(d,4)}')
    A('v_lshrrev_b32 v3, 4, v0'); A('v_lshlrev_b32 v2, 7, v3')
    A('v_and_b32 v4, 7, v0'); A('v_lshl_add_u32 v2, v4, 4, v2')
    A('s_lshl_b32 s17, s16, 13'); A(f's_add_u32 s17, s17, {MEMG2 if sync else MEMG}'); A('s_add_u32 s18, s17, 4096')
    def issue():
        for kk in range(14):
            A(f'buffer_load_dwordx4 {v(WB[kk],4)}, v2, s[4:7], {"s17" if kk < 8 else "s18"} offen offset:{(kk%8)*512}{st}')
    tstamp(A, 100, 4, 5, sreg=93)
    if sync:
        A('s_max_u32 s27, s16, 2'); A('s_sub_u32 s27, s27, 1')
        wait_hint(A, 27, fail)
        tstamp(A, 110, 4, 5, sreg=93)
        def chk():
            A(f'v_max_u32 v4, {v(WB[0])}, {v(WB[0]+2)}')
            for kk in range(1, 14): A(f'v_max3_u32 v4, v4, {v(WB[kk])}, {v(WB[kk]+2)}')
            A('v_cmp_eq_u32 vcc, -1, v4')
        spin_wait(A, issue, chk, fail, sleep=3)
    else:
        issue(); A('s_waitcnt vmcnt(0)')
    tstamp(A, 120, 4, 5, sreg=93)
    for kk in range(14):
        for tt in range(2):
            A(f'v_mfma_f32_16x16x32_bf16 {v(DM[tt],4)}, {v(WB[kk],4)}, {v(TF(kk,tt),4)}, {"0" if kk == 0 else v(DM[tt],4)}')
    A('v_and_b32 v4, 15, v0'); A('v_lshlrev_b32 v5, 2, v3'); A('v_sub_u32 v4, v4, v5')
    A('v_mov_b32 v5, 0xff800000')
    A.nop(6)
    for tt in range(2):
        d = DS[(tt, tt)]
        for rr in range(4):
            A(f'v_cmp_le_i32 vcc, {rr}, v4')
            A('s_nop 1')
            A(f'v_cndmask_b32 {v(d+rr)}, v5, {v(d+rr)}, vcc')
    A(f's_mov_b32 s31, 0x{f2u(LOG2E):08x}')
    def xred(reg, tmp, op):
        for sw in ('v_permlane16_swap_b32', 'v_permlane32_swap_b32'):
            A(f'v_mov_b32 {v(tmp)}, {v(reg)}'); A('s_nop 1')
            A(f'{sw} {v(reg)}, {v(tmp)}'); A('s_nop 0')
            A(f'{op} {v(reg)}, {v(reg)}, {v(tmp)}')
    A('v_and_b32 v6, 8, v0'); A('v_lshlrev_b32 v6, 7, v6')
    A('v_and_b32 v7, 7, v0'); A('v_lshl_add_u32 v6, v7, 4, v6')
    A('v_lshrrev_b32 v7, 1, v6') ; A('v_and_b32 v7, 0x200, v7'); A('v_and_b32 v8, 0x70, v6'); A('v_or_b32 v7, v7, v8')
    A('v_and_b32 v8, 1, v3'); A('v_lshl_add_u32 v7, v8, 7, v7')
    A('v_lshl_add_u32 v6, v8, 3, v6')
    A('v_lshrrev_b32 v8, 1, v3'); A('v_lshl_add_u32 v6, v8, 8, v6')
    A(f's_lshr_b32 s17, {s(h_s)}, 1'); A('s_lshl_b32 s18, s16, 3'); A('s_add_u32 s17, s17, s18'); A('s_lshl_b32 s17, s17, 12')
    A(f's_and_b32 s18, {s(h_s)}, 1'); A('s_lshl_b32 s19, s18, 7'); A('s_add_u32 s17, s17, s19'); A(f's_add_u32 s17, s17, {PXX}')
    A(f's_lshr_b32 s19, {s(h_s)}, 2'); A('s_lshl_b32 s21, s16, 2'); A('s_add_u32 s19, s19, s21'); A('s_lshl_b32 s19, s19, 11')
    A('s_lshl_b32 s18, s18, 3'); A('s_add_u32 s19, s19, s18')
    A(f's_and_b32 s18, {s(h_s)}, 2'); A('s_lshl_b32 s18, s18, 7'); A('s_add_u32 s19, s19, s18'); A(f's_add_u32 s19, s19, {PXM}')
    for tt in range(2):
        xs = [DS[(0, tt)]] + ([DS[(1, 1)]] if tt else [])
        vals = [DM[tt]+rr for rr in range(4)] + [d+rr for d in xs for rr in range(4)]
        A(f'v_max3_f32 v9, {v(vals[0])}, {v(vals[1])}, {v(vals[2])}')
        i = 3
        while i < len(vals):
            if i+1 < len(vals): A(f'v_max3_f32 v9, v9, {v(vals[i])}, {v(vals[i+1])}'); i += 2
            else: A(f'v_max_f32 v9, v9, {v(vals[i])}'); i += 1
        xred(9, 10, 'v_max_f32')
        A(f'v_mul_f32 v9, 0x{f2u(-LOG2E):08x}, v9')
        for x in vals: A(f'v_fma_f32 {v(x)}, {v(x)}, s31, v9')
        for x in vals: A(f'v_exp_f32 {v(x)}, {v(x)}')
        A('s_nop 0')
        A(f'v_add_f32 v9, {v(vals[0])}, {v(vals[1])}'); A(f'v_add_f32 v10, {v(vals[2])}, {v(vals[3])}')
        A('v_add_f32 v9, v9, v10'); A('v_mul_f32 v9, 0.5, v9')
        for x in vals[4:]: A(f'v_add_f32 v9, v9, {v(x)}')
        xred(9, 10, 'v_add_f32')
        A('v_rcp_f32 v9, v9'); A('s_nop 0')
        for x in vals: A(f'v_mul_f32 {v(x)}, {v(x)}, v9')
        for kt in range(2):
            if kt < len(xs):
                d = xs[kt]
                A(f'v_cvt_pk_bf16_f32 v12, {v(d)}, {v(d+1)}'); A(f'v_cvt_pk_bf16_f32 v13, {v(d+2)}, {v(d+3)}')
            else:
                A('v_mov_b32 v12, 0'); A('v_mov_b32 v13, 0')
            A(f'buffer_store_dwordx2 v[12:13], v6, s[4:7], s17 offen offset:{tt*2048+kt*512}{st}')
            A('s_nop 1')
        d = DM[tt]
        A(f'v_cvt_pk_bf16_f32 v14, {v(d)}, {v(d+1)}'); A(f'v_cvt_pk_bf16_f32 v15, {v(d+2)}, {v(d+3)}')
        A('s_mov_b32 exec_hi, 0')
        A(f'buffer_store_dwordx2 v[14:15], v7, s[4:7], s19 offen offset:{tt*1024}{st}')
        A('s_mov_b32 exec_hi, -1')
        A('s_nop 1')
    if sync:
        A('s_waitcnt vmcnt(0)')
        A('v_mov_b32 v12, 1')
        A('s_lshl_b32 s17, s16, 6'); A(f's_lshl_b32 s18, {s(h_s)}, 2'); A('s_add_u32 s17, s17, s18'); A(f's_add_u32 s17, s17, {PFL}')
        A('v_mov_b32 v13, 0')
        A('buffer_store_dword v12, v13, s[4:7], s17 offen sc1')

def phase_o(A, seg_s, b_s, fail, sync):
    ld = ''
    UB = lambda ml, hpl, ct: 16 + ((ml*2+hpl)*2+ct)*8
    YB = lambda ml, ct: 80 + (ml*2+ct)*4
    PX = lambda oc, hpl: 96 + (oc*2+hpl)*4
    PMr = lambda oc: 128 + oc*4
    ACC = lambda oc, ml, ct: 144 + ((oc*2+ml)*2+ct)*4
    XG = 208
    A('v_and_b32 v3, 8, v0'); A('v_cmp_eq_u32 vcc, 0, v3')
    A('v_mov_b32 v2, 0xeeee'); A('v_mov_b32 v3, 0x4444'); A('v_cndmask_b32 v2, v2, v3, vcc')
    A(f's_lshl_b32 s16, {s(seg_s)}, 3'); A('s_lshl_b32 s17, s3, 1'); A('s_add_u32 s16, s16, s17')
    A('s_mul_i32 s18, s16, 14'); A(f's_lshl_b32 s17, {s(b_s)}, 1'); A('s_add_u32 s18, s18, s17'); A('s_lshl_b32 s18, s18, 12')
    A(f's_add_u32 s18, s18, {UF}')
    for hpl in range(2):
        for ml in range(2):
            A(f's_add_u32 s19, s18, {(hpl*14+ml)*4096}')
            for j in range(4):
                A(f'buffer_load_dwordx4 {v(UB(ml,hpl,0)+4*j,4)}, v1, s[4:7], s19 offen offset:{j*1024}{ld}')
    A('s_lshl_b32 s22, s3, 3')
    A('v_lshrrev_b32 v4, 3, v0'); A('v_add_u32 v4, s22, v4')
    A('v_and_b32 v5, 7, v0')
    A('v_mul_u32_u24 v6, 896, v4'); A('v_lshl_add_u32 v6, v5, 4, v6')
    A(f's_mul_i32 s22, {s(seg_s)}, {32*896}'); A(f's_lshl_b32 s23, {s(b_s)}, 7'); A('s_add_u32 s22, s22, s23')
    A(f's_add_u32 s23, s22, {GF}')
    A(f'buffer_load_dwordx4 {v(XG,4)}, v6, s[8:11], s22 offen')
    A(f'buffer_load_dwordx4 {v(XG+4,4)}, v6, s[4:7], s23 offen{ld}')
    for k in range(32): A(f'v_mov_b64 {v(144+2*k,2)}, 0')
    for k in range(8): A(f'v_mov_b64 {v(128+2*k,2)}, 0')
    if sync:
        Lw = A.newlabel('ow')
        A('s_cmp_lg_u32 s3, 0'); A(f's_cbranch_scc1 {Lw}')
        A('v_mov_b32 v11, v4'); A('v_mov_b32 v12, v5')
        A(f's_and_b32 s27, {s(seg_s)}, 62')
        wait_hint(A, 27, fail)
        A('v_mov_b32 v4, v11'); A('v_mov_b32 v5, v12')
        A('v_and_b32 v7, 15, v0'); A('v_lshlrev_b32 v7, 2, v7')
        A(f's_lshl_b32 s19, {s(seg_s)}, 6'); A(f's_add_u32 s19, s19, {PFL}'); A('v_add_u32 v7, s19, v7')
        A('v_mov_b32 v8, 1')
        A(f's_lshr_b32 s19, {s(seg_s)}, 1'); A('s_mul_i32 s19, s19, 7'); A(f's_add_u32 s19, s19, {s(b_s)}'); A('s_lshl_b32 s19, s19, 7')
        A(f's_add_u32 s19, s19, {YFL}')
        A('v_and_b32 v9, 15, v0'); A('v_lshlrev_b32 v9, 2, v9'); A('v_add_u32 v9, s19, v9')
        import chain
        A(f'v_cmp_lt_u32 vcc, {63 if chain.DBG_NOYF else 15}, v0'); A('s_nop 1')
        A('v_cndmask_b32 v7, v7, v9, vcc')
        A('s_mov_b32 exec_hi, 0')
        A('s_mov_b64 vcc, 0')
        spin_wait(A, lambda: A('buffer_load_dword v9, v7, s[4:7], 0 offen sc1'), lambda: A('v_cmp_gt_u32 vcc, v8, v9'), Lw+'f', sleep=4, backoff=(16, 100))
        A('s_mov_b32 exec_hi, -1')
        A(f's_branch {Lw}')
        A.label(Lw+'f')
        A('s_mov_b32 exec_hi, -1')
        A(f's_branch {fail}')
        A.label(Lw)
        A('s_barrier')
        tstamp(A, 130, 8, 9, sreg=93)
    A('s_lshl_b32 s18, s16, 12'); A(f's_add_u32 s18, s18, {PXX}'); A('s_add_u32 s19, s18, 4096')
    for hpl in range(2):
        for oc in range(4):
            A(f'buffer_load_dwordx4 {v(PX(oc,hpl),4)}, v1, s[4:7], {"s19" if hpl else "s18"} offen offset:{oc*1024}{ld}')
    A('v_lshrrev_b32 v7, 4, v0'); A('v_lshlrev_b32 v7, 7, v7'); A('v_and_b32 v8, 7, v0'); A('v_lshl_add_u32 v7, v8, 4, v7')
    A(f's_lshl_b32 s18, {s(seg_s)}, 2'); A('s_add_u32 s18, s18, s3'); A('s_lshl_b32 s18, s18, 11'); A(f's_add_u32 s18, s18, {PXM}')
    A('s_mov_b32 exec_lo, 0x00ff00ff'); A('s_mov_b32 exec_hi, 0x00ff00ff')
    for oc in range(4):
        A(f'buffer_load_dwordx4 {v(PMr(oc),4)}, v7, s[4:7], s18 offen offset:{oc*512}{ld}')
    A('s_mov_b64 exec, -1')
    A(f's_mul_i32 s18, {s(seg_s)}, 14'); A('s_add_u32 s18, s18, s17'); A('s_lshl_b32 s18, s18, 2'); A('s_add_u32 s18, s18, s3'); A('s_lshl_b32 s18, s18, 11')
    A(f's_add_u32 s18, s18, {YG}'); A('s_add_u32 s19, s18, 8192')
    for ml in range(2):
        for ct in range(2):
            A(f'buffer_load_dwordx4 {v(YB(ml,ct),4)}, v1, s[4:7], {"s19" if ml else "s18"} offen offset:{ct*1024}{ld}')
    A('s_waitcnt vmcnt(8)')
    for oc in range(4):
        for hpl in range(2):
            for ml in range(2):
                for ct in range(2):
                    A(f'v_smfmac_f32_16x16x64_bf16 {v(ACC(oc,ml,ct),4)}, {v(PX(oc,hpl),4)}, {v(UB(ml,hpl,ct),8)}, v2')
    A('s_waitcnt vmcnt(0)')
    tstamp(A, 140, 8, 9, sreg=93)
    for oc in range(4):
        for ml in range(2):
            for ct in range(2):
                d = ACC(oc, ml, ct)
                A(f'v_mfma_f32_16x16x32_bf16 {v(d,4)}, {v(PMr(oc),4)}, {v(YB(ml,ct),4)}, {v(d,4)}')
    A('v_lshrrev_b32 v7, 5, v0'); A(f'v_mul_u32_u24 v7, {32*RS}, v7')
    A('v_and_b32 v8, 16, v0'); A(f'v_mul_u32_u24 v8, {RS//4}, v8'); A('v_add_u32 v7, v7, v8')
    A('v_and_b32 v8, 15, v0'); A('v_lshl_add_u32 v7, v8, 3, v7')
    A(f's_mul_i32 s18, s3, {64*RS}'); A('v_add_u32 v7, s18, v7')
    A('s_barrier')
    for oc in range(4):
        A(f'v_add_u32 v8, {oc*8*RS}, v7')
        for rr in range(4):
            for ml in range(2):
                o = (rr*RS + ml*128)//4
                A(f'ds_write2_b32 v8, {v(ACC(oc,ml,0)+rr)}, {v(ACC(oc,ml,1)+rr)} offset0:{o} offset1:{o+1}')
    A('s_waitcnt lgkmcnt(0)')
    A('s_barrier')
    A(f'v_mul_u32_u24 v7, {RS}, v4'); A('v_lshl_add_u32 v7, v5, 5, v7')
    for sl in range(8):
        if sl and sl % 2 == 0: A(f'v_add_u32 v7, {64*RS}, v7')
        for j in range(2): A(f'ds_read_b128 {v(16+8*sl+4*j,4)}, v7 offset:{(sl&1)*32*RS+16*j}')
    A('s_waitcnt lgkmcnt(0)')
    for step in (1, 2, 4):
        for sl in range(0, 8, 2*step):
            for j in range(4):
                A(f'v_pk_add_f32 {v(16+8*sl+2*j,2)}, {v(16+8*sl+2*j,2)}, {v(16+8*(sl+step)+2*j,2)}')
    for j in range(4):
        a_, b_ = 16+2*j, 17+2*j
        A(f'v_cvt_pk_bf16_f32 v8, {v(a_)}, {v(b_)}')
        A(f'v_lshlrev_b32 {v(a_)}, 16, v8'); A(f'v_and_b32 {v(b_)}, 0xffff0000, v8')
        A(f'v_lshlrev_b32 v9, 16, {v(XG+4+j)}'); A(f'v_and_b32 v10, 0xffff0000, {v(XG+4+j)}')
        A(f'v_mul_f32 {v(a_)}, {v(a_)}, v9'); A(f'v_mul_f32 {v(b_)}, {v(b_)}, v10')
        A(f'v_cvt_pk_bf16_f32 v8, {v(a_)}, {v(b_)}')
        A(f'v_lshlrev_b32 {v(a_)}, 16, v8'); A(f'v_and_b32 {v(b_)}, 0xffff0000, v8')
        A(f'v_lshlrev_b32 v9, 16, {v(XG+j)}'); A(f'v_and_b32 v10, 0xffff0000, {v(XG+j)}')
        A(f'v_add_f32 {v(a_)}, {v(a_)}, v9'); A(f'v_add_f32 {v(b_)}, {v(b_)}, v10')
        A(f'v_cvt_pk_bf16_f32 {v(24+j)}, {v(a_)}, {v(b_)}')
    A('buffer_store_dwordx4 v[24:27], v6, s[12:15], s22 offen')

def phase_yw(A, gq, fail, sync=True):
    W = [256 + 4*i for i in range(56)]
    AFr = [16 + 4*k for k in range(14)]
    ACC = 80; OUT = 96
    A(f's_lshl_b32 s17, {s(gq)}, 2'); A('s_add_u32 s17, s17, s3')
    sdivmod(A, 22, 23, 17, 14, 112)
    A(f's_mul_i32 s18, s22, {2*28*14*1024}'); A(f's_mul_i32 s19, s23, {2*14*1024}')
    A('s_add_u32 s18, s18, s19'); A(f's_add_u32 s18, s18, {NC}'); A(f's_add_u32 s24, s18, {28*14*1024}')
    load_frags(A, W[:28], 18, 20); load_frags(A, W[28:], 24, 20)
    A('v_and_b32 v2, 8, v0'); A('v_lshlrev_b32 v2, 10, v2')
    A('v_and_b32 v3, 7, v0'); A('v_lshl_add_u32 v2, v3, 4, v2')
    A('v_lshrrev_b32 v3, 5, v0'); A('v_lshl_add_u32 v2, v3, 7, v2')
    A('v_and_b32 v6, 16, v0'); A('v_lshrrev_b32 v6, 1, v6'); A('v_add_u32 v2, v2, v6')
    A(f'v_mul_u32_u24 v3, {14*8192}, v3')
    A('v_and_b32 v6, 31, v0'); A('v_lshl_add_u32 v3, v6, 4, v3')
    A('s_lshl_b32 s21, s23, 2'); A('s_lshr_b32 s19, s22, 1'); A('s_add_u32 s21, s21, s19'); A('s_lshl_b32 s21, s21, 11')
    A('s_and_b32 s19, s22, 1'); A('s_lshl_b32 s19, s19, 9'); A('s_add_u32 s21, s21, s19'); A(f's_add_u32 s21, s21, {YG}')
    A('s_lshr_b32 s26, s23, 1'); A('s_lshl_b32 s26, s26, 7'); A('s_lshl_b32 s19, s22, 3'); A('s_add_u32 s26, s26, s19')
    A('s_and_b32 s19, s23, 1'); A('s_lshl_b32 s19, s19, 2'); A('s_add_u32 s26, s26, s19'); A(f's_add_u32 s26, s26, {YFL}')
    A(f's_mov_b32 s24, {MEMG2 if sync else MEMG}')
    A('s_mov_b32 s27, 1')
    A('s_mov_b32 s31, 0')
    A('s_mov_b32 s23, 0')
    A('v_mov_b32 v7, 0')
    def flag():
        A('v_mov_b32 v6, s23'); A('s_mov_b64 exec, 1')
        A('buffer_store_dword v6, v7, s[4:7], s26 offen sc1'); A('s_mov_b64 exec, -1')
        A('s_mov_b32 s23, 0'); A('s_add_u32 s26, s26, 896')
    L = A.newlabel('yw'); Lh = A.newlabel('ywh'); Lnf = A.newlabel('ywn'); Ld = A.newlabel('ywd')
    A.label(L)
    A('s_add_u32 s25, s24, 4096')
    def issue(fl):
        for kk in range(14):
            for pc in range(2):
                A(f'buffer_load_dwordx2 {v(AFr[kk]+2*pc,2)}, v2, s[4:7], {"s24" if kk < 8 else "s25"} offen offset:{(kk%8)*512+pc*256}{fl}')
    Lgo = A.newlabel('ywg')
    if sync:
        A('s_cmp_ge_u32 s31, s27'); A(f's_cbranch_scc1 {Lh}')
        A('s_sub_u32 s19, s27, 1'); A('s_max_u32 s19, s19, 1')
        wait_hint(A, 19, fail)
        A('s_mov_b32 s31, s29')
        A('s_cmp_ge_u32 s31, s27'); A(f's_cbranch_scc1 {Lh}')
        def chk():
            A(f'v_max_u32 v4, {v(AFr[0])}, {v(AFr[0]+2)}')
            for kk in range(1, 14): A(f'v_max3_u32 v4, v4, {v(AFr[kk])}, {v(AFr[kk]+2)}')
            A('v_cmp_eq_u32 vcc, -1, v4')
        spin_wait(A, lambda: issue(' sc1'), chk, fail, sleep=3)
        A(f's_branch {Lgo}')
        A.label(Lh)
    issue(' sc1' if sync else '')
    A.label(Lgo)
    for kk in range(14):
        A(f's_waitcnt vmcnt({2*(13-kk)})')
        for tl in range(4):
            d = ACC + 4*tl
            A(f'v_mfma_f32_16x16x32_bf16 {v(d,4)}, {v(AFr[kk],4)}, {r(W[tl*14+kk],4)}, {"0" if kk == 0 else v(d,4)}')
    if sync:
        A('s_cmp_eq_u32 s23, 0'); A(f's_cbranch_scc1 {Lnf}')
        flag()
        A.label(Lnf)
    A.nop(8)
    for ct in range(2):
        o = OUT + 4*ct
        for hs in range(2):
            d = ACC + 4*(hs*2+ct)
            A(f'v_cvt_pk_bf16_f32 {v(o+2*hs)}, {v(d)}, {v(d+1)}'); A(f'v_cvt_pk_bf16_f32 {v(o+2*hs+1)}, {v(d+2)}, {v(d+3)}')
        A(f'buffer_store_dwordx4 {v(o,4)}, v3, s[4:7], s21 offen offset:{ct*1024}{" sc1" if sync else ""}')
    A('s_add_u32 s24, s24, 16384')
    A(f's_add_u32 s21, s21, {2*14*8192}')
    A('s_add_u32 s27, s27, 2')
    if sync:
        A('s_lshr_b32 s23, s27, 1')
        A('s_cmp_ge_u32 s31, s27'); A(f's_cbranch_scc1 {Ld}')
        A('s_waitcnt vmcnt(0)')
        flag()
        A.label(Ld)
    tstamp(A, 16, 8, 9, sreg=27)
    A('s_cmp_lt_u32 s27, 64')
    A(f's_cbranch_scc1 {L}')

W_LDS = 4*S_STG
def gen_k4(A):
    A.label('k4_kernel'); A('s_cmp_ge_u32 s2, 224'); A('s_cbranch_scc1 k4_end')
    prologue(A); phase_f2(A, 2)
    A.label('k4_end'); A('s_endpgm')
    return dict(name='k4_kernel', grid=224, block=256, lds=W_LDS, vgpr=256, sgpr=48, agpr=256)
def gen_k5(A):
    A.label('k5_kernel'); A('s_cmp_ge_u32 s2, 256'); A('s_cbranch_scc1 k5_end')
    prologue(A)
    A('s_and_b32 s32, s2, 15'); A('s_lshr_b32 s33, s2, 4')
    phase_s(A, 32, 33, 'k5_end', False)
    A.label('k5_end'); A('s_endpgm')
    return dict(name='k5_kernel', grid=256, block=256, lds=W_LDS, vgpr=256, sgpr=48, agpr=256)
def gen_k6(A):
    A.label('k6_kernel'); A('s_cmp_ge_u32 s2, 448'); A('s_cbranch_scc1 k6_end')
    srd(A, 8, 0, SZ_X); srd(A, 12, 88, SZ_X)
    prologue(A)
    sdivmod(A, 32, 33, 2, 7, 448)
    phase_o(A, 32, 33, 'k6_end', False)
    A.label('k6_end'); A('s_endpgm')
    return dict(name='k6_kernel', grid=448, block=256, lds=W_LDS, vgpr=256, sgpr=48, agpr=0)
```

```python
from asmlib import *
from layout import *
from k1 import sdivmod, srd
from wk import prologue, load_frags, f2u, LOG2E, tstamp, wait_words, mnf_addr

STG, XB, XS_ = 0, 8192, 576
RED, WL = 8192, 16384
CHAIN_LDS = WL + 4*14*1024
SPIN = 200000
NSTEP = 63
PROFILE = False
EWPOS = 12
QUICK = False
RING = 0
RSP = 0
PSETS = 1
EWMI = -1
VDEL = 0
SSF = 0
PDEL = 40
MDEL = 0
MSRC = 0
EWW = 0
DYNF = 0
TAGC = 0
MSETS = 2
VMSETS = 2
TAGS = 0
TG = 16384
STAGP = 24
UEARLY = 1
PFS = 128
VFLAG = 0
LAT = 0
PREF = 3
POLLALL = 1
DBG_NOYW = 0
DBG_NOYF = 0
WBSTEP = 4
WBLAST = 2
NROLE = 30
DBG_NOITEM = DBG_PLAIN = 0
DBG_U0 = DBG_X0 = DBG_NOY = 0
BDEL = 8
STAG = 40
EWM_POS = 0

def stamp(A, i):
    if PROFILE and not LAT: A(f's_memrealtime {s(50+2*i,2)}')
def stamp_flush(A, n, tmp, tmp2):
    if not PROFILE: return
    A('s_waitcnt lgkmcnt(0)')
    for i in range(n): A(f'v_writelane_b32 {v(tmp)}, {s(50+2*i)}, {i}')
    A(f'v_mbcnt_lo_u32_b32 {v(tmp2)}, -1, 0')
    A(f'v_lshlrev_b32 {v(tmp2)}, 2, {v(tmp2)}')
    A('s_lshl_b32 s48, s20, 6')
    A('s_add_u32 s48, s48, s49')
    A('s_mov_b64 s[70:71], exec')
    A('s_mov_b64 exec, 0xffff')
    A(f'buffer_store_dword {v(tmp)}, {v(tmp2)}, s[4:7], s48 offen')
    A('s_mov_b64 exec, s[70:71]')
def stamp_init(A):
    if not PROFILE: return
    A('s_lshl_b32 s49, s15, 2'); A('s_add_u32 s49, s49, s3'); A('s_lshl_b32 s49, s49, 12')
    A(f's_add_u32 s49, s49, {PROF}')

OOL = []
def flush_ool(A):
    for f in OOL: f()
    OOL.clear()

class Lds:
    def __init__(self, A): self.A = A; self.q = []
    def op(self, name, ins): self.A(ins); self.q.append(name)
    def need(self, name):
        if name not in self.q: return
        i = self.q.index(name)
        n = len(self.q) - 1 - i
        self.A(f's_waitcnt lgkmcnt({min(n,15)})')
        self.q = self.q[i+1:] if n <= 15 else self.q
    def drain(self):
        self.A('s_waitcnt lgkmcnt(0)'); self.q = []

def smf(A, d, a_, b):
    A(f'v_smfmac_f32_16x16x64_bf16 {v(d,4)}, {r(a_,4)}, {r(b,8)}, v2')

NF = 2
def common_setup(A):
    A('v_and_b32 v11, 8, v0')
    A('v_cmp_eq_u32 vcc, 0, v11')
    A('v_mov_b32 v2, 0xeeee')
    A('v_mov_b32 v11, 0x4444')
    A('v_cndmask_b32 v2, v2, v11, vcc')
    A('v_lshrrev_b32 v11, 4, v0'); A('v_lshlrev_b32 v8, 7, v11')
    A('v_and_b32 v11, 7, v0'); A('v_lshl_add_u32 v8, v11, 4, v8')
    A('s_mul_i32 s16, s3, 112')
    A('v_add_u32 v3, s16, v0'); A('v_lshlrev_b32 v3, 4, v3')
    A('v_min_u32 v4, 47, v0'); A('v_add_u32 v4, s16, v4'); A('v_add_u32 v4, 64, v4'); A('v_lshlrev_b32 v4, 4, v4')
    A('v_min_u32 v5, 13, v0'); A('v_lshlrev_b32 v5, 2, v5')
    A(f's_mov_b32 s40, {EWM}')
    A(f's_mov_b32 s41, {EWP}')
    A('s_lshl_b32 s16, s15, 8')
    A('s_add_u32 s46, s40, s16')
    A('s_add_u32 s47, s41, s16')
    A('s_mov_b64 s[42:43], 0xffff')
    if SSF:
        A('s_lshl_b32 s16, s15, 2'); A('s_add_u32 s16, s16, s3'); A('s_lshl_b32 s16, s16, 8')
        A(f's_add_u32 s46, s16, {EW2}'); A('s_mov_b32 s47, s46')
        A('v_mov_b32 v5, 0'); A('s_mov_b64 s[42:43], 1')
        A(f's_mov_b32 s40, {EW2}'); A(f's_mov_b32 s41, {EW2+16384}')

def step_addr(A):
    A('s_and_b32 s21, s20, 3')
    A(f's_lshl_b32 s24, s21, 14')
    A(f's_add_u32 s24, s24, {MEMR}')
    A('s_add_u32 s25, s24, 8192')
    A(f's_lshl_b32 s26, s21, 15')
    A(f's_add_u32 s26, s26, {PR}')
    A('s_add_u32 s45, s26, 16384')
    A('s_xor_b32 s22, s21, 2')
    A(f's_lshl_b32 s27, s22, 15')
    A(f's_add_u32 s27, s27, {PR}')
    A('s_add_u32 s44, s20, 1')
    A('s_and_b32 s22, s44, 3')
    A(f's_lshl_b32 s28, s22, 14')
    A(f's_add_u32 s28, s28, {MEMR}')
    A('s_xor_b32 s22, s22, 2')
    A(f's_lshl_b32 s29, s22, 14')
    A(f's_add_u32 s29, s29, {MEMR}')

def store_flag(A, voff, base, st, tmp):
    if SSF: return
    A(f'v_mov_b32 {v(tmp)}, s44')
    if base == 's41': A('s_mov_b32 exec_lo, 0')
    A(f'buffer_store_dword {v(tmp)}, {v(voff)}, s[4:7], {base} offen{st}')
    if base == 's41': A('s_mov_b32 exec_lo, -1')

def ssf_store(A, base, st, t0, t1):
    A(f'v_mbcnt_lo_u32_b32 {v(t1)}, -1, 0'); A(f'v_mbcnt_hi_u32_b32 {v(t1)}, -1, {v(t1)}'); A(f'v_lshlrev_b32 {v(t1)}, 8, {v(t1)}')
    A(f'v_mov_b32 {v(t0)}, s44')
    A(f'buffer_store_dword {v(t0)}, {v(t1)}, s[4:7], {base} offen{st}')
    A(f'buffer_store_dword {v(t0)}, {v(t1)}, s[4:7], {base} offen offset:128{st}')

def wait_flag(A, voff, base, want, regs, fail, poller):
    nf = NF
    Lb = A.newlabel('wfb')
    if poller is not None or POLLALL:
        L = A.newlabel('wf'); Lok = A.newlabel('wfo')
        if not POLLALL:
            A(f's_cmp_lg_u32 s3, {poller}')
            A(f's_cbranch_scc1 {Lb}')
        A(f's_mov_b32 s30, {SPIN}')
        A('s_mov_b64 exec, s[42:43]')
        def issue(k): A(f'buffer_load_dword {v(regs[k])}, {v(voff)}, s[4:7], {base} offen offset:{k*128} sc1')
        for k in range(nf-1):
            issue(k); A.nop(52//nf)
        A.label(L)
        for k in range(nf):
            issue((k+nf-1) % nf)
            A(f's_waitcnt vmcnt({nf-1})')
            A(f'v_cmp_gt_u32 vcc, {want}, {v(regs[k])}')
            A(f's_cbranch_vccz {Lok}')
        A('s_sub_u32 s30, s30, 1')
        A('s_cmp_lg_u32 s30, 0')
        A(f's_cbranch_scc1 {L}')
        A('s_mov_b64 exec, -1')
        A(f's_branch {fail}')
        A.label(Lok)
        A('s_mov_b64 exec, -1')
    A.label(Lb)
    if not POLLALL: A('s_barrier')

def poll_mem(A, sets, fail):
    L = A.newlabel('pm'); Lok = A.newlabel('pmo'); L1 = A.newlabel('pm1')
    def issue(k):
        so = 's24' if k == 0 else 's25'
        A(f'buffer_load_dwordx4 {v(sets[k],4)}, v3, s[4:7], {so} offen sc1')
        A(f'buffer_load_dwordx4 {v(sets[k]+4,4)}, v4, s[4:7], {so} offen sc1')
    stamp(A, 8)
    if PROFILE: A('s_mov_b32 s68, 0')
    def check(k):
        b = sets[k]
        if PROFILE: A('s_add_u32 s68, s68, 1')
        A(f'ds_write_b128 v3, {v(b,4)}')
        A(f'ds_write_b128 v4, {v(b+4,4)}')
        A(f'v_max3_u32 v0, {v(b)}, {v(b+1)}, {v(b+2)}')
        A(f'v_max3_u32 v1, {v(b+3)}, {v(b+4)}, {v(b+5)}')
        A(f'v_max3_u32 v0, v0, {v(b+6)}, {v(b+7)}')
        A('v_max_u32 v0, v0, v1')
        A('v_cmp_eq_u32 vcc, -1, v0')
    A(f's_mov_b32 s30, {SPIN}')
    if len(sets) == 1:
        A.label(L)
        issue(0)
        A('s_sub_u32 s30, s30, 1'); A('s_cmp_eq_u32 s30, 0'); A(f's_cbranch_scc1 {fail}')
        A('s_waitcnt vmcnt(0)'); check(0)
        A(f's_cbranch_vccnz {L}')
    else:
        issue(0)
        A.nop(STAG)
        A.label(L)
        issue(1); A('s_waitcnt vmcnt(2)'); check(0)
        A(f's_cbranch_vccnz {L1}')
        def ool():
            A.label(L1)
            issue(0); A('s_waitcnt vmcnt(2)'); check(1)
            A(f's_cbranch_vccz {Lok}')
            A('s_sub_u32 s30, s30, 1'); A('s_cmp_lg_u32 s30, 0'); A(f's_cbranch_scc1 {L}')
            A(f's_branch {fail}')
        OOL.append(ool)
    A.label(Lok)
    stamp(A, 0)
    A('s_waitcnt lgkmcnt(0)')
    A('s_barrier')
    stamp(A, 1)

def post_paired(d0, d1, xreg, xoff, t):
    I = [f'v_cvt_pk_bf16_f32 {v(t+rr)}, {v(d0+rr)}, {v(d1+rr)}' for rr in range(4)]
    W = [f'ds_write_b32 {v(xreg)}, {v(t+rr)} offset:{xoff+16*rr}' for rr in range(4)]
    return I, W
def post_single(d, xreg, xoff):
    I = [f'v_permlane32_swap_b32 {v(d)}, {v(d+1)}', f'v_permlane32_swap_b32 {v(d+2)}, {v(d+3)}',
         f'v_cvt_pk_bf16_f32 {v(d)}, {v(d)}, {v(d+1)}', f'v_cvt_pk_bf16_f32 {v(d+2)}, {v(d+2)}, {v(d+3)}']
    W = [f'ds_write_b32 {v(xreg)}, {v(d)} offset:{xoff}', f'ds_write_b32 {v(xreg)}, {v(d+2)} offset:{xoff+32}']
    return I, W

def x_addrs(A):
    A('v_and_b32 v11, 12, v0'); A('v_mul_u32_u24 v9, 36, v11')
    A('v_and_b32 v11, 3, v0');  A('v_lshl_add_u32 v9, v11, 2, v9')
    A('v_and_b32 v11, 16, v0'); A('v_lshl_add_u32 v9, v11, 2, v9')
    A(f's_mul_i32 s16, s3, {2*XS_}'); A(f's_add_u32 s16, s16, {XB}')
    A('v_add_u32 v9, s16, v9')
    A('v_lshrrev_b32 v11, 5, v0')
    A('v_lshl_add_u32 v10, v11, 4, v9')
    A(f'v_mul_u32_u24 v11, {XS_}, v11')
    A('v_add_u32 v9, v9, v11')

def gen_score(A, st, tag, fail, done):
    Lfin = f'sc_fin_{tag}'
    A('s_cmp_eq_u32 s3, 3')
    A(f's_cbranch_scc1 {Lfin}')
    ACC = [12, 16, 20, 24]
    SL = [28 + 4*i for i in range(9)]
    W = lambda tl, p: 64 + (tl*14+p)*8
    Lloop = f'sc_loop_{tag}'
    A('s_mov_b32 s20, 0')
    if TAGS or TAGC:
        A('v_lshlrev_b32 v6, 2, v0'); A('s_lshl_b32 s16, s3, 8'); A(f's_add_u32 s16, s16, {TG}'); A('v_add_u32 v6, s16, v6')
        A('v_mov_b32 v7, 0'); A('ds_write_b32 v6, v7')
    A.label(Lloop)
    step_addr(A)
    for k in range(8): A(f'v_mov_b64 {v(12+2*k,2)}, 0')
    wait_flag(A, 5, 's46', 's20', [SL[0]+k for k in range(4)], fail, 0)
    poll_mem(A, [SL[0], SL[2]][:MSETS], fail)
    Q = Lds(A)
    def rd(Q, p, slot):
        Q.op(('r', p), f'ds_read_b128 {v(SL[slot],4)}, v8 offset:{p*512}')
    slot = {}
    for p in range(5): slot[p] = 4+p; rd(Q, p, 4+p)
    for p in range(14):
        Q.need(('r', p))
        smf(A, ACC[0], SL[slot[p]], W(0, p)); smf(A, ACC[1], SL[slot[p]], W(1, p))
        if p == 1:
            A('s_waitcnt vmcnt(0)')
            for pp in range(5, 9): slot[pp] = pp-5; rd(Q, pp, pp-5)
        if 1 <= p < 6: slot[p+8] = slot.pop(p-1); rd(Q, p+8, slot[p+8])
    def phase(tl, order, rer, I, Wr):
        fill = [('v', x) for x in I] + [('w', x) for x in Wr] + [('n', None)]*BDEL + [('b', None)]
        if TAGS: fill = [('v', x) for x in I + ['v_add_u32 v7, 1, v7']] + [('w', x) for x in Wr + ['ds_write_b32 v6, v7']]
        rer = list(rer)
        for n, p in enumerate(order):
            Q.need(('r', p))
            smf(A, ACC[tl], SL[slot[p]], W(tl, p))
            if rer:
                pn = rer.pop(0); slot[pn] = slot.pop(p); rd(Q, pn, slot[pn])
            if n >= 4:
                for _ in range(2 if (not TAGS or n in (5, 6)) else 1):
                    if not fill: break
                    kind, x = fill.pop(0)
                    if kind == 'v': A(x)
                    elif kind == 'w': Q.op('w', x)
                    elif kind == 'n': pass
                    else: Q.drain(); A('s_barrier')
        assert not fill, fill
    I, Wr = post_paired(ACC[0], ACC[1], 9, 0, ACC[0])
    phase(2, [5, 6, 7, 8, 9, 10, 11, 12, 13, 0, 1, 2, 3, 4], [0, 1, 2, 3, 4], I, Wr)
    stamp(A, 2)
    I, Wr = post_single(ACC[2], 10, 8*XS_)
    phase(3, [10, 11, 12, 13, 0, 1, 2, 3, 4, 5, 6, 7, 8, 9], [5, 6, 7, 8, 9], I, Wr)
    stamp(A, 3)
    if TAGS or TAGC: A('v_add_u32 v7, 1, v7'); A.nop(7)
    else: A.nop(8)
    I, Wr = post_single(ACC[3], 10, 9*XS_)
    for x in I + Wr: A(x)
    if TAGS or TAGC: A('ds_write_b32 v6, v7')
    else:
        A('s_waitcnt lgkmcnt(0)')
        A('s_barrier')
    if SSF:
        Lq = A.newlabel('ssf'); A('s_or_b32 s22, s15, s3'); A('s_cmp_lg_u32 s22, 0'); A(f's_cbranch_scc1 {Lq}')
        A.nop(PDEL)
        ssf_store(A, 's41', st, 0, 1)
        A.label(Lq)
    stamp(A, 4); stamp_flush(A, 10, 0, 1)
    A('s_add_u32 s20, s20, 1')
    A(f's_cmp_lt_u32 s20, {NSTEP}')
    A(f's_cbranch_scc1 {Lloop}')
    A(f's_branch {done}')

    A.label(Lfin)
    ACC = [16, 20]; DX, DM = 24, 28
    PS = [32, 48]
    AF = [64 + 4*p for p in range(14)]
    A2 = [120 + 4*i for i in range(4)]
    T = 136
    XSR = [144 + 8*kk for kk in range(14)]
    W = lambda tl, p: 256 + (tl*14+p)*8
    posof = lambda kk: kk
    A('v_lshlrev_b32 v12, 4, v0')
    A('v_and_b32 v11, 16, v0'); A('v_lshlrev_b32 v1, 2, v11')
    A('v_lshrrev_b32 v11, 5, v0'); A('v_lshl_add_u32 v1, v11, 4, v1')
    A('v_and_b32 v11, 12, v0'); A('v_lshl_add_u32 v13, v11, 6, v1')
    A('v_and_b32 v11, 3, v0'); A('v_lshl_add_u32 v13, v11, 2, v13')
    A('s_lshr_b32 s16, s17, 1'); A('s_lshl_b32 s16, s16, 10')
    A('s_and_b32 s18, s17, 1'); A('s_lshl_b32 s19, s18, 7'); A('s_add_u32 s16, s16, s19')
    A('v_add_u32 v13, s16, v13')
    A('v_and_b32 v11, 8, v0');  A('v_lshl_add_u32 v14, v11, 2, v1')
    A('v_cmp_ne_u32 s[34:35], 0, v11')
    A('v_and_b32 v11, 7, v0');  A('v_lshl_add_u32 v14, v11, 1, v14')
    A('s_lshr_b32 s16, s17, 3'); A('s_lshl_b32 s16, s16, 10')
    A('s_and_b32 s19, s17, 3'); A('s_lshl_b32 s19, s19, 8'); A('s_add_u32 s16, s16, s19')
    A('s_and_b32 s19, s17, 4'); A('s_lshl_b32 s19, s19, 5'); A('s_add_u32 s16, s16, s19')
    A('s_add_u32 s16, s16, 8192'); A('v_add_u32 v14, s16, v14')
    A('s_lshl_b32 s16, s17, 2'); A('v_lshlrev_b32 v6, 7, v0'); A('v_add_u32 v6, s16, v6')
    A('v_lshrrev_b32 v11, 4, v0'); A('v_mul_u32_u24 v15, 144, v11')
    A('v_and_b32 v11, 7, v0'); A('v_lshl_add_u32 v15, v11, 4, v15')
    A(f'v_add_u32 v15, {XB}, v15')
    A(f's_mov_b32 s31, 0x{f2u(LOG2E):08x}')
    A('s_mov_b32 s33, 0x7fff7fff')
    A('v_min_u32 v7, 2, v0'); A('v_lshlrev_b32 v7, 8, v7'); A(f'v_add_u32 v7, {TG}, v7')
    A('s_mov_b32 s36, 0')
    def load_xs():
        for i in range(28):
            if i % 4 == 0:
                if i == 0: A('s_mov_b32 s23, s32')
                else: A('s_add_u32 s23, s23, 4096')
            A(f'buffer_load_dwordx4 {v(XSR[0]+4*i,4)}, v12, s[4:7], s23 offen offset:{(i%4)*1024}')
    A(f's_mov_b32 s32, {XNS}')
    load_xs()
    Lloop = f'sf_loop_{tag}'
    A('s_mov_b32 s20, 0')
    A.label(Lloop)
    if QUICK:
        Lq = A.newlabel('q')
        A('s_cmp_lg_u32 s20, 2'); A(f's_cbranch_scc1 {Lq}'); A('s_memrealtime s[64:65]'); A('s_memtime s[60:61]'); A.label(Lq)
    step_addr(A)
    for k in range(8): A(f'v_mov_b64 {v(16+2*k,2)}, 0')
    wait_flag(A, 5, 's46', 's20', [PS[0]+k for k in range(4)], fail, None)
    poll_mem(A, PS[:MSETS], fail)
    Q = Lds(A)
    for p in range(14):
        Q.op(('r', p), f'ds_read_b128 {v(AF[p],4)}, v8 offset:{p*512}')
    for p in range(14):
        Q.need(('r', p))
        smf(A, ACC[0], AF[p], W(0, p)); smf(A, ACC[1], AF[p], W(1, p))
    A.nop(8)
    I, Wr = post_paired(ACC[0], ACC[1], 9, 0, ACC[0])
    for x in I: A(x)
    for x in Wr: Q.op('w', x)
    nb = [0]
    def rd2(kk2):
        Q.op(('x', kk2), f'ds_read_b128 {v(A2[nb[0]%4],4)}, v15 offset:{kk2*XS_}')
        buf[kk2] = A2[nb[0] % 4]; nb[0] += 1
    buf = {}
    def second(kk2):
        Q.need(('x', kk2))
        smf(A, DX, buf[kk2], XSR[kk2])
        A(f'v_mfma_f32_16x16x32_bf16 {v(DM,4)}, {v(buf[kk2],4)}, {v(AF[posof(kk2)],4)}, {v(DM,4)}')
    rd2(6); rd2(7)
    second(6); second(7)
    if True:
        def sync(kks):
            Ls = A.newlabel('ts')
            A('s_add_u32 s36, s36, 1')
            A(f's_mov_b32 s30, {SPIN*4}')
            n0 = nb[0]
            A.label(Ls)
            A('ds_read_b32 v0, v7')
            for kk2 in kks: rd2(kk2)
            A('s_sub_u32 s30, s30, 1'); A('s_cmp_eq_u32 s30, 0'); A(f's_cbranch_scc1 {fail}')
            A(f's_waitcnt lgkmcnt({len(kks)})')
            A('v_cmp_gt_u32 vcc, s36, v0')
            A(f's_cbranch_vccnz {Ls}')
    if TAGS:
        sync([0, 1, 2, 3])
        stamp(A, 2)
        second(0); rd2(4); second(1); rd2(5); second(2); second(3); second(4); second(5)
        sync([8, 10, 12])
        second(8); second(10); second(12)
        sync([9, 11, 13])
        stamp(A, 3)
    else:
        A('s_barrier')
        stamp(A, 2)
        for kk2 in range(4): rd2(kk2)
        second(0); rd2(4); second(1); rd2(5); second(2); second(3)
        A('s_barrier')
        rd2(8); rd2(10)
        second(4); rd2(12); second(5); second(8); second(10); second(12)
        if TAGC: sync([9, 11, 13]); stamp(A, 3)
        else:
            A('s_barrier')
            stamp(A, 3)
            rd2(9); rd2(11); rd2(13)
    if EWPOS == -1: store_flag(A, 6, 's41', st, T+7)
    second(9); second(11); second(13)
    if EWPOS == 0: store_flag(A, 6, 's41', st, T+7)
    A.nop(8)
    stamp(A, 4)
    for d in (DX, DM):
        A(f'v_permlane32_swap_b32 {v(d)}, {v(d+1)}')
        A(f'v_permlane32_swap_b32 {v(d+2)}, {v(d+3)}')
    if EWPOS == 10: store_flag(A, 6, 's41', st, T+7)
    mx = [T, T+1]; sm = [T+2, T+3]; ml = [T+4, T+5]
    el = lambda t: (DX+2*t, DX+2*t+1, DM+2*t)
    for t in range(2):
        A(f'v_max3_f32 {v(mx[t])}, {v(el(t)[0])}, {v(el(t)[1])}, {v(el(t)[2])}')
    for t in range(2):
        A(f'v_mul_f32 {v(ml[t])}, 0x{f2u(-LOG2E):08x}, {v(mx[t])}')
    fx = []
    for j in (2, 0, 1):
        for t in range(2): fx.append(f'v_fma_f32 {v(el(t)[j])}, {v(el(t)[j])}, s31, {v(ml[t])}')
    for j in (2, 0, 1):
        for t in range(2): fx.append(f'v_exp_f32 {v(el(t)[j])}, {v(el(t)[j])}')
    for ror in (8, 4, 2, 1):
        for t in range(2):
            A(f'v_max_f32_dpp {v(mx[t])}, {v(mx[t])}, {v(mx[t])} row_ror:{ror} row_mask:0xf bank_mask:0xf')
        for _ in range(3): A(fx.pop(0))
        if EWPOS == 11 and ror == 8: store_flag(A, 6, 's41', st, T+7)
        if EWPOS == 12 and ror == 4: store_flag(A, 6, 's41', st, T+7)
    if EWPOS == 1: store_flag(A, 6, 's41', st, T+7)
    for t in range(2):
        A(f'v_fma_f32 {v(ml[t])}, -{v(mx[t])}, s31, -{v(ml[t])}')
    for t in range(2):
        A(f'v_fma_f32 {v(sm[t])}, {v(el(t)[2])}, 0.5, {v(el(t)[0])}')
    for t in range(2):
        A(f'v_exp_f32 {v(ml[t])}, {v(ml[t])}')
    for t in range(2):
        A(f'v_add_f32 {v(sm[t])}, {v(sm[t])}, {v(el(t)[1])}')
    for t in range(2):
        A(f'v_mul_f32 {v(sm[t])}, {v(sm[t])}, {v(ml[t])}')
    if EWPOS == 2: store_flag(A, 6, 's41', st, T+7)
    pre = [f'v_mul_f32 {v(el(t)[j])}, {v(el(t)[j])}, {v(ml[t])}' for j in range(3) for t in range(2)]
    for ror in (8, 4, 2, 1):
        A(pre.pop(0))
        if ror in (8, 4): A(pre.pop(0))
        for t in range(2):
            A(f'v_add_f32_dpp {v(sm[t])}, {v(sm[t])}, {v(sm[t])} row_ror:{ror} row_mask:0xf bank_mask:0xf')
    if EWPOS == 3: store_flag(A, 6, 's41', st, T+7)
    for t in range(2):
        A(f'v_rcp_f32 {v(sm[t])}, {v(sm[t])}')
    A(f'v_cndmask_b32 {v(T+6)}, {v(DM)}, {v(DM+2)}, s[34:35]')
    for j in range(2):
        for t in range(2):
            A(f'v_mul_f32 {v(el(t)[j])}, {v(el(t)[j])}, {v(sm[t])}')
    A(f'v_cndmask_b32 {v(T+7)}, {v(sm[0])}, {v(sm[1])}, s[34:35]')
    for t in range(2):
        A(f'v_cvt_pk_bf16_f32 {v(T+4+t)}, {v(el(t)[0])}, {v(el(t)[1])}')
    A(f'v_mul_f32 {v(T+6)}, {v(T+6)}, {v(T+7)}')
    for t in range(2):
        A(f'v_and_b32 {v(T+4+t)}, s33, {v(T+4+t)}')
    A(f'v_cvt_pk_bf16_f32 {v(T+6)}, {v(T+6)}, {v(T+6)}')
    for t in range(2):
        A(f'buffer_store_dword {v(T+4+t)}, v13, s[4:7], s26 offen offset:{32*t}{st}')
    A(f'v_and_b32 {v(T+6)}, s33, {v(T+6)}')
    A(f'buffer_store_short {v(T+6)}, v14, s[4:7], s26 offen{st}')
    for t in range(2):
        A(f'buffer_store_dword {v(T+4+t)}, v13, s[4:7], s45 offen offset:{32*t}{st}')
    A(f'buffer_store_short {v(T+6)}, v14, s[4:7], s45 offen{st}')
    if EWPOS == 4: store_flag(A, 6, 's41', st, T+7)
    stamp(A, 5)
    A(f'v_mov_b32 {v(T+7)}, -1')
    for cp in range(KC):
        if cp: A('s_add_u32 s27, s27, 16384')
        for t in range(2):
            A(f'buffer_store_dword {v(T+7)}, v13, s[4:7], s27 offen offset:{32*t}{st}')
        A(f'buffer_store_short {v(T+7)}, v14, s[4:7], s27 offen{st}')
    tstamp(A, 16, 0, 1, sreg=20)
    if not DBG_X0: A('s_add_u32 s32, s32, 28672')
    load_xs()
    stamp_flush(A, 10, 0, 1)
    A('s_add_u32 s20, s20, 1')
    A(f's_cmp_lt_u32 s20, {NSTEP}')
    A(f's_cbranch_scc1 {Lloop}')
    if QUICK:
        A('s_memrealtime s[66:67]'); A('s_memtime s[62:63]'); A('s_waitcnt lgkmcnt(0)')
        A('s_sub_u32 s62, s62, s60'); A('v_mov_b32 v0, s62'); A('s_lshl_b32 s16, s17, 2'); A('s_add_u32 s16, s16, 192'); A('v_mov_b32 v1, s16')
        A('buffer_store_dword v0, v1, s[8:11], 0 offen')
        A('s_sub_u32 s66, s66, s64'); A('v_mov_b32 v0, s66'); A('s_lshl_b32 s16, s17, 2'); A('s_add_u32 s16, s16, 128'); A('v_mov_b32 v1, s16')
        A('buffer_store_dword v0, v1, s[8:11], 0 offen')
    A(f's_branch {done}')

def interleave(A, g):
    if g < 256:
        A(f'v_swap_b32 {v(g+1)}, {v(g+4)}')
        A(f'v_swap_b32 {v(g+2)}, {v(g+4)}')
        A(f'v_swap_b32 {v(g+3)}, {v(g+5)}')
        A(f'v_swap_b32 {v(g+5)}, {v(g+6)}')
    else:
        q = g - 256
        A(f'v_accvgpr_read_b32 v11, {a(q+1)}')
        A(f'v_accvgpr_mov_b32 {a(q+1)}, {a(q+4)}')
        A(f'v_accvgpr_mov_b32 {a(q+4)}, {a(q+2)}')
        A(f'v_accvgpr_write_b32 {a(q+2)}, v11')
        A(f'v_accvgpr_read_b32 v11, {a(q+3)}')
        A(f'v_accvgpr_mov_b32 {a(q+3)}, {a(q+5)}')
        A(f'v_accvgpr_mov_b32 {a(q+5)}, {a(q+6)}')
        A(f'v_accvgpr_write_b32 {a(q+6)}, v11')

def load_tiles(A, tiles, post=None, pre=None):
    WIN = 30
    q = []
    def retire(left):
        g = q.pop(0)
        A(f's_waitcnt vmcnt({2*left})')
        interleave(A, g)
        if post: post(g)
    for ti, (dst, offa, offb, plist) in enumerate(tiles):
        if pre: pre(ti)
        for p in plist:
            if p % 4 == 0 or p == plist[0]:
                A(f's_add_u32 s22, s18, {offa+(p//4)*4096}')
                A(f's_add_u32 s23, s18, {offb+(p//4)*4096}')
            im = (p % 4)*1024
            A(f'buffer_load_dwordx4 {r(dst(p),4)}, v1, s[4:7], s22 offen offset:{im}')
            A(f'buffer_load_dwordx4 {r(dst(p)+4,4)}, v1, s[4:7], s23 offen offset:{im}')
            q.append(dst(p))
            if len(q) > WIN: retire(len(q)-1)
    while q: retire(len(q)-1)

def score_weights(A, fail=None):
    TS = 14*1024
    Lw3 = A.newlabel('w3'); Ld = A.newlabel('wd')
    A(f's_mul_i32 s18, s17, {28*TS}')
    A(f's_add_u32 s18, s18, {MC}')
    A(f's_mul_i32 s19, s3, {4*TS}')
    A('s_add_u32 s18, s18, s19')
    A('s_cmp_eq_u32 s3, 3')
    A(f's_cbranch_scc1 {Lw3}')
    W = lambda tl: (lambda p: 64 + (tl*14+p)*8)
    def pre(ti):
        if fail and ti in (0, 2):
            A('s_lshl_b32 s19, s17, 3'); A('s_add_u32 s19, s19, s3'); A(f's_add_u32 s19, s19, {2*ti}'); A('s_lshl_b32 s19, s19, 5')
            mnf_addr(A, 13, None, 's19')
            wait_words(A, 13, 11, fail, sleep=16)
    load_tiles(A, [(W(0), 0, 2*TS, range(14)), (W(1), TS, 3*TS, range(14)),
                   (W(2), 16*TS, 17*TS, range(14)), (W(3), 18*TS, 19*TS, range(14))], pre=pre)
    A(f's_branch {Ld}')
    A.label(Lw3)
    W = lambda tl: (lambda p: 256 + (tl*14+p)*8)
    load_tiles(A, [(W(0), 0, 2*TS, range(14)), (W(1), TS, 3*TS, range(14))], pre=pre)
    A.label(Ld)

YL = 8192
def ucheck(A, fail, t0):
    Lr = A.newlabel('ur'); Lro = A.newlabel('uro')
    A('s_cmp_lt_u32 s20, s33'); A(f's_cbranch_scc1 {Lro}')
    A(f's_mov_b32 s30, {SPIN}')
    A.label(Lr)
    A('v_lshrrev_b32 v1, 2, v12')
    for hp in range(8):
        A(f's_add_u32 s22, s37, {hp*14*256}')
        A(f'buffer_load_dword {v(t0+hp)}, v1, s[4:7], s22 offen sc1')
    A('s_sub_u32 s30, s30, 1'); A('s_cmp_eq_u32 s30, 0'); A(f's_cbranch_scc1 {fail}')
    A('s_waitcnt vmcnt(0)')
    A(f'v_min3_u32 v0, {v(t0)}, {v(t0+1)}, {v(t0+2)}'); A(f'v_min3_u32 v0, v0, {v(t0+3)}, {v(t0+4)}')
    A(f'v_min3_u32 v0, v0, {v(t0+5)}, {v(t0+6)}'); A(f'v_min_u32 v0, v0, {v(t0+7)}')
    A('v_cmp_eq_u32 vcc, 0, v0')
    A('s_or_b32 s22, vcc_lo, vcc_hi')
    A('s_lshr_b32 s23, s22, 16'); A('s_or_b32 s22, s22, s23')
    A('s_lshr_b32 s23, s22, 8'); A('s_or_b32 s22, s22, s23')
    A('s_and_b32 s22, s22, 0xff'); A('s_or_b32 s22, s22, 0x100')
    A('s_ff1_i32_b32 s22, s22')
    A('s_lshl_b32 s33, s22, 3')
    A('s_cmp_lt_u32 s20, s33'); A(f's_cbranch_scc1 {Lro}')
    A('s_sleep 8')
    A(f's_branch {Lr}')
    A.label(Lro)

def ypack(A, ACC, T):
    for ct in range(2):
        for hpl in range(2):
            d = ACC + 4*(hpl*2+ct); t = T + 2*(hpl*2+ct)
            A(f'v_cvt_pk_bf16_f32 {v(t)}, {v(d)}, {v(d+1)}'); A(f'v_cvt_pk_bf16_f32 {v(t+1)}, {v(d+2)}, {v(d+3)}')
            A(f'ds_write_b32 v13, {v(t)} offset:{(ct*2+hpl)*1024}')
            A(f'ds_write_b32 v13, {v(t+1)} offset:{(ct*2+hpl)*1024+8}')

def gen_value(A, st, tag, fail, done, merged_u=False):
    L3 = f'va3_{tag}'
    A('s_cmp_eq_u32 s3, 3'); A(f's_cbranch_scc1 {L3}')
    ACC = 16; SL = [32 + 4*i for i in range(8)]
    W = lambda ti, p: 64 + (ti*14+p)*8
    Lloop = f'va_loop_{tag}'
    A('s_mov_b32 s20, 0')
    A.label(Lloop)
    step_addr(A)
    for k in range(8): A(f'v_mov_b64 {v(ACC+2*k,2)}, 0')
    poll_mem(A, [SL[4], SL[6]][:VMSETS], fail)
    Q = Lds(A)
    slot = {}; free = [0, 1, 2, 3]; nxt = [0]
    def rd():
        p = nxt[0]
        if p > 13 or not free: return
        sl = free.pop(0); slot[p] = sl; nxt[0] += 1
        Q.op(('r', p), f'ds_read_b128 {v(SL[sl],4)}, v8 offset:{p*512}')
    for _ in range(4): rd()
    for p in range(14):
        Q.need(('r', p))
        for ti in range(4): smf(A, ACC+4*ti, SL[slot[p]], W(ti, p))
        free.append(slot[p]); rd()
    A.nop(8)
    ypack(A, ACC, SL[0])
    stamp(A, 2)
    A('s_waitcnt lgkmcnt(0)')
    A('s_barrier')
    A('s_barrier')
    stamp_flush(A, 8, 0, 1)
    A('s_add_u32 s20, s20, 1')
    A(f's_cmp_lt_u32 s20, {NSTEP}')
    A(f's_cbranch_scc1 {Lloop}')
    A(f's_branch {done}')
    A.label(L3)
    ACC = 16; SL = [32 + 4*i for i in range(4)]; TM = [48, 56, 64, 72]
    PS = [32, 80]
    UB = lambda hp, ct: 128 + (hp*2+ct)*8
    W = lambda ti, p: 256 + (ti*14+p)*8
    YB = lambda e, ct: 480 + (e*2+ct)*8
    Lloop = f'va3_loop_{tag}'
    A('s_mov_b32 s20, 0')
    A.label(Lloop)
    step_addr(A)
    for k in range(8): A(f'v_mov_b64 {v(ACC+2*k,2)}, 0')
    if merged_u: ucheck(A, fail, 80)
    poll_mem(A, [80, 88][:VMSETS], fail)
    Q = Lds(A)
    slot = {}; free = [0, 1, 2, 3]; nxt = [0]
    def rd():
        p = nxt[0]
        if p > 13 or not free: return
        sl = free.pop(0); slot[p] = sl; nxt[0] += 1
        Q.op(('r', p), f'ds_read_b128 {v(SL[sl],4)}, v8 offset:{p*512}')
    def ldsw(n):
        if n > 27: return
        t = TM[n % 4]
        Q.op(('wa', n), f'ds_read_b128 {v(t,4)}, v11 offset:{n*2048}')
        Q.op(('wb', n), f'ds_read_b128 {v(t+4,4)}, v11 offset:{n*2048+1024}')
    for _ in range(3): rd()
    for n in range(4): ldsw(n)
    rd()
    uq = []
    for hp in range(8):
        uq.append(f's_add_u32 s23, s36, {hp*14*4096}')
        for j in range(4): uq.append(f'buffer_load_dwordx4 {v(UB(hp,0)+4*j,4)}, v12, s[4:7], s23 offen offset:{j*1024}')
    for p in range(14):
        Q.need(('r', p))
        for ti in range(2):
            smf(A, ACC+4*ti, SL[slot[p]], W(ti, p))
            for _ in range(2):
                if uq: A(uq.pop(0))
        for ct in range(2):
            n = 2*p+ct
            Q.need(('wb', n))
            smf(A, ACC+8+4*ct, SL[slot[p]], TM[n % 4])
            ldsw(n+4)
        free.append(slot[p]); rd()
    assert not uq
    if not DBG_U0: A(f's_add_u32 s36, s36, {16*28*1024}')
    A.nop(8)
    ypack(A, ACC, SL[0])
    stamp(A, 2)
    A('s_waitcnt lgkmcnt(0)')
    A('s_barrier')
    for e in range(2):
        for ct in range(2):
            for u in range(2):
                A(f'ds_read_b128 {r(YB(e,ct)+4*u,4)}, v12 offset:{YL+((e*2+ct)*2+u)*1024}')
    D = [ACC, ACC+4]
    for kk in range(4): A(f'v_mov_b64 {v(ACC+2*kk,2)}, 0')
    wait_flag(A, 7, 's47', 's44', [PS[0]+k for k in range(4)], fail, 3)
    stamp(A, 6)
    if PROFILE: A('s_mov_b32 s64, 0')
    A('s_waitcnt lgkmcnt(0)')
    A('s_add_u32 s22, s26, 4096'); A('s_add_u32 s23, s26, 8192')
    A('s_add_u32 s18, s45, 4096'); A('s_add_u32 s19, s45, 8192')
    def issue(k):
        so = ('s26', 's22', 's23') if k == 0 else ('s45', 's18', 's19')
        for i in range(10):
            A(f'buffer_load_dwordx4 {v(PS[k]+4*i,4)}, v12, s[4:7], {so[i//4]} offen offset:{(i%4)*1024} sc1')
    L = A.newlabel('pp'); Lf = A.newlabel('ppf')
    def attempt(k, younger):
        Lskip = A.newlabel('ps'); b = PS[k]
        if EWMI < 0: store_flag(A, 6, 's40', st, 1); younger += 1
        A(f's_waitcnt vmcnt({younger+9})')
        if PROFILE: A('s_add_u32 s64, s64, 1')
        A(f'v_or3_b32 v0, {v(b)}, {v(b+1)}, {v(b+2)}'); A(f'v_or_b32 v0, v0, {v(b+3)}')
        A('v_and_b32 v1, 0x80008000, v0')
        A('v_cmp_ne_u32 vcc, 0, v1')
        A(f's_cbranch_vccnz {Lskip}')
        for i in range(10):
            x = b+4*i
            if i: A(f's_waitcnt vmcnt({younger+9-i})')
            for ct in range(2):
                smf(A, D[ct], x, UB(i, ct) if i < 8 else YB(i-8, ct))
                if i: A(f'v_or3_b32 v0, v0, {v(x+2*ct)}, {v(x+2*ct+1)}')
            if i == EWMI: store_flag(A, 6, 's40', st, 1); younger += 1
        A('v_and_b32 v0, 0x80008000, v0')
        A('v_cmp_ne_u32 vcc, 0, v0')
        A(f's_cbranch_vccz {Lf}')
        A.nop(6)
        for kk in range(4): A(f'v_mov_b64 {v(ACC+2*kk,2)}, 0')
        A('s_waitcnt vmcnt(0)')
        A.label(Lskip)
        A(f's_waitcnt vmcnt({younger-1 if EWMI >= 0 else 0})')
    A(f's_mov_b32 s30, {SPIN}')
    if RING:
        so = ('s26', 's22', 's23'); b = PS[0]
        ld = lambda i: A(f'buffer_load_dwordx4 {v(b+4*i,4)}, v12, s[4:7], {so[i//4]} offen offset:{(i%4)*1024} sc1')
        A('s_mov_b32 s18, 0')
        for i in range(10):
            ld(i)
            if RSP: A.nop(RSP)
        A.label(L)
        for i in range(10):
            x = b+4*i; Ln = A.newlabel('rn')
            A('s_waitcnt vmcnt(9)')
            A(f'v_or3_b32 v0, {v(x)}, {v(x+1)}, {v(x+2)}')
            A(f'v_or_b32 v0, v0, {v(x+3)}')
            A(f's_bitcmp1_b32 s18, {i}')
            A(f's_cbranch_scc1 {Ln}')
            A('v_and_b32 v0, 0x80008000, v0')
            A('v_cmp_ne_u32 vcc, 0, v0')
            A(f's_cbranch_vccnz {Ln}')
            for ct in range(2): smf(A, D[ct], x, UB(i, ct) if i < 8 else YB(i-8, ct))
            Lnf = A.newlabel('rf')
            A('s_cmp_lg_u32 s18, 0'); A(f's_cbranch_scc1 {Lnf}')
            store_flag(A, 6, 's40', st, 1)
            A(f's_bitset1_b32 s18, {i}')
            A(f's_branch {Ln}x')
            A.label(Lnf)
            A(f's_bitset1_b32 s18, {i}')
            A('s_cmp_eq_u32 s18, 0x3ff'); A(f's_cbranch_scc1 {Lf}')
            A.label(Ln)
            ld(i)
            A.label(Ln+'x')
    elif PSETS == 2:
        issue(0)
        A.nop(STAGP)
        A.label(L)
        issue(1); attempt(0, 10)
        issue(0); attempt(1, 10)
    else:
        pass
    if RING or PSETS == 2:
        A('s_sub_u32 s30, s30, 1')
        A('s_cmp_lg_u32 s30, 0')
        A(f's_cbranch_scc1 {L}')
        A(f's_branch {fail}')
    else:
        b = PS[0]; Lq = A.newlabel('pq'); Ll = A.newlabel('pl')
        A.label(L)
        issue(0)
        store_flag(A, 6, 's40', st, 1)
        A('s_waitcnt vmcnt(10)')
        if PROFILE: A('s_add_u32 s64, s64, 1')
        A(f'v_or3_b32 v0, {v(b)}, {v(b+1)}, {v(b+2)}'); A(f'v_or_b32 v0, v0, {v(b+3)}')
        A('v_and_b32 v1, 0x80008000, v0')
        A('v_cmp_ne_u32 vcc, 0, v1')
        A(f's_cbranch_vccnz {Lq}')
        for i in range(10):
            x = b+4*i
            if i: A(f's_waitcnt vmcnt({10-i})')
            for ct in range(2):
                smf(A, D[ct], x, UB(i, ct) if i < 8 else YB(i-8, ct))
                if i: A(f'v_or3_b32 v0, v0, {v(x+2*ct)}, {v(x+2*ct+1)}')
        A('v_and_b32 v0, 0x80008000, v0')
        A('v_cmp_ne_u32 vcc, 0, v0')
        A(f's_cbranch_vccnz {Ll}')
        def ool():
            A.label(Ll)
            A.nop(6)
            for kk in range(4): A(f'v_mov_b64 {v(ACC+2*kk,2)}, 0')
            A.label(Lq)
            A('s_waitcnt vmcnt(0)')
            A('s_sub_u32 s30, s30, 1'); A('s_cmp_lg_u32 s30, 0'); A(f's_cbranch_scc1 {L}')
            A(f's_branch {fail}')
        OOL.append(ool)
    A.label(Lf)
    stamp(A, 3)
    A.nop(5)
    for ct in range(2):
        A(f'v_permlane32_swap_b32 {v(D[ct])}, {v(D[ct]+1)}'); A(f'v_permlane32_swap_b32 {v(D[ct]+2)}, {v(D[ct]+3)}')
    for t in range(2):
        for ct in range(2): A(f'v_add_f32 {v(D[ct]+2*t)}, {v(D[ct]+2*t)}, {v(D[ct]+2*t+1)}')
    O = ACC+8
    for t in range(2): A(f'v_cvt_pk_bf16_f32 {v(O+t)}, {v(D[0]+2*t)}, {v(D[1]+2*t)}')
    for t in range(2): A(f'v_min_u32 {v(O+t)}, 0xfffffffe, {v(O+t)}')
    def mstore(reg2, so, fl):
        for t in range(2): A(f'buffer_store_dword {v(reg2[t])}, v15, s[4:7], {so} offen offset:{32*t}{fl}')
    mstore([O, O+1], 's28', st)
    A('s_add_u32 s28, s28, 8192')
    mstore([O, O+1], 's28', st)
    stamp(A, 4); stamp(A, 5)
    A('s_barrier')
    A(f'v_mov_b32 {v(O+2)}, -1')
    mstore([O+2, O+2], 's29', st)
    A('s_add_u32 s29, s29, 8192')
    mstore([O+2, O+2], 's29', st)
    mstore([O, O+1], 's39', st)
    Lnx = A.newlabel('vnx')
    if merged_u:
        A(f's_cmp_lg_u32 s20, {NSTEP-1}'); A(f's_cbranch_scc1 {Lnx}')
        A(f's_mov_b32 s22, {MEMG2+63*8192}')
        mstore([O, O+1], 's22', ' sc1')
    A.label(Lnx)
    stamp_flush(A, 8, 0, 1)
    A('s_add_u32 s39, s39, 8192')
    A('s_add_u32 s20, s20, 1')
    A(f's_cmp_lt_u32 s20, {NSTEP}')
    A(f's_cbranch_scc1 {Lloop}')
    A(f's_branch {done}')

def value_setup(A, fail=None):
    TS = 14*1024; HS = 28*TS
    A(f's_mul_i32 s18, s3, {4*HS}')
    A(f's_mul_i32 s22, s17, {2*TS}')
    A('s_add_u32 s18, s18, s22')
    A(f's_add_u32 s18, s18, {NC}')
    A('v_lshlrev_b32 v12, 4, v0')
    if fail:
        A('s_lshl_b32 s19, s3, 2'); A('s_add_u32 s19, s19, 16'); A('s_lshl_b32 s19, s19, 3'); A('s_lshr_b32 s22, s17, 1'); A('s_add_u32 s19, s19, s22'); A('s_lshl_b32 s19, s19, 5')
        A('v_bfe_u32 v11, v0, 3, 2')
        mnf_addr(A, 13, 11, 's19')
        wait_words(A, 13, 11, fail, sleep=16)
    off = lambda ti: ((2*(ti >> 1))*HS+(ti & 1)*TS, (2*(ti >> 1)+1)*HS+(ti & 1)*TS)
    Lw3 = A.newlabel('vw3'); Ld = A.newlabel('vwd')
    A('s_cmp_eq_u32 s3, 3'); A(f's_cbranch_scc1 {Lw3}')
    load_tiles(A, [((lambda p, ti=ti: 64 + (ti*14+p)*8), *off(ti), range(14)) for ti in range(4)])
    A(f's_branch {Ld}')
    A.label(Lw3)
    A(f'v_add_u32 v14, {WL}, v12')
    def post(g):
        if g < 256:
            n = (g-32)//8; ct, p = n // 14, n % 14
            A(f'ds_write_b128 v14, {v(g,4)} offset:{(p*2+ct)*2048}')
            A(f'ds_write_b128 v14, {v(g+4,4)} offset:{(p*2+ct)*2048+1024}')
    load_tiles(A, [((lambda p, ct=ct: 32 + (ct*14+p)*8), *off(2+ct), range(14)) for ct in range(2)] +
                  [((lambda p, ti=ti: 256 + (ti*14+p)*8), *off(ti), range(14)) for ti in range(2)], post)
    A('s_waitcnt lgkmcnt(0)')
    A.label(Ld)
    A('s_lshr_b32 s22, s3, 1'); A('s_lshl_b32 s22, s22, 12'); A('s_and_b32 s23, s3, 1'); A('s_lshl_b32 s23, s23, 2'); A('s_add_u32 s22, s22, s23')
    A(f's_add_u32 s22, s22, {YL}'); A('v_add_u32 v13, s22, v12')
    A('v_and_b32 v11, 15, v0'); A('v_lshlrev_b32 v7, 2, v11')
    if SSF: A('v_mov_b32 v7, 0')
    A('v_and_b32 v11, 12, v0'); A('v_lshlrev_b32 v15, 5, v11')
    A('v_and_b32 v11, 3, v0'); A('v_lshl_add_u32 v15, v11, 2, v15')
    A('v_and_b32 v11, 16, v0'); A('v_lshl_add_u32 v15, v11, 2, v15')
    A('v_lshrrev_b32 v11, 5, v0'); A('v_lshl_add_u32 v15, v11, 4, v15')
    A('s_lshl_b32 s23, s17, 9'); A('v_add_u32 v15, s23, v15')
    A('s_lshl_b32 s23, s17, 2'); A('v_lshlrev_b32 v6, 7, v0'); A('v_add_u32 v6, s23, v6')
    A('s_lshl_b32 s36, s17, 12'); A(f's_add_u32 s36, s36, {UF}')
    A(f's_mov_b32 s39, {MEMG+8192}')

def value_setup2(A):
    A('s_mov_b32 s33, 0')
    A('s_lshl_b32 s37, s17, 8'); A(f's_add_u32 s37, s37, {UFL}')
    A(f'v_add_u32 v11, {WL}, v12')

def mode_exchange(A, va=8, vb=9):
    srd(A, 8, 96, 256)
    A('s_getreg_b32 s12, hwreg(HW_REG_XCC_ID)')
    A('s_and_b32 s12, s12, 15')
    A('s_add_u32 s12, s12, 1')
    A(f'v_mov_b32 {v(va)}, s12')
    A('s_lshl_b32 s13, s15, 2')
    A(f'v_mov_b32 {v(vb)}, s13')
    A('s_waitcnt lgkmcnt(0)')
    A(f'buffer_store_dword {v(va)}, {v(vb)}, s[8:11], 0 offen sc1')

def mode_gather(A, fail):
    A(f'v_min_u32 v1, {NROLE-1}, v0')
    A('v_lshlrev_b32 v1, 2, v1')
    L = A.newlabel('mg')
    A(f's_mov_b32 s30, {SPIN}')
    A.label(L)
    A('buffer_load_dword v11, v1, s[8:11], 0 offen sc1')
    A('s_sub_u32 s30, s30, 1')
    A('s_cmp_eq_u32 s30, 0')
    A(f's_cbranch_scc1 {fail}')
    A('s_waitcnt vmcnt(0)')
    A('v_cmp_eq_u32 vcc, 0, v11')
    A(f's_cbranch_vccnz {L}')
    A('v_cmp_ne_u32 vcc, s12, v11')
    A('s_cmp_eq_u64 vcc, 0')
    A('s_cselect_b32 s14, 1, 0')

def gen_forwarders(A, fail, done):
    A('s_sub_u32 s17, s15, 30'); A('s_lshl_b32 s17, s17, 2'); A('s_add_u32 s17, s17, s3')
    A('v_lshlrev_b32 v6, 7, v0')
    A('v_lshlrev_b32 v12, 4, v0')
    A('s_cmp_lg_u32 s17, 0')
    A('s_cbranch_scc1 fw_pf')
    A('s_mov_b32 s20, 1')
    A(f's_mov_b32 s22, {HINT}')
    A.label('fw_m_loop')
    A('s_lshl_b32 s24, s20, 13'); A(f's_add_u32 s26, s24, {MEMG2}'); A(f's_add_u32 s24, s24, {MEMG}')
    A('s_add_u32 s25, s24, 4096'); A('s_add_u32 s27, s26, 4096')
    A(f's_mov_b32 s30, {SPIN*4}')
    A.label('fw_m_poll')
    for j in range(7):
        A(f'buffer_load_dwordx4 {v(16+4*j,4)}, v12, s[4:7], {"s24" if j < 4 else "s25"} offen offset:{(j%4)*1024} sc1')
    A('s_sub_u32 s30, s30, 1'); A('s_cmp_eq_u32 s30, 0'); A(f's_cbranch_scc1 {fail}')
    A('s_waitcnt vmcnt(0)')
    A('v_max_u32 v1, v16, v17')
    for j in range(1, 14): A(f'v_max3_u32 v1, v1, {v(16+2*j)}, {v(17+2*j)}')
    A('v_cmp_eq_u32 vcc, -1, v1')
    A('s_cbranch_vccz fw_m_ok')
    A('s_sleep 2')
    A('s_branch fw_m_poll')
    A.label('fw_m_ok')
    for j in range(7):
        A(f'buffer_store_dwordx4 {v(16+4*j,4)}, v12, s[4:7], {"s26" if j < 4 else "s27"} offen offset:{(j%4)*1024} sc1')
    A('s_waitcnt vmcnt(0)')
    A('v_mov_b32 v1, s20'); A('s_mov_b64 exec, 0xffff')
    A('buffer_store_dword v1, v6, s[4:7], s22 offen sc1'); A('s_mov_b64 exec, -1')
    A('s_add_u32 s20, s20, 1'); A('s_cmp_lt_u32 s20, 64'); A('s_cbranch_scc1 fw_m_loop')
    A(f's_branch {done}')
    A.label('fw_pf')
    if not PREF: A(f's_branch {done}')
    A('s_cmp_lg_u32 s17, 4'); A(f's_cbranch_scc1 {done}')
    A('v_mov_b32 v13, 0')
    wait_words(A, 13, 11, fail, srd_='s[8:11]', cnt='s30', ln=(14, 16), sleep=16)
    A(f's_mov_b32 s30, {SPIN*4}')
    A('s_mov_b32 s20, 0')
    A('v_mov_b32 v7, 0')
    A.label('fw_pf_loop')
    A('s_mov_b64 exec, 1')
    A('buffer_load_dword v16, v7, s[4:7], s46 offen sc1')
    A('s_mov_b64 exec, -1')
    A('s_waitcnt vmcnt(0)')
    A('v_readfirstlane_b32 s21, v16')
    A('s_cmp_ge_u32 s20, 63'); A(f's_cbranch_scc1 {done}')
    A(f's_add_u32 s22, s21, {PREF}')
    A('s_cmp_gt_u32 s20, s22'); A('s_cbranch_scc1 fw_pf_idle')
    A('s_mul_i32 s24, s20, 28672'); A(f's_add_u32 s24, s24, {XNS}')
    for j in range(7):
        for sub in range(4): A(f'buffer_load_dwordx4 {v(16+4*sub,4)}, v12, s[4:7], s24 offen offset:{sub*1024}')
        A('s_add_u32 s24, s24, 4096')
    A('s_add_u32 s20, s20, 1')
    A('s_branch fw_pf_loop')
    A.label('fw_pf_idle')
    A('s_sleep 8')
    A('s_sub_u32 s30, s30, 1'); A('s_cmp_eq_u32 s30, 0'); A(f's_cbranch_scc1 {done}')
    A('s_branch fw_pf_loop')

def gen_chain_body(A, fail, done, merged=False, fused=False):
    if fused:
        import p0
        def after_flags():
            A('s_waitcnt vmcnt(0)'); A('s_barrier')
            mode_exchange(A, 16, 17)
        p0.ph_init(A, after_flags)
        A('s_waitcnt vmcnt(0)')
        A('s_barrier')
        A('v_mov_b32 v16, 1'); A('s_add_u32 s13, s13, 128'); A('v_mov_b32 v17, s13')
        A('buffer_store_dword v16, v17, s[8:11], 0 offen sc1')
        tstamp(A, 3, 12, 13)
        A('s_cmp_lg_u32 s3, 3'); A('s_cbranch_scc1 ch_noln')
        A('s_cmp_ge_u32 s15, 16'); A('s_cbranch_scc1 ch_noln')
        srd(A, 36, 0, 2048*448*2)
        A('s_add_u32 s32, s15, 112')
        def wi():
            A('v_and_b32 v5, 31, v0'); A('v_lshlrev_b32 v5, 2, v5')
            wait_words(A, 5, 1, fail, srd_='s[8:11]')
        p0.ph_ln(A, 32, wi, xsrd='s[36:39]', barrier=False)
        A.label('ch_noln')
    else: mode_exchange(A)
    common_setup(A)
    stamp_init(A)
    mode_gather(A, fail)
    A('v_lshlrev_b32 v1, 4, v0')
    def wait_ring(va, vd, ln=None):
        if not fused: return
        A(f'v_and_b32 {v(va)}, 31, v0'); A(f'v_lshlrev_b32 {v(va)}, 2, {v(va)}'); A(f'v_add_u32 {v(va)}, 128, {v(va)}')
        wait_words(A, va, vd, fail, srd_='s[8:11]', cnt='s30', ln=ln)
    if merged:
        A('s_cmp_lt_u32 s15, 30'); A('s_cbranch_scc1 ch_main')
        wait_ring(13, 11)
        gen_forwarders(A, fail, done)
        A.label('ch_main')
    A('s_cmp_ge_u32 s15, 16')
    A('s_cbranch_scc1 ch_value')
    A('s_mov_b32 s17, s15')
    score_weights(A, fail if fused else None)
    x_addrs(A)
    wait_ring(13, 11, ln=(12, 14))
    tstamp(A, 1, 12, 13)
    A('s_cmp_eq_u32 s14, 0')
    A('s_cbranch_scc1 ch_score_slow')
    gen_score(A, '', 'f', fail, done); flush_ool(A)
    A.label('ch_score_slow')
    gen_score(A, ' sc1', 's', fail, done); flush_ool(A)
    A.label('ch_value')
    A('s_sub_u32 s17, s15, 16')
    value_setup(A, fail if fused else None)
    wait_ring(16, 17)
    tstamp(A, 1, 16, 17)
    value_setup2(A)
    tstamp(A, 2, 16, 17)
    A('s_cmp_eq_u32 s14, 0')
    A('s_cbranch_scc1 ch_value_slow')
    gen_value(A, '', 'f', fail, done, merged); flush_ool(A)
    A.label('ch_value_slow')
    gen_value(A, ' sc1', 's', fail, done, merged); flush_ool(A)

def gen_k3(A):
    A.label('k3_kernel')
    A('s_and_b32 s15, s2, 7')
    A('s_cmp_lg_u32 s15, 0')
    A('s_cbranch_scc1 k3_end')
    A('s_lshr_b32 s15, s2, 3')
    A('s_cmp_ge_u32 s15, 30')
    A('s_cbranch_scc1 k3_end')
    prologue(A)
    gen_chain_body(A, 'k3_end', 'k3_end')
    A.label('k3_end')
    A('s_endpgm')
    return dict(name='k3_kernel', grid=256, block=256, lds=CHAIN_LDS, vgpr=256, sgpr=72, agpr=256)
```

```python
from asmlib import *
from layout import *
from k1 import sdivmod, srd, SZ_X
from wk import prologue, load_frags, silu_bf, f2u, LOG2E, tstamp

RS = 272
SPIN = 400000

def spin_wait(A, issue, ok_cmp, fail, sleep=2, backoff=None):
    L = A.newlabel('sw'); Lok = A.newlabel('swo')
    A(f's_mov_b32 s30, {SPIN}')
    A.label(L)
    issue()
    A('s_waitcnt vmcnt(0)')
    ok_cmp()
    A(f's_cbranch_vccz {Lok}')
    if sleep: A(f's_sleep {sleep}')
    if backoff:
        Lb = A.newlabel('swb')
        A(f's_cmp_gt_u32 s30, {SPIN-backoff[0]}'); A(f's_cbranch_scc1 {Lb}')
        A(f's_sleep {backoff[1]}')
        A.label(Lb)
    A('s_sub_u32 s30, s30, 1')
    A('s_cmp_lg_u32 s30, 0')
    A(f's_cbranch_scc1 {L}')
    A(f's_branch {fail}')
    A.label(Lok)

def wait_hint(A, need, fail, base=HINT, bsel=None):
    L = A.newlabel('wh'); Lok = A.newlabel('who'); Lsh = A.newlabel('whs')
    A('s_and_b32 s28, s96, 15'); A('s_lshl_b32 s28, s28, 7'); A(f's_add_u32 s28, s28, {base}')
    if bsel is not None: A(f's_lshl_b32 s29, {s(bsel)}, 11'); A('s_add_u32 s28, s28, s29')
    A('v_mov_b32 v5, 0')
    A(f's_mov_b32 s30, {SPIN}')
    A.label(L)
    A('s_mov_b64 exec, 1')
    A('buffer_load_dword v4, v5, s[4:7], s28 offen sc1')
    A('s_mov_b64 exec, -1')
    A('s_waitcnt vmcnt(0)')
    A('v_readfirstlane_b32 s29, v4')
    A(f's_cmp_ge_u32 s29, {s(need)}')
    A(f's_cbranch_scc1 {Lok}')
    A('s_add_u32 s29, s29, 2')
    A(f's_cmp_ge_u32 s29, {s(need)}')
    A(f's_cbranch_scc1 {Lsh}')
    A('s_sleep 48')
    A.label(Lsh)
    A('s_sleep 6')
    A('s_sub_u32 s30, s30, 1')
    A('s_cmp_lg_u32 s30, 0')
    A(f's_cbranch_scc1 {L}')
    A(f's_branch {fail}')
    A.label(Lok)

def phase_f2(A, item, st=''):
    sdivmod(A, 16, 17, item, 7, 224)
    ACC = 0
    ACC = 192
    HA = [[(8 + (rt*14+k)*4) if (8+(rt*14+k)*4) < 192 else None for k in range(14)] for rt in range(4)]
    AFR = lambda rt, k: 256 + (rt*14+k)*4
    BFR = lambda T, k: (8 + (T*7+k)*4)
    BF2 = lambda T, k: (120 + (T*7+k)*4) if (120+(T*7+k)*4) < 192 else (480 + (T*7+k-18)*4 if (T*7+k-18) < 8 else None)
    K1_, K2_ = 8, 6
    K1_, K2_ = 9, 5
    A(f's_mul_i32 s18, s16, {4*56*1024}')
    A(f's_mul_i32 s19, s3, {14*1024}')
    A('s_add_u32 s18, s18, s19')
    A(f's_add_u32 s18, s18, {HF}')
    A(f's_mul_i32 s21, s17, {4*56*1024}')
    A('s_add_u32 s21, s21, s19')
    A(f's_add_u32 s21, s21, {W2F}')
    BA = lambda T, k: 8 + (T*7+k)*4
    def BB(T, k):
        i = T*7+k
        return 120 + 4*i if i < 18 else (480 + 4*(i-18) if i < 26 else 8 + 4*(i-26))
    for T in range(4):
        A(f's_add_u32 s22, s21, {T*56*1024}')
        load_frags(A, [BA(T, k) for k in range(7)], 22, 20)
    for rt in range(4):
        A(f's_add_u32 s22, s18, {rt*56*1024}')
        load_frags(A, [AFR(rt, k) for k in range(14)], 22, 20)
    late = []
    for T in range(4):
        A(f's_add_u32 s22, s21, {T*56*1024+7*1024}')
        regs = [BB(T, k) for k in range(7)]
        if T == 3: regs = regs[:5]
        load_frags(A, regs, 22, 20)
    A('s_waitcnt vmcnt(26)')
    for k in range(7):
        for rt in range(4):
            for T in range(4):
                d = ACC + (rt*4+T)*4
                A(f'v_mfma_f32_16x16x32_bf16 {v(d,4)}, {r(AFR(rt,k),4)}, {r(BA(T,k),4)}, {"0" if k == 0 else v(d,4)}')
        if k == 2:
            A(f's_add_u32 s22, s21, {3*56*1024+12*1024}')
            load_frags(A, [BB(3, 5), BB(3, 6)], 22, 20)
    A('s_waitcnt vmcnt(0)')
    for k in range(7):
        for rt in range(4):
            for T in range(4):
                d = ACC + (rt*4+T)*4
                A(f'v_mfma_f32_16x16x32_bf16 {v(d,4)}, {r(AFR(rt,k+7),4)}, {r(BB(T,k),4)}, {v(d,4)}')
    A.nop(8)
    A('v_lshrrev_b32 v2, 4, v0'); A(f'v_mul_u32_u24 v2, {4*RS}, v2')
    A('v_and_b32 v3, 15, v0'); A('v_lshl_add_u32 v2, v3, 3, v2')
    A(f's_mul_i32 s22, s3, {64*RS}'); A('v_add_u32 v2, s22, v2')
    A('s_barrier')
    for rt in range(4):
        A(f'v_add_u32 v3, {rt*16*RS}, v2')
        for rr in range(4):
            for m in range(2):
                d0 = ACC + (rt*4+2*m)*4 + rr; d1 = d0 + 4
                o = (rr*RS + m*128)//4
                A(f'ds_write2_b32 v3, {v(d0)}, {v(d1)} offset0:{o} offset1:{o+1}')
    A('s_waitcnt lgkmcnt(0)')
    A('s_barrier')
    A('s_lshl_b32 s22, s3, 4')
    A('v_lshrrev_b32 v2, 2, v0'); A('v_add_u32 v2, s22, v2')
    A('v_and_b32 v3, 3, v0')
    A(f'v_mul_u32_u24 v4, {RS}, v2'); A('v_lshl_add_u32 v4, v3, 6, v4')
    for w in range(4):
        if w: A(f'v_add_u32 v4, {64*RS}, v4')
        for j in range(4): A(f'ds_read_b128 {v(8+16*w+4*j,4)}, v4 offset:{16*j}')
    A('v_mul_u32_u24 v5, 896, v2'); A('v_lshl_add_u32 v5, v3, 5, v5')
    A(f's_mul_i32 s22, s16, {64*896}'); A('s_lshl_b32 s23, s17, 7'); A('s_add_u32 s22, s22, s23'); A(f's_add_u32 s22, s22, {GF}')
    A('s_waitcnt lgkmcnt(0)')
    for j in range(8):
        A(f'v_pk_add_f32 {v(8+2*j,2)}, {v(8+2*j,2)}, {v(24+2*j,2)}')
        A(f'v_pk_add_f32 {v(40+2*j,2)}, {v(40+2*j,2)}, {v(56+2*j,2)}')
        A(f'v_pk_add_f32 {v(8+2*j,2)}, {v(8+2*j,2)}, {v(40+2*j,2)}')
    for j in range(8):
        a_, b_ = 8+2*j, 9+2*j
        A(f'v_cvt_pk_bf16_f32 v6, {v(a_)}, {v(b_)}')
        A(f'v_lshlrev_b32 {v(a_)}, 16, v6'); A(f'v_and_b32 {v(b_)}, 0xffff0000, v6')
        silu_bf(A, a_, 72); silu_bf(A, b_, 73)
        A(f'v_cvt_pk_bf16_f32 {v(80+j)}, {v(a_)}, {v(b_)}')
    A(f'buffer_store_dwordx4 v[80:83], v5, s[4:7], s22 offen{st}')
    A(f'buffer_store_dwordx4 v[84:87], v5, s[4:7], s22 offen offset:16{st}')

S_STG = 28*1024
def phase_s(A, h_s, qs_s, fail, sync):
    st = ' sc1' if sync else ''
    XP = lambda tt, kk: 256 + (tt*14+kk)*4
    XN = lambda kt, kk: 368 + (kt*14+kk)*4
    TF = lambda P, tt: 144 + (P*2+tt)*4
    DT = 16
    DS = {(0, 0): 32, (0, 1): 36, (1, 1): 40}
    DM = [44, 48]
    WB = [56 + 4*i for i in range(14)]
    A(f's_lshl_b32 s16, {s(qs_s)}, 2'); A('s_add_u32 s16, s16, s3')
    A(f's_mul_i32 s17, s16, {28*1024}')
    A(f's_add_u32 s18, s17, {XNP}')
    if XNF: A(f's_add_u32 s17, s17, {XNF}')
    A(f's_mul_i32 s19, {s(h_s)}, {28*14*1024}')
    A(f's_mul_i32 s21, s3, {7*1024}')
    A('s_add_u32 s19, s19, s21')
    A(f's_add_u32 s19, s19, {MC}')
    NB = 4
    def dma(P):
        for half in range(2):
            A(f's_add_u32 s22, s21, {(P % NB)*S_STG + half*4096}')
            A('s_mov_b32 m0, s22')
            A(f's_add_u32 s23, s19, {P*S_STG + half*4096}')
            for j in range(4 if half == 0 else 3):
                A(f'buffer_load_dwordx4 v1, s[4:7], s23 offen offset:{j*1024} lds')
    A('s_barrier')
    for P in range(3): dma(P)
    load_frags(A, [XP(tt, kk) for tt in range(2) for kk in range(14)], 18, 20)
    load_frags(A, [XN(kt, kk) for kt in range(2) for kk in range(14)], 17, 20)
    for P in range(14):
        if P == 0: A('s_waitcnt vmcnt(0)')
        else:
            later = sum(7 for x in range(P+1, min(P+3, 14)) if x >= 3)
            A(f's_waitcnt vmcnt({later if P >= 3 else 63})') if P >= 3 else None
        A('s_barrier')
        if P+3 < 14: dma(P+3)
        base = (P % NB)*S_STG
        if base >= 32768:
            A(f'v_add_u32 v2, {base}, v1'); ar, ab = 'v2', 0
        else: ar, ab = 'v1', base
        for e in range(2):
            for kk in range(14):
                A(f'ds_read_b128 {v(WB[kk],4)}, {ar} offset:{ab + (e*14+kk)*1024}')
            for kk in range(14):
                A(f's_waitcnt lgkmcnt({13-kk})')
                for tt in range(2):
                    d = DT + (e*2+tt)*4
                    A(f'v_mfma_f32_16x16x32_bf16 {v(d,4)}, {v(WB[kk],4)}, {r(XP(tt,kk),4)}, {"0" if kk == 0 else v(d,4)}')
        A.nop(8)
        for tt in range(2):
            for rr in range(4):
                A(f'v_cvt_pk_bf16_f32 {v(TF(P,tt)+rr)}, {v(DT+tt*4+rr)}, {v(DT+8+tt*4+rr)}')
        A('s_nop 1')
        for (kt, tt), d in DS.items():
            A(f'v_mfma_f32_16x16x32_bf16 {v(d,4)}, {r(XN(kt,P),4)}, {v(TF(P,tt),4)}, {"0" if P == 0 else v(d,4)}')
    A('v_lshrrev_b32 v3, 4, v0'); A('v_lshlrev_b32 v2, 7, v3')
    A('v_and_b32 v4, 7, v0'); A('v_lshl_add_u32 v2, v4, 4, v2')
    A('s_lshl_b32 s17, s16, 13'); A(f's_add_u32 s17, s17, {MEMG2 if sync else MEMG}'); A('s_add_u32 s18, s17, 4096')
    def issue():
        for kk in range(14):
            A(f'buffer_load_dwordx4 {v(WB[kk],4)}, v2, s[4:7], {"s17" if kk < 8 else "s18"} offen offset:{(kk%8)*512}{st}')
    tstamp(A, 100, 4, 5, sreg=93)
    if sync:
        A('s_max_u32 s27, s16, 2'); A('s_sub_u32 s27, s27, 1')
        wait_hint(A, 27, fail)
        tstamp(A, 110, 4, 5, sreg=93)
        def chk():
            A(f'v_max_u32 v4, {v(WB[0])}, {v(WB[0]+1)}')
            for j in range(1, 28): A(f'v_max3_u32 v4, v4, {v(WB[0]+2*j)}, {v(WB[0]+2*j+1)}')
            A('v_cmp_eq_u32 vcc, -1, v4')
        spin_wait(A, issue, chk, fail, sleep=3)
    else:
        issue(); A('s_waitcnt vmcnt(0)')
    tstamp(A, 120, 4, 5, sreg=93)
    for kk in range(14):
        for tt in range(2):
            A(f'v_mfma_f32_16x16x32_bf16 {v(DM[tt],4)}, {v(WB[kk],4)}, {v(TF(kk,tt),4)}, {"0" if kk == 0 else v(DM[tt],4)}')
    A('v_and_b32 v4, 15, v0'); A('v_lshlrev_b32 v5, 2, v3'); A('v_sub_u32 v4, v4, v5')
    A('v_mov_b32 v5, 0xff800000')
    A.nop(6)
    for tt in range(2):
        d = DS[(tt, tt)]
        for rr in range(4):
            A(f'v_cmp_le_i32 vcc, {rr}, v4')
            A('s_nop 1')
            A(f'v_cndmask_b32 {v(d+rr)}, v5, {v(d+rr)}, vcc')
    A(f's_mov_b32 s31, 0x{f2u(LOG2E):08x}')
    def xred(reg, tmp, op):
        for sw in ('v_permlane16_swap_b32', 'v_permlane32_swap_b32'):
            A(f'v_mov_b32 {v(tmp)}, {v(reg)}'); A('s_nop 1')
            A(f'{sw} {v(reg)}, {v(tmp)}'); A('s_nop 0')
            A(f'{op} {v(reg)}, {v(reg)}, {v(tmp)}')
    A('v_and_b32 v6, 8, v0'); A('v_lshlrev_b32 v6, 7, v6')
    A('v_and_b32 v7, 7, v0'); A('v_lshl_add_u32 v6, v7, 4, v6')
    A('v_lshrrev_b32 v7, 1, v6') ; A('v_and_b32 v7, 0x200, v7'); A('v_and_b32 v8, 0x70, v6'); A('v_or_b32 v7, v7, v8')
    A('v_and_b32 v8, 1, v3'); A('v_lshl_add_u32 v7, v8, 7, v7')
    A('v_lshl_add_u32 v6, v8, 3, v6')
    A('v_lshrrev_b32 v8, 1, v3'); A('v_lshl_add_u32 v6, v8, 8, v6')
    A(f's_lshr_b32 s17, {s(h_s)}, 1'); A('s_lshl_b32 s18, s16, 3'); A('s_add_u32 s17, s17, s18'); A('s_lshl_b32 s17, s17, 12')
    A(f's_and_b32 s18, {s(h_s)}, 1'); A('s_lshl_b32 s19, s18, 7'); A('s_add_u32 s17, s17, s19'); A(f's_add_u32 s17, s17, {PXX}')
    A(f's_lshr_b32 s19, {s(h_s)}, 2'); A('s_lshl_b32 s21, s16, 2'); A('s_add_u32 s19, s19, s21'); A('s_lshl_b32 s19, s19, 11')
    A('s_lshl_b32 s18, s18, 3'); A('s_add_u32 s19, s19, s18')
    A(f's_and_b32 s18, {s(h_s)}, 2'); A('s_lshl_b32 s18, s18, 7'); A('s_add_u32 s19, s19, s18'); A(f's_add_u32 s19, s19, {PXM}')
    for tt in range(2):
        xs = [DS[(0, tt)]] + ([DS[(1, 1)]] if tt else [])
        vals = [DM[tt]+rr for rr in range(4)] + [d+rr for d in xs for rr in range(4)]
        A(f'v_max3_f32 v9, {v(vals[0])}, {v(vals[1])}, {v(vals[2])}')
        i = 3
        while i < len(vals):
            if i+1 < len(vals): A(f'v_max3_f32 v9, v9, {v(vals[i])}, {v(vals[i+1])}'); i += 2
            else: A(f'v_max_f32 v9, v9, {v(vals[i])}'); i += 1
        xred(9, 10, 'v_max_f32')
        A(f'v_mul_f32 v9, 0x{f2u(-LOG2E):08x}, v9')
        for x in vals: A(f'v_fma_f32 {v(x)}, {v(x)}, s31, v9')
        for x in vals: A(f'v_exp_f32 {v(x)}, {v(x)}')
        A('s_nop 0')
        A(f'v_add_f32 v9, {v(vals[0])}, {v(vals[1])}'); A(f'v_add_f32 v10, {v(vals[2])}, {v(vals[3])}')
        A('v_add_f32 v9, v9, v10'); A('v_mul_f32 v9, 0.5, v9')
        for x in vals[4:]: A(f'v_add_f32 v9, v9, {v(x)}')
        xred(9, 10, 'v_add_f32')
        A('v_rcp_f32 v9, v9'); A('s_nop 0')
        for x in vals: A(f'v_mul_f32 {v(x)}, {v(x)}, v9')
        for kt in range(2):
            if kt < len(xs):
                d = xs[kt]
                A(f'v_cvt_pk_bf16_f32 v12, {v(d)}, {v(d+1)}'); A(f'v_cvt_pk_bf16_f32 v13, {v(d+2)}, {v(d+3)}')
            else:
                A('v_mov_b32 v12, 0'); A('v_mov_b32 v13, 0')
            A(f'buffer_store_dwordx2 v[12:13], v6, s[4:7], s17 offen offset:{tt*2048+kt*512}{st}')
            A('s_nop 1')
        d = DM[tt]
        A(f'v_cvt_pk_bf16_f32 v14, {v(d)}, {v(d+1)}'); A(f'v_cvt_pk_bf16_f32 v15, {v(d+2)}, {v(d+3)}')
        A('s_mov_b32 exec_hi, 0')
        A(f'buffer_store_dwordx2 v[14:15], v7, s[4:7], s19 offen offset:{tt*1024}{st}')
        A('s_mov_b32 exec_hi, -1')
        A('s_nop 1')
    if sync:
        A('s_waitcnt vmcnt(0)')
        A('v_mov_b32 v12, 1')
        A('s_lshl_b32 s17, s16, 6'); A(f's_lshl_b32 s18, {s(h_s)}, 2'); A('s_add_u32 s17, s17, s18'); A(f's_add_u32 s17, s17, {PFL}')
        A('v_mov_b32 v13, 0')
        A('buffer_store_dword v12, v13, s[4:7], s17 offen sc1')

def phase_o(A, seg_s, b_s, fail, sync):
    ld = ''
    UB = lambda ml, hpl, ct: 16 + ((ml*2+hpl)*2+ct)*8
    YB = lambda ml, ct: 80 + (ml*2+ct)*4
    PX = lambda oc, hpl: 96 + (oc*2+hpl)*4
    PMr = lambda oc: 128 + oc*4
    ACC = lambda oc, ml, ct: 144 + ((oc*2+ml)*2+ct)*4
    XG = 208
    A('v_and_b32 v3, 8, v0'); A('v_cmp_eq_u32 vcc, 0, v3')
    A('v_mov_b32 v2, 0xeeee'); A('v_mov_b32 v3, 0x4444'); A('v_cndmask_b32 v2, v2, v3, vcc')
    A(f's_lshl_b32 s16, {s(seg_s)}, 3'); A('s_lshl_b32 s17, s3, 1'); A('s_add_u32 s16, s16, s17')
    A('s_mul_i32 s18, s16, 14'); A(f's_lshl_b32 s17, {s(b_s)}, 1'); A('s_add_u32 s18, s18, s17'); A('s_lshl_b32 s18, s18, 12')
    A(f's_add_u32 s18, s18, {UF}')
    for hpl in range(2):
        for ml in range(2):
            A(f's_add_u32 s19, s18, {(hpl*14+ml)*4096}')
            for j in range(4):
                A(f'buffer_load_dwordx4 {v(UB(ml,hpl,0)+4*j,4)}, v1, s[4:7], s19 offen offset:{j*1024}{ld}')
    A('s_lshl_b32 s22, s3, 3')
    A('v_lshrrev_b32 v4, 3, v0'); A('v_add_u32 v4, s22, v4')
    A('v_and_b32 v5, 7, v0')
    A('v_mul_u32_u24 v6, 896, v4'); A('v_lshl_add_u32 v6, v5, 4, v6')
    A(f's_mul_i32 s22, {s(seg_s)}, {32*896}'); A(f's_lshl_b32 s23, {s(b_s)}, 7'); A('s_add_u32 s22, s22, s23')
    A(f's_add_u32 s23, s22, {GF}')
    A(f'buffer_load_dwordx4 {v(XG,4)}, v6, s[8:11], s22 offen')
    A(f'buffer_load_dwordx4 {v(XG+4,4)}, v6, s[4:7], s23 offen{ld}')
    for k in range(32): A(f'v_mov_b64 {v(144+2*k,2)}, 0')
    for k in range(8): A(f'v_mov_b64 {v(128+2*k,2)}, 0')
    if sync:
        Lw = A.newlabel('ow')
        A('s_cmp_lg_u32 s3, 0'); A(f's_cbranch_scc1 {Lw}')
        A('v_mov_b32 v11, v4'); A('v_mov_b32 v12, v5')
        A(f's_and_b32 s27, {s(seg_s)}, 62')
        wait_hint(A, 27, fail)
        A('v_mov_b32 v4, v11'); A('v_mov_b32 v5, v12')
        A('v_and_b32 v7, 15, v0'); A('v_lshlrev_b32 v7, 2, v7')
        A(f's_lshl_b32 s19, {s(seg_s)}, 6'); A(f's_add_u32 s19, s19, {PFL}'); A('v_add_u32 v7, s19, v7')
        A('v_mov_b32 v8, 1')
        A(f's_lshr_b32 s19, {s(seg_s)}, 1'); A('s_mul_i32 s19, s19, 7'); A(f's_add_u32 s19, s19, {s(b_s)}'); A('s_lshl_b32 s19, s19, 7')
        A(f's_add_u32 s19, s19, {YFL}')
        A('v_and_b32 v9, 15, v0'); A('v_lshlrev_b32 v9, 2, v9'); A('v_add_u32 v9, s19, v9')
        import chain
        A(f'v_cmp_lt_u32 vcc, {63 if chain.DBG_NOYF else 15}, v0'); A('s_nop 1')
        A('v_cndmask_b32 v7, v7, v9, vcc')
        A('s_mov_b32 exec_hi, 0')
        A('s_mov_b64 vcc, 0')
        spin_wait(A, lambda: A('buffer_load_dword v9, v7, s[4:7], 0 offen sc1'), lambda: A('v_cmp_gt_u32 vcc, v8, v9'), Lw+'f', sleep=4, backoff=(16, 100))
        A('s_mov_b32 exec_hi, -1')
        A(f's_branch {Lw}')
        A.label(Lw+'f')
        A('s_mov_b32 exec_hi, -1')
        A(f's_branch {fail}')
        A.label(Lw)
        A('s_barrier')
        tstamp(A, 130, 8, 9, sreg=93)
    A('s_lshl_b32 s18, s16, 12'); A(f's_add_u32 s18, s18, {PXX}'); A('s_add_u32 s19, s18, 4096')
    for hpl in range(2):
        for oc in range(4):
            A(f'buffer_load_dwordx4 {v(PX(oc,hpl),4)}, v1, s[4:7], {"s19" if hpl else "s18"} offen offset:{oc*1024}{ld}')
    A('v_lshrrev_b32 v7, 4, v0'); A('v_lshlrev_b32 v7, 7, v7'); A('v_and_b32 v8, 7, v0'); A('v_lshl_add_u32 v7, v8, 4, v7')
    A(f's_lshl_b32 s18, {s(seg_s)}, 2'); A('s_add_u32 s18, s18, s3'); A('s_lshl_b32 s18, s18, 11'); A(f's_add_u32 s18, s18, {PXM}')
    A('s_mov_b32 exec_lo, 0x00ff00ff'); A('s_mov_b32 exec_hi, 0x00ff00ff')
    for oc in range(4):
        A(f'buffer_load_dwordx4 {v(PMr(oc),4)}, v7, s[4:7], s18 offen offset:{oc*512}{ld}')
    A('s_mov_b64 exec, -1')
    A(f's_mul_i32 s18, {s(seg_s)}, 14'); A('s_add_u32 s18, s18, s17'); A('s_lshl_b32 s18, s18, 2'); A('s_add_u32 s18, s18, s3'); A('s_lshl_b32 s18, s18, 11')
    A(f's_add_u32 s18, s18, {YG}'); A('s_add_u32 s19, s18, 8192')
    for ml in range(2):
        for ct in range(2):
            A(f'buffer_load_dwordx4 {v(YB(ml,ct),4)}, v1, s[4:7], {"s19" if ml else "s18"} offen offset:{ct*1024}{ld}')
    A('s_waitcnt vmcnt(8)')
    for oc in range(4):
        for hpl in range(2):
            for ml in range(2):
                for ct in range(2):
                    A(f'v_smfmac_f32_16x16x64_bf16 {v(ACC(oc,ml,ct),4)}, {v(PX(oc,hpl),4)}, {v(UB(ml,hpl,ct),8)}, v2')
    A('s_waitcnt vmcnt(0)')
    tstamp(A, 140, 8, 9, sreg=93)
    for oc in range(4):
        for ml in range(2):
            for ct in range(2):
                d = ACC(oc, ml, ct)
                A(f'v_mfma_f32_16x16x32_bf16 {v(d,4)}, {v(PMr(oc),4)}, {v(YB(ml,ct),4)}, {v(d,4)}')
    A('v_lshrrev_b32 v7, 5, v0'); A(f'v_mul_u32_u24 v7, {32*RS}, v7')
    A('v_and_b32 v8, 16, v0'); A(f'v_mul_u32_u24 v8, {RS//4}, v8'); A('v_add_u32 v7, v7, v8')
    A('v_and_b32 v8, 15, v0'); A('v_lshl_add_u32 v7, v8, 3, v7')
    A(f's_mul_i32 s18, s3, {64*RS}'); A('v_add_u32 v7, s18, v7')
    A('s_barrier')
    for oc in range(4):
        A(f'v_add_u32 v8, {oc*8*RS}, v7')
        for rr in range(4):
            for ml in range(2):
                o = (rr*RS + ml*128)//4
                A(f'ds_write2_b32 v8, {v(ACC(oc,ml,0)+rr)}, {v(ACC(oc,ml,1)+rr)} offset0:{o} offset1:{o+1}')
    A('s_waitcnt lgkmcnt(0)')
    A('s_barrier')
    A(f'v_mul_u32_u24 v7, {RS}, v4'); A('v_lshl_add_u32 v7, v5, 5, v7')
    for sl in range(8):
        if sl and sl % 2 == 0: A(f'v_add_u32 v7, {64*RS}, v7')
        for j in range(2): A(f'ds_read_b128 {v(16+8*sl+4*j,4)}, v7 offset:{(sl&1)*32*RS+16*j}')
    A('s_waitcnt lgkmcnt(0)')
    for step in (1, 2, 4):
        for sl in range(0, 8, 2*step):
            for j in range(4):
                A(f'v_pk_add_f32 {v(16+8*sl+2*j,2)}, {v(16+8*sl+2*j,2)}, {v(16+8*(sl+step)+2*j,2)}')
    for j in range(4):
        a_, b_ = 16+2*j, 17+2*j
        A(f'v_cvt_pk_bf16_f32 v8, {v(a_)}, {v(b_)}')
        A(f'v_lshlrev_b32 {v(a_)}, 16, v8'); A(f'v_and_b32 {v(b_)}, 0xffff0000, v8')
        A(f'v_lshlrev_b32 v9, 16, {v(XG+4+j)}'); A(f'v_and_b32 v10, 0xffff0000, {v(XG+4+j)}')
        A(f'v_mul_f32 {v(a_)}, {v(a_)}, v9'); A(f'v_mul_f32 {v(b_)}, {v(b_)}, v10')
        A(f'v_cvt_pk_bf16_f32 v8, {v(a_)}, {v(b_)}')
        A(f'v_lshlrev_b32 {v(a_)}, 16, v8'); A(f'v_and_b32 {v(b_)}, 0xffff0000, v8')
        A(f'v_lshlrev_b32 v9, 16, {v(XG+j)}'); A(f'v_and_b32 v10, 0xffff0000, {v(XG+j)}')
        A(f'v_add_f32 {v(a_)}, {v(a_)}, v9'); A(f'v_add_f32 {v(b_)}, {v(b_)}, v10')
        A(f'v_cvt_pk_bf16_f32 {v(24+j)}, {v(a_)}, {v(b_)}')
    A('buffer_store_dwordx4 v[24:27], v6, s[12:15], s22 offen')

def phase_yw(A, gq, fail, sync=True):
    W = [256 + 4*i for i in range(56)]
    AFr = [16 + 4*k for k in range(14)]
    ACC = 80; OUT = 96
    A(f's_lshl_b32 s17, {s(gq)}, 2'); A('s_add_u32 s17, s17, s3')
    sdivmod(A, 22, 23, 17, 14, 112)
    A(f's_mul_i32 s18, s22, {2*28*14*1024}'); A(f's_mul_i32 s19, s23, {2*14*1024}')
    A('s_add_u32 s18, s18, s19'); A(f's_add_u32 s18, s18, {NC}'); A(f's_add_u32 s24, s18, {28*14*1024}')
    load_frags(A, W[:28], 18, 20); load_frags(A, W[28:], 24, 20)
    A('v_and_b32 v2, 8, v0'); A('v_lshlrev_b32 v2, 10, v2')
    A('v_and_b32 v3, 7, v0'); A('v_lshl_add_u32 v2, v3, 4, v2')
    A('v_lshrrev_b32 v3, 5, v0'); A('v_lshl_add_u32 v2, v3, 7, v2')
    A('v_and_b32 v6, 16, v0'); A('v_lshrrev_b32 v6, 1, v6'); A('v_add_u32 v2, v2, v6')
    A(f'v_mul_u32_u24 v3, {14*8192}, v3')
    A('v_and_b32 v6, 31, v0'); A('v_lshl_add_u32 v3, v6, 4, v3')
    A('s_lshl_b32 s21, s23, 2'); A('s_lshr_b32 s19, s22, 1'); A('s_add_u32 s21, s21, s19'); A('s_lshl_b32 s21, s21, 11')
    A('s_and_b32 s19, s22, 1'); A('s_lshl_b32 s19, s19, 9'); A('s_add_u32 s21, s21, s19'); A(f's_add_u32 s21, s21, {YG}')
    A('s_lshr_b32 s26, s23, 1'); A('s_lshl_b32 s26, s26, 7'); A('s_lshl_b32 s19, s22, 3'); A('s_add_u32 s26, s26, s19')
    A('s_and_b32 s19, s23, 1'); A('s_lshl_b32 s19, s19, 2'); A('s_add_u32 s26, s26, s19'); A(f's_add_u32 s26, s26, {YFL}')
    A(f's_mov_b32 s24, {MEMG2 if sync else MEMG}')
    A('s_mov_b32 s27, 1')
    A('s_mov_b32 s31, 0')
    A('s_mov_b32 s23, 0')
    A('v_mov_b32 v7, 0')
    def flag():
        A('v_mov_b32 v6, s23'); A('s_mov_b64 exec, 1')
        A('buffer_store_dword v6, v7, s[4:7], s26 offen sc1'); A('s_mov_b64 exec, -1')
        A('s_mov_b32 s23, 0'); A('s_add_u32 s26, s26, 896')
    L = A.newlabel('yw'); Lh = A.newlabel('ywh'); Lnf = A.newlabel('ywn'); Ld = A.newlabel('ywd')
    A.label(L)
    A('s_add_u32 s25, s24, 4096')
    def issue(fl):
        for kk in range(14):
            for pc in range(2):
                A(f'buffer_load_dwordx2 {v(AFr[kk]+2*pc,2)}, v2, s[4:7], {"s24" if kk < 8 else "s25"} offen offset:{(kk%8)*512+pc*256}{fl}')
    Lgo = A.newlabel('ywg')
    if sync:
        A('s_cmp_ge_u32 s31, s27'); A(f's_cbranch_scc1 {Lh}')
        A('s_sub_u32 s19, s27, 1'); A('s_max_u32 s19, s19, 1')
        wait_hint(A, 19, fail)
        A('s_mov_b32 s31, s29')
        A('s_cmp_ge_u32 s31, s27'); A(f's_cbranch_scc1 {Lh}')
        def chk():
            A(f'v_max_u32 v4, {v(AFr[0])}, {v(AFr[0]+1)}')
            for j in range(1, 28): A(f'v_max3_u32 v4, v4, {v(AFr[0]+2*j)}, {v(AFr[0]+2*j+1)}')
            A('v_cmp_eq_u32 vcc, -1, v4')
        spin_wait(A, lambda: issue(' sc1'), chk, fail, sleep=3)
        A(f's_branch {Lgo}')
        A.label(Lh)
    issue(' sc1' if sync else '')
    A.label(Lgo)
    for kk in range(14):
        A(f's_waitcnt vmcnt({2*(13-kk)})')
        for tl in range(4):
            d = ACC + 4*tl
            A(f'v_mfma_f32_16x16x32_bf16 {v(d,4)}, {v(AFr[kk],4)}, {r(W[tl*14+kk],4)}, {"0" if kk == 0 else v(d,4)}')
    if sync:
        A('s_cmp_eq_u32 s23, 0'); A(f's_cbranch_scc1 {Lnf}')
        flag()
        A.label(Lnf)
    A.nop(8)
    for ct in range(2):
        o = OUT + 4*ct
        for hs in range(2):
            d = ACC + 4*(hs*2+ct)
            A(f'v_cvt_pk_bf16_f32 {v(o+2*hs)}, {v(d)}, {v(d+1)}'); A(f'v_cvt_pk_bf16_f32 {v(o+2*hs+1)}, {v(d+2)}, {v(d+3)}')
        A(f'buffer_store_dwordx4 {v(o,4)}, v3, s[4:7], s21 offen offset:{ct*1024}{" sc1" if sync else ""}')
    A('s_add_u32 s24, s24, 16384')
    A(f's_add_u32 s21, s21, {2*14*8192}')
    A('s_add_u32 s27, s27, 2')
    if sync:
        A('s_lshr_b32 s23, s27, 1')
        A('s_cmp_ge_u32 s31, s27'); A(f's_cbranch_scc1 {Ld}')
        A('s_waitcnt vmcnt(0)')
        flag()
        A.label(Ld)
    tstamp(A, 16, 8, 9, sreg=27)
    A('s_cmp_lt_u32 s27, 64')
    A(f's_cbranch_scc1 {L}')

W_LDS = 4*S_STG
def gen_k4(A):
    A.label('k4_kernel'); A('s_cmp_ge_u32 s2, 224'); A('s_cbranch_scc1 k4_end')
    prologue(A); phase_f2(A, 2)
    A.label('k4_end'); A('s_endpgm')
    return dict(name='k4_kernel', grid=224, block=256, lds=W_LDS, vgpr=256, sgpr=48, agpr=256)
def gen_k5(A):
    A.label('k5_kernel'); A('s_cmp_ge_u32 s2, 256'); A('s_cbranch_scc1 k5_end')
    prologue(A)
    A('s_and_b32 s32, s2, 15'); A('s_lshr_b32 s33, s2, 4')
    phase_s(A, 32, 33, 'k5_end', False)
    A.label('k5_end'); A('s_endpgm')
    return dict(name='k5_kernel', grid=256, block=256, lds=W_LDS, vgpr=256, sgpr=48, agpr=256)
def gen_k6(A):
    A.label('k6_kernel'); A('s_cmp_ge_u32 s2, 448'); A('s_cbranch_scc1 k6_end')
    srd(A, 8, 0, SZ_X); srd(A, 12, 88, SZ_X)
    prologue(A)
    sdivmod(A, 32, 33, 2, 7, 448)
    phase_o(A, 32, 33, 'k6_end', False)
    A.label('k6_end'); A('s_endpgm')
    return dict(name='k6_kernel', grid=448, block=256, lds=W_LDS, vgpr=256, sgpr=48, agpr=0)
```

```python
from asmlib import *
from layout import *
from k1 import sdivmod, srd
from wk import prologue, load_frags, f2u, LOG2E, tstamp, wait_words, mnf_addr

STG, XB, XS_ = 0, 8192, 576
RED, WL = 8192, 16384
CHAIN_LDS = WL + 4*14*1024
SPIN = 200000
NSTEP = 63
PROFILE = False
EWPOS = 12
QUICK = False
LNST = ''
RING = 0
RSP = 0
PSETS = 1
EWMI = -1
VDEL = 0
SSF = 0
PDEL = 40
MDEL = 0
MSRC = 0
EWW = 0
DYNF = 0
TAGC = 0
MSETS = 2
VMSETS = 2
TAGS = 0
TG = 16384
STAGP = 24
UEARLY = 1
PFS = 128
VFLAG = 0
LAT = 0
PREF = 3
POLLALL = 1
DBG_NOYW = 0
DBG_NOYF = 0
WBSTEP = 4
WBLAST = 2
NROLE = 30
DBG_NOITEM = DBG_PLAIN = 0
DBG_U0 = DBG_X0 = DBG_NOY = 0
BDEL = 8
STAG = 40
EWM_POS = 0

def stamp(A, i):
    if PROFILE and not LAT: A(f's_memrealtime {s(50+2*i,2)}')
def stamp_flush(A, n, tmp, tmp2):
    if not PROFILE: return
    A('s_waitcnt lgkmcnt(0)')
    for i in range(n): A(f'v_writelane_b32 {v(tmp)}, {s(50+2*i)}, {i}')
    A(f'v_mbcnt_lo_u32_b32 {v(tmp2)}, -1, 0')
    A(f'v_lshlrev_b32 {v(tmp2)}, 2, {v(tmp2)}')
    A('s_lshl_b32 s48, s20, 6')
    A('s_add_u32 s48, s48, s49')
    A('s_mov_b64 s[70:71], exec')
    A('s_mov_b64 exec, 0xffff')
    A(f'buffer_store_dword {v(tmp)}, {v(tmp2)}, s[4:7], s48 offen')
    A('s_mov_b64 exec, s[70:71]')
def stamp_init(A):
    if not PROFILE: return
    A('s_lshl_b32 s49, s15, 2'); A('s_add_u32 s49, s49, s3'); A('s_lshl_b32 s49, s49, 12')
    A(f's_add_u32 s49, s49, {PROF}')

OOL = []
def flush_ool(A):
    for f in OOL: f()
    OOL.clear()

class Lds:
    def __init__(self, A): self.A = A; self.q = []
    def op(self, name, ins): self.A(ins); self.q.append(name)
    def need(self, name):
        if name not in self.q: return
        i = self.q.index(name)
        n = len(self.q) - 1 - i
        self.A(f's_waitcnt lgkmcnt({min(n,15)})')
        self.q = self.q[i+1:] if n <= 15 else self.q
    def drain(self):
        self.A('s_waitcnt lgkmcnt(0)'); self.q = []

def smf(A, d, a_, b):
    A(f'v_smfmac_f32_16x16x64_bf16 {v(d,4)}, {r(a_,4)}, {r(b,8)}, v2')

NF = 2
def common_setup(A):
    A('v_and_b32 v11, 8, v0')
    A('v_cmp_eq_u32 vcc, 0, v11')
    A('v_mov_b32 v2, 0xeeee')
    A('v_mov_b32 v11, 0x4444')
    A('v_cndmask_b32 v2, v2, v11, vcc')
    A('v_lshrrev_b32 v11, 4, v0'); A('v_lshlrev_b32 v8, 7, v11')
    A('v_and_b32 v11, 7, v0'); A('v_lshl_add_u32 v8, v11, 4, v8')
    A('s_mul_i32 s16, s3, 112')
    A('v_add_u32 v3, s16, v0'); A('v_lshlrev_b32 v3, 4, v3')
    A('v_min_u32 v4, 47, v0'); A('v_add_u32 v4, s16, v4'); A('v_add_u32 v4, 64, v4'); A('v_lshlrev_b32 v4, 4, v4')
    A('v_min_u32 v5, 13, v0'); A('v_lshlrev_b32 v5, 2, v5')
    A(f's_mov_b32 s40, {EWM}')
    A(f's_mov_b32 s41, {EWP}')
    A('s_lshl_b32 s16, s15, 8')
    A('s_add_u32 s46, s40, s16')
    A('s_add_u32 s47, s41, s16')
    A('s_mov_b64 s[42:43], 0xffff')
    if SSF:
        A('s_lshl_b32 s16, s15, 2'); A('s_add_u32 s16, s16, s3'); A('s_lshl_b32 s16, s16, 8')
        A(f's_add_u32 s46, s16, {EW2}'); A('s_mov_b32 s47, s46')
        A('v_mov_b32 v5, 0'); A('s_mov_b64 s[42:43], 1')
        A(f's_mov_b32 s40, {EW2}'); A(f's_mov_b32 s41, {EW2+16384}')

def step_addr(A):
    A('s_and_b32 s21, s20, 3')
    A(f's_lshl_b32 s24, s21, 14')
    A(f's_add_u32 s24, s24, {MEMR}')
    A('s_add_u32 s25, s24, 8192')
    A(f's_lshl_b32 s26, s21, 15')
    A(f's_add_u32 s26, s26, {PR}')
    A('s_add_u32 s45, s26, 16384')
    A('s_xor_b32 s22, s21, 2')
    A(f's_lshl_b32 s27, s22, 15')
    A(f's_add_u32 s27, s27, {PR}')
    A('s_add_u32 s44, s20, 1')
    A('s_and_b32 s22, s44, 3')
    A(f's_lshl_b32 s28, s22, 14')
    A(f's_add_u32 s28, s28, {MEMR}')
    A('s_xor_b32 s22, s22, 2')
    A(f's_lshl_b32 s29, s22, 14')
    A(f's_add_u32 s29, s29, {MEMR}')

def store_flag(A, voff, base, st, tmp):
    if SSF: return
    A(f'v_mov_b32 {v(tmp)}, s44')
    if base == 's41': A('s_mov_b32 exec_lo, 0')
    A(f'buffer_store_dword {v(tmp)}, {v(voff)}, s[4:7], {base} offen{st}')
    if base == 's41': A('s_mov_b32 exec_lo, -1')

def ssf_store(A, base, st, t0, t1):
    A(f'v_mbcnt_lo_u32_b32 {v(t1)}, -1, 0'); A(f'v_mbcnt_hi_u32_b32 {v(t1)}, -1, {v(t1)}'); A(f'v_lshlrev_b32 {v(t1)}, 8, {v(t1)}')
    A(f'v_mov_b32 {v(t0)}, s44')
    A(f'buffer_store_dword {v(t0)}, {v(t1)}, s[4:7], {base} offen{st}')
    A(f'buffer_store_dword {v(t0)}, {v(t1)}, s[4:7], {base} offen offset:128{st}')

def wait_flag(A, voff, base, want, regs, fail, poller):
    nf = NF
    Lb = A.newlabel('wfb')
    if poller is not None or POLLALL:
        L = A.newlabel('wf'); Lok = A.newlabel('wfo')
        if not POLLALL:
            A(f's_cmp_lg_u32 s3, {poller}')
            A(f's_cbranch_scc1 {Lb}')
        A(f's_mov_b32 s30, {SPIN}')
        A('s_mov_b64 exec, s[42:43]')
        def issue(k): A(f'buffer_load_dword {v(regs[k])}, {v(voff)}, s[4:7], {base} offen offset:{k*128} sc1')
        for k in range(nf-1):
            issue(k); A.nop(52//nf)
        A.label(L)
        for k in range(nf):
            issue((k+nf-1) % nf)
            A(f's_waitcnt vmcnt({nf-1})')
            A(f'v_cmp_gt_u32 vcc, {want}, {v(regs[k])}')
            A(f's_cbranch_vccz {Lok}')
        A('s_sub_u32 s30, s30, 1')
        A('s_cmp_lg_u32 s30, 0')
        A(f's_cbranch_scc1 {L}')
        A('s_mov_b64 exec, -1')
        A(f's_branch {fail}')
        A.label(Lok)
        A('s_mov_b64 exec, -1')
    A.label(Lb)
    if not POLLALL: A('s_barrier')

def poll_mem(A, sets, fail):
    L = A.newlabel('pm'); Lok = A.newlabel('pmo'); L1 = A.newlabel('pm1')
    def issue(k):
        so = 's24' if k == 0 else 's25'
        A(f'buffer_load_dwordx4 {v(sets[k],4)}, v3, s[4:7], {so} offen sc1')
        A(f'buffer_load_dwordx4 {v(sets[k]+4,4)}, v4, s[4:7], {so} offen sc1')
    stamp(A, 8)
    if PROFILE: A('s_mov_b32 s68, 0')
    def check(k):
        b = sets[k]
        if PROFILE: A('s_add_u32 s68, s68, 1')
        A(f'ds_write_b128 v3, {v(b,4)}')
        A(f'ds_write_b128 v4, {v(b+4,4)}')
        A(f'v_max3_u32 v0, {v(b)}, {v(b+1)}, {v(b+2)}')
        A(f'v_max3_u32 v1, {v(b+3)}, {v(b+4)}, {v(b+5)}')
        A(f'v_max3_u32 v0, v0, {v(b+6)}, {v(b+7)}')
        A('v_max_u32 v0, v0, v1')
        A('v_cmp_eq_u32 vcc, -1, v0')
    A(f's_mov_b32 s30, {SPIN}')
    if len(sets) == 1:
        A.label(L)
        issue(0)
        A('s_sub_u32 s30, s30, 1'); A('s_cmp_eq_u32 s30, 0'); A(f's_cbranch_scc1 {fail}')
        A('s_waitcnt vmcnt(0)'); check(0)
        A(f's_cbranch_vccnz {L}')
    else:
        issue(0)
        A.nop(STAG)
        A.label(L)
        issue(1); A('s_waitcnt vmcnt(2)'); check(0)
        A(f's_cbranch_vccnz {L1}')
        def ool():
            A.label(L1)
            issue(0); A('s_waitcnt vmcnt(2)'); check(1)
            A(f's_cbranch_vccz {Lok}')
            A('s_sub_u32 s30, s30, 1')
            A(f's_cmp_gt_u32 s30, {SPIN-4}'); A(f's_cbranch_scc1 {L}')
            A('s_sleep 10')
            A('s_cmp_lg_u32 s30, 0'); A(f's_cbranch_scc1 {L}')
            A(f's_branch {fail}')
        OOL.append(ool)
    A.label(Lok)
    stamp(A, 0)
    A('s_waitcnt lgkmcnt(0)')
    A('s_barrier')
    stamp(A, 1)

def post_paired(d0, d1, xreg, xoff, t):
    I = [f'v_cvt_pk_bf16_f32 {v(t+rr)}, {v(d0+rr)}, {v(d1+rr)}' for rr in range(4)]
    W = [f'ds_write_b32 {v(xreg)}, {v(t+rr)} offset:{xoff+16*rr}' for rr in range(4)]
    return I, W
def post_single(d, xreg, xoff):
    I = [f'v_permlane32_swap_b32 {v(d)}, {v(d+1)}', f'v_permlane32_swap_b32 {v(d+2)}, {v(d+3)}',
         f'v_cvt_pk_bf16_f32 {v(d)}, {v(d)}, {v(d+1)}', f'v_cvt_pk_bf16_f32 {v(d+2)}, {v(d+2)}, {v(d+3)}']
    W = [f'ds_write_b32 {v(xreg)}, {v(d)} offset:{xoff}', f'ds_write_b32 {v(xreg)}, {v(d+2)} offset:{xoff+32}']
    return I, W

def x_addrs(A):
    A('v_and_b32 v11, 12, v0'); A('v_mul_u32_u24 v9, 36, v11')
    A('v_and_b32 v11, 3, v0');  A('v_lshl_add_u32 v9, v11, 2, v9')
    A('v_and_b32 v11, 16, v0'); A('v_lshl_add_u32 v9, v11, 2, v9')
    A(f's_mul_i32 s16, s3, {2*XS_}'); A(f's_add_u32 s16, s16, {XB}')
    A('v_add_u32 v9, s16, v9')
    A('v_lshrrev_b32 v11, 5, v0')
    A('v_lshl_add_u32 v10, v11, 4, v9')
    A(f'v_mul_u32_u24 v11, {XS_}, v11')
    A('v_add_u32 v9, v9, v11')

def gen_score(A, st, tag, fail, done):
    Lfin = f'sc_fin_{tag}'
    A('s_cmp_eq_u32 s3, 3')
    A(f's_cbranch_scc1 {Lfin}')
    ACC = [12, 16, 20, 24]
    SL = [28 + 4*i for i in range(9)]
    W = lambda tl, p: 64 + (tl*14+p)*8
    Lloop = f'sc_loop_{tag}'
    A('s_mov_b32 s20, 0')
    if TAGS or TAGC:
        A('v_lshlrev_b32 v6, 2, v0'); A('s_lshl_b32 s16, s3, 8'); A(f's_add_u32 s16, s16, {TG}'); A('v_add_u32 v6, s16, v6')
        A('v_mov_b32 v7, 0'); A('ds_write_b32 v6, v7')
    A.label(Lloop)
    step_addr(A)
    for k in range(8): A(f'v_mov_b64 {v(12+2*k,2)}, 0')
    wait_flag(A, 5, 's46', 's20', [SL[0]+k for k in range(4)], fail, 0)
    poll_mem(A, [SL[0], SL[2]][:MSETS], fail)
    Q = Lds(A)
    def rd(Q, p, slot):
        Q.op(('r', p), f'ds_read_b128 {v(SL[slot],4)}, v8 offset:{p*512}')
    slot = {}
    for p in range(5): slot[p] = 4+p; rd(Q, p, 4+p)
    for p in range(14):
        Q.need(('r', p))
        smf(A, ACC[0], SL[slot[p]], W(0, p)); smf(A, ACC[1], SL[slot[p]], W(1, p))
        if p == 1:
            A('s_waitcnt vmcnt(0)')
            for pp in range(5, 9): slot[pp] = pp-5; rd(Q, pp, pp-5)
        if 1 <= p < 6: slot[p+8] = slot.pop(p-1); rd(Q, p+8, slot[p+8])
    def phase(tl, order, rer, I, Wr):
        fill = [('v', x) for x in I] + [('w', x) for x in Wr] + [('n', None)]*BDEL + [('b', None)]
        if TAGS: fill = [('v', x) for x in I + ['v_add_u32 v7, 1, v7']] + [('w', x) for x in Wr + ['ds_write_b32 v6, v7']]
        rer = list(rer)
        for n, p in enumerate(order):
            Q.need(('r', p))
            smf(A, ACC[tl], SL[slot[p]], W(tl, p))
            if rer:
                pn = rer.pop(0); slot[pn] = slot.pop(p); rd(Q, pn, slot[pn])
            if n >= 4:
                for _ in range(2 if (not TAGS or n in (5, 6)) else 1):
                    if not fill: break
                    kind, x = fill.pop(0)
                    if kind == 'v': A(x)
                    elif kind == 'w': Q.op('w', x)
                    elif kind == 'n': pass
                    else: Q.drain(); A('s_barrier')
        assert not fill, fill
    I, Wr = post_paired(ACC[0], ACC[1], 9, 0, ACC[0])
    phase(2, [5, 6, 7, 8, 9, 10, 11, 12, 13, 0, 1, 2, 3, 4], [0, 1, 2, 3, 4], I, Wr)
    stamp(A, 2)
    I, Wr = post_single(ACC[2], 10, 8*XS_)
    phase(3, [10, 11, 12, 13, 0, 1, 2, 3, 4, 5, 6, 7, 8, 9], [5, 6, 7, 8, 9], I, Wr)
    stamp(A, 3)
    if TAGS or TAGC: A('v_add_u32 v7, 1, v7'); A.nop(7)
    else: A.nop(8)
    I, Wr = post_single(ACC[3], 10, 9*XS_)
    for x in I + Wr: A(x)
    if TAGS or TAGC: A('ds_write_b32 v6, v7')
    else:
        A('s_waitcnt lgkmcnt(0)')
        A('s_barrier')
    if SSF:
        Lq = A.newlabel('ssf'); A('s_or_b32 s22, s15, s3'); A('s_cmp_lg_u32 s22, 0'); A(f's_cbranch_scc1 {Lq}')
        A.nop(PDEL)
        ssf_store(A, 's41', st, 0, 1)
        A.label(Lq)
    stamp(A, 4); stamp_flush(A, 10, 0, 1)
    A('s_add_u32 s20, s20, 1')
    A(f's_cmp_lt_u32 s20, {NSTEP}')
    A(f's_cbranch_scc1 {Lloop}')
    A(f's_branch {done}')

    A.label(Lfin)
    ACC = [16, 20]; DX, DM = 24, 28
    PS = [32, 48]
    AF = [64 + 4*p for p in range(14)]
    A2 = [120 + 4*i for i in range(4)]
    T = 136
    XSR = [144 + 8*kk for kk in range(14)]
    W = lambda tl, p: 256 + (tl*14+p)*8
    posof = lambda kk: kk
    A('v_lshlrev_b32 v12, 4, v0')
    A('v_and_b32 v11, 16, v0'); A('v_lshlrev_b32 v1, 2, v11')
    A('v_lshrrev_b32 v11, 5, v0'); A('v_lshl_add_u32 v1, v11, 4, v1')
    A('v_and_b32 v11, 12, v0'); A('v_lshl_add_u32 v13, v11, 6, v1')
    A('v_and_b32 v11, 3, v0'); A('v_lshl_add_u32 v13, v11, 2, v13')
    A('s_lshr_b32 s16, s17, 1'); A('s_lshl_b32 s16, s16, 10')
    A('s_and_b32 s18, s17, 1'); A('s_lshl_b32 s19, s18, 7'); A('s_add_u32 s16, s16, s19')
    A('v_add_u32 v13, s16, v13')
    A('v_and_b32 v11, 8, v0');  A('v_lshl_add_u32 v14, v11, 2, v1')
    A('v_cmp_ne_u32 s[34:35], 0, v11')
    A('v_and_b32 v11, 7, v0');  A('v_lshl_add_u32 v14, v11, 1, v14')
    A('s_lshr_b32 s16, s17, 3'); A('s_lshl_b32 s16, s16, 10')
    A('s_and_b32 s19, s17, 3'); A('s_lshl_b32 s19, s19, 8'); A('s_add_u32 s16, s16, s19')
    A('s_and_b32 s19, s17, 4'); A('s_lshl_b32 s19, s19, 5'); A('s_add_u32 s16, s16, s19')
    A('s_add_u32 s16, s16, 8192'); A('v_add_u32 v14, s16, v14')
    A('s_lshl_b32 s16, s17, 2'); A('v_lshlrev_b32 v6, 7, v0'); A('v_add_u32 v6, s16, v6')
    A('v_lshrrev_b32 v11, 4, v0'); A('v_mul_u32_u24 v15, 144, v11')
    A('v_and_b32 v11, 7, v0'); A('v_lshl_add_u32 v15, v11, 4, v15')
    A(f'v_add_u32 v15, {XB}, v15')
    A(f's_mov_b32 s31, 0x{f2u(LOG2E):08x}')
    A('s_mov_b32 s33, 0x7fff7fff')
    A('v_min_u32 v7, 2, v0'); A('v_lshlrev_b32 v7, 8, v7'); A(f'v_add_u32 v7, {TG}, v7')
    A('s_mov_b32 s36, 0')
    def load_xs():
        for i in range(28):
            if i % 4 == 0:
                if i == 0: A('s_mov_b32 s23, s32')
                else: A('s_add_u32 s23, s23, 4096')
            A(f'buffer_load_dwordx4 {v(XSR[0]+4*i,4)}, v12, s[4:7], s23 offen offset:{(i%4)*1024}')
    A(f's_mov_b32 s32, {XNS}')
    load_xs()
    Lloop = f'sf_loop_{tag}'
    A('s_mov_b32 s20, 0')
    A.label(Lloop)
    if QUICK:
        Lq = A.newlabel('q')
        A('s_cmp_lg_u32 s20, 2'); A(f's_cbranch_scc1 {Lq}'); A('s_memrealtime s[64:65]'); A('s_memtime s[60:61]'); A.label(Lq)
    step_addr(A)
    for k in range(8): A(f'v_mov_b64 {v(16+2*k,2)}, 0')
    wait_flag(A, 5, 's46', 's20', [PS[0]+k for k in range(4)], fail, None)
    poll_mem(A, PS[:MSETS], fail)
    Q = Lds(A)
    for p in range(14):
        Q.op(('r', p), f'ds_read_b128 {v(AF[p],4)}, v8 offset:{p*512}')
    for p in range(14):
        Q.need(('r', p))
        smf(A, ACC[0], AF[p], W(0, p)); smf(A, ACC[1], AF[p], W(1, p))
    A.nop(8)
    I, Wr = post_paired(ACC[0], ACC[1], 9, 0, ACC[0])
    for x in I: A(x)
    for x in Wr: Q.op('w', x)
    nb = [0]
    def rd2(kk2):
        Q.op(('x', kk2), f'ds_read_b128 {v(A2[nb[0]%4],4)}, v15 offset:{kk2*XS_}')
        buf[kk2] = A2[nb[0] % 4]; nb[0] += 1
    buf = {}
    def second(kk2):
        Q.need(('x', kk2))
        smf(A, DX, buf[kk2], XSR[kk2])
        A(f'v_mfma_f32_16x16x32_bf16 {v(DM,4)}, {v(buf[kk2],4)}, {v(AF[posof(kk2)],4)}, {v(DM,4)}')
    rd2(6); rd2(7)
    second(6); second(7)
    if True:
        def sync(kks):
            Ls = A.newlabel('ts')
            A('s_add_u32 s36, s36, 1')
            A(f's_mov_b32 s30, {SPIN*4}')
            n0 = nb[0]
            A.label(Ls)
            A('ds_read_b32 v0, v7')
            for kk2 in kks: rd2(kk2)
            A('s_sub_u32 s30, s30, 1'); A('s_cmp_eq_u32 s30, 0'); A(f's_cbranch_scc1 {fail}')
            A(f's_waitcnt lgkmcnt({len(kks)})')
            A('v_cmp_gt_u32 vcc, s36, v0')
            A(f's_cbranch_vccnz {Ls}')
    if TAGS:
        sync([0, 1, 2, 3])
        stamp(A, 2)
        second(0); rd2(4); second(1); rd2(5); second(2); second(3); second(4); second(5)
        sync([8, 10, 12])
        second(8); second(10); second(12)
        sync([9, 11, 13])
        stamp(A, 3)
    else:
        A('s_barrier')
        stamp(A, 2)
        for kk2 in range(4): rd2(kk2)
        second(0); rd2(4); second(1); rd2(5); second(2); second(3)
        A('s_barrier')
        rd2(8); rd2(10)
        second(4); rd2(12); second(5); second(8); second(10); second(12)
        if TAGC: sync([9, 11, 13]); stamp(A, 3)
        else:
            A('s_barrier')
            stamp(A, 3)
            rd2(9); rd2(11); rd2(13)
    if EWPOS == -1: store_flag(A, 6, 's41', st, T+7)
    second(9); second(11); second(13)
    if EWPOS == 0: store_flag(A, 6, 's41', st, T+7)
    A.nop(8)
    stamp(A, 4)
    for d in (DX, DM):
        A(f'v_permlane32_swap_b32 {v(d)}, {v(d+1)}')
        A(f'v_permlane32_swap_b32 {v(d+2)}, {v(d+3)}')
    if EWPOS == 10: store_flag(A, 6, 's41', st, T+7)
    mx = [T, T+1]; sm = [T+2, T+3]; ml = [T+4, T+5]
    el = lambda t: (DX+2*t, DX+2*t+1, DM+2*t)
    for t in range(2):
        A(f'v_max3_f32 {v(mx[t])}, {v(el(t)[0])}, {v(el(t)[1])}, {v(el(t)[2])}')
    for t in range(2):
        A(f'v_mul_f32 {v(ml[t])}, 0x{f2u(-LOG2E):08x}, {v(mx[t])}')
    fx = []
    for j in (2, 0, 1):
        for t in range(2): fx.append(f'v_fma_f32 {v(el(t)[j])}, {v(el(t)[j])}, s31, {v(ml[t])}')
    for j in (2, 0, 1):
        for t in range(2): fx.append(f'v_exp_f32 {v(el(t)[j])}, {v(el(t)[j])}')
    for ror in (8, 4, 2, 1):
        for t in range(2):
            A(f'v_max_f32_dpp {v(mx[t])}, {v(mx[t])}, {v(mx[t])} row_ror:{ror} row_mask:0xf bank_mask:0xf')
        for _ in range(3): A(fx.pop(0))
        if EWPOS == 11 and ror == 8: store_flag(A, 6, 's41', st, T+7)
        if EWPOS == 12 and ror == 4: store_flag(A, 6, 's41', st, T+7)
    if EWPOS == 1: store_flag(A, 6, 's41', st, T+7)
    for t in range(2):
        A(f'v_fma_f32 {v(ml[t])}, -{v(mx[t])}, s31, -{v(ml[t])}')
    for t in range(2):
        A(f'v_fma_f32 {v(sm[t])}, {v(el(t)[2])}, 0.5, {v(el(t)[0])}')
    for t in range(2):
        A(f'v_exp_f32 {v(ml[t])}, {v(ml[t])}')
    for t in range(2):
        A(f'v_add_f32 {v(sm[t])}, {v(sm[t])}, {v(el(t)[1])}')
    for t in range(2):
        A(f'v_mul_f32 {v(sm[t])}, {v(sm[t])}, {v(ml[t])}')
    if EWPOS == 2: store_flag(A, 6, 's41', st, T+7)
    pre = [f'v_mul_f32 {v(el(t)[j])}, {v(el(t)[j])}, {v(ml[t])}' for j in range(3) for t in range(2)]
    for ror in (8, 4, 2, 1):
        A(pre.pop(0))
        if ror in (8, 4): A(pre.pop(0))
        for t in range(2):
            A(f'v_add_f32_dpp {v(sm[t])}, {v(sm[t])}, {v(sm[t])} row_ror:{ror} row_mask:0xf bank_mask:0xf')
    if EWPOS == 3: store_flag(A, 6, 's41', st, T+7)
    for t in range(2):
        A(f'v_rcp_f32 {v(sm[t])}, {v(sm[t])}')
    A(f'v_cndmask_b32 {v(T+6)}, {v(DM)}, {v(DM+2)}, s[34:35]')
    for j in range(2):
        for t in range(2):
            A(f'v_mul_f32 {v(el(t)[j])}, {v(el(t)[j])}, {v(sm[t])}')
    A(f'v_cndmask_b32 {v(T+7)}, {v(sm[0])}, {v(sm[1])}, s[34:35]')
    for t in range(2):
        A(f'v_cvt_pk_bf16_f32 {v(T+4+t)}, {v(el(t)[0])}, {v(el(t)[1])}')
    A(f'v_mul_f32 {v(T+6)}, {v(T+6)}, {v(T+7)}')
    for t in range(2):
        A(f'v_and_b32 {v(T+4+t)}, s33, {v(T+4+t)}')
    A(f'v_cvt_pk_bf16_f32 {v(T+6)}, {v(T+6)}, {v(T+6)}')
    for t in range(2):
        A(f'buffer_store_dword {v(T+4+t)}, v13, s[4:7], s26 offen offset:{32*t}{st}')
    A(f'v_and_b32 {v(T+6)}, s33, {v(T+6)}')
    A(f'buffer_store_short {v(T+6)}, v14, s[4:7], s26 offen{st}')
    for t in range(2):
        A(f'buffer_store_dword {v(T+4+t)}, v13, s[4:7], s45 offen offset:{32*t}{st}')
    A(f'buffer_store_short {v(T+6)}, v14, s[4:7], s45 offen{st}')
    if EWPOS == 4: store_flag(A, 6, 's41', st, T+7)
    stamp(A, 5)
    A(f'v_mov_b32 {v(T+7)}, -1')
    for cp in range(KC):
        if cp: A('s_add_u32 s27, s27, 16384')
        for t in range(2):
            A(f'buffer_store_dword {v(T+7)}, v13, s[4:7], s27 offen offset:{32*t}{st}')
        A(f'buffer_store_short {v(T+7)}, v14, s[4:7], s27 offen{st}')
    tstamp(A, 16, 0, 1, sreg=20)
    if not DBG_X0: A('s_add_u32 s32, s32, 28672')
    load_xs()
    stamp_flush(A, 10, 0, 1)
    A('s_add_u32 s20, s20, 1')
    A(f's_cmp_lt_u32 s20, {NSTEP}')
    A(f's_cbranch_scc1 {Lloop}')
    if QUICK:
        A('s_memrealtime s[66:67]'); A('s_memtime s[62:63]'); A('s_waitcnt lgkmcnt(0)')
        A('s_sub_u32 s62, s62, s60'); A('v_mov_b32 v0, s62'); A('s_lshl_b32 s16, s17, 2'); A('s_add_u32 s16, s16, 192'); A('v_mov_b32 v1, s16')
        A('buffer_store_dword v0, v1, s[8:11], 0 offen')
        A('s_sub_u32 s66, s66, s64'); A('v_mov_b32 v0, s66'); A('s_lshl_b32 s16, s17, 2'); A('s_add_u32 s16, s16, 128'); A('v_mov_b32 v1, s16')
        A('buffer_store_dword v0, v1, s[8:11], 0 offen')
    A(f's_branch {done}')

def interleave(A, g):
    if g < 256:
        A(f'v_swap_b32 {v(g+1)}, {v(g+4)}')
        A(f'v_swap_b32 {v(g+2)}, {v(g+4)}')
        A(f'v_swap_b32 {v(g+3)}, {v(g+5)}')
        A(f'v_swap_b32 {v(g+5)}, {v(g+6)}')
    else:
        q = g - 256
        A(f'v_accvgpr_read_b32 v11, {a(q+1)}')
        A(f'v_accvgpr_mov_b32 {a(q+1)}, {a(q+4)}')
        A(f'v_accvgpr_mov_b32 {a(q+4)}, {a(q+2)}')
        A(f'v_accvgpr_write_b32 {a(q+2)}, v11')
        A(f'v_accvgpr_read_b32 v11, {a(q+3)}')
        A(f'v_accvgpr_mov_b32 {a(q+3)}, {a(q+5)}')
        A(f'v_accvgpr_mov_b32 {a(q+5)}, {a(q+6)}')
        A(f'v_accvgpr_write_b32 {a(q+6)}, v11')

def load_tiles(A, tiles, post=None, pre=None, issued=None):
    WIN = 30
    q = []
    def retire(left):
        g = q.pop(0)
        A(f's_waitcnt vmcnt({2*left})')
        interleave(A, g)
        if post: post(g)
    for ti, (dst, offa, offb, plist) in enumerate(tiles):
        if pre: pre(ti)
        for p in plist:
            if p % 4 == 0 or p == plist[0]:
                A(f's_add_u32 s22, s18, {offa+(p//4)*4096}')
                A(f's_add_u32 s23, s18, {offb+(p//4)*4096}')
            im = (p % 4)*1024
            A(f'buffer_load_dwordx4 {r(dst(p),4)}, v1, s[4:7], s22 offen offset:{im}')
            A(f'buffer_load_dwordx4 {r(dst(p)+4,4)}, v1, s[4:7], s23 offen offset:{im}')
            q.append(dst(p))
            if len(q) > WIN: retire(len(q)-1)
    if issued: issued()
    while q: retire(len(q)-1)

def score_weights(A, fail=None):
    TS = 14*1024
    Lw3 = A.newlabel('w3'); Ld = A.newlabel('wd')
    A(f's_mul_i32 s18, s17, {28*TS}')
    A(f's_add_u32 s18, s18, {MC}')
    A(f's_mul_i32 s19, s3, {4*TS}')
    A('s_add_u32 s18, s18, s19')
    A('s_cmp_eq_u32 s3, 3')
    A(f's_cbranch_scc1 {Lw3}')
    W = lambda tl: (lambda p: 64 + (tl*14+p)*8)
    def pre(ti):
        if fail and ti in (0, 2):
            A('s_lshl_b32 s19, s17, 3'); A('s_add_u32 s19, s19, s3'); A(f's_add_u32 s19, s19, {2*ti}'); A('s_lshl_b32 s19, s19, 7')
            mnf_addr(A, 13, None, 's19')
            wait_words(A, 13, 11, fail, sleep=16)
    load_tiles(A, [(W(0), 0, 2*TS, range(14)), (W(1), TS, 3*TS, range(14)),
                   (W(2), 16*TS, 17*TS, range(14)), (W(3), 18*TS, 19*TS, range(14))], pre=pre)
    A(f's_branch {Ld}')
    A.label(Lw3)
    W = lambda tl: (lambda p: 256 + (tl*14+p)*8)
    load_tiles(A, [(W(0), 0, 2*TS, range(14)), (W(1), TS, 3*TS, range(14))], pre=pre)
    A.label(Ld)

YL = 8192
def ucheck(A, fail, t0, once=False):
    Lr = A.newlabel('ur'); Lro = A.newlabel('uro')
    A('s_cmp_lt_u32 s20, s33'); A(f's_cbranch_scc1 {Lro}')
    A('v_lshrrev_b32 v1, 2, v12')
    if once:
        A(f'buffer_load_dword {v(t0)}, v1, s[4:7], s37 offen sc1')
        A('s_waitcnt vmcnt(0)')
        A(f'v_cmp_eq_u32 vcc, 0, {v(t0)}'); A('s_cmp_lg_u64 vcc, 0'); A('s_cselect_b32 s33, 0, 8')
    else:
        A('s_cmp_eq_u32 s20, 0'); A(f's_cbranch_scc1 {Lr}')
        for rd_ in range(8):
            A(f's_add_u32 s22, s37, {rd_*14*256}')
            A(f'buffer_load_dword {v(t0+rd_)}, v1, s[4:7], s22 offen sc1')
        A('s_waitcnt vmcnt(0)')
        A('s_mov_b32 s33, 64')
        for rd_ in range(7, -1, -1):
            A(f'v_cmp_eq_u32 vcc, 0, {v(t0+rd_)}'); A('s_cmp_lg_u64 vcc, 0'); A(f's_cselect_b32 s33, {8*rd_}, s33')
        A('s_cmp_lt_u32 s20, s33'); A(f's_cbranch_scc1 {Lro}')
        A.label(Lr)
        A('s_lshr_b32 s22, s20, 3'); A('s_lshl_b32 s33, s22, 3'); A('s_add_u32 s33, s33, 8')
        A(f's_mul_i32 s22, s22, {14*256}'); A('s_add_u32 s22, s22, s37'); A('v_add_u32 v1, s22, v1')
        wait_words(A, 1, t0, fail, cnt='s30', sleep=12)
    A.label(Lro)

def ypack(A, ACC, T):
    for ct in range(2):
        for hpl in range(2):
            d = ACC + 4*(hpl*2+ct); t = T + 2*(hpl*2+ct)
            A(f'v_cvt_pk_bf16_f32 {v(t)}, {v(d)}, {v(d+1)}'); A(f'v_cvt_pk_bf16_f32 {v(t+1)}, {v(d+2)}, {v(d+3)}')
            A(f'ds_write_b32 v13, {v(t)} offset:{(ct*2+hpl)*1024}')
            A(f'ds_write_b32 v13, {v(t+1)} offset:{(ct*2+hpl)*1024+8}')

def gen_value(A, st, tag, fail, done, merged_u=False):
    L3 = f'va3_{tag}'
    A('s_cmp_eq_u32 s3, 3'); A(f's_cbranch_scc1 {L3}')
    ACC = 16; SL = [32 + 4*i for i in range(8)]
    W = lambda ti, p: 64 + (ti*14+p)*8
    Lloop = f'va_loop_{tag}'
    A('s_mov_b32 s20, 0')
    A.label(Lloop)
    step_addr(A)
    for k in range(8): A(f'v_mov_b64 {v(ACC+2*k,2)}, 0')
    poll_mem(A, [SL[4], SL[6]][:VMSETS], fail)
    Q = Lds(A)
    slot = {}; free = [0, 1, 2, 3]; nxt = [0]
    def rd():
        p = nxt[0]
        if p > 13 or not free: return
        sl = free.pop(0); slot[p] = sl; nxt[0] += 1
        Q.op(('r', p), f'ds_read_b128 {v(SL[sl],4)}, v8 offset:{p*512}')
    for _ in range(4): rd()
    for p in range(14):
        Q.need(('r', p))
        for ti in range(4): smf(A, ACC+4*ti, SL[slot[p]], W(ti, p))
        free.append(slot[p]); rd()
    A.nop(8)
    ypack(A, ACC, SL[0])
    stamp(A, 2)
    A('s_waitcnt lgkmcnt(0)')
    A('s_barrier')
    A('s_barrier')
    stamp_flush(A, 8, 0, 1)
    A('s_add_u32 s20, s20, 1')
    A(f's_cmp_lt_u32 s20, {NSTEP}')
    A(f's_cbranch_scc1 {Lloop}')
    A(f's_branch {done}')
    A.label(L3)
    ACC = 16; SL = [32 + 4*i for i in range(4)]; TM = [48, 56, 64, 72]
    PS = [32, 80]
    UB = lambda hp, ct: 128 + (hp*2+ct)*8
    W = lambda ti, p: 256 + (ti*14+p)*8
    YB = lambda e, ct: 480 + (e*2+ct)*8
    Lloop = f'va3_loop_{tag}'
    A('s_mov_b32 s20, 0')
    A.label(Lloop)
    step_addr(A)
    for k in range(8): A(f'v_mov_b64 {v(ACC+2*k,2)}, 0')
    if merged_u: ucheck(A, fail, 80)
    poll_mem(A, [80, 88][:VMSETS], fail)
    Q = Lds(A)
    slot = {}; free = [0, 1, 2, 3]; nxt = [0]
    def rd():
        p = nxt[0]
        if p > 13 or not free: return
        sl = free.pop(0); slot[p] = sl; nxt[0] += 1
        Q.op(('r', p), f'ds_read_b128 {v(SL[sl],4)}, v8 offset:{p*512}')
    def ldsw(n):
        if n > 27: return
        t = TM[n % 4]
        Q.op(('wa', n), f'ds_read_b128 {v(t,4)}, v11 offset:{n*2048}')
        Q.op(('wb', n), f'ds_read_b128 {v(t+4,4)}, v11 offset:{n*2048+1024}')
    for _ in range(3): rd()
    for n in range(4): ldsw(n)
    rd()
    uq = []
    for hp in range(8):
        uq.append(f's_add_u32 s23, s36, {hp*14*4096}')
        for j in range(4): uq.append(f'buffer_load_dwordx4 {v(UB(hp,0)+4*j,4)}, v12, s[4:7], s23 offen offset:{j*1024}')
    for p in range(14):
        Q.need(('r', p))
        for ti in range(2):
            smf(A, ACC+4*ti, SL[slot[p]], W(ti, p))
            for _ in range(2):
                if uq: A(uq.pop(0))
        for ct in range(2):
            n = 2*p+ct
            Q.need(('wb', n))
            smf(A, ACC+8+4*ct, SL[slot[p]], TM[n % 4])
            ldsw(n+4)
        free.append(slot[p]); rd()
    assert not uq
    if not DBG_U0: A(f's_add_u32 s36, s36, {16*28*1024}')
    A.nop(8)
    ypack(A, ACC, SL[0])
    stamp(A, 2)
    A('s_waitcnt lgkmcnt(0)')
    A('s_barrier')
    for e in range(2):
        for ct in range(2):
            for u in range(2):
                A(f'ds_read_b128 {r(YB(e,ct)+4*u,4)}, v12 offset:{YL+((e*2+ct)*2+u)*1024}')
    D = [ACC, ACC+4]
    for kk in range(4): A(f'v_mov_b64 {v(ACC+2*kk,2)}, 0')
    wait_flag(A, 7, 's47', 's44', [PS[0]+k for k in range(4)], fail, 3)
    stamp(A, 6)
    if PROFILE: A('s_mov_b32 s64, 0')
    A('s_waitcnt lgkmcnt(0)')
    A('s_add_u32 s22, s26, 4096'); A('s_add_u32 s23, s26, 8192')
    A('s_add_u32 s18, s45, 4096'); A('s_add_u32 s19, s45, 8192')
    def issue(k):
        so = ('s26', 's22', 's23') if k == 0 else ('s45', 's18', 's19')
        for i in range(10):
            A(f'buffer_load_dwordx4 {v(PS[k]+4*i,4)}, v12, s[4:7], {so[i//4]} offen offset:{(i%4)*1024} sc1')
    L = A.newlabel('pp'); Lf = A.newlabel('ppf')
    def attempt(k, younger):
        Lskip = A.newlabel('ps'); b = PS[k]
        if EWMI < 0: store_flag(A, 6, 's40', st, 1); younger += 1
        A(f's_waitcnt vmcnt({younger+9})')
        if PROFILE: A('s_add_u32 s64, s64, 1')
        A(f'v_or3_b32 v0, {v(b)}, {v(b+1)}, {v(b+2)}'); A(f'v_or_b32 v0, v0, {v(b+3)}')
        A('v_and_b32 v1, 0x80008000, v0')
        A('v_cmp_ne_u32 vcc, 0, v1')
        A(f's_cbranch_vccnz {Lskip}')
        for i in range(10):
            x = b+4*i
            if i: A(f's_waitcnt vmcnt({younger+9-i})')
            for ct in range(2):
                smf(A, D[ct], x, UB(i, ct) if i < 8 else YB(i-8, ct))
                if i: A(f'v_or3_b32 v0, v0, {v(x+2*ct)}, {v(x+2*ct+1)}')
            if i == EWMI: store_flag(A, 6, 's40', st, 1); younger += 1
        A('v_and_b32 v0, 0x80008000, v0')
        A('v_cmp_ne_u32 vcc, 0, v0')
        A(f's_cbranch_vccz {Lf}')
        A.nop(6)
        for kk in range(4): A(f'v_mov_b64 {v(ACC+2*kk,2)}, 0')
        A('s_waitcnt vmcnt(0)')
        A.label(Lskip)
        A(f's_waitcnt vmcnt({younger-1 if EWMI >= 0 else 0})')
    A(f's_mov_b32 s30, {SPIN}')
    if RING:
        so = ('s26', 's22', 's23'); b = PS[0]
        ld = lambda i: A(f'buffer_load_dwordx4 {v(b+4*i,4)}, v12, s[4:7], {so[i//4]} offen offset:{(i%4)*1024} sc1')
        A('s_mov_b32 s18, 0')
        for i in range(10):
            ld(i)
            if RSP: A.nop(RSP)
        A.label(L)
        for i in range(10):
            x = b+4*i; Ln = A.newlabel('rn')
            A('s_waitcnt vmcnt(9)')
            A(f'v_or3_b32 v0, {v(x)}, {v(x+1)}, {v(x+2)}')
            A(f'v_or_b32 v0, v0, {v(x+3)}')
            A(f's_bitcmp1_b32 s18, {i}')
            A(f's_cbranch_scc1 {Ln}')
            A('v_and_b32 v0, 0x80008000, v0')
            A('v_cmp_ne_u32 vcc, 0, v0')
            A(f's_cbranch_vccnz {Ln}')
            for ct in range(2): smf(A, D[ct], x, UB(i, ct) if i < 8 else YB(i-8, ct))
            Lnf = A.newlabel('rf')
            A('s_cmp_lg_u32 s18, 0'); A(f's_cbranch_scc1 {Lnf}')
            store_flag(A, 6, 's40', st, 1)
            A(f's_bitset1_b32 s18, {i}')
            A(f's_branch {Ln}x')
            A.label(Lnf)
            A(f's_bitset1_b32 s18, {i}')
            A('s_cmp_eq_u32 s18, 0x3ff'); A(f's_cbranch_scc1 {Lf}')
            A.label(Ln)
            ld(i)
            A.label(Ln+'x')
    elif PSETS == 2:
        issue(0)
        A.nop(STAGP)
        A.label(L)
        issue(1); attempt(0, 10)
        issue(0); attempt(1, 10)
    else:
        pass
    if RING or PSETS == 2:
        A('s_sub_u32 s30, s30, 1')
        A('s_cmp_lg_u32 s30, 0')
        A(f's_cbranch_scc1 {L}')
        A(f's_branch {fail}')
    else:
        b = PS[0]; Lq = A.newlabel('pq'); Ll = A.newlabel('pl')
        A.label(L)
        issue(0)
        store_flag(A, 6, 's40', st, 1)
        A('s_waitcnt vmcnt(10)')
        if PROFILE: A('s_add_u32 s64, s64, 1')
        A(f'v_or3_b32 v0, {v(b)}, {v(b+1)}, {v(b+2)}'); A(f'v_or_b32 v0, v0, {v(b+3)}')
        A('v_and_b32 v1, 0x80008000, v0')
        A('v_cmp_ne_u32 vcc, 0, v1')
        A(f's_cbranch_vccnz {Lq}')
        for i in range(10):
            x = b+4*i
            if i: A(f's_waitcnt vmcnt({10-i})')
            for ct in range(2):
                smf(A, D[ct], x, UB(i, ct) if i < 8 else YB(i-8, ct))
                if i: A(f'v_or3_b32 v0, v0, {v(x+2*ct)}, {v(x+2*ct+1)}')
        A('v_and_b32 v0, 0x80008000, v0')
        A('v_cmp_ne_u32 vcc, 0, v0')
        A(f's_cbranch_vccnz {Ll}')
        def ool():
            A.label(Ll)
            A.nop(6)
            for kk in range(4): A(f'v_mov_b64 {v(ACC+2*kk,2)}, 0')
            A.label(Lq)
            A('s_waitcnt vmcnt(0)')
            A('s_sub_u32 s30, s30, 1'); A('s_cmp_lg_u32 s30, 0'); A(f's_cbranch_scc1 {L}')
            A(f's_branch {fail}')
        OOL.append(ool)
    A.label(Lf)
    stamp(A, 3)
    A.nop(5)
    for ct in range(2):
        A(f'v_permlane32_swap_b32 {v(D[ct])}, {v(D[ct]+1)}'); A(f'v_permlane32_swap_b32 {v(D[ct]+2)}, {v(D[ct]+3)}')
    for t in range(2):
        for ct in range(2): A(f'v_add_f32 {v(D[ct]+2*t)}, {v(D[ct]+2*t)}, {v(D[ct]+2*t+1)}')
    O = ACC+8
    for t in range(2): A(f'v_cvt_pk_bf16_f32 {v(O+t)}, {v(D[0]+2*t)}, {v(D[1]+2*t)}')
    for t in range(2): A(f'v_min_u32 {v(O+t)}, 0xfffffffe, {v(O+t)}')
    def mstore(reg2, so, fl):
        for t in range(2): A(f'buffer_store_dword {v(reg2[t])}, v15, s[4:7], {so} offen offset:{32*t}{fl}')
    mstore([O, O+1], 's28', st)
    A('s_add_u32 s28, s28, 8192')
    mstore([O, O+1], 's28', st)
    stamp(A, 4); stamp(A, 5)
    A('s_barrier')
    A(f'v_mov_b32 {v(O+2)}, -1')
    mstore([O+2, O+2], 's29', st)
    A('s_add_u32 s29, s29, 8192')
    mstore([O+2, O+2], 's29', st)
    mstore([O, O+1], 's39', st)
    Lnx = A.newlabel('vnx')
    if merged_u:
        A(f's_cmp_lg_u32 s20, {NSTEP-1}'); A(f's_cbranch_scc1 {Lnx}')
        A(f's_mov_b32 s22, {MEMG2+63*8192}')
        mstore([O, O+1], 's22', ' sc1')
    A.label(Lnx)
    stamp_flush(A, 8, 0, 1)
    A('s_add_u32 s39, s39, 8192')
    A('s_add_u32 s20, s20, 1')
    A(f's_cmp_lt_u32 s20, {NSTEP}')
    A(f's_cbranch_scc1 {Lloop}')
    A(f's_branch {done}')

def value_setup(A, fail=None):
    TS = 14*1024; HS = 28*TS
    A(f's_mul_i32 s18, s3, {4*HS}')
    A(f's_mul_i32 s22, s17, {2*TS}')
    A('s_add_u32 s18, s18, s22')
    A(f's_add_u32 s18, s18, {NC}')
    A('v_lshlrev_b32 v12, 4, v0')
    A('s_mov_b32 s33, 0')
    A('s_lshl_b32 s37, s17, 8'); A(f's_add_u32 s37, s37, {UFL}')
    def prew(hpl):
        if not fail: return
        A('s_lshl_b32 s19, s3, 2'); A(f's_add_u32 s19, s19, {16+2*hpl}'); A('s_lshl_b32 s19, s19, 3'); A('s_lshr_b32 s22, s17, 1'); A('s_add_u32 s19, s19, s22'); A('s_lshl_b32 s19, s19, 7')
        mnf_addr(A, 13, 11, 's19')
        wait_words(A, 13, 11, fail, sleep=16)
    off = lambda ti: ((2*(ti >> 1))*HS+(ti & 1)*TS, (2*(ti >> 1)+1)*HS+(ti & 1)*TS)
    Lw3 = A.newlabel('vw3'); Ld = A.newlabel('vwd')
    A('s_cmp_eq_u32 s3, 3'); A(f's_cbranch_scc1 {Lw3}')
    load_tiles(A, [((lambda p, ti=ti: 64 + (ti*14+p)*8), *off(ti), range(14)) for ti in (2, 3, 0, 1)], pre=lambda n: prew(1-n//2) if n % 2 == 0 else None)
    A(f's_branch {Ld}')
    A.label(Lw3)
    A(f'v_add_u32 v14, {WL}, v12')
    def early():
        if not fail: return
        A('v_mov_b32 v15, v0'); A('s_mov_b32 s20, 0')
        ucheck(A, fail, 16, once=True)
        A('v_mov_b32 v0, v15'); A('v_lshlrev_b32 v1, 4, v0')
    def post(g):
        if g < 256:
            n = (g-32)//8; ct, p = n // 14, n % 14
            A(f'ds_write_b128 v14, {v(g,4)} offset:{(p*2+ct)*2048}')
            A(f'ds_write_b128 v14, {v(g+4,4)} offset:{(p*2+ct)*2048+1024}')
    load_tiles(A, [((lambda p, ct=ct: 32 + (ct*14+p)*8), *off(2+ct), range(14)) for ct in range(2)] +
                  [((lambda p, ti=ti: 256 + (ti*14+p)*8), *off(ti), range(14)) for ti in range(2)], post, pre=lambda n: prew(1-n//2) if n % 2 == 0 else None, issued=early)
    A('s_waitcnt lgkmcnt(0)')
    A.label(Ld)
    A('s_lshr_b32 s22, s3, 1'); A('s_lshl_b32 s22, s22, 12'); A('s_and_b32 s23, s3, 1'); A('s_lshl_b32 s23, s23, 2'); A('s_add_u32 s22, s22, s23')
    A(f's_add_u32 s22, s22, {YL}'); A('v_add_u32 v13, s22, v12')
    A('v_and_b32 v11, 15, v0'); A('v_lshlrev_b32 v7, 2, v11')
    if SSF: A('v_mov_b32 v7, 0')
    A('v_and_b32 v11, 12, v0'); A('v_lshlrev_b32 v15, 5, v11')
    A('v_and_b32 v11, 3, v0'); A('v_lshl_add_u32 v15, v11, 2, v15')
    A('v_and_b32 v11, 16, v0'); A('v_lshl_add_u32 v15, v11, 2, v15')
    A('v_lshrrev_b32 v11, 5, v0'); A('v_lshl_add_u32 v15, v11, 4, v15')
    A('s_lshl_b32 s23, s17, 9'); A('v_add_u32 v15, s23, v15')
    A('s_lshl_b32 s23, s17, 2'); A('v_lshlrev_b32 v6, 7, v0'); A('v_add_u32 v6, s23, v6')
    A('s_lshl_b32 s36, s17, 12'); A(f's_add_u32 s36, s36, {UF}')
    A(f's_mov_b32 s39, {MEMG+8192}')

def value_setup2(A):
    A(f'v_add_u32 v11, {WL}, v12')

def mode_exchange(A, va=8, vb=9):
    srd(A, 8, 96, 256)
    A('s_getreg_b32 s12, hwreg(HW_REG_XCC_ID)')
    A('s_and_b32 s12, s12, 15')
    A('s_add_u32 s12, s12, 1')
    A(f'v_mov_b32 {v(va)}, s12')
    A('s_lshl_b32 s13, s15, 2')
    A(f'v_mov_b32 {v(vb)}, s13')
    A('s_waitcnt lgkmcnt(0)')
    A(f'buffer_store_dword {v(va)}, {v(vb)}, s[8:11], 0 offen sc1')

def mode_gather(A, fail):
    A(f'v_min_u32 v1, {NROLE-1}, v0')
    A('v_lshlrev_b32 v1, 2, v1')
    L = A.newlabel('mg')
    A(f's_mov_b32 s30, {SPIN}')
    A.label(L)
    A('buffer_load_dword v11, v1, s[8:11], 0 offen sc1')
    A('s_sub_u32 s30, s30, 1')
    A('s_cmp_eq_u32 s30, 0')
    A(f's_cbranch_scc1 {fail}')
    A('s_waitcnt vmcnt(0)')
    A('v_cmp_eq_u32 vcc, 0, v11')
    A(f's_cbranch_vccnz {L}')
    A('v_cmp_ne_u32 vcc, s12, v11')
    A('s_cmp_eq_u64 vcc, 0')
    A('s_cselect_b32 s14, 1, 0')

def gen_forwarders(A, fail, done):
    A('s_sub_u32 s17, s15, 30'); A('s_lshl_b32 s17, s17, 2'); A('s_add_u32 s17, s17, s3')
    A('v_lshlrev_b32 v6, 7, v0')
    A('v_lshlrev_b32 v12, 4, v0')
    A('s_cmp_lg_u32 s17, 0')
    A('s_cbranch_scc1 fw_pf')
    A('s_mov_b32 s20, 1')
    A(f's_mov_b32 s22, {HINT}')
    A.label('fw_m_loop')
    A('s_lshl_b32 s24, s20, 13'); A(f's_add_u32 s26, s24, {MEMG2}'); A(f's_add_u32 s24, s24, {MEMG}')
    A('s_add_u32 s25, s24, 4096'); A('s_add_u32 s27, s26, 4096')
    A(f's_mov_b32 s30, {SPIN*4}')
    A.label('fw_m_poll')
    for j in range(7):
        A(f'buffer_load_dwordx4 {v(16+4*j,4)}, v12, s[4:7], {"s24" if j < 4 else "s25"} offen offset:{(j%4)*1024} sc1')
    A('s_sub_u32 s30, s30, 1'); A('s_cmp_eq_u32 s30, 0'); A(f's_cbranch_scc1 {fail}')
    A('s_waitcnt vmcnt(0)')
    A('v_max_u32 v1, v16, v17')
    for j in range(1, 14): A(f'v_max3_u32 v1, v1, {v(16+2*j)}, {v(17+2*j)}')
    A('v_cmp_eq_u32 vcc, -1, v1')
    A('s_cbranch_vccz fw_m_ok')
    A('s_sleep 2')
    A('s_branch fw_m_poll')
    A.label('fw_m_ok')
    for j in range(7):
        A(f'buffer_store_dwordx4 {v(16+4*j,4)}, v12, s[4:7], {"s26" if j < 4 else "s27"} offen offset:{(j%4)*1024} sc1')
    A('s_waitcnt vmcnt(0)')
    A('v_mov_b32 v1, s20'); A('s_mov_b64 exec, 0xffff')
    A('buffer_store_dword v1, v6, s[4:7], s22 offen sc1'); A('s_mov_b64 exec, -1')
    A('s_add_u32 s20, s20, 1'); A('s_cmp_lt_u32 s20, 64'); A('s_cbranch_scc1 fw_m_loop')
    A(f's_branch {done}')
    A.label('fw_pf')
    if not PREF: A(f's_branch {done}')
    A('s_cmp_lg_u32 s17, 4'); A(f's_cbranch_scc1 {done}')
    A('v_mov_b32 v13, 0')
    wait_words(A, 13, 11, fail, srd_='s[8:11]', cnt='s30', ln=(14, 16), sleep=16)
    A(f's_mov_b32 s30, {SPIN*4}')
    A('s_mov_b32 s20, 0')
    A('v_mov_b32 v7, 0')
    A.label('fw_pf_loop')
    A('s_mov_b64 exec, 1')
    A('buffer_load_dword v16, v7, s[4:7], s46 offen sc1')
    A('s_mov_b64 exec, -1')
    A('s_waitcnt vmcnt(0)')
    A('v_readfirstlane_b32 s21, v16')
    A('s_cmp_ge_u32 s20, 63'); A(f's_cbranch_scc1 {done}')
    A(f's_add_u32 s22, s21, {PREF}')
    A('s_cmp_gt_u32 s20, s22'); A('s_cbranch_scc1 fw_pf_idle')
    A('s_mul_i32 s24, s20, 28672'); A(f's_add_u32 s24, s24, {XNS}')
    for j in range(7):
        for sub in range(4): A(f'buffer_load_dwordx4 {v(16+4*sub,4)}, v12, s[4:7], s24 offen offset:{sub*1024}')
        A('s_add_u32 s24, s24, 4096')
    A('s_add_u32 s20, s20, 1')
    A('s_branch fw_pf_loop')
    A.label('fw_pf_idle')
    A('s_sleep 8')
    A('s_sub_u32 s30, s30, 1'); A('s_cmp_eq_u32 s30, 0'); A(f's_cbranch_scc1 {done}')
    A('s_branch fw_pf_loop')

def gen_chain_body(A, fail, done, merged=False, fused=False):
    if fused:
        import p0
        srd(A, 36, 0, 2048*448*2)
        A('s_lshl_b32 s32, s15, 2'); A('s_add_u32 s32, s32, s3')
        def hook():
            p0.ph_zero_flags(A)
            A('s_waitcnt vmcnt(0)'); A('s_barrier')
            mode_exchange(A, 184, 185)
            tstamp(A, 3, 186, 187)
        def wi():
            A('v_and_b32 v5, 31, v0'); A('v_lshlrev_b32 v5, 2, v5')
            wait_words(A, 5, 1, fail, srd_='s[8:11]')
        p0.ph_ln(A, 32, wi, xsrd='s[36:39]', hook=hook)
        tstamp(A, 4, 12, 13)
        A('s_cmp_lt_u32 s15, 30'); A('s_cbranch_scc1 ch_noinit')
        p0.ph_init(A)
        A('s_sub_u32 s16, s15, 30'); A('s_lshl_b32 s16, s16, 2'); A('s_add_u32 s16, s16, s3'); A('s_min_u32 s16, s16, 6'); A('s_lshl_b32 s16, s16, 9')
        for half in range(2):
            A(f's_add_u32 s17, s16, {FFL + half*256}'); A('v_lshlrev_b32 v16, 2, v0'); A('v_add_u32 v16, s17, v16')
            wait_words(A, 16, 17, fail, sleep=16)
        A('s_barrier')
        A('v_mov_b32 v16, 1'); A('s_add_u32 s13, s13, 128'); A('v_mov_b32 v17, s13')
        A('buffer_store_dword v16, v17, s[8:11], 0 offen sc1')
        A.label('ch_noinit')
    else: mode_exchange(A)
    common_setup(A)
    stamp_init(A)
    mode_gather(A, fail)
    A('v_lshlrev_b32 v1, 4, v0')
    def wait_ring(va, vd, ln=None):
        if not fused: return
        A(f'v_and_b32 {v(va)}, 1, v0'); A(f'v_lshlrev_b32 {v(va)}, 2, {v(va)}'); A(f'v_add_u32 {v(va)}, {128+120}, {v(va)}')
        wait_words(A, va, vd, fail, srd_='s[8:11]', cnt='s30', ln=ln)
    if merged:
        A('s_cmp_lt_u32 s15, 30'); A('s_cbranch_scc1 ch_main')
        wait_ring(13, 11)
        gen_forwarders(A, fail, done)
        A.label('ch_main')
    A('s_cmp_ge_u32 s15, 16')
    A('s_cbranch_scc1 ch_value')
    A('s_mov_b32 s17, s15')
    score_weights(A, fail if fused else None)
    x_addrs(A)
    wait_ring(13, 11, ln=(12, 14))
    tstamp(A, 1, 12, 13)
    A('s_cmp_eq_u32 s14, 0')
    A('s_cbranch_scc1 ch_score_slow')
    gen_score(A, '', 'f', fail, done); flush_ool(A)
    A.label('ch_score_slow')
    gen_score(A, ' sc1', 's', fail, done); flush_ool(A)
    A.label('ch_value')
    A('s_sub_u32 s17, s15, 16')
    value_setup(A, fail if fused else None)
    wait_ring(16, 17)
    tstamp(A, 1, 16, 17)
    value_setup2(A)
    tstamp(A, 2, 16, 17)
    A('s_cmp_eq_u32 s14, 0')
    A('s_cbranch_scc1 ch_value_slow')
    gen_value(A, '', 'f', fail, done, merged); flush_ool(A)
    A.label('ch_value_slow')
    gen_value(A, ' sc1', 's', fail, done, merged); flush_ool(A)

def gen_k3(A):
    A.label('k3_kernel')
    A('s_and_b32 s15, s2, 7')
    A('s_cmp_lg_u32 s15, 0')
    A('s_cbranch_scc1 k3_end')
    A('s_lshr_b32 s15, s2, 3')
    A('s_cmp_ge_u32 s15, 30')
    A('s_cbranch_scc1 k3_end')
    prologue(A)
    gen_chain_body(A, 'k3_end', 'k3_end')
    A.label('k3_end')
    A('s_endpgm')
    return dict(name='k3_kernel', grid=256, block=256, lds=CHAIN_LDS, vgpr=256, sgpr=72, agpr=256)
```

```python
from asmlib import *
from layout import *
from k1 import sdivmod, srd, SZ_X, reformat
from wk import prologue, wsgemm, tstamp, wait_words
import p0
FUSED = True
KNAME = 'k2_kernel'
import chain, wk2
from wk2 import spin_wait, phase_f2, phase_s, phase_o, phase_yw

NS = 128
def set_flag(A, ph, release=False):
    A('s_waitcnt vmcnt(0)')
    A('s_barrier')
    Ls = A.newlabel('sf')
    A('s_cmp_lg_u32 s3, 0'); A(f's_cbranch_scc1 {Ls}')
    if release:
        Lr = A.newlabel('sfr')
        A('s_cmp_ge_u32 s96, 74'); A(f's_cbranch_scc1 {Lr}')
        A('buffer_wbl2 sc1'); A('s_waitcnt vmcnt(0)')
        A.label(Lr)
    A('v_mov_b32 v2, 1')
    A('s_lshl_b32 s16, s96, 2'); A(f's_add_u32 s16, s16, {WFL + ph*1024}')
    A('v_mov_b32 v3, 0')
    A('s_mov_b64 exec, 1')
    A('buffer_store_dword v2, v3, s[4:7], s16 offen sc1')
    A('s_mov_b64 exec, -1')
    A.label(Ls)

def wait_flags(A, ph, fail, vt=2, sleep=16):
    Lw = A.newlabel('wfl')
    A('s_cmp_lg_u32 s3, 0'); A(f's_cbranch_scc1 {Lw}')
    A(f'v_mbcnt_lo_u32_b32 {v(vt)}, -1, 0'); A(f'v_mbcnt_hi_u32_b32 {v(vt)}, -1, {v(vt)}')
    A(f'v_min_u32 {v(vt)}, 55, {v(vt)}'); A(f'v_lshlrev_b32 {v(vt)}, 4, {v(vt)}')
    A(f's_mov_b32 s16, {WFL + ph*1024}')
    d = vt + 2 if (vt + 2) % 2 == 0 else vt + 1
    def chk():
        A(f'v_min3_u32 {v(vt+1) if d != vt+1 else v(d)}, {v(d)}, {v(d+1)}, {v(d+2)}') if False else None
        A(f'v_min_u32 {v(d)}, {v(d)}, {v(d+1)}'); A(f'v_min3_u32 {v(d)}, {v(d)}, {v(d+2)}, {v(d+3)}')
        A(f'v_cmp_eq_u32 vcc, 0, {v(d)}')
    spin_wait(A, lambda: A(f'buffer_load_dwordx4 {v(d,4)}, {v(vt)}, s[4:7], s16 offen sc1'), chk, fail, sleep=sleep)
    A.label(Lw)
    A('s_barrier')

def gen_k2(A):
    A.label(KNAME)
    A('s_cmp_ge_u32 s2, 256')
    A('s_cbranch_scc1 k2_end')
    prologue(A)
    tstamp(A, 0, 2, 3)
    A('s_and_b32 s16, s2, 7')
    A('s_lshr_b32 s15, s2, 3')
    A('s_cmp_lg_u32 s16, 0')
    A('s_cbranch_scc1 k2_worker')
    chain.NROLE = 32
    chain.gen_chain_body(A, 'k2_end', 'k2_end', merged=True, fused=FUSED)
    A.label('k2_worker')
    A('s_mul_i32 s96, s15, 7'); A('s_add_u32 s96, s96, s16'); A('s_sub_u32 s96, s96, 1')
    A('s_sub_u32 s91, s16, 1'); A('s_mov_b32 s92, s15')
    srd(A, 8, 0, SZ_X); srd(A, 12, 88, SZ_X)
    if FUSED:
        srd(A, 44, 96, 256)
        def wait_init():
            A('v_and_b32 v5, 31, v0'); A('v_lshlrev_b32 v5, 2, v5')
            wait_words(A, 5, 1, 'k2_end', srd_='s[44:47]')
        p0.ph_mn(A, wait_init)
        tstamp(A, 5, 2, 3)
    wsgemm(A, 'U', wid=96, st_flags=' sc1', fail='k2_end' if FUSED else None)
    reformat(A, 96, '')
    set_flag(A, 3, release=True)
    tstamp(A, 1, 2, 3)
    wait_flags(A, 3, 'k2_end')
    wsgemm(A, 'F1', wid=96, st_flags=' sc1')
    set_flag(A, 1)
    tstamp(A, 2, 2, 3)
    wait_flags(A, 1, 'k2_end')
    tstamp(A, 3, 2, 3)
    phase_f2(A, 96, st=' sc1')
    set_flag(A, 2)
    tstamp(A, 4, 2, 3)
    A('s_mov_b32 s93, 0')
    if chain.DBG_NOITEM: A('s_branch k2_end')
    A('s_cmp_lt_u32 s92, 28')
    A('s_cbranch_scc1 k2_so')
    A('s_sub_u32 s32, s92, 28'); A('s_lshl_b32 s33, s91, 2'); A('s_add_u32 s32, s32, s33')
    phase_yw(A, 32, 'k2_end')
    A('s_branch k2_end')
    A.label('k2_so')
    A('s_cmp_ge_u32 s92, 19')
    A('s_cbranch_scc1 k2_ow')
    A('s_mul_i32 s97, s91, 19'); A('s_add_u32 s97, s97, s92')
    A('s_cmp_ge_u32 s97, 128'); A('s_cbranch_scc1 k2_end')
    A('s_lshr_b32 s32, s97, 3'); A('s_and_b32 s33, s97, 7')
    A.label('k2_sitem')
    phase_s(A, 32, 33, 'k2_end', True)
    tstamp(A, 6, 2, 3, sreg=93)
    A('s_add_u32 s93, s93, 1')
    A('s_add_u32 s33, s33, 8')
    A('s_cmp_lt_u32 s33, 16')
    A('s_cbranch_scc1 k2_sitem')
    A('s_branch k2_end')
    A.label('k2_ow')
    wait_flags(A, 2, 'k2_end')
    A('s_sub_u32 s34, s92, 19'); A('s_mov_b32 s35, s91')
    A.label('k2_oitem')
    phase_o(A, 34, 35, 'k2_end', True)
    tstamp(A, 6, 2, 3, sreg=93)
    A('s_add_u32 s93, s93, 1')
    A('s_add_u32 s34, s34, 9')
    A('s_cmp_lt_u32 s34, 64')
    A('s_cbranch_scc1 k2_oitem')
    A.label('k2_end')
    A('s_endpgm')
    return dict(name=KNAME, grid=256, block=256, lds=163840, vgpr=256, sgpr=100, agpr=256)
```

```python
from asmlib import *
from layout import *
from k1 import sdivmod, srd, SZ_X, SZ_MEM0, SZ_W
import wk
def mst(A, i):
    if wk.TS: A(f's_memrealtime {s(70+2*i,2)}')
K1_NI = 32
def p0_common(A):
    A('v_lshrrev_b32 v2, 4, v0')
    A('v_and_b32 v3, 15, v0')
    A('v_lshlrev_b32 v4, 4, v0')
    A('s_mov_b32 s20, 0x05040100')
    A('s_mov_b32 s21, 0x07060302')

def fill(A, nm, lo, hi, reg, vaddr, sidx, nwg):
    assert (hi-lo) % 4096 == 0
    A(f's_lshl_b32 s17, {sidx}, 12'); A(f's_add_u32 s17, s17, {lo}')
    A.label('k1_fill'+nm)
    A(f's_cmp_ge_u32 s17, {hi}')
    A('s_cbranch_scc1 k1_fille'+nm)
    A(f'buffer_store_dwordx4 {v(reg,4)}, {v(vaddr)}, s[4:7], s17 offen sc1')
    A(f's_add_u32 s17, s17, {4096*nwg}')
    A('s_branch k1_fill'+nm)
    A.label('k1_fille'+nm)

def ph_zero_flags(A):
    A('s_lshl_b32 s18, s3, 10'); A('v_lshlrev_b32 v188, 4, v0'); A('v_add_u32 v188, s18, v188')
    for k in range(4): A(f'v_mov_b32 {v(184+k)}, 0')
    fill(A, 'c', FLAGS, PROF, 184, 188, 's15', 32)

def ph_init(A):
    p0_common(A)
    srd(A, 36, 8, SZ_MEM0)
    A('s_lshl_b32 s16, s3, 6')
    A('v_add_u32 v5, s16, v0')
    A('v_mov_b32 v8, -1'); A('v_mov_b32 v9, -1'); A('v_mov_b32 v10, -1'); A('v_mov_b32 v11, -1')
    A('v_lshlrev_b32 v6, 4, v5')
    A('s_sub_u32 s22, s15, 30')
    A('s_waitcnt lgkmcnt(0)')
    A('s_cmp_lg_u32 s22, 0')
    A('s_cbranch_scc1 k1_iend')
    for it in range(2):
        A(f'v_add_u32 v7, {256*it}, v5')
        A('v_and_b32 v16, 7, v7')
        A('v_mul_u32_u24 v16, 896, v16')
        A('v_lshrrev_b32 v17, 3, v7')
        A('v_lshl_add_u32 v16, v17, 4, v16')
        A('v_lshlrev_b32 v17, 4, v7')
        A('v_cmp_gt_u32 vcc, 448, v7')
        A('s_and_saveexec_b64 s[18:19], vcc')
        Ls = A.newlabel('k1_skip')
        A(f's_cbranch_execz {Ls}')
        A('buffer_load_dwordx4 v[20:23], v16, s[36:39], 0 offen')
        A('s_waitcnt vmcnt(0)')
        for d in range(4):
            A(f'v_min_u32 {v(20+d)}, 0xfffffffe, {v(20+d)}')
        for cp in range(KC):
            A(f's_mov_b32 s17, {MEMR + cp*8192}')
            A('buffer_store_dwordx4 v[20:23], v17, s[4:7], s17 offen sc1')
        A(f's_mov_b32 s17, {MEMG}')
        A('buffer_store_dwordx4 v[20:23], v17, s[4:7], s17 offen sc1')
        A(f's_mov_b32 s17, {MEMG2}')
        A('buffer_store_dwordx4 v[20:23], v17, s[4:7], s17 offen sc1')
        A('s_waitcnt vmcnt(0)')
        A.label(Ls)
        A('s_mov_b64 exec, s[18:19]')
    A.label('k1_iend')
    A('v_lshlrev_b32 v1, 4, v0')

def ph_ln(A, rt, wait_init, xsrd='s[8:11]', barrier=True, st=' sc1', hook=None):
    p0_common(A)
    A(f's_mov_b32 s16, {s(rt)}')
    A('s_mul_i32 s17, s16, %d' % (16*896))
    A('v_mul_u32_u24 v5, 896, v3')
    A('v_lshl_add_u32 v5, v2, 4, v5')
    A('s_waitcnt lgkmcnt(0)')
    RAW, XF = 8, 64
    for kk in range(14):
        A(f'buffer_load_dwordx4 {v(RAW+4*kk,4)}, v5, {xsrd}, s17 offen offset:{64*kk}')
    A('v_mov_b32 v6, 0')
    A('v_mov_b32 v7, 0')
    if hook: hook()
    for kk in range(14):
        A(f's_waitcnt vmcnt({13-kk})')
        for d in range(4):
            i = 4*kk+d
            A(f'v_lshlrev_b32 {v(XF+2*i)}, 16, {v(RAW+i)}')
            A(f'v_and_b32 {v(XF+2*i+1)}, 0xffff0000, {v(RAW+i)}')
            A(f'v_add_f32 v6, v6, {v(XF+2*i)}')
            A(f'v_add_f32 v7, v7, {v(XF+2*i+1)}')
    def allred(reg, tmp):
        A(f'v_mov_b32 {v(tmp)}, {v(reg)}')
        A('s_nop 1')
        A(f'v_permlane16_swap_b32 {v(reg)}, {v(tmp)}')
        A('s_nop 1')
        A(f'v_add_f32 {v(reg)}, {v(reg)}, {v(tmp)}')
        A(f'v_mov_b32 {v(tmp)}, {v(reg)}')
        A('s_nop 1')
        A(f'v_permlane32_swap_b32 {v(reg)}, {v(tmp)}')
        A('s_nop 1')
        A(f'v_add_f32 {v(reg)}, {v(reg)}, {v(tmp)}')
    A('v_add_f32 v6, v6, v7')
    allred(6, 7)
    import struct
    f2u = lambda f: struct.unpack('<I', struct.pack('<f', f))[0]
    A(f'v_mul_f32 v6, 0x{f2u(1.0/448):08x}, v6')
    A('v_mov_b32 v176, 0')
    A('v_mov_b32 v177, 0')
    for i in range(56):
        A(f'v_sub_f32 v178, {v(XF+2*i)}, v6')
        A(f'v_sub_f32 v179, {v(XF+2*i+1)}, v6')
        A('v_fmac_f32 v176, v178, v178')
        A('v_fmac_f32 v177, v179, v179')
    A('v_add_f32 v176, v176, v177')
    allred(176, 177)
    A(f'v_mul_f32 v176, 0x{f2u(1.0/448):08x}, v176')
    A('v_cvt_pk_bf16_f32 v6, v6, v176')
    A('v_and_b32 v176, 0xffff0000, v6')
    A('v_lshlrev_b32 v6, 16, v6')
    A(f'v_add_f32 v176, 0x{f2u(1e-5):08x}, v176')
    A('v_cvt_pk_bf16_f32 v176, v176, v176')
    A('v_and_b32 v176, 0xffff0000, v176')
    A('v_sqrt_f32 v176, v176')
    A('s_nop 0')
    A('v_cvt_pk_bf16_f32 v176, v176, v176')
    A('v_and_b32 v176, 0xffff0000, v176')
    A('v_rcp_f32 v177, v176')
    A('s_nop 0')
    A('v_fma_f32 v178, -v176, v177, 1.0')
    A('v_fma_f32 v177, v178, v177, v177')
    for i in range(56):
        A(f'v_sub_f32 v178, {v(XF+2*i)}, v6')
        A(f'v_sub_f32 v179, {v(XF+2*i+1)}, v6')
        A('v_cvt_pk_bf16_f32 v178, v178, v179')
        A('v_and_b32 v179, 0xffff0000, v178')
        A('v_lshlrev_b32 v178, 16, v178')
        A('v_mul_f32 v178, v178, v177')
        A('v_mul_f32 v179, v179, v177')
        A(f'v_cvt_pk_bf16_f32 {v(RAW+i)}, v178, v179')
    A('s_mul_i32 s17, s16, %d' % (14*1024))
    A(f's_add_u32 s18, s17, {XNP}')
    if XNF: A(f's_add_u32 s17, s17, {XNF}')
    A('v_and_b32 v5, 1, v2'); A('v_lshlrev_b32 v5, 9, v5')
    A('v_lshrrev_b32 v6, 1, v2'); A('v_lshl_add_u32 v5, v6, 8, v5')
    A('v_lshrrev_b32 v6, 1, v3'); A('v_lshl_add_u32 v6, v6, 4, v5')
    A('v_and_b32 v7, 1, v3'); A('v_lshl_add_u32 v6, v7, 10, v6')
    A('v_cmp_eq_u32 s[22:23], 1, v7')
    A('v_lshl_add_u32 v5, v3, 4, v5')
    A('s_lshr_b32 s19, s16, 1'); A(f's_mul_i32 s19, s19, {28*1024}')
    A('s_and_b32 s24, s16, 1'); A('s_lshl_b32 s24, s24, 7')
    A('s_add_u32 s19, s19, s24'); A(f's_add_u32 s19, s19, {XNS}')
    for kk in range(14):
        if kk % 4 == 0 and kk:
            A('s_add_u32 s17, s17, 4096')
            A('s_add_u32 s18, s18, 4096')
        if kk % 2 == 0 and kk: A('s_add_u32 s19, s19, 4096')
        b = RAW+4*kk
        t = XF + 8*kk
        for d in range(4): A(f'v_mov_b32 {v(t+d)}, {v(b+d)}')
        A('s_nop 1')
        A(f'v_permlane32_swap_b32 {v(t)}, {v(t+2)}')
        A(f'v_permlane32_swap_b32 {v(t+1)}, {v(t+3)}')
        A('s_nop 1')
        A(f'buffer_store_dwordx4 {v(t,4)}, v5, s[4:7], s18 offen offset:{(kk%4)*1024}{st}')
        A(f'v_cndmask_b32 v178, {v(t+2)}, {v(t)}, s[22:23]')
        A(f'v_cndmask_b32 v179, {v(t+3)}, {v(t+1)}, s[22:23]')
        A('s_nop 1')
        A('v_mov_b32_dpp v180, v178 quad_perm:[1,0,3,2] row_mask:0xf bank_mask:0xf')
        A('v_mov_b32_dpp v181, v179 quad_perm:[1,0,3,2] row_mask:0xf bank_mask:0xf')
        A(f'v_cndmask_b32 {v(t+4)}, {v(t)}, v180, s[22:23]')
        A(f'v_cndmask_b32 {v(t+5)}, v180, {v(t+2)}, s[22:23]')
        A(f'v_cndmask_b32 {v(t+6)}, {v(t+1)}, v181, s[22:23]')
        A(f'v_cndmask_b32 {v(t+7)}, v181, {v(t+3)}, s[22:23]')
        A(f'buffer_store_dwordx4 {v(t+4,4)}, v6, s[4:7], s19 offen offset:{(kk%2)*2048}{st}')
    wait_init()
    if not st: A('buffer_wbl2 sc1'); A('s_waitcnt vmcnt(0)')
    A('s_lshl_b32 s17, s16, 2'); A(f's_add_u32 s17, s17, {LNF}')
    A('v_mov_b32 v1, 1'); A('v_mov_b32 v5, 0'); A('s_mov_b64 exec, 1')
    A('buffer_store_dword v1, v5, s[4:7], s17 offen sc1'); A('s_mov_b64 exec, -1')
    A('v_lshlrev_b32 v1, 4, v0')

import struct
f2u = lambda f: struct.unpack('<I', struct.pack('<f', f))[0]
def ln_chunks(rt):
    RAW, T = 136, 192
    M_, V_, R_ = 212, 213, 214; A0, A1, A2 = 216, 217, 218
    C = [[] for _ in range(6)]
    c = C[0]
    c += [f's_mul_i32 s56, {s(rt)}, {16*896}', f'v_mul_u32_u24 {v(A0)}, 896, v3', f'v_lshl_add_u32 {v(A0)}, v2, 4, {v(A0)}']
    c += [('v', f'buffer_load_dwordx4 {v(RAW+4*kk,4)}, {v(A0)}, s[8:11], s56 offen offset:{64*kk}') for kk in range(14)]
    def allred(c, reg, tmp):
        for sw in ('v_permlane16_swap_b32', 'v_permlane32_swap_b32'):
            c += [f'v_mov_b32 {v(tmp)}, {v(reg)}', 's_nop 1', f'{sw} {v(reg)}, {v(tmp)}', 's_nop 1', f'v_add_f32 {v(reg)}, {v(reg)}, {v(tmp)}']
    c = C[1]
    c += [f'v_mov_b32 {v(M_)}, 0', f'v_mov_b32 {v(V_)}, 0']
    for i in range(56):
        c += [f'v_lshlrev_b32 {v(T)}, 16, {v(RAW+i)}', f'v_and_b32 {v(T+1)}, 0xffff0000, {v(RAW+i)}',
              f'v_add_f32 {v(M_)}, {v(M_)}, {v(T)}', f'v_add_f32 {v(V_)}, {v(V_)}, {v(T+1)}']
    c += [f'v_add_f32 {v(M_)}, {v(M_)}, {v(V_)}']; allred(c, M_, V_)
    c += [f'v_mul_f32 {v(M_)}, 0x{f2u(1.0/448):08x}, {v(M_)}']
    c = C[2]
    c += [f'v_mov_b32 {v(V_)}, 0', f'v_mov_b32 {v(R_)}, 0']
    for i in range(56):
        c += [f'v_lshlrev_b32 {v(T)}, 16, {v(RAW+i)}', f'v_and_b32 {v(T+1)}, 0xffff0000, {v(RAW+i)}',
              f'v_sub_f32 {v(T)}, {v(T)}, {v(M_)}', f'v_sub_f32 {v(T+1)}, {v(T+1)}, {v(M_)}',
              f'v_fmac_f32 {v(V_)}, {v(T)}, {v(T)}', f'v_fmac_f32 {v(R_)}, {v(T+1)}, {v(T+1)}']
    c += [f'v_add_f32 {v(V_)}, {v(V_)}, {v(R_)}']; allred(c, V_, R_)
    c += [f'v_mul_f32 {v(V_)}, 0x{f2u(1.0/448):08x}, {v(V_)}', f'v_cvt_pk_bf16_f32 {v(M_)}, {v(M_)}, {v(V_)}',
          f'v_and_b32 {v(V_)}, 0xffff0000, {v(M_)}', f'v_lshlrev_b32 {v(M_)}, 16, {v(M_)}',
          f'v_add_f32 {v(V_)}, 0x{f2u(1e-5):08x}, {v(V_)}', f'v_cvt_pk_bf16_f32 {v(V_)}, {v(V_)}, {v(V_)}', f'v_and_b32 {v(V_)}, 0xffff0000, {v(V_)}',
          f'v_sqrt_f32 {v(V_)}, {v(V_)}', 's_nop 0', f'v_cvt_pk_bf16_f32 {v(V_)}, {v(V_)}, {v(V_)}', f'v_and_b32 {v(V_)}, 0xffff0000, {v(V_)}',
          f'v_rcp_f32 {v(R_)}, {v(V_)}', 's_nop 0', f'v_fma_f32 {v(T)}, -{v(V_)}, {v(R_)}, 1.0', f'v_fma_f32 {v(R_)}, {v(T)}, {v(R_)}, {v(R_)}']
    c += [f's_mul_i32 s56, {s(rt)}, {14*1024}', f's_add_u32 s57, s56, {XNP}'] + ([f's_add_u32 s56, s56, {XNF}'] if XNF else [])
    c += [f'v_lshlrev_b32 {v(A0)}, 4, v0',
          f'v_and_b32 {v(A1)}, 1, v2', f'v_lshlrev_b32 {v(A1)}, 9, {v(A1)}', f'v_lshrrev_b32 {v(A2)}, 1, v2', f'v_lshl_add_u32 {v(A1)}, {v(A2)}, 8, {v(A1)}',
          f'v_lshrrev_b32 {v(A2)}, 1, v3', f'v_lshl_add_u32 {v(A2)}, {v(A2)}, 4, {v(A1)}', f'v_and_b32 {v(T)}, 1, v3', f'v_lshl_add_u32 {v(A2)}, {v(T)}, 10, {v(A2)}',
          f'v_cmp_eq_u32 s[60:61], 1, {v(T)}', f'v_lshl_add_u32 {v(A1)}, v3, 4, {v(A1)}',
          f's_lshr_b32 s58, {s(rt)}, 1', f's_mul_i32 s58, s58, {28*1024}', f's_and_b32 s59, {s(rt)}, 1', 's_lshl_b32 s59, s59, 7', 's_add_u32 s58, s58, s59', f's_add_u32 s58, s58, {XNS}']
    for kk in range(14):
        c = C[3 + min(kk//5, 2)]
        if kk % 4 == 0 and kk: c += ['s_add_u32 s56, s56, 4096', 's_add_u32 s57, s57, 4096']
        if kk % 2 == 0 and kk: c += ['s_add_u32 s58, s58, 4096']
        b = RAW+4*kk; t = T + 8*(kk & 1); x0, x1, x2, x3 = T+16, T+17, T+18, T+19
        for d in range(4):
            i = b+d
            c += [f'v_lshlrev_b32 {v(x0)}, 16, {v(i)}', f'v_and_b32 {v(x1)}, 0xffff0000, {v(i)}',
                  f'v_sub_f32 {v(x0)}, {v(x0)}, {v(M_)}', f'v_sub_f32 {v(x1)}, {v(x1)}, {v(M_)}', f'v_cvt_pk_bf16_f32 {v(x0)}, {v(x0)}, {v(x1)}',
                  f'v_and_b32 {v(x1)}, 0xffff0000, {v(x0)}', f'v_lshlrev_b32 {v(x0)}, 16, {v(x0)}',
                  f'v_mul_f32 {v(x0)}, {v(x0)}, {v(R_)}', f'v_mul_f32 {v(x1)}, {v(x1)}, {v(R_)}', f'v_cvt_pk_bf16_f32 {v(i)}, {v(x0)}, {v(x1)}',
                  f'v_mov_b32 {v(t+d)}, {v(i)}']
        c += [('v', f'buffer_store_dwordx4 {v(b,4)}, {v(A0)}, s[4:7], s56 offen offset:{(kk%4)*1024} sc1'), 's_nop 0',
              f'v_permlane32_swap_b32 {v(t)}, {v(t+2)}', f'v_permlane32_swap_b32 {v(t+1)}, {v(t+3)}', 's_nop 1',
              ('v', f'buffer_store_dwordx4 {v(t,4)}, {v(A1)}, s[4:7], s57 offen offset:{(kk%4)*1024} sc1'),
              f'v_cndmask_b32 {v(x0)}, {v(t+2)}, {v(t)}, s[60:61]', f'v_cndmask_b32 {v(x1)}, {v(t+3)}, {v(t+1)}, s[60:61]', 's_nop 1',
              f'v_mov_b32_dpp {v(x2)}, {v(x0)} quad_perm:[1,0,3,2] row_mask:0xf bank_mask:0xf', f'v_mov_b32_dpp {v(x3)}, {v(x1)} quad_perm:[1,0,3,2] row_mask:0xf bank_mask:0xf',
              f'v_cndmask_b32 {v(t+4)}, {v(t)}, {v(x2)}, s[60:61]', f'v_cndmask_b32 {v(t+5)}, {v(x2)}, {v(t+2)}, s[60:61]',
              f'v_cndmask_b32 {v(t+6)}, {v(t+1)}, {v(x3)}, s[60:61]', f'v_cndmask_b32 {v(t+7)}, {v(x3)}, {v(t+3)}, s[60:61]',
              ('v', f'buffer_store_dwordx4 {v(t+4,4)}, {v(A2)}, s[4:7], s58 offen offset:{(kk%2)*2048} sc1')]
    return C

def mn_decode(A):
    A('s_lshl_b32 s16, s91, 5'); A('s_add_u32 s16, s16, s92')
    sdivmod(A, 32, 19, 16, 7, 224)
    A('s_lshr_b32 s17, s32, 3'); A('s_lshl_b32 s17, s17, 2'); A('s_and_b32 s16, s32, 3'); A('s_add_u32 s17, s17, s16')
    A('s_bfe_u32 s33, s32, 0x10002')

def ph_mn(A, wait_init):
    p0_common(A)
    mn_decode(A)
    ACCS, RB, OUTR = [16, 32], 48, 112
    AFR = lambda t4, ks: 256 + (t4*8+ks)*4
    A('s_lshl_b32 s16, s33, 4'); A('s_add_u32 s16, s16, 16')
    A('s_load_dwordx2 s[36:37], s[0:1], s16')
    A('s_add_u32 s16, s16, 8')
    A('s_load_dwordx2 s[40:41], s[0:1], s16')
    A(f's_mov_b32 s38, {SZ_W}'); A('s_mov_b32 s39, 0x00020000')
    A(f's_mov_b32 s42, {SZ_W}'); A('s_mov_b32 s43, 0x00020000')
    A('s_lshl_b32 s23, s17, 9')
    A('v_lshrrev_b32 v7, 5, v0'); A('v_and_b32 v6, 31, v0')
    A('v_xor_b32 v5, v6, v7'); A('v_lshlrev_b32 v5, 4, v5'); A('v_lshl_add_u32 v5, v7, 13, v5')
    A('v_lshlrev_b32 v6, 4, v6'); A('v_lshl_add_u32 v6, v7, 13, v6')
    A('v_xor_b32 v7, v2, v3'); A('v_lshlrev_b32 v7, 4, v7')
    A('s_lshr_b32 s24, s3, 1'); A('s_lshl_b32 s24, s24, 14'); A('s_and_b32 s25, s3, 1'); A('s_lshl_b32 s25, s25, 9'); A('s_add_u32 s24, s24, s25')
    for q in range(4):
        A(f'v_xor_b32 {v(8+q)}, {64*q}, v7')
        A(f'v_lshl_add_u32 {v(12+q)}, v3, 10, {v(8+q)}'); A(f'v_add_u32 {v(12+q)}, s24, {v(12+q)}')
        A(f'v_lshl_add_u32 {v(8+q)}, v3, 9, {v(8+q)}')
    A('s_lshl_b32 s24, s3, 13')
    A('s_lshl_b32 s34, s33, 4'); A('s_add_u32 s34, s34, s17'); A('s_lshl_b32 s34, s34, 10')
    A('s_lshl_b32 s16, s19, 2'); A('s_add_u32 s16, s16, s3'); A('s_lshl_b32 s16, s16, 2'); A('s_add_u32 s34, s34, s16'); A(f's_add_u32 s34, s34, {MNF}')
    A(f's_mul_i32 s32, s17, {28*14*1024}'); A('s_lshl_b32 s16, s19, 11'); A('s_add_u32 s32, s32, s16')
    A('s_waitcnt lgkmcnt(0)')
    mst(A, 6)
    A('s_lshl_b32 s25, s19, 19'); A('s_lshl_b32 s26, s3, 17'); A('s_add_u32 s25, s25, s26'); A('s_add_u32 s25, s25, s23')
    A('s_mov_b32 m0, s24')
    for j in range(8):
        A(f'v_xor_b32 v1, {32*j}, v5')
        A('buffer_load_dwordx4 v1, s[36:39], s25 offen lds')
        A('s_add_u32 s25, s25, 16384'); A('s_add_u32 m0, m0, 1024')
    A('s_cmp_lg_u32 s33, 0')
    A('s_cbranch_scc1 k1_N')
    def body(isM):
        vq = ['a']*8
        def vneed(name):
            if name not in vq: return
            i = len(vq) - 1 - vq[::-1].index(name)
            A(f's_waitcnt vmcnt({len(vq)-1-i})'); del vq[:i+1]
        BS = [48+k for k in range(7)]
        if isM:
            for k in range(7): A(f's_mov_b32 {s(BS[k])}, {k}')
            A('s_mov_b32 s30, 0x3d800000'); A('s_mov_b32 s31, 0x3d800000')
            A(f's_add_u32 s32, s32, {MC}'); A(f's_mul_i32 s16, s3, 14336'); A('s_add_u32 s32, s32, s16')
            A('s_lshl_b32 s27, s3, 17'); A('s_add_u32 s27, s27, s23')
            A('s_lshl_b32 s28, s3, 7')
            A('s_and_b32 s28, s28, 0xff'); A('v_xor_b32 v6, s28, v6')
        else:
            A('s_lshr_b32 s16, s17, 1'); A('s_cmp_eq_u32 s16, 7'); A('s_cselect_b32 s16, 0, s16')
            for k in range(7):
                A(f's_add_u32 {s(BS[k])}, s16, {k}'); A(f's_sub_u32 s25, {s(BS[k])}, 7'); A(f's_cmp_ge_u32 {s(BS[k])}, 7'); A(f's_cselect_b32 {s(BS[k])}, s25, {s(BS[k])}')
            A(f's_add_u32 s32, s32, {NC}'); A('s_lshr_b32 s16, s3, 1'); A(f's_mul_i32 s16, s16, {2*14336}'); A('s_add_u32 s32, s32, s16')
            A('s_and_b32 s16, s3, 1'); A('s_lshl_b32 s16, s16, 7'); A('s_add_u32 s32, s32, s16')
            A('v_and_b32 v4, 1, v3'); A('v_mul_u32_u24 v4, 14336, v4'); A('v_lshl_add_u32 v4, v2, 8, v4')
            A('v_lshrrev_b32 v5, 1, v3'); A('v_lshl_add_u32 v4, v5, 4, v4')
            A('v_lshrrev_b32 v6, 3, v0'); A('v_mul_u32_u24 v6, 896, v6'); A('v_and_b32 v5, 7, v0'); A('v_lshl_add_u32 v6, v5, 4, v6')
            A('v_lshlrev_b32 v12, 10, v2'); A('v_lshrrev_b32 v5, 2, v3'); A('v_lshl_add_u32 v12, v5, 7, v12')
            A('v_and_b32 v5, 3, v3'); A('v_lshl_add_u32 v12, v5, 3, v12'); A('s_lshl_b32 s16, s3, 5'); A('v_add_u32 v12, s16, v12')
            A('s_mul_i32 s27, s17, 229376'); A(f's_mul_i32 s16, s3, {64*896}'); A('s_add_u32 s27, s27, s16')
        def dma(k):
            I = []
            I.append(f's_add_u32 s26, s24, {(1 + k % 4)*32768}'); I.append('s_mov_b32 m0, s26')
            I.append(f's_lshl_b32 s25, {s(BS[k])}, {19 if isM else 7}'); I.append('s_add_u32 s25, s25, s27')
            for j in range(8):
                if isM:
                    I.append(f'v_xor_b32 v1, {16*j}, v6'); I.append('buffer_load_dwordx4 v1, s[40:43], s25 offen lds')
                    I.append('s_add_u32 s25, s25, 16384')
                else:
                    I.append('buffer_load_dwordx4 v6, s[40:43], s25 offen lds'); I.append(f's_add_u32 s25, s25, {8*896}')
                I.append('s_add_u32 m0, m0, 1024')
                if not isM: I.append('s_nop 0')
            for x in I: A(x)
            vq.extend([('d', k)]*8)
        def flag(k):
            A(f's_lshl_b32 s16, {s(BS[k])}, 7'); A('s_add_u32 s16, s16, s34')
            A('s_mov_b64 exec, 1'); A('buffer_store_dword v128, v129, s[4:7], s16 offen sc1'); A('s_mov_b64 exec, -1')
            vq.append('f')
        dma(0); dma(1)
        A('v_mov_b32 v128, 1'); A('v_mov_b32 v129, 0')
        for k in range(4): A(f'v_mov_b32 {v(136+k)}, -1')
        A('s_lshl_b32 s16, s3, 10'); A('v_lshlrev_b32 v140, 4, v0'); A('v_add_u32 v140, s16, v140')
        A('s_mov_b32 s29, s17')
        for nm, lo, hi in (('a', MEMR + KC*8192, FLAGS), ('b', MEMG+8192, MEMG+64*8192), ('d', MEMG2+8192, MEMG2+64*8192)):
            fill(A, nm+('m' if isM else 'n'), lo, hi, 136, 140, 's96', 224)
        A('s_mov_b32 s17, s29')
        mst(A, 7)
        vneed('a')
        A('s_barrier')
        mst(A, 0)
        for t4 in range(4):
            for ks in range(8):
                A(f'ds_read_b128 {r(AFR(t4,ks),4)}, {v(8+(ks&3))} offset:{t4*8192+(ks>>2)*256}')
        for k in range(7):
            ACC = ACCS[k & 1]; B0 = RB + 32*(k & 1); O = OUTR + 8*(k & 1)
            vneed(('d', k))
            if k >= 2:
                vneed(('s', k-2))
                if k == 2:
                    wait_init(); vq.clear()
                    A('s_lshl_b32 s16, s96, 2'); A('s_add_u32 s16, s16, s3'); A('s_lshl_b32 s16, s16, 2'); A(f's_add_u32 s16, s16, {FFL}')
                    A('s_mov_b64 exec, 1'); A('buffer_store_dword v128, v129, s[4:7], s16 offen sc1'); A('s_mov_b64 exec, -1')
                    vq.append('f')
                flag(k-2)
            A('s_barrier')
            if k == 0: mst(A, 1)
            base = (1 + k % 4)*32768
            for q in range(4 if isM else 1): A(f'v_add_u32 {v(130+q)}, {base}, {v(12+q)}')
            for ks in range(8):
                if isM: A(f'ds_read_b128 {v(B0+4*ks,4)}, {v(130+(ks&3))} offset:{(ks>>2)*256}')
                else:
                    A(f'ds_read_b64_tr_b16 {v(B0+4*ks,2)}, v130 offset:{ks*4096}')
                    A(f'ds_read_b64_tr_b16 {v(B0+4*ks+2,2)}, v130 offset:{ks*4096+512}')
            if k+2 < 7: dma(k+2)
            for ks in range(8):
                A(f's_waitcnt lgkmcnt({min(15, (7-ks)*(1 if isM else 2))})')
                for t4 in range(4):
                    d = ACC + 4*t4
                    A(f'v_mfma_f32_16x16x32_bf16 {v(d,4)}, {r(AFR(t4,ks),4)}, {v(B0+4*ks,4)}, {"0" if ks == 0 else v(d,4)}')
            A(f's_mul_i32 s28, {s(BS[k])}, {4*14336}'); A('s_add_u32 s28, s28, s32')
            A.nop(7)
            for u in range(2):
                for ab in range(2):
                    d = ACC + (u*2+ab)*4
                    if isM:
                        for rr in range(0, 4, 2): A(f'v_pk_mul_f32 {v(d+rr,2)}, {v(d+rr,2)}, s[30:31]')
                    A(f'v_cvt_pk_bf16_f32 {v(O+4*u+2*ab)}, {v(d)}, {v(d+1)}')
                    A(f'v_cvt_pk_bf16_f32 {v(O+4*u+2*ab+1)}, {v(d+2)}, {v(d+3)}')
                A(f'buffer_store_dwordx4 {v(O+4*u,4)}, v4, s[4:7], s28 offen offset:{u*1024} sc1')
                vq.append(('s', k))
            if k == 0: mst(A, 2)
            if k == 2: mst(A, 3)
            if k == 4: mst(A, 4)
        vneed(('s', 5)); flag(5)
        vneed(('s', 6)); flag(6)
    body(True)
    A('s_branch k1_MNend')
    A.label('k1_N')
    body(False)
    A.label('k1_MNend')
    if wk.TS:
        mst(A, 5)
        A('s_lshl_b32 s94, s2, 2'); A('s_add_u32 s94, s94, s3'); A('s_lshl_b32 s94, s94, 12'); A(f's_add_u32 s94, s94, {PROF + 220*4}')
        A('s_waitcnt lgkmcnt(0)')
        for it in range(8):
            A(f'v_mov_b32 v8, {s(70+2*it)}'); A('v_mov_b32 v9, 0')
            A(f'buffer_store_dword v8, v9, s[4:7], s94 offen offset:{4*it}')
        A('v_mov_b32 v8, s33'); A('buffer_store_dword v8, v9, s[4:7], s94 offen offset:32')
    A('v_lshlrev_b32 v1, 4, v0')
```

```python
from asmlib import *
from layout import *
from k1 import sdivmod, srd, SZ_X
import struct
f2u = lambda f: struct.unpack('<I', struct.pack('<f', f))[0]
LOG2E = 1.4426950408889634

def prologue(A):
    srd(A, 4, 104, WS_END)
    A('v_lshrrev_b32 v1, 6, v0')
    A('v_and_b32 v0, 63, v0')
    A('v_readfirstlane_b32 s3, v1')
    A('v_lshlrev_b32 v1, 4, v0')
    A('s_waitcnt lgkmcnt(0)')

TS = False
def tstamp(A, slot, va=254, vb=255, sreg=None):
    if not TS: return
    A('s_memrealtime s[98:99]')
    A('s_lshl_b32 s94, s2, 2'); A('s_add_u32 s94, s94, s3'); A('s_lshl_b32 s94, s94, 12'); A(f's_add_u32 s94, s94, {PROF + slot*4}')
    if sreg is not None:
        A(f's_lshl_b32 s95, {s(sreg)}, 2'); A('s_add_u32 s94, s94, s95')
    A('s_waitcnt lgkmcnt(0)')
    A(f'v_mov_b32 {v(va)}, s98'); A(f'v_mov_b32 {v(vb)}, 0')
    A(f'buffer_store_dword {v(va)}, {v(vb)}, s[4:7], s94 offen')

def load_frags(A, regs, soff, tmp_s, flags=''):
    for i, rg in enumerate(regs):
        if i % 4 == 0:
            if i == 0: A(f's_mov_b32 {s(tmp_s)}, {s(soff)}')
            else: A(f's_add_u32 {s(tmp_s)}, {s(tmp_s)}, 4096')
        A(f'buffer_load_dwordx4 {r(rg,4)}, v1, s[4:7], {s(tmp_s)} offen offset:{(i%4)*1024}{flags}')

def silu_bf(A, x, t):
    A(f'v_mul_f32 {v(t)}, 0x{f2u(-LOG2E):08x}, {v(x)}')
    A(f'v_exp_f32 {v(t)}, {v(t)}')
    A('s_nop 0')
    A(f'v_add_f32 {v(t)}, 1.0, {v(t)}')
    A(f'v_rcp_f32 {v(t)}, {v(t)}')
    A('s_nop 0')
    A(f'v_mul_f32 {v(x)}, {v(x)}, {v(t)}')

def wait_words(A, va, vd, fail, srd_='s[4:7]', cnt='s35', sleep=4, ln=None):
    L = A.newlabel('ww'); Lok = A.newlabel('wwo')
    if ln: A(f'v_lshlrev_b32 {v(ln[0])}, 3, v0'); A(f'v_add_u32 {v(ln[0])}, {LNF}, {v(ln[0])}')
    A(f's_mov_b32 {cnt}, 400000')
    A.label(L)
    A(f'buffer_load_dword {v(vd)}, {v(va)}, {srd_}, 0 offen sc1')
    if ln: A(f'buffer_load_dwordx2 {v(ln[1],2)}, {v(ln[0])}, s[4:7], 0 offen sc1')
    A('s_waitcnt vmcnt(0)')
    if ln: A(f'v_min3_u32 {v(vd)}, {v(vd)}, {v(ln[1])}, {v(ln[1]+1)}')
    A(f'v_cmp_eq_u32 vcc, 0, {v(vd)}')
    A(f's_cbranch_vccz {Lok}')
    A(f's_sleep {sleep}')
    A(f's_sub_u32 {cnt}, {cnt}, 1'); A(f's_cmp_lg_u32 {cnt}, 0'); A(f's_cbranch_scc1 {L}')
    A(f's_branch {fail}')
    A.label(Lok)

def mnf_addr(A, va, two, sbase):
    A(f'v_and_b32 {v(va)}, 31, v0'); A(f'v_min_u32 {v(va)}, 27, {v(va)}'); A(f'v_lshlrev_b32 {v(va)}, 2, {v(va)}')
    if two is not None: A(f'v_lshrrev_b32 {v(two)}, 5, v0'); A(f'v_lshl_add_u32 {v(va)}, {v(two)}, 10, {v(va)}')
    A(f's_add_u32 {sbase}, {sbase}, {MNF}')
    A(f'v_add_u32 {v(va)}, {sbase}, {v(va)}')

def wsgemm(A, kind, wid=2, st_flags='', fail=None):
    W = lambda tl, kk: 256 + (tl*14+kk)*4
    ACCS, OUT = [16, 48], 80
    XR = [96 + 4*i for i in range(8)]
    ncls, nseg = (8, 8) if kind == 'U' else (16, 4)
    sh = 3 if kind == 'U' else 4
    NB, SB = 4, 28*1024
    A(f's_and_b32 s16, s92, {ncls-1}')
    A(f's_lshr_b32 s17, s92, {sh}')
    A(f's_lshl_b32 s18, s91, {5-sh}')
    A('s_add_u32 s17, s17, s18')
    A('s_lshl_b32 s17, s17, 2')
    A('s_add_u32 s17, s17, s3')
    if kind == 'U':
        sdivmod(A, 22, 23, 17, 14, 112)
        if fail:
            A('s_lshl_b32 s18, s22, 1'); A('s_add_u32 s18, s18, 16'); A('s_lshl_b32 s18, s18, 3'); A('s_lshr_b32 s19, s23, 1'); A('s_add_u32 s18, s18, s19'); A('s_lshl_b32 s18, s18, 7')
            mnf_addr(A, 2, 3, 's18')
            wait_words(A, 2, 3, fail, ln=(4, 6), sleep=16)
        A(f's_mul_i32 s18, s22, {2*28*14*1024}')
        A(f's_mul_i32 s23, s23, {2*14*1024}')
        A('s_add_u32 s18, s18, s23')
        A(f's_add_u32 s18, s18, {NC}')
        toff = [0, 14*1024, 28*14*1024, 28*14*1024+14*1024]
    else:
        A(f's_mul_i32 s18, s17, {56*1024}')
        A(f's_add_u32 s18, s18, {W13}')
        toff = [0, 14*1024, 28*1024, 42*1024]
    xbase = XNP
    A(f's_mul_i32 s24, s3, {7*1024}')
    A(f's_mul_i32 s19, s16, {28*1024}')
    A('s_add_u32 s19, s19, s24')
    A(f's_add_u32 s19, s19, {xbase}')
    def dma(it):
        for half in range(2):
            A(f's_add_u32 s22, s24, {(it % NB)*SB + half*4096}')
            A('s_mov_b32 m0, s22')
            A(f's_add_u32 s23, s19, {it*ncls*28*1024 + half*4096}')
            for j in range(4 if half == 0 else 3):
                A(f'buffer_load_dwordx4 v1, s[4:7], s23 offen offset:{j*1024} lds')
    A('s_barrier')
    dma(0)
    for tl in range(4): A(f's_add_u32 {s(26+tl)}, s18, {toff[tl]}')
    for kc in range(4):
        for tl in range(4):
            for kk in range(4*kc, min(4*kc+4, 14)):
                A(f'buffer_load_dwordx4 {r(W(tl,kk),4)}, v1, s[4:7], {s(26+tl)} offen offset:{(kk%4)*1024}')
            if kc < 3: A(f's_add_u32 {s(26+tl)}, {s(26+tl)}, 4096')
    if kind == 'U':
        A(f's_mul_i32 s21, s16, {16*28*1024}'); A('s_lshl_b32 s22, s17, 12'); A('s_add_u32 s21, s21, s22'); A(f's_add_u32 s21, s21, {UF}')
        dstep = ncls*16*28*1024
    else:
        A(f's_mul_i32 s21, s16, {2*56*1024}'); A('s_lshl_b32 s22, s17, 10'); A('s_add_u32 s21, s21, s22'); A(f's_add_u32 s21, s21, {HF}')
        dstep = ncls*2*56*1024
    flags = kind == 'U' and st_flags
    def uflag(rnd):
        A('s_mov_b64 exec, 1')
        A(f's_add_u32 s22, s25, {rnd*14*256}'); A('buffer_store_dword v2, v3, s[4:7], s22 offen sc1')
        A('s_mov_b64 exec, -1')
    if flags:
        sdivmod(A, 22, 23, 17, 14, 112)
        A('s_lshl_b32 s25, s22, 3'); A('s_add_u32 s25, s25, s16'); A('s_lshl_b32 s25, s25, 2'); A('s_lshl_b32 s23, s23, 8'); A('s_add_u32 s25, s25, s23'); A(f's_add_u32 s25, s25, {UFL}')
        A('v_mov_b32 v2, 1'); A('v_mov_b32 v3, 0')
    A(f'v_add_u32 v4, {2*SB}, v1')
    vq = ['d0']*7 + [('w', kc) for kc in range(4) for _ in range(16 if kc < 3 else 8)]
    def vneed(name):
        if name not in vq: return
        i = len(vq) - 1 - vq[::-1].index(name)
        n = len(vq) - 1 - i
        A(f's_waitcnt vmcnt({min(n,63)})')
        assert n <= 63
        del vq[:i+1]
    def epilogue(it):
        ACC = ACCS[it & 1]; I = []
        if kind == 'U':
            for ct in range(2):
                for tt in range(2):
                    o = OUT + 4*(ct*2+tt)
                    da = ACC + ((ct)*2+tt)*4; db = ACC + ((2+ct)*2+tt)*4
                    I += [f'v_cvt_pk_bf16_f32 {v(o)}, {v(da)}, {v(da+1)}', f'v_cvt_pk_bf16_f32 {v(o+1)}, {v(db)}, {v(db+1)}',
                          f'v_cvt_pk_bf16_f32 {v(o+2)}, {v(da+2)}, {v(da+3)}', f'v_cvt_pk_bf16_f32 {v(o+3)}, {v(db+2)}, {v(db+3)}',
                          ('st', f'buffer_store_dwordx4 {v(o,4)}, v1, s[4:7], s21 offen offset:{(ct*2+tt)*1024}{st_flags}')]
        else:
            B_ = Asm()
            for tt in range(2):
                o = OUT + 4*tt
                for ab in range(2):
                    gd = ACC + ((ab*2+0)*2+tt)*4; ud = ACC + ((ab*2+1)*2+tt)*4
                    for p in range(2):
                        g0, g1, u0, u1 = gd+2*p, gd+2*p+1, ud+2*p, ud+2*p+1
                        B_(f'v_cvt_pk_bf16_f32 v8, {v(g0)}, {v(g1)}'); B_(f'v_cvt_pk_bf16_f32 v9, {v(u0)}, {v(u1)}')
                        B_(f'v_lshlrev_b32 {v(g0)}, 16, v8'); B_(f'v_and_b32 {v(g1)}, 0xffff0000, v8')
                        B_(f'v_lshlrev_b32 {v(u0)}, 16, v9'); B_(f'v_and_b32 {v(u1)}, 0xffff0000, v9')
                        silu_bf(B_, g0, 10); silu_bf(B_, g1, 11)
                        B_(f'v_cvt_pk_bf16_f32 v8, {v(g0)}, {v(g1)}')
                        B_(f'v_lshlrev_b32 {v(g0)}, 16, v8'); B_(f'v_and_b32 {v(g1)}, 0xffff0000, v8')
                        B_(f'v_mul_f32 {v(g0)}, {v(g0)}, {v(u0)}'); B_(f'v_mul_f32 {v(g1)}, {v(g1)}, {v(u1)}')
                        B_(f'v_cvt_pk_bf16_f32 {v(o+2*ab+p)}, {v(g0)}, {v(g1)}')
                if tt: B_(f's_add_u32 s22, s21, {56*1024}')
                B_.lines.append(('st', f'buffer_store_dwordx4 {v(o,4)}, v1, s[4:7], {"s22" if tt else "s21"} offen{st_flags}'))
            I = [x.strip() if isinstance(x, str) else x for x in B_.lines]
        I.append(f's_add_u32 s21, s21, {dstep}')
        return I
    def emit(x, it):
        if isinstance(x, tuple): A(x[1]); vq.append(('s', it))
        else: A(x)
    pend = []
    for it in range(nseg):
        ACC = ACCS[it & 1]
        vneed(f'd{it}')
        A('s_barrier')
        for nx in ([1, 2] if it == 0 else [it+2]):
            if nx < nseg: dma(nx); vq.extend([f'd{nx}']*7)
        base = (it % NB)*SB
        ar, ab_ = ('v1', base) if base < 2*SB else ('v4', base-2*SB)
        def rdx(kk):
            for tt in range(2): A(f'ds_read_b128 {v(XR[(kk%4)*2+tt],4)}, {ar} offset:{ab_+(tt*14+kk)*1024}')
        for kk in range(3): rdx(kk)
        per = (len(pend) + 95) // 96
        n = 0
        for kk in range(14):
            if it == 0 and kk % 4 == 0: vneed(('w', kk//4))
            if kk+3 < 14: rdx(kk+3)
            A(f's_waitcnt lgkmcnt({2*min(3, 13-kk)})')
            for tl in range(4):
                for tt in range(2):
                    d = ACC + (tl*2+tt)*4
                    c = '0' if kk == 0 else v(d, 4)
                    xw, ww = v(XR[(kk%4)*2+tt], 4), r(W(tl, kk), 4)
                    if kind == 'U': A(f'v_mfma_f32_16x16x32_bf16 {v(d,4)}, {xw}, {ww}, {c}')
                    else: A(f'v_mfma_f32_16x16x32_bf16 {v(d,4)}, {ww}, {xw}, {c}')
                    n += 1
                    if n > 8:
                        for _ in range(per):
                            if pend: emit(pend.pop(0), it-1)
            if flags and kk == (5 if it == 1 else 13) and it > 0:
                vneed(('s', it-1)); uflag(it-1); vq.append('f')
        assert not pend
        if TS and kind == 'U':
            A(f's_memrealtime {s(70+2*it,2)}')
        pend = epilogue(it)
    A.nop(8)
    for x in pend: emit(x, nseg-1)
    if flags:
        A('s_waitcnt vmcnt(0)')
        uflag(nseg-1)
    if TS and kind == 'U':
        A('s_lshl_b32 s94, s2, 2'); A('s_add_u32 s94, s94, s3'); A('s_lshl_b32 s94, s94, 12'); A(f's_add_u32 s94, s94, {PROF + 200*4}')
        A('s_waitcnt lgkmcnt(0)')
        for it in range(8):
            A(f'v_mov_b32 v8, {s(70+2*it)}'); A('v_mov_b32 v9, 0')
            A(f'buffer_store_dword v8, v9, s[4:7], s94 offen offset:{4*it}')

def gen_k2(A):
    A.label('k2_kernel')
    A('s_cmp_ge_u32 s2, 224')
    A('s_cbranch_scc1 k2_end')
    prologue(A)
    wsgemm(A, 'U')
    wsgemm(A, 'F1')
    A.label('k2_end')
    A('s_endpgm')
    return dict(name='k2_kernel', grid=224, block=256, lds=0, vgpr=256, sgpr=40, agpr=256)
```

```python
from asmlib import *
from layout import *
from k1 import sdivmod, srd, SZ_X
from wk import prologue, load_frags, silu_bf, f2u, LOG2E, tstamp

RS = 272
SPIN = 400000

def spin_wait(A, issue, ok_cmp, fail, sleep=2, backoff=None):
    L = A.newlabel('sw'); Lok = A.newlabel('swo')
    A(f's_mov_b32 s30, {SPIN}')
    A.label(L)
    issue()
    A('s_waitcnt vmcnt(0)')
    ok_cmp()
    A(f's_cbranch_vccz {Lok}')
    if sleep: A(f's_sleep {sleep}')
    if backoff:
        Lb = A.newlabel('swb')
        A(f's_cmp_gt_u32 s30, {SPIN-backoff[0]}'); A(f's_cbranch_scc1 {Lb}')
        A(f's_sleep {backoff[1]}')
        A.label(Lb)
    A('s_sub_u32 s30, s30, 1')
    A('s_cmp_lg_u32 s30, 0')
    A(f's_cbranch_scc1 {L}')
    A(f's_branch {fail}')
    A.label(Lok)

def wait_hint(A, need, fail, base=HINT, bsel=None):
    L = A.newlabel('wh'); Lok = A.newlabel('who'); Lsh = A.newlabel('whs')
    A('s_and_b32 s28, s96, 15'); A('s_lshl_b32 s28, s28, 7'); A(f's_add_u32 s28, s28, {base}')
    if bsel is not None: A(f's_lshl_b32 s29, {s(bsel)}, 11'); A('s_add_u32 s28, s28, s29')
    A('v_mov_b32 v5, 0')
    A(f's_mov_b32 s30, {SPIN}')
    A.label(L)
    A('s_mov_b64 exec, 1')
    A('buffer_load_dword v4, v5, s[4:7], s28 offen sc1')
    A('s_mov_b64 exec, -1')
    A('s_waitcnt vmcnt(0)')
    A('v_readfirstlane_b32 s29, v4')
    A(f's_cmp_ge_u32 s29, {s(need)}')
    A(f's_cbranch_scc1 {Lok}')
    A('s_add_u32 s29, s29, 2')
    A(f's_cmp_ge_u32 s29, {s(need)}')
    A(f's_cbranch_scc1 {Lsh}')
    A('s_sleep 48')
    A.label(Lsh)
    A('s_sleep 6')
    A('s_sub_u32 s30, s30, 1')
    A('s_cmp_lg_u32 s30, 0')
    A(f's_cbranch_scc1 {L}')
    A(f's_branch {fail}')
    A.label(Lok)

def phase_f2(A, item, st=''):
    sdivmod(A, 16, 17, item, 7, 224)
    ACC = 0
    ACC = 192
    HA = [[(8 + (rt*14+k)*4) if (8+(rt*14+k)*4) < 192 else None for k in range(14)] for rt in range(4)]
    AFR = lambda rt, k: 256 + (rt*14+k)*4
    BFR = lambda T, k: (8 + (T*7+k)*4)
    BF2 = lambda T, k: (120 + (T*7+k)*4) if (120+(T*7+k)*4) < 192 else (480 + (T*7+k-18)*4 if (T*7+k-18) < 8 else None)
    K1_, K2_ = 8, 6
    K1_, K2_ = 9, 5
    A(f's_mul_i32 s18, s16, {4*56*1024}')
    A(f's_mul_i32 s19, s3, {14*1024}')
    A('s_add_u32 s18, s18, s19')
    A(f's_add_u32 s18, s18, {HF}')
    A(f's_mul_i32 s21, s17, {4*56*1024}')
    A('s_add_u32 s21, s21, s19')
    A(f's_add_u32 s21, s21, {W2F}')
    BA = lambda T, k: 8 + (T*7+k)*4
    def BB(T, k):
        i = T*7+k
        return 120 + 4*i if i < 18 else (480 + 4*(i-18) if i < 26 else 8 + 4*(i-26))
    for T in range(4):
        A(f's_add_u32 s22, s21, {T*56*1024}')
        load_frags(A, [BA(T, k) for k in range(7)], 22, 20)
    for rt in range(4):
        A(f's_add_u32 s22, s18, {rt*56*1024}')
        load_frags(A, [AFR(rt, k) for k in range(14)], 22, 20)
    late = []
    for T in range(4):
        A(f's_add_u32 s22, s21, {T*56*1024+7*1024}')
        regs = [BB(T, k) for k in range(7)]
        if T == 3: regs = regs[:5]
        load_frags(A, regs, 22, 20)
    A('s_waitcnt vmcnt(26)')
    for k in range(7):
        for rt in range(4):
            for T in range(4):
                d = ACC + (rt*4+T)*4
                A(f'v_mfma_f32_16x16x32_bf16 {v(d,4)}, {r(AFR(rt,k),4)}, {r(BA(T,k),4)}, {"0" if k == 0 else v(d,4)}')
        if k == 2:
            A(f's_add_u32 s22, s21, {3*56*1024+12*1024}')
            load_frags(A, [BB(3, 5), BB(3, 6)], 22, 20)
    A('s_waitcnt vmcnt(0)')
    for k in range(7):
        for rt in range(4):
            for T in range(4):
                d = ACC + (rt*4+T)*4
                A(f'v_mfma_f32_16x16x32_bf16 {v(d,4)}, {r(AFR(rt,k+7),4)}, {r(BB(T,k),4)}, {v(d,4)}')
    A.nop(8)
    A('v_lshrrev_b32 v2, 4, v0'); A(f'v_mul_u32_u24 v2, {4*RS}, v2')
    A('v_and_b32 v3, 15, v0'); A('v_lshl_add_u32 v2, v3, 3, v2')
    A(f's_mul_i32 s22, s3, {64*RS}'); A('v_add_u32 v2, s22, v2')
    A('s_barrier')
    for rt in range(4):
        A(f'v_add_u32 v3, {rt*16*RS}, v2')
        for rr in range(4):
            for m in range(2):
                d0 = ACC + (rt*4+2*m)*4 + rr; d1 = d0 + 4
                o = (rr*RS + m*128)//4
                A(f'ds_write2_b32 v3, {v(d0)}, {v(d1)} offset0:{o} offset1:{o+1}')
    A('s_waitcnt lgkmcnt(0)')
    A('s_barrier')
    A('s_lshl_b32 s22, s3, 4')
    A('v_lshrrev_b32 v2, 2, v0'); A('v_add_u32 v2, s22, v2')
    A('v_and_b32 v3, 3, v0')
    A(f'v_mul_u32_u24 v4, {RS}, v2'); A('v_lshl_add_u32 v4, v3, 6, v4')
    for w in range(4):
        if w: A(f'v_add_u32 v4, {64*RS}, v4')
        for j in range(4): A(f'ds_read_b128 {v(8+16*w+4*j,4)}, v4 offset:{16*j}')
    A('v_mul_u32_u24 v5, 896, v2'); A('v_lshl_add_u32 v5, v3, 5, v5')
    A(f's_mul_i32 s22, s16, {64*896}'); A('s_lshl_b32 s23, s17, 7'); A('s_add_u32 s22, s22, s23'); A(f's_add_u32 s22, s22, {GF}')
    A('s_waitcnt lgkmcnt(0)')
    for j in range(8):
        A(f'v_pk_add_f32 {v(8+2*j,2)}, {v(8+2*j,2)}, {v(24+2*j,2)}')
        A(f'v_pk_add_f32 {v(40+2*j,2)}, {v(40+2*j,2)}, {v(56+2*j,2)}')
        A(f'v_pk_add_f32 {v(8+2*j,2)}, {v(8+2*j,2)}, {v(40+2*j,2)}')
    for j in range(8):
        a_, b_ = 8+2*j, 9+2*j
        A(f'v_cvt_pk_bf16_f32 v6, {v(a_)}, {v(b_)}')
        A(f'v_lshlrev_b32 {v(a_)}, 16, v6'); A(f'v_and_b32 {v(b_)}, 0xffff0000, v6')
        silu_bf(A, a_, 72); silu_bf(A, b_, 73)
        A(f'v_cvt_pk_bf16_f32 {v(80+j)}, {v(a_)}, {v(b_)}')
    A(f'buffer_store_dwordx4 v[80:83], v5, s[4:7], s22 offen{st}')
    A(f'buffer_store_dwordx4 v[84:87], v5, s[4:7], s22 offen offset:16{st}')

S_STG = 28*1024
def phase_s(A, h_s, qs_s, fail, sync):
    st = ' sc1' if sync else ''
    XP = lambda tt, kk: 256 + (tt*14+kk)*4
    XN = lambda kt, kk: 368 + (kt*14+kk)*4
    TF = lambda P, tt: 144 + (P*2+tt)*4
    DT = 16
    DS = {(0, 0): 32, (0, 1): 36, (1, 1): 40}
    DM = [44, 48]
    WB = [56 + 4*i for i in range(14)]
    A(f's_lshl_b32 s16, {s(qs_s)}, 2'); A('s_add_u32 s16, s16, s3')
    A(f's_mul_i32 s17, s16, {28*1024}')
    A(f's_add_u32 s18, s17, {XNP}')
    if XNF: A(f's_add_u32 s17, s17, {XNF}')
    A(f's_mul_i32 s19, {s(h_s)}, {28*14*1024}')
    A(f's_mul_i32 s21, s3, {7*1024}')
    A('s_add_u32 s19, s19, s21')
    A(f's_add_u32 s19, s19, {MC}')
    NB = 4
    def dma(P):
        for half in range(2):
            A(f's_add_u32 s22, s21, {(P % NB)*S_STG + half*4096}')
            A('s_mov_b32 m0, s22')
            A(f's_add_u32 s23, s19, {P*S_STG + half*4096}')
            for j in range(4 if half == 0 else 3):
                A(f'buffer_load_dwordx4 v1, s[4:7], s23 offen offset:{j*1024} lds')
    A('s_barrier')
    for P in range(3): dma(P)
    load_frags(A, [XP(tt, kk) for tt in range(2) for kk in range(14)], 18, 20)
    A('v_lshrrev_b32 v3, 4, v0'); A('v_and_b32 v2, 1, v3'); A('v_lshlrev_b32 v2, 9, v2'); A('v_lshrrev_b32 v3, 1, v3'); A('v_lshl_add_u32 v2, v3, 8, v2')
    A('v_and_b32 v3, 15, v0'); A('v_lshl_add_u32 v2, v3, 4, v2')
    for i in range(28):
        if i % 4 == 0: A(f's_add_u32 s20, s18, {i*1024}')
        A(f'buffer_load_dwordx4 {v(144+4*i,4)}, v2, s[4:7], s20 offen offset:{(i%4)*1024}')
    A('s_waitcnt vmcnt(0)')
    for i in range(28):
        b = 144+4*i
        A(f'v_permlane32_swap_b32 {v(b)}, {v(b+2)}'); A(f'v_permlane32_swap_b32 {v(b+1)}, {v(b+3)}')
    for i in range(112): A(f'v_accvgpr_write_b32 {a(112+i)}, {v(144+i)}')
    for P in range(14):
        if P == 0: A('s_waitcnt vmcnt(0)')
        else:
            later = sum(7 for x in range(P+1, min(P+3, 14)) if x >= 3)
            A(f's_waitcnt vmcnt({later if P >= 3 else 63})') if P >= 3 else None
        A('s_barrier')
        if P+3 < 14: dma(P+3)
        base = (P % NB)*S_STG
        if base >= 32768:
            A(f'v_add_u32 v2, {base}, v1'); ar, ab = 'v2', 0
        else: ar, ab = 'v1', base
        for e in range(2):
            for kk in range(14):
                A(f'ds_read_b128 {v(WB[kk],4)}, {ar} offset:{ab + (e*14+kk)*1024}')
            for kk in range(14):
                A(f's_waitcnt lgkmcnt({13-kk})')
                for tt in range(2):
                    d = DT + (e*2+tt)*4
                    A(f'v_mfma_f32_16x16x32_bf16 {v(d,4)}, {v(WB[kk],4)}, {r(XP(tt,kk),4)}, {"0" if kk == 0 else v(d,4)}')
        A.nop(8)
        for tt in range(2):
            for rr in range(4):
                A(f'v_cvt_pk_bf16_f32 {v(TF(P,tt)+rr)}, {v(DT+tt*4+rr)}, {v(DT+8+tt*4+rr)}')
        A('s_nop 1')
        for (kt, tt), d in DS.items():
            A(f'v_mfma_f32_16x16x32_bf16 {v(d,4)}, {r(XN(kt,P),4)}, {v(TF(P,tt),4)}, {"0" if P == 0 else v(d,4)}')
    A('v_lshrrev_b32 v3, 4, v0'); A('v_lshlrev_b32 v2, 7, v3')
    A('v_and_b32 v4, 7, v0'); A('v_lshl_add_u32 v2, v4, 4, v2')
    A('s_lshl_b32 s17, s16, 13'); A(f's_add_u32 s17, s17, {MEMG2 if sync else MEMG}'); A('s_add_u32 s18, s17, 4096')
    def issue():
        for kk in range(14):
            A(f'buffer_load_dwordx4 {v(WB[kk],4)}, v2, s[4:7], {"s17" if kk < 8 else "s18"} offen offset:{(kk%8)*512}{st}')
    tstamp(A, 100, 4, 5, sreg=93)
    if sync:
        A('s_max_u32 s27, s16, 2'); A('s_sub_u32 s27, s27, 1')
        wait_hint(A, 27, fail)
        tstamp(A, 110, 4, 5, sreg=93)
        def chk():
            A(f'v_max_u32 v4, {v(WB[0])}, {v(WB[0]+1)}')
            for j in range(1, 28): A(f'v_max3_u32 v4, v4, {v(WB[0]+2*j)}, {v(WB[0]+2*j+1)}')
            A('v_cmp_eq_u32 vcc, -1, v4')
        spin_wait(A, issue, chk, fail, sleep=3)
    else:
        issue(); A('s_waitcnt vmcnt(0)')
    tstamp(A, 120, 4, 5, sreg=93)
    for kk in range(14):
        for tt in range(2):
            A(f'v_mfma_f32_16x16x32_bf16 {v(DM[tt],4)}, {v(WB[kk],4)}, {v(TF(kk,tt),4)}, {"0" if kk == 0 else v(DM[tt],4)}')
    A('v_and_b32 v4, 15, v0'); A('v_lshlrev_b32 v5, 2, v3'); A('v_sub_u32 v4, v4, v5')
    A('v_mov_b32 v5, 0xff800000')
    A.nop(6)
    for tt in range(2):
        d = DS[(tt, tt)]
        for rr in range(4):
            A(f'v_cmp_le_i32 vcc, {rr}, v4')
            A('s_nop 1')
            A(f'v_cndmask_b32 {v(d+rr)}, v5, {v(d+rr)}, vcc')
    A(f's_mov_b32 s31, 0x{f2u(LOG2E):08x}')
    def xred(reg, tmp, op):
        for sw in ('v_permlane16_swap_b32', 'v_permlane32_swap_b32'):
            A(f'v_mov_b32 {v(tmp)}, {v(reg)}'); A('s_nop 1')
            A(f'{sw} {v(reg)}, {v(tmp)}'); A('s_nop 0')
            A(f'{op} {v(reg)}, {v(reg)}, {v(tmp)}')
    A('v_and_b32 v6, 8, v0'); A('v_lshlrev_b32 v6, 7, v6')
    A('v_and_b32 v7, 7, v0'); A('v_lshl_add_u32 v6, v7, 4, v6')
    A('v_lshrrev_b32 v7, 1, v6') ; A('v_and_b32 v7, 0x200, v7'); A('v_and_b32 v8, 0x70, v6'); A('v_or_b32 v7, v7, v8')
    A('v_and_b32 v8, 1, v3'); A('v_lshl_add_u32 v7, v8, 7, v7')
    A('v_lshl_add_u32 v6, v8, 3, v6')
    A('v_lshrrev_b32 v8, 1, v3'); A('v_lshl_add_u32 v6, v8, 8, v6')
    A(f's_lshr_b32 s17, {s(h_s)}, 1'); A('s_lshl_b32 s18, s16, 3'); A('s_add_u32 s17, s17, s18'); A('s_lshl_b32 s17, s17, 12')
    A(f's_and_b32 s18, {s(h_s)}, 1'); A('s_lshl_b32 s19, s18, 7'); A('s_add_u32 s17, s17, s19'); A(f's_add_u32 s17, s17, {PXX}')
    A(f's_lshr_b32 s19, {s(h_s)}, 2'); A('s_lshl_b32 s21, s16, 2'); A('s_add_u32 s19, s19, s21'); A('s_lshl_b32 s19, s19, 11')
    A('s_lshl_b32 s18, s18, 3'); A('s_add_u32 s19, s19, s18')
    A(f's_and_b32 s18, {s(h_s)}, 2'); A('s_lshl_b32 s18, s18, 7'); A('s_add_u32 s19, s19, s18'); A(f's_add_u32 s19, s19, {PXM}')
    for tt in range(2):
        xs = [DS[(0, tt)]] + ([DS[(1, 1)]] if tt else [])
        vals = [DM[tt]+rr for rr in range(4)] + [d+rr for d in xs for rr in range(4)]
        A(f'v_max3_f32 v9, {v(vals[0])}, {v(vals[1])}, {v(vals[2])}')
        i = 3
        while i < len(vals):
            if i+1 < len(vals): A(f'v_max3_f32 v9, v9, {v(vals[i])}, {v(vals[i+1])}'); i += 2
            else: A(f'v_max_f32 v9, v9, {v(vals[i])}'); i += 1
        xred(9, 10, 'v_max_f32')
        A(f'v_mul_f32 v9, 0x{f2u(-LOG2E):08x}, v9')
        for x in vals: A(f'v_fma_f32 {v(x)}, {v(x)}, s31, v9')
        for x in vals: A(f'v_exp_f32 {v(x)}, {v(x)}')
        A('s_nop 0')
        A(f'v_add_f32 v9, {v(vals[0])}, {v(vals[1])}'); A(f'v_add_f32 v10, {v(vals[2])}, {v(vals[3])}')
        A('v_add_f32 v9, v9, v10'); A('v_mul_f32 v9, 0.5, v9')
        for x in vals[4:]: A(f'v_add_f32 v9, v9, {v(x)}')
        xred(9, 10, 'v_add_f32')
        A('v_rcp_f32 v9, v9'); A('s_nop 0')
        for x in vals: A(f'v_mul_f32 {v(x)}, {v(x)}, v9')
        for kt in range(2):
            if kt < len(xs):
                d = xs[kt]
                A(f'v_cvt_pk_bf16_f32 v12, {v(d)}, {v(d+1)}'); A(f'v_cvt_pk_bf16_f32 v13, {v(d+2)}, {v(d+3)}')
            else:
                A('v_mov_b32 v12, 0'); A('v_mov_b32 v13, 0')
            A(f'buffer_store_dwordx2 v[12:13], v6, s[4:7], s17 offen offset:{tt*2048+kt*512}{st}')
            A('s_nop 1')
        d = DM[tt]
        A(f'v_cvt_pk_bf16_f32 v14, {v(d)}, {v(d+1)}'); A(f'v_cvt_pk_bf16_f32 v15, {v(d+2)}, {v(d+3)}')
        A('s_mov_b32 exec_hi, 0')
        A(f'buffer_store_dwordx2 v[14:15], v7, s[4:7], s19 offen offset:{tt*1024}{st}')
        A('s_mov_b32 exec_hi, -1')
        A('s_nop 1')
    if sync:
        A('s_waitcnt vmcnt(0)')
        A('v_mov_b32 v12, 1')
        A('s_lshl_b32 s17, s16, 6'); A(f's_lshl_b32 s18, {s(h_s)}, 2'); A('s_add_u32 s17, s17, s18'); A(f's_add_u32 s17, s17, {PFL}')
        A('v_mov_b32 v13, 0')
        A('buffer_store_dword v12, v13, s[4:7], s17 offen sc1')

def phase_o(A, seg_s, b_s, fail, sync):
    ld = ''
    UB = lambda ml, hpl, ct: 16 + ((ml*2+hpl)*2+ct)*8
    YB = lambda ml, ct: 80 + (ml*2+ct)*4
    PX = lambda oc, hpl: 96 + (oc*2+hpl)*4
    PMr = lambda oc: 128 + oc*4
    ACC = lambda oc, ml, ct: 144 + ((oc*2+ml)*2+ct)*4
    XG = 208
    A('v_and_b32 v3, 8, v0'); A('v_cmp_eq_u32 vcc, 0, v3')
    A('v_mov_b32 v2, 0xeeee'); A('v_mov_b32 v3, 0x4444'); A('v_cndmask_b32 v2, v2, v3, vcc')
    A(f's_lshl_b32 s16, {s(seg_s)}, 3'); A('s_lshl_b32 s17, s3, 1'); A('s_add_u32 s16, s16, s17')
    A('s_mul_i32 s18, s16, 14'); A(f's_lshl_b32 s17, {s(b_s)}, 1'); A('s_add_u32 s18, s18, s17'); A('s_lshl_b32 s18, s18, 12')
    A(f's_add_u32 s18, s18, {UF}')
    for hpl in range(2):
        for ml in range(2):
            A(f's_add_u32 s19, s18, {(hpl*14+ml)*4096}')
            for j in range(4):
                A(f'buffer_load_dwordx4 {v(UB(ml,hpl,0)+4*j,4)}, v1, s[4:7], s19 offen offset:{j*1024}{ld}')
    A('s_lshl_b32 s22, s3, 3')
    A('v_lshrrev_b32 v4, 3, v0'); A('v_add_u32 v4, s22, v4')
    A('v_and_b32 v5, 7, v0')
    A('v_mul_u32_u24 v6, 896, v4'); A('v_lshl_add_u32 v6, v5, 4, v6')
    A(f's_mul_i32 s22, {s(seg_s)}, {32*896}'); A(f's_lshl_b32 s23, {s(b_s)}, 7'); A('s_add_u32 s22, s22, s23')
    A(f's_add_u32 s23, s22, {GF}')
    A(f'buffer_load_dwordx4 {v(XG,4)}, v6, s[8:11], s22 offen')
    A(f'buffer_load_dwordx4 {v(XG+4,4)}, v6, s[4:7], s23 offen{ld}')
    for k in range(32): A(f'v_mov_b64 {v(144+2*k,2)}, 0')
    for k in range(8): A(f'v_mov_b64 {v(128+2*k,2)}, 0')
    if sync:
        Lw = A.newlabel('ow')
        A('s_cmp_lg_u32 s3, 0'); A(f's_cbranch_scc1 {Lw}')
        A('v_mov_b32 v11, v4'); A('v_mov_b32 v12, v5')
        A(f's_and_b32 s27, {s(seg_s)}, 62')
        wait_hint(A, 27, fail)
        A('v_mov_b32 v4, v11'); A('v_mov_b32 v5, v12')
        A('v_and_b32 v7, 15, v0'); A('v_lshlrev_b32 v7, 2, v7')
        A(f's_lshl_b32 s19, {s(seg_s)}, 6'); A(f's_add_u32 s19, s19, {PFL}'); A('v_add_u32 v7, s19, v7')
        A('v_mov_b32 v8, 1')
        A(f's_lshr_b32 s19, {s(seg_s)}, 1'); A('s_mul_i32 s19, s19, 7'); A(f's_add_u32 s19, s19, {s(b_s)}'); A('s_lshl_b32 s19, s19, 7')
        A(f's_add_u32 s19, s19, {YFL}')
        A('v_and_b32 v9, 15, v0'); A('v_lshlrev_b32 v9, 2, v9'); A('v_add_u32 v9, s19, v9')
        import chain
        A(f'v_cmp_lt_u32 vcc, {63 if chain.DBG_NOYF else 15}, v0'); A('s_nop 1')
        A('v_cndmask_b32 v7, v7, v9, vcc')
        A('s_mov_b32 exec_hi, 0')
        A('s_mov_b64 vcc, 0')
        spin_wait(A, lambda: A('buffer_load_dword v9, v7, s[4:7], 0 offen sc1'), lambda: A('v_cmp_gt_u32 vcc, v8, v9'), Lw+'f', sleep=4, backoff=(16, 100))
        A('s_mov_b32 exec_hi, -1')
        A(f's_branch {Lw}')
        A.label(Lw+'f')
        A('s_mov_b32 exec_hi, -1')
        A(f's_branch {fail}')
        A.label(Lw)
        A('s_barrier')
        tstamp(A, 130, 8, 9, sreg=93)
    A('s_lshl_b32 s18, s16, 12'); A(f's_add_u32 s18, s18, {PXX}'); A('s_add_u32 s19, s18, 4096')
    for hpl in range(2):
        for oc in range(4):
            A(f'buffer_load_dwordx4 {v(PX(oc,hpl),4)}, v1, s[4:7], {"s19" if hpl else "s18"} offen offset:{oc*1024}{ld}')
    A('v_lshrrev_b32 v7, 4, v0'); A('v_lshlrev_b32 v7, 7, v7'); A('v_and_b32 v8, 7, v0'); A('v_lshl_add_u32 v7, v8, 4, v7')
    A(f's_lshl_b32 s18, {s(seg_s)}, 2'); A('s_add_u32 s18, s18, s3'); A('s_lshl_b32 s18, s18, 11'); A(f's_add_u32 s18, s18, {PXM}')
    A('s_mov_b32 exec_lo, 0x00ff00ff'); A('s_mov_b32 exec_hi, 0x00ff00ff')
    for oc in range(4):
        A(f'buffer_load_dwordx4 {v(PMr(oc),4)}, v7, s[4:7], s18 offen offset:{oc*512}{ld}')
    A('s_mov_b64 exec, -1')
    A(f's_mul_i32 s18, {s(seg_s)}, 14'); A('s_add_u32 s18, s18, s17'); A('s_lshl_b32 s18, s18, 2'); A('s_add_u32 s18, s18, s3'); A('s_lshl_b32 s18, s18, 11')
    A(f's_add_u32 s18, s18, {YG}'); A('s_add_u32 s19, s18, 8192')
    for ml in range(2):
        for ct in range(2):
            A(f'buffer_load_dwordx4 {v(YB(ml,ct),4)}, v1, s[4:7], {"s19" if ml else "s18"} offen offset:{ct*1024}{ld}')
    A('s_waitcnt vmcnt(8)')
    for oc in range(4):
        for hpl in range(2):
            for ml in range(2):
                for ct in range(2):
                    A(f'v_smfmac_f32_16x16x64_bf16 {v(ACC(oc,ml,ct),4)}, {v(PX(oc,hpl),4)}, {v(UB(ml,hpl,ct),8)}, v2')
    A('s_waitcnt vmcnt(0)')
    tstamp(A, 140, 8, 9, sreg=93)
    for oc in range(4):
        for ml in range(2):
            for ct in range(2):
                d = ACC(oc, ml, ct)
                A(f'v_mfma_f32_16x16x32_bf16 {v(d,4)}, {v(PMr(oc),4)}, {v(YB(ml,ct),4)}, {v(d,4)}')
    A('v_lshrrev_b32 v7, 5, v0'); A(f'v_mul_u32_u24 v7, {32*RS}, v7')
    A('v_and_b32 v8, 16, v0'); A(f'v_mul_u32_u24 v8, {RS//4}, v8'); A('v_add_u32 v7, v7, v8')
    A('v_and_b32 v8, 15, v0'); A('v_lshl_add_u32 v7, v8, 3, v7')
    A(f's_mul_i32 s18, s3, {64*RS}'); A('v_add_u32 v7, s18, v7')
    A('s_barrier')
    for oc in range(4):
        A(f'v_add_u32 v8, {oc*8*RS}, v7')
        for rr in range(4):
            for ml in range(2):
                o = (rr*RS + ml*128)//4
                A(f'ds_write2_b32 v8, {v(ACC(oc,ml,0)+rr)}, {v(ACC(oc,ml,1)+rr)} offset0:{o} offset1:{o+1}')
    A('s_waitcnt lgkmcnt(0)')
    A('s_barrier')
    A(f'v_mul_u32_u24 v7, {RS}, v4'); A('v_lshl_add_u32 v7, v5, 5, v7')
    for sl in range(8):
        if sl and sl % 2 == 0: A(f'v_add_u32 v7, {64*RS}, v7')
        for j in range(2): A(f'ds_read_b128 {v(16+8*sl+4*j,4)}, v7 offset:{(sl&1)*32*RS+16*j}')
    A('s_waitcnt lgkmcnt(0)')
    for step in (1, 2, 4):
        for sl in range(0, 8, 2*step):
            for j in range(4):
                A(f'v_pk_add_f32 {v(16+8*sl+2*j,2)}, {v(16+8*sl+2*j,2)}, {v(16+8*(sl+step)+2*j,2)}')
    for j in range(4):
        a_, b_ = 16+2*j, 17+2*j
        A(f'v_cvt_pk_bf16_f32 v8, {v(a_)}, {v(b_)}')
        A(f'v_lshlrev_b32 {v(a_)}, 16, v8'); A(f'v_and_b32 {v(b_)}, 0xffff0000, v8')
        A(f'v_lshlrev_b32 v9, 16, {v(XG+4+j)}'); A(f'v_and_b32 v10, 0xffff0000, {v(XG+4+j)}')
        A(f'v_mul_f32 {v(a_)}, {v(a_)}, v9'); A(f'v_mul_f32 {v(b_)}, {v(b_)}, v10')
        A(f'v_cvt_pk_bf16_f32 v8, {v(a_)}, {v(b_)}')
        A(f'v_lshlrev_b32 {v(a_)}, 16, v8'); A(f'v_and_b32 {v(b_)}, 0xffff0000, v8')
        A(f'v_lshlrev_b32 v9, 16, {v(XG+j)}'); A(f'v_and_b32 v10, 0xffff0000, {v(XG+j)}')
        A(f'v_add_f32 {v(a_)}, {v(a_)}, v9'); A(f'v_add_f32 {v(b_)}, {v(b_)}, v10')
        A(f'v_cvt_pk_bf16_f32 {v(24+j)}, {v(a_)}, {v(b_)}')
    A('buffer_store_dwordx4 v[24:27], v6, s[12:15], s22 offen')

def phase_yw(A, gq, fail, sync=True):
    W = [256 + 4*i for i in range(56)]
    AFr = [16 + 4*k for k in range(14)]
    ACC = 80; OUT = 96
    A(f's_lshl_b32 s17, {s(gq)}, 2'); A('s_add_u32 s17, s17, s3')
    sdivmod(A, 22, 23, 17, 14, 112)
    A(f's_mul_i32 s18, s22, {2*28*14*1024}'); A(f's_mul_i32 s19, s23, {2*14*1024}')
    A('s_add_u32 s18, s18, s19'); A(f's_add_u32 s18, s18, {NC}'); A(f's_add_u32 s24, s18, {28*14*1024}')
    load_frags(A, W[:28], 18, 20); load_frags(A, W[28:], 24, 20)
    A('v_and_b32 v2, 8, v0'); A('v_lshlrev_b32 v2, 10, v2')
    A('v_and_b32 v3, 7, v0'); A('v_lshl_add_u32 v2, v3, 4, v2')
    A('v_lshrrev_b32 v3, 5, v0'); A('v_lshl_add_u32 v2, v3, 7, v2')
    A('v_and_b32 v6, 16, v0'); A('v_lshrrev_b32 v6, 1, v6'); A('v_add_u32 v2, v2, v6')
    A(f'v_mul_u32_u24 v3, {14*8192}, v3')
    A('v_and_b32 v6, 31, v0'); A('v_lshl_add_u32 v3, v6, 4, v3')
    A('s_lshl_b32 s21, s23, 2'); A('s_lshr_b32 s19, s22, 1'); A('s_add_u32 s21, s21, s19'); A('s_lshl_b32 s21, s21, 11')
    A('s_and_b32 s19, s22, 1'); A('s_lshl_b32 s19, s19, 9'); A('s_add_u32 s21, s21, s19'); A(f's_add_u32 s21, s21, {YG}')
    A('s_lshr_b32 s26, s23, 1'); A('s_lshl_b32 s26, s26, 7'); A('s_lshl_b32 s19, s22, 3'); A('s_add_u32 s26, s26, s19')
    A('s_and_b32 s19, s23, 1'); A('s_lshl_b32 s19, s19, 2'); A('s_add_u32 s26, s26, s19'); A(f's_add_u32 s26, s26, {YFL}')
    A(f's_mov_b32 s24, {MEMG2 if sync else MEMG}')
    A('s_mov_b32 s27, 1')
    A('s_mov_b32 s31, 0')
    A('s_mov_b32 s23, 0')
    A('v_mov_b32 v7, 0')
    def flag():
        A('v_mov_b32 v6, s23'); A('s_mov_b64 exec, 1')
        A('buffer_store_dword v6, v7, s[4:7], s26 offen sc1'); A('s_mov_b64 exec, -1')
        A('s_mov_b32 s23, 0'); A('s_add_u32 s26, s26, 896')
    L = A.newlabel('yw'); Lh = A.newlabel('ywh'); Lnf = A.newlabel('ywn'); Ld = A.newlabel('ywd')
    A.label(L)
    A('s_add_u32 s25, s24, 4096')
    def issue(fl):
        for kk in range(14):
            for pc in range(2):
                A(f'buffer_load_dwordx2 {v(AFr[kk]+2*pc,2)}, v2, s[4:7], {"s24" if kk < 8 else "s25"} offen offset:{(kk%8)*512+pc*256}{fl}')
    Lgo = A.newlabel('ywg')
    if sync:
        A('s_cmp_ge_u32 s31, s27'); A(f's_cbranch_scc1 {Lh}')
        A('s_sub_u32 s19, s27, 1'); A('s_max_u32 s19, s19, 1')
        wait_hint(A, 19, fail)
        A('s_mov_b32 s31, s29')
        A('s_cmp_ge_u32 s31, s27'); A(f's_cbranch_scc1 {Lh}')
        def chk():
            A(f'v_max_u32 v4, {v(AFr[0])}, {v(AFr[0]+1)}')
            for j in range(1, 28): A(f'v_max3_u32 v4, v4, {v(AFr[0]+2*j)}, {v(AFr[0]+2*j+1)}')
            A('v_cmp_eq_u32 vcc, -1, v4')
        spin_wait(A, lambda: issue(' sc1'), chk, fail, sleep=3)
        A(f's_branch {Lgo}')
        A.label(Lh)
    issue(' sc1' if sync else '')
    A.label(Lgo)
    for kk in range(14):
        A(f's_waitcnt vmcnt({2*(13-kk)})')
        for tl in range(4):
            d = ACC + 4*tl
            A(f'v_mfma_f32_16x16x32_bf16 {v(d,4)}, {v(AFr[kk],4)}, {r(W[tl*14+kk],4)}, {"0" if kk == 0 else v(d,4)}')
    if sync:
        A('s_cmp_eq_u32 s23, 0'); A(f's_cbranch_scc1 {Lnf}')
        flag()
        A.label(Lnf)
    A.nop(8)
    for ct in range(2):
        o = OUT + 4*ct
        for hs in range(2):
            d = ACC + 4*(hs*2+ct)
            A(f'v_cvt_pk_bf16_f32 {v(o+2*hs)}, {v(d)}, {v(d+1)}'); A(f'v_cvt_pk_bf16_f32 {v(o+2*hs+1)}, {v(d+2)}, {v(d+3)}')
        A(f'buffer_store_dwordx4 {v(o,4)}, v3, s[4:7], s21 offen offset:{ct*1024}{" sc1" if sync else ""}')
    A('s_add_u32 s24, s24, 16384')
    A(f's_add_u32 s21, s21, {2*14*8192}')
    A('s_add_u32 s27, s27, 2')
    if sync:
        A('s_lshr_b32 s23, s27, 1')
        A('s_cmp_ge_u32 s31, s27'); A(f's_cbranch_scc1 {Ld}')
        A('s_waitcnt vmcnt(0)')
        flag()
        A.label(Ld)
    tstamp(A, 16, 8, 9, sreg=27)
    A('s_cmp_lt_u32 s27, 64')
    A(f's_cbranch_scc1 {L}')

W_LDS = 4*S_STG
def gen_k4(A):
    A.label('k4_kernel'); A('s_cmp_ge_u32 s2, 224'); A('s_cbranch_scc1 k4_end')
    prologue(A); phase_f2(A, 2)
    A.label('k4_end'); A('s_endpgm')
    return dict(name='k4_kernel', grid=224, block=256, lds=W_LDS, vgpr=256, sgpr=48, agpr=256)
def gen_k5(A):
    A.label('k5_kernel'); A('s_cmp_ge_u32 s2, 256'); A('s_cbranch_scc1 k5_end')
    prologue(A)
    A('s_and_b32 s32, s2, 15'); A('s_lshr_b32 s33, s2, 4')
    phase_s(A, 32, 33, 'k5_end', False)
    A.label('k5_end'); A('s_endpgm')
    return dict(name='k5_kernel', grid=256, block=256, lds=W_LDS, vgpr=256, sgpr=48, agpr=256)
def gen_k6(A):
    A.label('k6_kernel'); A('s_cmp_ge_u32 s2, 448'); A('s_cbranch_scc1 k6_end')
    srd(A, 8, 0, SZ_X); srd(A, 12, 88, SZ_X)
    prologue(A)
    sdivmod(A, 32, 33, 2, 7, 448)
    phase_o(A, 32, 33, 'k6_end', False)
    A.label('k6_end'); A('s_endpgm')
    return dict(name='k6_kernel', grid=448, block=256, lds=W_LDS, vgpr=256, sgpr=48, agpr=0)
```

```python
from asmlib import *
from layout import *
from k1 import sdivmod, srd
from wk import prologue, load_frags, f2u, LOG2E, tstamp, wait_words, mnf_addr

STG, XB, XS_ = 0, 8192, 576
RED, WL = 8192, 16384
CHAIN_LDS = WL + 4*14*1024
SPIN = 200000
NSTEP = 63
PROFILE = False
EWPOS = 12
QUICK = False
MFIRST = 0
LNST = ''
RING = 0
RSP = 0
PSETS = 1
EWMI = -1
VDEL = 0
SSF = 0
PDEL = 40
MDEL = 0
MSRC = 0
EWW = 0
DYNF = 0
TAGC = 0
MSETS = 2
VMSETS = 2
TAGS = 0
TG = 16384
STAGP = 24
UEARLY = 1
PFS = 128
VFLAG = 0
LAT = 0
PREF = 3
POLLALL = 1
DBG_NOYW = 0
DBG_NOYF = 0
WBSTEP = 4
WBLAST = 2
NROLE = 30
DBG_NOITEM = DBG_PLAIN = 0
DBG_U0 = DBG_X0 = DBG_NOY = 0
BDEL = 8
STAG = 40
EWM_POS = 0

def stamp(A, i):
    if PROFILE and not LAT: A(f's_memrealtime {s(50+2*i,2)}')
def stamp_flush(A, n, tmp, tmp2):
    if not PROFILE: return
    A('s_waitcnt lgkmcnt(0)')
    for i in range(n): A(f'v_writelane_b32 {v(tmp)}, {s(50+2*i)}, {i}')
    A(f'v_mbcnt_lo_u32_b32 {v(tmp2)}, -1, 0')
    A(f'v_lshlrev_b32 {v(tmp2)}, 2, {v(tmp2)}')
    A('s_lshl_b32 s48, s20, 6')
    A('s_add_u32 s48, s48, s49')
    A('s_mov_b64 s[70:71], exec')
    A('s_mov_b64 exec, 0xffff')
    A(f'buffer_store_dword {v(tmp)}, {v(tmp2)}, s[4:7], s48 offen')
    A('s_mov_b64 exec, s[70:71]')
def stamp_init(A):
    if not PROFILE: return
    A('s_lshl_b32 s49, s15, 2'); A('s_add_u32 s49, s49, s3'); A('s_lshl_b32 s49, s49, 12')
    A(f's_add_u32 s49, s49, {PROF}')

OOL = []
def flush_ool(A):
    for f in OOL: f()
    OOL.clear()

class Lds:
    def __init__(self, A): self.A = A; self.q = []
    def op(self, name, ins): self.A(ins); self.q.append(name)
    def need(self, name):
        if name not in self.q: return
        i = self.q.index(name)
        n = len(self.q) - 1 - i
        self.A(f's_waitcnt lgkmcnt({min(n,15)})')
        self.q = self.q[i+1:] if n <= 15 else self.q
    def drain(self):
        self.A('s_waitcnt lgkmcnt(0)'); self.q = []

def smf(A, d, a_, b):
    A(f'v_smfmac_f32_16x16x64_bf16 {v(d,4)}, {r(a_,4)}, {r(b,8)}, v2')

NF = 2
def common_setup(A):
    A('v_and_b32 v11, 8, v0')
    A('v_cmp_eq_u32 vcc, 0, v11')
    A('v_mov_b32 v2, 0xeeee')
    A('v_mov_b32 v11, 0x4444')
    A('v_cndmask_b32 v2, v2, v11, vcc')
    A('v_lshrrev_b32 v11, 4, v0'); A('v_lshlrev_b32 v8, 7, v11')
    A('v_and_b32 v11, 7, v0'); A('v_lshl_add_u32 v8, v11, 4, v8')
    A('s_mul_i32 s16, s3, 112')
    A('v_add_u32 v3, s16, v0'); A('v_lshlrev_b32 v3, 4, v3')
    A('v_min_u32 v4, 47, v0'); A('v_add_u32 v4, s16, v4'); A('v_add_u32 v4, 64, v4'); A('v_lshlrev_b32 v4, 4, v4')
    A('v_min_u32 v5, 13, v0'); A('v_lshlrev_b32 v5, 2, v5')
    A(f's_mov_b32 s40, {EWM}')
    A(f's_mov_b32 s41, {EWP}')
    A('s_lshl_b32 s16, s15, 8')
    A('s_add_u32 s46, s40, s16')
    A('s_add_u32 s47, s41, s16')
    A('s_mov_b64 s[42:43], 0xffff')
    A('s_mov_b32 s72, 0'); A('s_mov_b32 s73, 0x0fffffff')
    if SSF:
        A('s_lshl_b32 s16, s15, 2'); A('s_add_u32 s16, s16, s3'); A('s_lshl_b32 s16, s16, 8')
        A(f's_add_u32 s46, s16, {EW2}'); A('s_mov_b32 s47, s46')
        A('v_mov_b32 v5, 0'); A('s_mov_b64 s[42:43], 1')
        A(f's_mov_b32 s40, {EW2}'); A(f's_mov_b32 s41, {EW2+16384}')

def step_addr(A):
    A('s_and_b32 s21, s20, 3')
    A(f's_lshl_b32 s24, s21, 14')
    A(f's_add_u32 s24, s24, {MEMR}')
    A('s_add_u32 s25, s24, 8192')
    A(f's_lshl_b32 s26, s21, 15')
    A(f's_add_u32 s26, s26, {PR}')
    A('s_add_u32 s45, s26, 16384')
    A('s_xor_b32 s22, s21, 2')
    A(f's_lshl_b32 s27, s22, 15')
    A(f's_add_u32 s27, s27, {PR}')
    A('s_add_u32 s44, s20, 1')
    A('s_and_b32 s22, s44, 3')
    A(f's_lshl_b32 s28, s22, 14')
    A(f's_add_u32 s28, s28, {MEMR}')
    A('s_xor_b32 s22, s22, 2')
    A(f's_lshl_b32 s29, s22, 14')
    A(f's_add_u32 s29, s29, {MEMR}')

def store_flag(A, voff, base, st, tmp):
    if SSF: return
    A(f'v_mov_b32 {v(tmp)}, s44')
    if base == 's41': A('s_mov_b64 exec, s[72:73]')
    else: A('s_mov_b32 exec_hi, 0x40000000')
    A(f'buffer_store_dword {v(tmp)}, {v(voff)}, s[4:7], {base} offen{st}')
    A('s_mov_b64 exec, -1')

def ssf_store(A, base, st, t0, t1):
    A(f'v_mbcnt_lo_u32_b32 {v(t1)}, -1, 0'); A(f'v_mbcnt_hi_u32_b32 {v(t1)}, -1, {v(t1)}'); A(f'v_lshlrev_b32 {v(t1)}, 8, {v(t1)}')
    A(f'v_mov_b32 {v(t0)}, s44')
    A(f'buffer_store_dword {v(t0)}, {v(t1)}, s[4:7], {base} offen{st}')
    A(f'buffer_store_dword {v(t0)}, {v(t1)}, s[4:7], {base} offen offset:128{st}')

def wait_flag(A, voff, base, want, regs, fail, poller):
    nf = NF
    Lb = A.newlabel('wfb')
    if poller is not None or POLLALL:
        L = A.newlabel('wf'); Lok = A.newlabel('wfo')
        if not POLLALL:
            A(f's_cmp_lg_u32 s3, {poller}')
            A(f's_cbranch_scc1 {Lb}')
        A(f's_mov_b32 s30, {SPIN}')
        A('s_mov_b64 exec, s[42:43]')
        def issue(k): A(f'buffer_load_dword {v(regs[k])}, {v(voff)}, s[4:7], {base} offen offset:{k*128} sc1')
        for k in range(nf-1):
            issue(k); A.nop(52//nf)
        A.label(L)
        for k in range(nf):
            issue((k+nf-1) % nf)
            A(f's_waitcnt vmcnt({nf-1})')
            A(f'v_cmp_gt_u32 vcc, {want}, {v(regs[k])}')
            A(f's_cbranch_vccz {Lok}')
        A('s_sub_u32 s30, s30, 1')
        A('s_cmp_lg_u32 s30, 0')
        A(f's_cbranch_scc1 {L}')
        A('s_mov_b64 exec, -1')
        A(f's_branch {fail}')
        A.label(Lok)
        A('s_mov_b64 exec, -1')
    A.label(Lb)
    if not POLLALL: A('s_barrier')

def poll_mem(A, sets, fail):
    L = A.newlabel('pm'); Lok = A.newlabel('pmo'); L1 = A.newlabel('pm1')
    def issue(k):
        so = 's24' if k == 0 else 's25'
        A(f'buffer_load_dwordx4 {v(sets[k],4)}, v3, s[4:7], {so} offen sc1')
        A(f'buffer_load_dwordx4 {v(sets[k]+4,4)}, v4, s[4:7], {so} offen sc1')
    stamp(A, 8)
    if PROFILE: A('s_mov_b32 s68, 0')
    def check(k):
        b = sets[k]
        if PROFILE: A('s_add_u32 s68, s68, 1')
        A(f'ds_write_b128 v3, {v(b,4)}')
        A(f'ds_write_b128 v4, {v(b+4,4)}')
        A(f'v_max3_u32 v0, {v(b)}, {v(b+1)}, {v(b+2)}')
        A(f'v_max3_u32 v1, {v(b+3)}, {v(b+4)}, {v(b+5)}')
        A(f'v_max3_u32 v0, v0, {v(b+6)}, {v(b+7)}')
        A('v_max_u32 v0, v0, v1')
        A('v_cmp_eq_u32 vcc, -1, v0')
    A(f's_mov_b32 s30, {SPIN}')
    if len(sets) == 1:
        A.label(L)
        issue(0)
        A('s_sub_u32 s30, s30, 1'); A('s_cmp_eq_u32 s30, 0'); A(f's_cbranch_scc1 {fail}')
        A('s_waitcnt vmcnt(0)'); check(0)
        A(f's_cbranch_vccnz {L}')
    else:
        issue(0)
        A.nop(STAG)
        A.label(L)
        issue(1); A('s_waitcnt vmcnt(2)'); check(0)
        A(f's_cbranch_vccnz {L1}')
        def ool():
            A.label(L1)
            issue(0); A('s_waitcnt vmcnt(2)'); check(1)
            A(f's_cbranch_vccz {Lok}')
            A('s_sub_u32 s30, s30, 1')
            A(f's_cmp_gt_u32 s30, {SPIN-4}'); A(f's_cbranch_scc1 {L}')
            A('s_sleep 10')
            A('s_cmp_lg_u32 s30, 0'); A(f's_cbranch_scc1 {L}')
            A(f's_branch {fail}')
        OOL.append(ool)
    A.label(Lok)
    stamp(A, 0)
    A('s_waitcnt lgkmcnt(0)')
    A('s_barrier')
    stamp(A, 1)

def post_paired(d0, d1, xreg, xoff, t):
    I = [f'v_cvt_pk_bf16_f32 {v(t+rr)}, {v(d0+rr)}, {v(d1+rr)}' for rr in range(4)]
    W = [f'ds_write_b32 {v(xreg)}, {v(t+rr)} offset:{xoff+16*rr}' for rr in range(4)]
    return I, W
def post_single(d, xreg, xoff):
    I = [f'v_permlane32_swap_b32 {v(d)}, {v(d+1)}', f'v_permlane32_swap_b32 {v(d+2)}, {v(d+3)}',
         f'v_cvt_pk_bf16_f32 {v(d)}, {v(d)}, {v(d+1)}', f'v_cvt_pk_bf16_f32 {v(d+2)}, {v(d+2)}, {v(d+3)}']
    W = [f'ds_write_b32 {v(xreg)}, {v(d)} offset:{xoff}', f'ds_write_b32 {v(xreg)}, {v(d+2)} offset:{xoff+32}']
    return I, W

def x_addrs(A):
    A('v_and_b32 v11, 12, v0'); A('v_mul_u32_u24 v9, 36, v11')
    A('v_and_b32 v11, 3, v0');  A('v_lshl_add_u32 v9, v11, 2, v9')
    A('v_and_b32 v11, 16, v0'); A('v_lshl_add_u32 v9, v11, 2, v9')
    A(f's_mul_i32 s16, s3, {2*XS_}'); A(f's_add_u32 s16, s16, {XB}')
    A('v_add_u32 v9, s16, v9')
    A('v_lshrrev_b32 v11, 5, v0')
    A('v_lshl_add_u32 v10, v11, 4, v9')
    A(f'v_mul_u32_u24 v11, {XS_}, v11')
    A('v_add_u32 v9, v9, v11')

def gen_score(A, st, tag, fail, done):
    Lfin = f'sc_fin_{tag}'
    A('s_cmp_eq_u32 s3, 3')
    A(f's_cbranch_scc1 {Lfin}')
    ACC = [12, 16, 20, 24]
    SL = [28 + 4*i for i in range(9)]
    W = lambda tl, p: 64 + (tl*14+p)*8
    Lloop = f'sc_loop_{tag}'
    A('s_mov_b32 s20, 0')
    if TAGS or TAGC:
        A('v_lshlrev_b32 v6, 2, v0'); A('s_lshl_b32 s16, s3, 8'); A(f's_add_u32 s16, s16, {TG}'); A('v_add_u32 v6, s16, v6')
        A('v_mov_b32 v7, 0'); A('ds_write_b32 v6, v7')
    A.label(Lloop)
    step_addr(A)
    for k in range(8): A(f'v_mov_b64 {v(12+2*k,2)}, 0')
    wait_flag(A, 5, 's46', 's20', [SL[0]+k for k in range(4)], fail, 0)
    poll_mem(A, [SL[0], SL[2]][:MSETS], fail)
    Q = Lds(A)
    def rd(Q, p, slot):
        Q.op(('r', p), f'ds_read_b128 {v(SL[slot],4)}, v8 offset:{p*512}')
    slot = {}
    for p in range(5): slot[p] = 4+p; rd(Q, p, 4+p)
    for p in range(14):
        Q.need(('r', p))
        smf(A, ACC[0], SL[slot[p]], W(0, p)); smf(A, ACC[1], SL[slot[p]], W(1, p))
        if p == 1:
            A('s_waitcnt vmcnt(0)')
            for pp in range(5, 9): slot[pp] = pp-5; rd(Q, pp, pp-5)
        if 1 <= p < 6: slot[p+8] = slot.pop(p-1); rd(Q, p+8, slot[p+8])
    def phase(tl, order, rer, I, Wr):
        fill = [('v', x) for x in I] + [('w', x) for x in Wr] + [('n', None)]*BDEL + [('b', None)]
        if TAGS: fill = [('v', x) for x in I + ['v_add_u32 v7, 1, v7']] + [('w', x) for x in Wr + ['ds_write_b32 v6, v7']]
        rer = list(rer)
        for n, p in enumerate(order):
            Q.need(('r', p))
            smf(A, ACC[tl], SL[slot[p]], W(tl, p))
            if rer:
                pn = rer.pop(0); slot[pn] = slot.pop(p); rd(Q, pn, slot[pn])
            if n >= 4:
                for _ in range(2 if (not TAGS or n in (5, 6)) else 1):
                    if not fill: break
                    kind, x = fill.pop(0)
                    if kind == 'v': A(x)
                    elif kind == 'w': Q.op('w', x)
                    elif kind == 'n': pass
                    else: Q.drain(); A('s_barrier')
        assert not fill, fill
    I, Wr = post_paired(ACC[0], ACC[1], 9, 0, ACC[0])
    phase(2, [5, 6, 7, 8, 9, 10, 11, 12, 13, 0, 1, 2, 3, 4], [0, 1, 2, 3, 4], I, Wr)
    stamp(A, 2)
    I, Wr = post_single(ACC[2], 10, 8*XS_)
    phase(3, [10, 11, 12, 13, 0, 1, 2, 3, 4, 5, 6, 7, 8, 9], [5, 6, 7, 8, 9], I, Wr)
    stamp(A, 3)
    if TAGS or TAGC: A('v_add_u32 v7, 1, v7'); A.nop(7)
    else: A.nop(8)
    I, Wr = post_single(ACC[3], 10, 9*XS_)
    for x in I + Wr: A(x)
    if TAGS or TAGC: A('ds_write_b32 v6, v7')
    else:
        A('s_waitcnt lgkmcnt(0)')
        A('s_barrier')
    if EWPOS == 99:
        Lq = A.newlabel('w0f'); A('s_cmp_lg_u32 s3, 0'); A(f's_cbranch_scc1 {Lq}')
        A('v_mbcnt_lo_u32_b32 v1, -1, 0'); A('v_mbcnt_hi_u32_b32 v1, -1, v1'); A('v_lshlrev_b32 v1, 7, v1'); A('s_lshl_b32 s22, s17, 2'); A('v_add_u32 v1, s22, v1')
        A.nop(PDEL)
        store_flag(A, 1, 's41', st, 0)
        A.label(Lq)
    if SSF:
        Lq = A.newlabel('ssf'); A('s_or_b32 s22, s15, s3'); A('s_cmp_lg_u32 s22, 0'); A(f's_cbranch_scc1 {Lq}')
        A.nop(PDEL)
        ssf_store(A, 's41', st, 0, 1)
        A.label(Lq)
    stamp(A, 4); stamp_flush(A, 10, 0, 1)
    A('s_add_u32 s20, s20, 1')
    A(f's_cmp_lt_u32 s20, {NSTEP}')
    A(f's_cbranch_scc1 {Lloop}')
    A(f's_branch {done}')

    A.label(Lfin)
    ACC = [16, 20]; DX, DM = 24, 28
    PS = [32, 48]
    AF = [64 + 4*p for p in range(14)]
    A2 = [120 + 4*i for i in range(4)]
    T = 136
    XSR = [144 + 8*kk for kk in range(14)]
    W = lambda tl, p: 256 + (tl*14+p)*8
    posof = lambda kk: kk
    A('v_lshlrev_b32 v12, 4, v0')
    A('v_and_b32 v11, 16, v0'); A('v_lshlrev_b32 v1, 2, v11')
    A('v_lshrrev_b32 v11, 5, v0'); A('v_lshl_add_u32 v1, v11, 4, v1')
    A('v_and_b32 v11, 12, v0'); A('v_lshl_add_u32 v13, v11, 6, v1')
    A('v_and_b32 v11, 3, v0'); A('v_lshl_add_u32 v13, v11, 2, v13')
    A('s_lshr_b32 s16, s17, 1'); A('s_lshl_b32 s16, s16, 10')
    A('s_and_b32 s18, s17, 1'); A('s_lshl_b32 s19, s18, 7'); A('s_add_u32 s16, s16, s19')
    A('v_add_u32 v13, s16, v13')
    A('v_and_b32 v11, 8, v0');  A('v_lshl_add_u32 v14, v11, 2, v1')
    A('v_cmp_ne_u32 s[34:35], 0, v11')
    A('v_and_b32 v11, 7, v0');  A('v_lshl_add_u32 v14, v11, 1, v14')
    A('s_lshr_b32 s16, s17, 3'); A('s_lshl_b32 s16, s16, 10')
    A('s_and_b32 s19, s17, 3'); A('s_lshl_b32 s19, s19, 8'); A('s_add_u32 s16, s16, s19')
    A('s_and_b32 s19, s17, 4'); A('s_lshl_b32 s19, s19, 5'); A('s_add_u32 s16, s16, s19')
    A('s_add_u32 s16, s16, 8192'); A('v_add_u32 v14, s16, v14')
    A('s_lshl_b32 s16, s17, 2'); A('v_lshlrev_b32 v6, 7, v0'); A('v_add_u32 v6, s16, v6')
    A('v_lshrrev_b32 v11, 4, v0'); A('v_mul_u32_u24 v15, 144, v11')
    A('v_and_b32 v11, 7, v0'); A('v_lshl_add_u32 v15, v11, 4, v15')
    A(f'v_add_u32 v15, {XB}, v15')
    A(f's_mov_b32 s31, 0x{f2u(LOG2E):08x}')
    A('s_mov_b32 s33, 0x7fff7fff')
    A('s_mov_b32 s38, 0'); A('s_mov_b32 s39, -1')
    A('v_min_u32 v7, 2, v0'); A('v_lshlrev_b32 v7, 8, v7'); A(f'v_add_u32 v7, {TG}, v7')
    A('s_mov_b32 s36, 0')
    def load_xs():
        for i in range(28):
            if i % 4 == 0:
                if i == 0: A('s_mov_b32 s23, s32')
                else: A('s_add_u32 s23, s23, 4096')
            A(f'buffer_load_dwordx4 {v(XSR[0]+4*i,4)}, v12, s[4:7], s23 offen offset:{(i%4)*1024}')
    A(f's_mov_b32 s32, {XNS}')
    load_xs()
    Lloop = f'sf_loop_{tag}'
    A('s_mov_b32 s20, 0')
    A.label(Lloop)
    if QUICK:
        Lq = A.newlabel('q')
        A('s_cmp_lg_u32 s20, 2'); A(f's_cbranch_scc1 {Lq}'); A('s_memrealtime s[64:65]'); A('s_memtime s[60:61]'); A.label(Lq)
    step_addr(A)
    for k in range(8): A(f'v_mov_b64 {v(16+2*k,2)}, 0')
    wait_flag(A, 5, 's46', 's20', [PS[0]+k for k in range(4)], fail, None)
    poll_mem(A, PS[:MSETS], fail)
    Q = Lds(A)
    for p in range(14):
        Q.op(('r', p), f'ds_read_b128 {v(AF[p],4)}, v8 offset:{p*512}')
    for p in range(14):
        Q.need(('r', p))
        smf(A, ACC[0], AF[p], W(0, p)); smf(A, ACC[1], AF[p], W(1, p))
    A.nop(8)
    I, Wr = post_paired(ACC[0], ACC[1], 9, 0, ACC[0])
    for x in I: A(x)
    for x in Wr: Q.op('w', x)
    nb = [0]
    def rd2(kk2):
        Q.op(('x', kk2), f'ds_read_b128 {v(A2[nb[0]%4],4)}, v15 offset:{kk2*XS_}')
        buf[kk2] = A2[nb[0] % 4]; nb[0] += 1
    buf = {}
    def second(kk2):
        Q.need(('x', kk2))
        smf(A, DX, buf[kk2], XSR[kk2])
        A(f'v_mfma_f32_16x16x32_bf16 {v(DM,4)}, {v(buf[kk2],4)}, {v(AF[posof(kk2)],4)}, {v(DM,4)}')
    rd2(6); rd2(7)
    second(6); second(7)
    if True:
        def sync(kks):
            Ls = A.newlabel('ts')
            A('s_add_u32 s36, s36, 1')
            A(f's_mov_b32 s30, {SPIN*4}')
            n0 = nb[0]
            A.label(Ls)
            A('ds_read_b32 v0, v7')
            for kk2 in kks: rd2(kk2)
            A('s_sub_u32 s30, s30, 1'); A('s_cmp_eq_u32 s30, 0'); A(f's_cbranch_scc1 {fail}')
            A(f's_waitcnt lgkmcnt({len(kks)})')
            A('v_cmp_gt_u32 vcc, s36, v0')
            A(f's_cbranch_vccnz {Ls}')
    if TAGS:
        sync([0, 1, 2, 3])
        stamp(A, 2)
        second(0); rd2(4); second(1); rd2(5); second(2); second(3); second(4); second(5)
        sync([8, 10, 12])
        second(8); second(10); second(12)
        sync([9, 11, 13])
        stamp(A, 3)
    else:
        A('s_barrier')
        stamp(A, 2)
        for kk2 in range(4): rd2(kk2)
        second(0); rd2(4); second(1); rd2(5); second(2); second(3)
        A('s_barrier')
        rd2(8); rd2(10)
        second(4); rd2(12); second(5); second(8); second(10); second(12)
        if TAGC: sync([9, 11, 13]); stamp(A, 3)
        else:
            A('s_barrier')
            stamp(A, 3)
            rd2(9); rd2(11); rd2(13)
    if EWPOS == -1: store_flag(A, 6, 's41', st, T+7)
    second(9); second(11); second(13)
    if EWPOS == 0: store_flag(A, 6, 's41', st, T+7)
    A.nop(8)
    stamp(A, 4)
    A(f'v_permlane32_swap_b32 {v(DX)}, {v(DX+1)}')
    A(f'v_permlane32_swap_b32 {v(DX+2)}, {v(DX+3)}')
    A(f'v_cndmask_b32 {v(DM)}, {v(DM)}, {v(DM+1)}, s[38:39]')
    A(f'v_cndmask_b32 {v(DM+2)}, {v(DM+2)}, {v(DM+3)}, s[38:39]')
    if EWPOS == 10: store_flag(A, 6, 's41', st, T+7)
    mx = [T, T+1]; sm = [T+2, T+3]; ml = [T+4, T+5]
    el = lambda t: (DX+2*t, DX+2*t+1, DM+2*t)
    for t in range(2):
        A(f'v_max3_f32 {v(mx[t])}, {v(el(t)[0])}, {v(el(t)[1])}, {v(el(t)[2])}')
    for t in range(2):
        A(f'v_mul_f32 {v(ml[t])}, 0x{f2u(-LOG2E):08x}, {v(mx[t])}')
    fx = []
    for j in (2, 0, 1):
        for t in range(2): fx.append(f'v_fma_f32 {v(el(t)[j])}, {v(el(t)[j])}, s31, {v(ml[t])}')
    for j in (2, 0, 1):
        for t in range(2): fx.append(f'v_exp_f32 {v(el(t)[j])}, {v(el(t)[j])}')
    for ror in (8, 4, 2, 1):
        for t in range(2):
            A(f'v_max_f32_dpp {v(mx[t])}, {v(mx[t])}, {v(mx[t])} row_ror:{ror} row_mask:0xf bank_mask:0xf')
        for _ in range(3): A(fx.pop(0))
        if EWPOS == 11 and ror == 8: store_flag(A, 6, 's41', st, T+7)
        if EWPOS == 12 and ror == 4: store_flag(A, 6, 's41', st, T+7)
    if EWPOS == 1: store_flag(A, 6, 's41', st, T+7)
    for t in range(2):
        A(f'v_fma_f32 {v(ml[t])}, -{v(mx[t])}, s31, -{v(ml[t])}')
    for t in range(2):
        A(f'v_fma_f32 {v(sm[t])}, {v(el(t)[2])}, 0.5, {v(el(t)[0])}')
    for t in range(2):
        A(f'v_exp_f32 {v(ml[t])}, {v(ml[t])}')
    for t in range(2):
        A(f'v_add_f32 {v(sm[t])}, {v(sm[t])}, {v(el(t)[1])}')
    for t in range(2):
        A(f'v_mul_f32 {v(sm[t])}, {v(sm[t])}, {v(ml[t])}')
    if EWPOS == 2: store_flag(A, 6, 's41', st, T+7)
    pre = [f'v_mul_f32 {v(el(t)[j])}, {v(el(t)[j])}, {v(ml[t])}' for j in range(3) for t in range(2)]
    for ror in (8, 4, 2, 1):
        A(pre.pop(0))
        if ror in (8, 4): A(pre.pop(0))
        for t in range(2):
            A(f'v_add_f32_dpp {v(sm[t])}, {v(sm[t])}, {v(sm[t])} row_ror:{ror} row_mask:0xf bank_mask:0xf')
    if EWPOS == 3: store_flag(A, 6, 's41', st, T+7)
    for t in range(2):
        A(f'v_rcp_f32 {v(sm[t])}, {v(sm[t])}')
    A(f'v_cndmask_b32 {v(T+6)}, {v(DM)}, {v(DM+2)}, s[34:35]')
    for j in range(2):
        for t in range(2):
            A(f'v_mul_f32 {v(el(t)[j])}, {v(el(t)[j])}, {v(sm[t])}')
    A(f'v_cndmask_b32 {v(T+7)}, {v(sm[0])}, {v(sm[1])}, s[34:35]')
    for t in range(2):
        A(f'v_cvt_pk_bf16_f32 {v(T+4+t)}, {v(el(t)[0])}, {v(el(t)[1])}')
    A(f'v_mul_f32 {v(T+6)}, {v(T+6)}, {v(T+7)}')
    for t in range(2):
        A(f'v_and_b32 {v(T+4+t)}, s33, {v(T+4+t)}')
    A(f'v_cvt_pk_bf16_f32 {v(T+6)}, {v(T+6)}, {v(T+6)}')
    for t in range(2):
        A(f'buffer_store_dword {v(T+4+t)}, v13, s[4:7], s26 offen offset:{32*t}{st}')
    A(f'v_and_b32 {v(T+6)}, s33, {v(T+6)}')
    A(f'buffer_store_short {v(T+6)}, v14, s[4:7], s26 offen{st}')
    if PSETS == 2:
        for t in range(2):
            A(f'buffer_store_dword {v(T+4+t)}, v13, s[4:7], s45 offen offset:{32*t}{st}')
        A(f'buffer_store_short {v(T+6)}, v14, s[4:7], s45 offen{st}')
    if EWPOS == 4: store_flag(A, 6, 's41', st, T+7)
    stamp(A, 5)
    A(f'v_mov_b32 {v(T+7)}, -1')
    for cp in range(PSETS):
        if cp: A('s_add_u32 s27, s27, 16384')
        for t in range(2):
            A(f'buffer_store_dword {v(T+7)}, v13, s[4:7], s27 offen offset:{32*t}{st}')
        A(f'buffer_store_short {v(T+7)}, v14, s[4:7], s27 offen{st}')
    tstamp(A, 16, 0, 1, sreg=20)
    if not DBG_X0: A('s_add_u32 s32, s32, 28672')
    load_xs()
    stamp_flush(A, 10, 0, 1)
    A('s_add_u32 s20, s20, 1')
    A(f's_cmp_lt_u32 s20, {NSTEP}')
    A(f's_cbranch_scc1 {Lloop}')
    if QUICK:
        A('s_memrealtime s[66:67]'); A('s_memtime s[62:63]'); A('s_waitcnt lgkmcnt(0)')
        A('s_sub_u32 s62, s62, s60'); A('v_mov_b32 v0, s62'); A('s_lshl_b32 s16, s17, 2'); A('s_add_u32 s16, s16, 192'); A('v_mov_b32 v1, s16')
        A('buffer_store_dword v0, v1, s[8:11], 0 offen')
        A('s_sub_u32 s66, s66, s64'); A('v_mov_b32 v0, s66'); A('s_lshl_b32 s16, s17, 2'); A('s_add_u32 s16, s16, 128'); A('v_mov_b32 v1, s16')
        A('buffer_store_dword v0, v1, s[8:11], 0 offen')
    A(f's_branch {done}')

def interleave(A, g):
    if g < 256:
        A(f'v_swap_b32 {v(g+1)}, {v(g+4)}')
        A(f'v_swap_b32 {v(g+2)}, {v(g+4)}')
        A(f'v_swap_b32 {v(g+3)}, {v(g+5)}')
        A(f'v_swap_b32 {v(g+5)}, {v(g+6)}')
    else:
        q = g - 256
        A(f'v_accvgpr_read_b32 v11, {a(q+1)}')
        A(f'v_accvgpr_mov_b32 {a(q+1)}, {a(q+4)}')
        A(f'v_accvgpr_mov_b32 {a(q+4)}, {a(q+2)}')
        A(f'v_accvgpr_write_b32 {a(q+2)}, v11')
        A(f'v_accvgpr_read_b32 v11, {a(q+3)}')
        A(f'v_accvgpr_mov_b32 {a(q+3)}, {a(q+5)}')
        A(f'v_accvgpr_mov_b32 {a(q+5)}, {a(q+6)}')
        A(f'v_accvgpr_write_b32 {a(q+6)}, v11')

def load_tiles(A, tiles, post=None, pre=None, issued=None):
    WIN = 30
    q = []
    def retire(left):
        g = q.pop(0)
        A(f's_waitcnt vmcnt({2*left})')
        interleave(A, g)
        if post: post(g)
    for ti, (dst, offa, offb, plist) in enumerate(tiles):
        if pre: pre(ti)
        for p in plist:
            if p % 4 == 0 or p == plist[0]:
                A(f's_add_u32 s22, s18, {offa+(p//4)*4096}')
                A(f's_add_u32 s23, s18, {offb+(p//4)*4096}')
            im = (p % 4)*1024
            A(f'buffer_load_dwordx4 {r(dst(p),4)}, v1, s[4:7], s22 offen offset:{im}')
            A(f'buffer_load_dwordx4 {r(dst(p)+4,4)}, v1, s[4:7], s23 offen offset:{im}')
            q.append(dst(p))
            if len(q) > WIN: retire(len(q)-1)
    if issued: issued()
    while q: retire(len(q)-1)

def score_weights(A, fail=None):
    TS = 14*1024
    Lw3 = A.newlabel('w3'); Ld = A.newlabel('wd')
    A(f's_mul_i32 s18, s17, {28*TS}')
    A(f's_add_u32 s18, s18, {MC}')
    A(f's_mul_i32 s19, s3, {4*TS}')
    A('s_add_u32 s18, s18, s19')
    A('s_cmp_eq_u32 s3, 3')
    A(f's_cbranch_scc1 {Lw3}')
    W = lambda tl: (lambda p: 64 + (tl*14+p)*8)
    def pre(ti):
        if fail and ti in (0, 2):
            A('s_lshl_b32 s19, s17, 3'); A('s_add_u32 s19, s19, s3'); A(f's_add_u32 s19, s19, {2*ti}'); A('s_lshl_b32 s19, s19, 7')
            mnf_addr(A, 13, None, 's19')
            wait_words(A, 13, 11, fail, sleep=16)
    load_tiles(A, [(W(0), 0, 2*TS, range(14)), (W(1), TS, 3*TS, range(14)),
                   (W(2), 16*TS, 17*TS, range(14)), (W(3), 18*TS, 19*TS, range(14))], pre=pre)
    A(f's_branch {Ld}')
    A.label(Lw3)
    W = lambda tl: (lambda p: 256 + (tl*14+p)*8)
    load_tiles(A, [(W(0), 0, 2*TS, range(14)), (W(1), TS, 3*TS, range(14))], pre=pre)
    A.label(Ld)

YL = 8192
def ucheck(A, fail, t0, once=False):
    Lr = A.newlabel('ur'); Lro = A.newlabel('uro')
    A('s_cmp_lt_u32 s20, s33'); A(f's_cbranch_scc1 {Lro}')
    A('v_lshrrev_b32 v1, 2, v12')
    if once:
        A(f'buffer_load_dword {v(t0)}, v1, s[4:7], s37 offen sc1')
        A('s_waitcnt vmcnt(0)')
        A(f'v_cmp_eq_u32 vcc, 0, {v(t0)}'); A('s_cmp_lg_u64 vcc, 0'); A('s_cselect_b32 s33, 0, 8')
    else:
        A('s_cmp_eq_u32 s20, 0'); A(f's_cbranch_scc1 {Lr}')
        for rd_ in range(8):
            A(f's_add_u32 s22, s37, {rd_*14*256}')
            A(f'buffer_load_dword {v(t0+rd_)}, v1, s[4:7], s22 offen sc1')
        A('s_waitcnt vmcnt(0)')
        A('s_mov_b32 s33, 64')
        for rd_ in range(7, -1, -1):
            A(f'v_cmp_eq_u32 vcc, 0, {v(t0+rd_)}'); A('s_cmp_lg_u64 vcc, 0'); A(f's_cselect_b32 s33, {8*rd_}, s33')
        A('s_cmp_lt_u32 s20, s33'); A(f's_cbranch_scc1 {Lro}')
        A.label(Lr)
        A('s_lshr_b32 s22, s20, 3'); A('s_lshl_b32 s33, s22, 3'); A('s_add_u32 s33, s33, 8')
        A(f's_mul_i32 s22, s22, {14*256}'); A('s_add_u32 s22, s22, s37'); A('v_add_u32 v1, s22, v1')
        wait_words(A, 1, t0, fail, cnt='s30', sleep=12)
    A.label(Lro)

def ypack(A, ACC, T):
    for ct in range(2):
        for hpl in range(2):
            d = ACC + 4*(hpl*2+ct); t = T + 2*(hpl*2+ct)
            A(f'v_cvt_pk_bf16_f32 {v(t)}, {v(d)}, {v(d+1)}'); A(f'v_cvt_pk_bf16_f32 {v(t+1)}, {v(d+2)}, {v(d+3)}')
            A(f'ds_write_b32 v13, {v(t)} offset:{(ct*2+hpl)*1024}')
            A(f'ds_write_b32 v13, {v(t+1)} offset:{(ct*2+hpl)*1024+8}')

def gen_value(A, st, tag, fail, done, merged_u=False):
    L3 = f'va3_{tag}'
    A('s_cmp_eq_u32 s3, 3'); A(f's_cbranch_scc1 {L3}')
    ACC = 16; SL = [32 + 4*i for i in range(8)]
    W = lambda ti, p: 64 + (ti*14+p)*8
    Lloop = f'va_loop_{tag}'
    A('s_mov_b32 s20, 0')
    A.label(Lloop)
    step_addr(A)
    for k in range(8): A(f'v_mov_b64 {v(ACC+2*k,2)}, 0')
    poll_mem(A, [SL[4], SL[6]][:VMSETS], fail)
    Q = Lds(A)
    slot = {}; free = [0, 1, 2, 3]; nxt = [0]
    def rd():
        p = nxt[0]
        if p > 13 or not free: return
        sl = free.pop(0); slot[p] = sl; nxt[0] += 1
        Q.op(('r', p), f'ds_read_b128 {v(SL[sl],4)}, v8 offset:{p*512}')
    for _ in range(4): rd()
    for p in range(14):
        Q.need(('r', p))
        for ti in range(4): smf(A, ACC+4*ti, SL[slot[p]], W(ti, p))
        free.append(slot[p]); rd()
    A.nop(8)
    ypack(A, ACC, SL[0])
    stamp(A, 2)
    A('s_waitcnt lgkmcnt(0)')
    A('s_barrier')
    A('s_barrier')
    stamp_flush(A, 8, 0, 1)
    A('s_add_u32 s20, s20, 1')
    A(f's_cmp_lt_u32 s20, {NSTEP}')
    A(f's_cbranch_scc1 {Lloop}')
    A(f's_branch {done}')
    A.label(L3)
    ACC = 16; SL = [32 + 4*i for i in range(4)]; TM = [48, 56, 64, 72]
    PS = [32, 80]
    UB = lambda hp, ct: 128 + (hp*2+ct)*8
    W = lambda ti, p: 256 + (ti*14+p)*8
    YB = lambda e, ct: 480 + (e*2+ct)*8
    Lloop = f'va3_loop_{tag}'
    A('s_mov_b32 s20, 0')
    A.label(Lloop)
    step_addr(A)
    for k in range(8): A(f'v_mov_b64 {v(ACC+2*k,2)}, 0')
    if merged_u: ucheck(A, fail, 80)
    poll_mem(A, [80, 88][:VMSETS], fail)
    Q = Lds(A)
    slot = {}; free = [0, 1, 2, 3]; nxt = [0]
    def rd():
        p = nxt[0]
        if p > 13 or not free: return
        sl = free.pop(0); slot[p] = sl; nxt[0] += 1
        Q.op(('r', p), f'ds_read_b128 {v(SL[sl],4)}, v8 offset:{p*512}')
    def ldsw(n):
        if n > 27: return
        t = TM[n % 4]
        Q.op(('wa', n), f'ds_read_b128 {v(t,4)}, v11 offset:{n*2048}')
        Q.op(('wb', n), f'ds_read_b128 {v(t+4,4)}, v11 offset:{n*2048+1024}')
    for _ in range(3): rd()
    for n in range(4): ldsw(n)
    rd()
    uq = []
    for hp in range(8):
        uq.append(f's_add_u32 s23, s36, {hp*14*4096}')
        for j in range(4): uq.append(f'buffer_load_dwordx4 {v(UB(hp,0)+4*j,4)}, v12, s[4:7], s23 offen offset:{j*1024}')
    for p in range(14):
        Q.need(('r', p))
        for ti in range(2):
            smf(A, ACC+4*ti, SL[slot[p]], W(ti, p))
            for _ in range(2):
                if uq: A(uq.pop(0))
        for ct in range(2):
            n = 2*p+ct
            Q.need(('wb', n))
            smf(A, ACC+8+4*ct, SL[slot[p]], TM[n % 4])
            ldsw(n+4)
        free.append(slot[p]); rd()
    assert not uq
    if not DBG_U0: A(f's_add_u32 s36, s36, {16*28*1024}')
    A.nop(8)
    ypack(A, ACC, SL[0])
    stamp(A, 2)
    A('s_waitcnt lgkmcnt(0)')
    A('s_barrier')
    for e in range(2):
        for ct in range(2):
            for u in range(2):
                A(f'ds_read_b128 {r(YB(e,ct)+4*u,4)}, v12 offset:{YL+((e*2+ct)*2+u)*1024}')
    D = [ACC, ACC+4]
    for kk in range(4): A(f'v_mov_b64 {v(ACC+2*kk,2)}, 0')
    wait_flag(A, 7, 's47', 's44', [PS[0]+k for k in range(4)], fail, 3)
    stamp(A, 6)
    if PROFILE: A('s_mov_b32 s64, 0')
    A('s_waitcnt lgkmcnt(0)')
    A('s_add_u32 s22, s26, 4096'); A('s_add_u32 s23, s26, 8192')
    A('s_add_u32 s18, s45, 4096'); A('s_add_u32 s19, s45, 8192')
    def issue(k):
        so = ('s26', 's22', 's23') if k == 0 else ('s45', 's18', 's19')
        for i in range(10):
            A(f'buffer_load_dwordx4 {v(PS[k]+4*i,4)}, v12, s[4:7], {so[i//4]} offen offset:{(i%4)*1024} sc1')
    L = A.newlabel('pp'); Lf = A.newlabel('ppf')
    def attempt(k, younger):
        Lskip = A.newlabel('ps'); b = PS[k]
        if EWMI < 0: store_flag(A, 6, 's40', st, 1); younger += 1
        A(f's_waitcnt vmcnt({younger+9})')
        if PROFILE: A('s_add_u32 s64, s64, 1')
        A(f'v_or3_b32 v0, {v(b)}, {v(b+1)}, {v(b+2)}'); A(f'v_or_b32 v0, v0, {v(b+3)}')
        A('v_and_b32 v1, 0x80008000, v0')
        A('v_cmp_ne_u32 vcc, 0, v1')
        A(f's_cbranch_vccnz {Lskip}')
        for i in range(10):
            x = b+4*i
            if i: A(f's_waitcnt vmcnt({younger+9-i})')
            for ct in range(2):
                smf(A, D[ct], x, UB(i, ct) if i < 8 else YB(i-8, ct))
                if i: A(f'v_or3_b32 v0, v0, {v(x+2*ct)}, {v(x+2*ct+1)}')
            if i == EWMI: store_flag(A, 6, 's40', st, 1); younger += 1
        A('v_and_b32 v0, 0x80008000, v0')
        A('v_cmp_ne_u32 vcc, 0, v0')
        A(f's_cbranch_vccz {Lf}')
        A.nop(6)
        for kk in range(4): A(f'v_mov_b64 {v(ACC+2*kk,2)}, 0')
        A('s_waitcnt vmcnt(0)')
        A.label(Lskip)
        A(f's_waitcnt vmcnt({younger-1 if EWMI >= 0 else 0})')
    A(f's_mov_b32 s30, {SPIN}')
    if RING:
        so = ('s26', 's22', 's23'); b = PS[0]
        ld = lambda i: A(f'buffer_load_dwordx4 {v(b+4*i,4)}, v12, s[4:7], {so[i//4]} offen offset:{(i%4)*1024} sc1')
        A('s_mov_b32 s18, 0')
        for i in range(10):
            ld(i)
            if RSP: A.nop(RSP)
        A.label(L)
        for i in range(10):
            x = b+4*i; Ln = A.newlabel('rn')
            A('s_waitcnt vmcnt(9)')
            A(f'v_or3_b32 v0, {v(x)}, {v(x+1)}, {v(x+2)}')
            A(f'v_or_b32 v0, v0, {v(x+3)}')
            A(f's_bitcmp1_b32 s18, {i}')
            A(f's_cbranch_scc1 {Ln}')
            A('v_and_b32 v0, 0x80008000, v0')
            A('v_cmp_ne_u32 vcc, 0, v0')
            A(f's_cbranch_vccnz {Ln}')
            for ct in range(2): smf(A, D[ct], x, UB(i, ct) if i < 8 else YB(i-8, ct))
            Lnf = A.newlabel('rf')
            A('s_cmp_lg_u32 s18, 0'); A(f's_cbranch_scc1 {Lnf}')
            store_flag(A, 6, 's40', st, 1)
            A(f's_bitset1_b32 s18, {i}')
            A(f's_branch {Ln}x')
            A.label(Lnf)
            A(f's_bitset1_b32 s18, {i}')
            A('s_cmp_eq_u32 s18, 0x3ff'); A(f's_cbranch_scc1 {Lf}')
            A.label(Ln)
            ld(i)
            A.label(Ln+'x')
    elif PSETS == 2:
        issue(0)
        A.nop(STAGP)
        A.label(L)
        issue(1); attempt(0, 10)
        issue(0); attempt(1, 10)
    else:
        pass
    if RING or PSETS == 2:
        A('s_sub_u32 s30, s30, 1')
        A('s_cmp_lg_u32 s30, 0')
        A(f's_cbranch_scc1 {L}')
        A(f's_branch {fail}')
    else:
        b = PS[0]; Ll = A.newlabel('pl'); Lacc = A.newlabel('pa')
        A.label(L)
        if MFIRST: store_flag(A, 6, 's40', st, 1)
        issue(0)
        if not MFIRST: store_flag(A, 6, 's40', st, 1)
        if PROFILE: A('s_add_u32 s64, s64, 1')
        for i in range(10):
            A(f's_waitcnt vmcnt({(9 if MFIRST else 10)-i})')
            for ct in range(2): smf(A, D[ct], b+4*i, UB(i, ct) if i < 8 else YB(i-8, ct))
        A.nop(3)
        def ool():
            A.label(Ll)
            A(f'v_or3_b32 v0, {v(b)}, {v(b+1)}, {v(b+2)}')
            for j in range(3, 39, 2): A(f'v_or3_b32 v0, v0, {v(b+j)}, {v(b+j+1)}')
            A(f'v_or_b32 v0, v0, {v(b+39)}')
            A('v_and_b32 v0, 0x80008000, v0')
            A('v_cmp_ne_u32 vcc, 0, v0')
            A(f's_cbranch_vccz {Lacc}')
            for kk in range(4): A(f'v_mov_b64 {v(ACC+2*kk,2)}, 0')
            A('s_waitcnt vmcnt(0)')
            A('s_sub_u32 s30, s30, 1'); A('s_cmp_lg_u32 s30, 0'); A(f's_cbranch_scc1 {L}')
            A(f's_branch {fail}')
        OOL.append(ool)
    A.label(Lf)
    stamp(A, 3)
    A.nop(5)
    for ct in range(2):
        A(f'v_permlane32_swap_b32 {v(D[ct])}, {v(D[ct]+1)}'); A(f'v_permlane32_swap_b32 {v(D[ct]+2)}, {v(D[ct]+3)}')
    for t in range(2):
        for ct in range(2): A(f'v_add_f32 {v(D[ct]+2*t)}, {v(D[ct]+2*t)}, {v(D[ct]+2*t+1)}')
    if not RING and PSETS == 1:
        A(f'v_cmp_u_f32 vcc, {v(D[0])}, {v(D[0]+2)}')
    O = ACC+8
    for t in range(2): A(f'v_cvt_pk_bf16_f32 {v(O+t)}, {v(D[0]+2*t)}, {v(D[1]+2*t)}')
    for t in range(2): A(f'v_min_u32 {v(O+t)}, 0xfffffffe, {v(O+t)}')
    if not RING and PSETS == 1:
        A(f's_cbranch_vccnz {Ll}')
        A.label(Lacc)
    def mstore(reg2, so, fl):
        for t in range(2): A(f'buffer_store_dword {v(reg2[t])}, v15, s[4:7], {so} offen offset:{32*t}{fl}')
    mstore([O, O+1], 's28', st)
    A('s_add_u32 s28, s28, 8192')
    mstore([O, O+1], 's28', st)
    stamp(A, 4); stamp(A, 5)
    A('s_barrier')
    A(f'v_mov_b32 {v(O+2)}, -1')
    mstore([O+2, O+2], 's29', st)
    A('s_add_u32 s29, s29, 8192')
    mstore([O+2, O+2], 's29', st)
    mstore([O, O+1], 's39', st)
    Lnx = A.newlabel('vnx')
    if merged_u:
        A(f's_cmp_lg_u32 s20, {NSTEP-1}'); A(f's_cbranch_scc1 {Lnx}')
        A(f's_mov_b32 s22, {MEMG2+63*8192}')
        mstore([O, O+1], 's22', ' sc1')
    A.label(Lnx)
    stamp_flush(A, 8, 0, 1)
    A('s_add_u32 s39, s39, 8192')
    A('s_add_u32 s20, s20, 1')
    A(f's_cmp_lt_u32 s20, {NSTEP}')
    A(f's_cbranch_scc1 {Lloop}')
    A(f's_branch {done}')

def value_setup(A, fail=None):
    TS = 14*1024; HS = 28*TS
    A(f's_mul_i32 s18, s3, {4*HS}')
    A(f's_mul_i32 s22, s17, {2*TS}')
    A('s_add_u32 s18, s18, s22')
    A(f's_add_u32 s18, s18, {NC}')
    A('v_lshlrev_b32 v12, 4, v0')
    A('s_mov_b32 s33, 0')
    A('s_lshl_b32 s37, s17, 8'); A(f's_add_u32 s37, s37, {UFL}')
    def prew(hpl):
        if not fail: return
        A('s_lshl_b32 s19, s3, 2'); A(f's_add_u32 s19, s19, {16+2*hpl}'); A('s_lshl_b32 s19, s19, 3'); A('s_lshr_b32 s22, s17, 1'); A('s_add_u32 s19, s19, s22'); A('s_lshl_b32 s19, s19, 7')
        mnf_addr(A, 13, 11, 's19')
        wait_words(A, 13, 11, fail, sleep=16)
    off = lambda ti: ((2*(ti >> 1))*HS+(ti & 1)*TS, (2*(ti >> 1)+1)*HS+(ti & 1)*TS)
    Lw3 = A.newlabel('vw3'); Ld = A.newlabel('vwd')
    A('s_cmp_eq_u32 s3, 3'); A(f's_cbranch_scc1 {Lw3}')
    load_tiles(A, [((lambda p, ti=ti: 64 + (ti*14+p)*8), *off(ti), range(14)) for ti in (2, 3, 0, 1)], pre=lambda n: prew(1-n//2) if n % 2 == 0 else None)
    A(f's_branch {Ld}')
    A.label(Lw3)
    A(f'v_add_u32 v14, {WL}, v12')
    def early():
        if not fail: return
        A('v_mov_b32 v15, v0'); A('s_mov_b32 s20, 0')
        ucheck(A, fail, 16, once=True)
        A('v_mov_b32 v0, v15'); A('v_lshlrev_b32 v1, 4, v0')
    def post(g):
        if g < 256:
            n = (g-32)//8; ct, p = n // 14, n % 14
            A(f'ds_write_b128 v14, {v(g,4)} offset:{(p*2+ct)*2048}')
            A(f'ds_write_b128 v14, {v(g+4,4)} offset:{(p*2+ct)*2048+1024}')
    load_tiles(A, [((lambda p, ct=ct: 32 + (ct*14+p)*8), *off(2+ct), range(14)) for ct in range(2)] +
                  [((lambda p, ti=ti: 256 + (ti*14+p)*8), *off(ti), range(14)) for ti in range(2)], post, pre=lambda n: prew(1-n//2) if n % 2 == 0 else None, issued=early)
    A('s_waitcnt lgkmcnt(0)')
    A.label(Ld)
    A('s_lshr_b32 s22, s3, 1'); A('s_lshl_b32 s22, s22, 12'); A('s_and_b32 s23, s3, 1'); A('s_lshl_b32 s23, s23, 2'); A('s_add_u32 s22, s22, s23')
    A(f's_add_u32 s22, s22, {YL}'); A('v_add_u32 v13, s22, v12')
    A('v_and_b32 v11, 15, v0'); A('v_lshlrev_b32 v7, 2, v11')
    if SSF: A('v_mov_b32 v7, 0')
    A('v_and_b32 v11, 12, v0'); A('v_lshlrev_b32 v15, 5, v11')
    A('v_and_b32 v11, 3, v0'); A('v_lshl_add_u32 v15, v11, 2, v15')
    A('v_and_b32 v11, 16, v0'); A('v_lshl_add_u32 v15, v11, 2, v15')
    A('v_lshrrev_b32 v11, 5, v0'); A('v_lshl_add_u32 v15, v11, 4, v15')
    A('s_lshl_b32 s23, s17, 9'); A('v_add_u32 v15, s23, v15')
    A('s_lshl_b32 s23, s17, 2'); A('v_lshlrev_b32 v6, 7, v0'); A('v_add_u32 v6, s23, v6')
    A('s_lshl_b32 s36, s17, 12'); A(f's_add_u32 s36, s36, {UF}')
    A(f's_mov_b32 s39, {MEMG+8192}')

def value_setup2(A):
    A(f'v_add_u32 v11, {WL}, v12')

def mode_exchange(A, va=8, vb=9):
    srd(A, 8, 96, 256)
    A('s_getreg_b32 s12, hwreg(HW_REG_XCC_ID)')
    A('s_and_b32 s12, s12, 15')
    A('s_add_u32 s12, s12, 1')
    A(f'v_mov_b32 {v(va)}, s12')
    A('s_lshl_b32 s13, s15, 2')
    A(f'v_mov_b32 {v(vb)}, s13')
    A('s_waitcnt lgkmcnt(0)')
    A(f'buffer_store_dword {v(va)}, {v(vb)}, s[8:11], 0 offen sc1')

def mode_gather(A, fail):
    A(f'v_min_u32 v1, {NROLE-1}, v0')
    A('v_lshlrev_b32 v1, 2, v1')
    L = A.newlabel('mg')
    A(f's_mov_b32 s30, {SPIN}')
    A.label(L)
    A('buffer_load_dword v11, v1, s[8:11], 0 offen sc1')
    A('s_sub_u32 s30, s30, 1')
    A('s_cmp_eq_u32 s30, 0')
    A(f's_cbranch_scc1 {fail}')
    A('s_waitcnt vmcnt(0)')
    A('v_cmp_eq_u32 vcc, 0, v11')
    A(f's_cbranch_vccnz {L}')
    A('v_cmp_ne_u32 vcc, s12, v11')
    A('s_cmp_eq_u64 vcc, 0')
    A('s_cselect_b32 s14, 1, 0')

def gen_forwarders(A, fail, done):
    A('s_sub_u32 s17, s15, 30'); A('s_lshl_b32 s17, s17, 2'); A('s_add_u32 s17, s17, s3')
    A('v_lshlrev_b32 v6, 7, v0')
    A('v_lshlrev_b32 v12, 4, v0')
    A('s_cmp_lg_u32 s17, 0')
    A('s_cbranch_scc1 fw_pf')
    A('s_mov_b32 s20, 1')
    A(f's_mov_b32 s22, {HINT}')
    A.label('fw_m_loop')
    A('s_lshl_b32 s24, s20, 13'); A(f's_add_u32 s26, s24, {MEMG2}'); A(f's_add_u32 s24, s24, {MEMG}')
    A('s_add_u32 s25, s24, 4096'); A('s_add_u32 s27, s26, 4096')
    A(f's_mov_b32 s30, {SPIN*4}')
    A.label('fw_m_poll')
    for j in range(7):
        A(f'buffer_load_dwordx4 {v(16+4*j,4)}, v12, s[4:7], {"s24" if j < 4 else "s25"} offen offset:{(j%4)*1024} sc1')
    A('s_sub_u32 s30, s30, 1'); A('s_cmp_eq_u32 s30, 0'); A(f's_cbranch_scc1 {fail}')
    A('s_waitcnt vmcnt(0)')
    A('v_max_u32 v1, v16, v17')
    for j in range(1, 14): A(f'v_max3_u32 v1, v1, {v(16+2*j)}, {v(17+2*j)}')
    A('v_cmp_eq_u32 vcc, -1, v1')
    A('s_cbranch_vccz fw_m_ok')
    A('s_sleep 2')
    A('s_branch fw_m_poll')
    A.label('fw_m_ok')
    for j in range(7):
        A(f'buffer_store_dwordx4 {v(16+4*j,4)}, v12, s[4:7], {"s26" if j < 4 else "s27"} offen offset:{(j%4)*1024} sc1')
    A('s_waitcnt vmcnt(0)')
    A('v_mov_b32 v1, s20'); A('s_mov_b64 exec, 0xffff')
    A('buffer_store_dword v1, v6, s[4:7], s22 offen sc1'); A('s_mov_b64 exec, -1')
    A('s_add_u32 s20, s20, 1'); A('s_cmp_lt_u32 s20, 64'); A('s_cbranch_scc1 fw_m_loop')
    A(f's_branch {done}')
    A.label('fw_pf')
    if not PREF: A(f's_branch {done}')
    A('s_cmp_lg_u32 s17, 4'); A(f's_cbranch_scc1 {done}')
    A('v_mov_b32 v13, 0')
    wait_words(A, 13, 11, fail, srd_='s[8:11]', cnt='s30', ln=(14, 16), sleep=16)
    A(f's_mov_b32 s30, {SPIN*4}')
    A('s_mov_b32 s20, 0')
    A('v_mov_b32 v7, 0')
    A.label('fw_pf_loop')
    A('s_mov_b64 exec, 1')
    A('buffer_load_dword v16, v7, s[4:7], s46 offen sc1')
    A('s_mov_b64 exec, -1')
    A('s_waitcnt vmcnt(0)')
    A('v_readfirstlane_b32 s21, v16')
    A('s_cmp_ge_u32 s20, 63'); A(f's_cbranch_scc1 {done}')
    A(f's_add_u32 s22, s21, {PREF}')
    A('s_cmp_gt_u32 s20, s22'); A('s_cbranch_scc1 fw_pf_idle')
    A('s_mul_i32 s24, s20, 28672'); A(f's_add_u32 s24, s24, {XNS}')
    for j in range(7):
        for sub in range(4): A(f'buffer_load_dwordx4 {v(16+4*sub,4)}, v12, s[4:7], s24 offen offset:{sub*1024}')
        A('s_add_u32 s24, s24, 4096')
    A('s_add_u32 s20, s20, 1')
    A('s_branch fw_pf_loop')
    A.label('fw_pf_idle')
    A('s_sleep 8')
    A('s_sub_u32 s30, s30, 1'); A('s_cmp_eq_u32 s30, 0'); A(f's_cbranch_scc1 {done}')
    A('s_branch fw_pf_loop')

def gen_chain_body(A, fail, done, merged=False, fused=False):
    if fused:
        import p0
        srd(A, 36, 0, 2048*448*2)
        A('s_lshl_b32 s32, s15, 2'); A('s_add_u32 s32, s32, s3')
        def hook():
            p0.ph_zero_flags(A)
            A('s_waitcnt vmcnt(0)'); A('s_barrier')
            mode_exchange(A, 184, 185)
            tstamp(A, 3, 186, 187)
        def wi():
            A('v_and_b32 v5, 31, v0'); A('v_lshlrev_b32 v5, 2, v5')
            wait_words(A, 5, 1, fail, srd_='s[8:11]')
        p0.ph_ln(A, 32, wi, xsrd='s[36:39]', hook=hook)
        tstamp(A, 4, 12, 13)
        A('s_cmp_lt_u32 s15, 30'); A('s_cbranch_scc1 ch_noinit')
        p0.ph_init(A)
        A('s_sub_u32 s16, s15, 30'); A('s_lshl_b32 s16, s16, 2'); A('s_add_u32 s16, s16, s3'); A('s_min_u32 s16, s16, 6'); A('s_lshl_b32 s16, s16, 9')
        for half in range(2):
            A(f's_add_u32 s17, s16, {FFL + half*256}'); A('v_lshlrev_b32 v16, 2, v0'); A('v_add_u32 v16, s17, v16')
            wait_words(A, 16, 17, fail, sleep=16)
        A('s_barrier')
        A('v_mov_b32 v16, 1'); A('s_add_u32 s13, s13, 128'); A('v_mov_b32 v17, s13')
        A('buffer_store_dword v16, v17, s[8:11], 0 offen sc1')
        A.label('ch_noinit')
    else: mode_exchange(A)
    common_setup(A)
    stamp_init(A)
    mode_gather(A, fail)
    A('v_lshlrev_b32 v1, 4, v0')
    def wait_ring(va, vd, ln=None):
        if not fused: return
        A(f'v_and_b32 {v(va)}, 1, v0'); A(f'v_lshlrev_b32 {v(va)}, 2, {v(va)}'); A(f'v_add_u32 {v(va)}, {128+120}, {v(va)}')
        wait_words(A, va, vd, fail, srd_='s[8:11]', cnt='s30', ln=ln)
    if merged:
        A('s_cmp_lt_u32 s15, 30'); A('s_cbranch_scc1 ch_main')
        wait_ring(13, 11)
        gen_forwarders(A, fail, done)
        A.label('ch_main')
    A('s_cmp_ge_u32 s15, 16')
    A('s_cbranch_scc1 ch_value')
    A('s_mov_b32 s17, s15')
    score_weights(A, fail if fused else None)
    x_addrs(A)
    wait_ring(13, 11, ln=(12, 14))
    tstamp(A, 1, 12, 13)
    A('s_cmp_eq_u32 s14, 0')
    A('s_cbranch_scc1 ch_score_slow')
    gen_score(A, '', 'f', fail, done); flush_ool(A)
    A.label('ch_score_slow')
    gen_score(A, ' sc1', 's', fail, done); flush_ool(A)
    A.label('ch_value')
    A('s_sub_u32 s17, s15, 16')
    value_setup(A, fail if fused else None)
    wait_ring(16, 17)
    tstamp(A, 1, 16, 17)
    value_setup2(A)
    tstamp(A, 2, 16, 17)
    A('s_cmp_eq_u32 s14, 0')
    A('s_cbranch_scc1 ch_value_slow')
    gen_value(A, '', 'f', fail, done, merged); flush_ool(A)
    A.label('ch_value_slow')
    gen_value(A, ' sc1', 's', fail, done, merged); flush_ool(A)

def gen_k3(A):
    A.label('k3_kernel')
    A('s_and_b32 s15, s2, 7')
    A('s_cmp_lg_u32 s15, 0')
    A('s_cbranch_scc1 k3_end')
    A('s_lshr_b32 s15, s2, 3')
    A('s_cmp_ge_u32 s15, 30')
    A('s_cbranch_scc1 k3_end')
    prologue(A)
    gen_chain_body(A, 'k3_end', 'k3_end')
    A.label('k3_end')
    A('s_endpgm')
    return dict(name='k3_kernel', grid=256, block=256, lds=CHAIN_LDS, vgpr=256, sgpr=72, agpr=256)
```

```python
from asmlib import *
from layout import *
from k1 import sdivmod, srd
from wk import prologue, load_frags, f2u, LOG2E, tstamp, wait_words, mnf_addr

STG, XB, XS_ = 0, 8192, 576
RED, WL = 8192, 16384
CHAIN_LDS = WL + 4*14*1024
SPIN = 200000
NSTEP = 63
PROFILE = False
EWPOS = 12
QUICK = False
OWN = 1
K0 = [0, 4, 7, 11]
FEWW = 1
FPS = 2
MSS = 0
MFIRST = 0
LNST = ''
RING = 0
RSP = 0
PSETS = 1
EWMI = -1
VDEL = 0
SSF = 0
PDEL = 40
MDEL = 0
MSRC = 0
EWW = 0
DYNF = 0
TAGC = 0
MSETS = 2
VMSETS = 2
TAGS = 0
TG = 16384
STAGP = 24
UEARLY = 1
PFS = 128
VFLAG = 0
LAT = 0
PREF = 3
POLLALL = 1
DBG_NOYW = 0
DBG_NOYF = 0
WBSTEP = 4
WBLAST = 2
NROLE = 30
DBG_NOITEM = DBG_PLAIN = 0
DBG_U0 = DBG_X0 = DBG_NOY = 0
BDEL = 8
STAG = 40
EWM_POS = 0

def stamp(A, i):
    if PROFILE and not LAT: A(f's_memrealtime {s(50+2*i,2)}')
def stamp_flush(A, n, tmp, tmp2):
    if not PROFILE: return
    A('s_waitcnt lgkmcnt(0)')
    for i in range(n): A(f'v_writelane_b32 {v(tmp)}, {s(50+2*i)}, {i}')
    A(f'v_mbcnt_lo_u32_b32 {v(tmp2)}, -1, 0')
    A(f'v_lshlrev_b32 {v(tmp2)}, 2, {v(tmp2)}')
    A('s_lshl_b32 s48, s20, 6')
    A('s_add_u32 s48, s48, s49')
    A('s_mov_b64 s[70:71], exec')
    A('s_mov_b64 exec, 0xffff')
    A(f'buffer_store_dword {v(tmp)}, {v(tmp2)}, s[4:7], s48 offen')
    A('s_mov_b64 exec, s[70:71]')
def stamp_init(A):
    if not PROFILE: return
    A('s_lshl_b32 s49, s15, 2'); A('s_add_u32 s49, s49, s3'); A('s_lshl_b32 s49, s49, 12')
    A(f's_add_u32 s49, s49, {PROF}')

OOL = []
def flush_ool(A):
    for f in OOL: f()
    OOL.clear()

class Lds:
    def __init__(self, A): self.A = A; self.q = []
    def op(self, name, ins): self.A(ins); self.q.append(name)
    def need(self, name):
        if name not in self.q: return
        i = self.q.index(name)
        n = len(self.q) - 1 - i
        self.A(f's_waitcnt lgkmcnt({min(n,15)})')
        self.q = self.q[i+1:] if n <= 15 else self.q
    def drain(self):
        self.A('s_waitcnt lgkmcnt(0)'); self.q = []

def smf(A, d, a_, b):
    A(f'v_smfmac_f32_16x16x64_bf16 {v(d,4)}, {r(a_,4)}, {r(b,8)}, v2')

NF = 2
def common_setup(A):
    A('v_and_b32 v11, 8, v0')
    A('v_cmp_eq_u32 vcc, 0, v11')
    A('v_mov_b32 v2, 0xeeee')
    A('v_mov_b32 v11, 0x4444')
    A('v_cndmask_b32 v2, v2, v11, vcc')
    A('v_lshrrev_b32 v11, 4, v0'); A('v_lshlrev_b32 v8, 7, v11')
    A('v_and_b32 v11, 7, v0'); A('v_lshl_add_u32 v8, v11, 4, v8')
    A('s_mul_i32 s16, s3, 112')
    A('v_add_u32 v3, s16, v0'); A('v_lshlrev_b32 v3, 4, v3')
    A('v_min_u32 v4, 47, v0'); A('v_add_u32 v4, s16, v4'); A('v_add_u32 v4, 64, v4'); A('v_lshlrev_b32 v4, 4, v4')
    A('v_min_u32 v5, 13, v0'); A('v_lshlrev_b32 v5, 2, v5')
    A(f's_mov_b32 s40, {EWM}')
    A(f's_mov_b32 s41, {EWP}')
    A('s_lshl_b32 s16, s15, 8')
    A('s_add_u32 s46, s40, s16')
    A('s_add_u32 s47, s41, s16')
    A('s_mov_b64 s[42:43], 0xffff')
    A('s_mov_b32 s72, 0'); A('s_mov_b32 s73, 0x0fffffff')
    if MSS:
        A('s_lshl_b32 s16, s15, 2'); A('s_add_u32 s16, s16, s3'); A('s_lshl_b32 s16, s16, 8')
        A(f's_add_u32 s74, s16, {EW2}'); A(f'v_min_u32 v5, {MSS-1}, v0'); A('v_lshlrev_b32 v5, 2, v5'); A(f's_mov_b32 s75, {EW2}')
    if SSF:
        A('s_lshl_b32 s16, s15, 2'); A('s_add_u32 s16, s16, s3'); A('s_lshl_b32 s16, s16, 8')
        A(f's_add_u32 s46, s16, {EW2}'); A('s_mov_b32 s47, s46')
        A('v_mov_b32 v5, 0'); A('s_mov_b64 s[42:43], 1')
        A(f's_mov_b32 s40, {EW2}'); A(f's_mov_b32 s41, {EW2+16384}')

def step_addr(A):
    A('s_and_b32 s21, s20, 3')
    A(f's_lshl_b32 s24, s21, 14')
    A(f's_add_u32 s24, s24, {MEMR}')
    A('s_add_u32 s25, s24, 8192')
    A(f's_lshl_b32 s26, s21, 15')
    A(f's_add_u32 s26, s26, {PR}')
    A('s_add_u32 s45, s26, 16384')
    A('s_xor_b32 s22, s21, 2')
    A(f's_lshl_b32 s27, s22, 15')
    A(f's_add_u32 s27, s27, {PR}')
    A('s_add_u32 s44, s20, 1')
    A('s_and_b32 s22, s44, 3')
    A(f's_lshl_b32 s28, s22, 14')
    A(f's_add_u32 s28, s28, {MEMR}')
    A('s_xor_b32 s22, s22, 2')
    A(f's_lshl_b32 s29, s22, 14')
    A(f's_add_u32 s29, s29, {MEMR}')

def store_flag(A, voff, base, st, tmp):
    if SSF: return
    A(f'v_mov_b32 {v(tmp)}, s44')
    if base == 's41': A('s_mov_b64 exec, s[72:73]')
    else: A('s_mov_b32 exec_hi, 0x40000000')
    A(f'buffer_store_dword {v(tmp)}, {v(voff)}, s[4:7], {base} offen{st}')
    A('s_mov_b64 exec, -1')

def ssf_store(A, base, st, t0, t1):
    A(f'v_mbcnt_lo_u32_b32 {v(t1)}, -1, 0'); A(f'v_mbcnt_hi_u32_b32 {v(t1)}, -1, {v(t1)}'); A(f'v_lshlrev_b32 {v(t1)}, 8, {v(t1)}')
    A(f'v_mov_b32 {v(t0)}, s44')
    A(f'buffer_store_dword {v(t0)}, {v(t1)}, s[4:7], {base} offen{st}')
    A(f'buffer_store_dword {v(t0)}, {v(t1)}, s[4:7], {base} offen offset:128{st}')

def wait_flag(A, voff, base, want, regs, fail, poller):
    nf = NF
    Lb = A.newlabel('wfb')
    if poller is not None or POLLALL:
        L = A.newlabel('wf'); Lok = A.newlabel('wfo')
        if not POLLALL:
            A(f's_cmp_lg_u32 s3, {poller}')
            A(f's_cbranch_scc1 {Lb}')
        A(f's_mov_b32 s30, {SPIN}')
        A('s_mov_b64 exec, s[42:43]')
        def issue(k): A(f'buffer_load_dword {v(regs[k])}, {v(voff)}, s[4:7], {base} offen offset:{k*128} sc1')
        for k in range(nf-1):
            issue(k); A.nop(52//nf)
        A.label(L)
        for k in range(nf):
            issue((k+nf-1) % nf)
            A(f's_waitcnt vmcnt({nf-1})')
            A(f'v_cmp_gt_u32 vcc, {want}, {v(regs[k])}')
            A(f's_cbranch_vccz {Lok}')
        A('s_sub_u32 s30, s30, 1')
        A('s_cmp_lg_u32 s30, 0')
        A(f's_cbranch_scc1 {L}')
        A('s_mov_b64 exec, -1')
        A(f's_branch {fail}')
        A.label(Lok)
        A('s_mov_b64 exec, -1')
    A.label(Lb)
    if not POLLALL: A('s_barrier')

def poll_mem(A, sets, fail, early=None):
    L = A.newlabel('pm'); Lok = A.newlabel('pmo'); L1 = A.newlabel('pm1')
    def issue(k):
        so = 's24' if k == 0 else 's25'
        A(f'buffer_load_dwordx4 {v(sets[k],4)}, v3, s[4:7], {so} offen sc1')
        A(f'buffer_load_dwordx4 {v(sets[k]+4,4)}, v4, s[4:7], {so} offen sc1')
    stamp(A, 8)
    if PROFILE: A('s_mov_b32 s68, 0')
    def check(k):
        b = sets[k]
        if PROFILE: A('s_add_u32 s68, s68, 1')
        A(f'ds_write_b128 v3, {v(b,4)}')
        A(f'ds_write_b128 v4, {v(b+4,4)}')
        A(f'v_max3_u32 v0, {v(b)}, {v(b+1)}, {v(b+2)}')
        A(f'v_max3_u32 v1, {v(b+3)}, {v(b+4)}, {v(b+5)}')
        A(f'v_max3_u32 v0, v0, {v(b+6)}, {v(b+7)}')
        A('v_max_u32 v0, v0, v1')
        A('v_cmp_eq_u32 vcc, -1, v0')
    A(f's_mov_b32 s30, {SPIN}')
    if len(sets) == 1:
        A.label(L)
        issue(0)
        A('s_sub_u32 s30, s30, 1'); A('s_cmp_eq_u32 s30, 0'); A(f's_cbranch_scc1 {fail}')
        A('s_waitcnt vmcnt(0)'); check(0)
        A(f's_cbranch_vccnz {L}')
    else:
        issue(0)
        A.nop(STAG)
        A.label(L)
        issue(1); A('s_waitcnt vmcnt(2)'); check(0)
        A(f's_cbranch_vccnz {L1}')
        def ool():
            A.label(L1)
            issue(0); A('s_waitcnt vmcnt(2)'); check(1)
            A(f's_cbranch_vccz {Lok}')
            A('s_sub_u32 s30, s30, 1')
            A(f's_cmp_gt_u32 s30, {SPIN-4}'); A(f's_cbranch_scc1 {L}')
            A('s_sleep 10')
            A('s_cmp_lg_u32 s30, 0'); A(f's_cbranch_scc1 {L}')
            A(f's_branch {fail}')
        OOL.append(ool)
    A.label(Lok)
    stamp(A, 0)
    n = early() if early else 0
    A(f's_waitcnt lgkmcnt({n})')
    A('s_barrier')
    stamp(A, 1)

def post_paired(d0, d1, xreg, xoff, t):
    I = [f'v_cvt_pk_bf16_f32 {v(t+rr)}, {v(d0+rr)}, {v(d1+rr)}' for rr in range(4)]
    W = [f'ds_write_b32 {v(xreg)}, {v(t+rr)} offset:{xoff+16*rr}' for rr in range(4)]
    return I, W
def post_single(d, xreg, xoff):
    I = [f'v_permlane32_swap_b32 {v(d)}, {v(d+1)}', f'v_permlane32_swap_b32 {v(d+2)}, {v(d+3)}',
         f'v_cvt_pk_bf16_f32 {v(d)}, {v(d)}, {v(d+1)}', f'v_cvt_pk_bf16_f32 {v(d+2)}, {v(d+2)}, {v(d+3)}']
    W = [f'ds_write_b32 {v(xreg)}, {v(d)} offset:{xoff}', f'ds_write_b32 {v(xreg)}, {v(d+2)} offset:{xoff+32}']
    return I, W

def x_addrs(A):
    A('v_and_b32 v11, 12, v0'); A('v_mul_u32_u24 v9, 36, v11')
    A('v_and_b32 v11, 3, v0');  A('v_lshl_add_u32 v9, v11, 2, v9')
    A('v_and_b32 v11, 16, v0'); A('v_lshl_add_u32 v9, v11, 2, v9')
    A(f's_mul_i32 s16, s3, {2*XS_}'); A(f's_add_u32 s16, s16, {XB}')
    A('v_add_u32 v9, s16, v9')
    A('v_lshrrev_b32 v11, 5, v0')
    A('v_lshl_add_u32 v10, v11, 4, v9')
    A(f'v_mul_u32_u24 v11, {XS_}, v11')
    A('v_add_u32 v9, v9, v11')

def gen_score(A, st, tag, fail, done):
    Lfin = f'sc_fin_{tag}'
    A('s_cmp_eq_u32 s3, 3')
    A(f's_cbranch_scc1 {Lfin}')
    for wv in range(3 if OWN else 1):
        if OWN and wv < 2: A(f's_cmp_lg_u32 s3, {wv}'); A(f's_cbranch_scc1 sc_w{wv+1}_{tag}')
        ACC = [12, 16, 20, 24]
        SL = [28 + 4*i for i in range(9)]
        W = lambda tl, p: 64 + (tl*14+p)*8
        Lloop = f'sc_loop_{tag}{wv}'
        A('s_mov_b32 s20, 0')
        if TAGS or TAGC:
            A('v_lshlrev_b32 v6, 2, v0'); A('s_lshl_b32 s16, s3, 8'); A(f's_add_u32 s16, s16, {TG}'); A('v_add_u32 v6, s16, v6')
            A('v_mov_b32 v7, 0'); A('ds_write_b32 v6, v7')
        A.label(Lloop)
        step_addr(A)
        for k in range(8): A(f'v_mov_b64 {v(12+2*k,2)}, 0')
        wait_flag(A, 5, 's74' if MSS else 's46', 's20', [SL[0]+k for k in range(4)], fail, 0)
        Q = Lds(A)
        def rd(Q, p, slot):
            Q.op(('r', p), f'ds_read_b128 {v(SL[slot],4)}, v8 offset:{p*512}')
        slot = {}
        sq = [(K0[wv]+i) % 14 for i in range(14)]
        def early():
            for i in range(3): slot[sq[i]] = 4+i; rd(Q, sq[i], 4+i)
            return 3
        poll_mem(A, [SL[0], SL[2]][:MSETS], fail, early if OWN else None)
        for i in range(3 if OWN else 0, 5): slot[sq[i]] = 4+i; rd(Q, sq[i], 4+i)
        for i in range(14):
            p = sq[i]
            if FEWW and i == 5: Q.need(('r', sq[8]))
            elif FEWW and i == 9: Q.need(('r', sq[13]))
            else: Q.need(('r', p))
            smf(A, ACC[0], SL[slot[p]], W(0, p)); smf(A, ACC[1], SL[slot[p]], W(1, p))
            if i == 1:
                A('s_waitcnt vmcnt(0)')
                for pp in range(5, 9): slot[sq[pp]] = pp-5; rd(Q, sq[pp], pp-5)
            if 1 <= i < 6: slot[sq[i+8]] = slot.pop(sq[i-1]); rd(Q, sq[i+8], slot[sq[i+8]])
        def phase(tl, order, rer, I, Wr):
            fill = [('v', x) for x in I] + [('w', x) for x in Wr] + [('n', None)]*BDEL + [('b', None)]
            if TAGS: fill = [('v', x) for x in I + ['v_add_u32 v7, 1, v7']] + [('w', x) for x in Wr + ['ds_write_b32 v6, v7']]
            rer = list(rer)
            for n, p in enumerate(order):
                Q.need(('r', order[13] if (FEWW and n == 9) else p))
                smf(A, ACC[tl], SL[slot[p]], W(tl, p))
                if rer:
                    pn = rer.pop(0); slot[pn] = slot.pop(p); rd(Q, pn, slot[pn])
                if n >= 4:
                    for _ in range(FPS if (FPS == 2 or fill[0:1] and fill[0][0] != 'n') else 3):
                        if not fill: break
                        kind, x = fill.pop(0)
                        if kind == 'v': A(x)
                        elif kind == 'w': Q.op('w', x)
                        elif kind == 'n': pass
                        else: Q.drain(); A('s_barrier')
            assert not fill, fill
        I, Wr = post_paired(ACC[0], ACC[1], 9, 0, ACC[0])
        phase(2, [sq[i] for i in [5, 6, 7, 8, 9, 10, 11, 12, 13, 0, 1, 2, 3, 4]], [sq[i] for i in [0, 1, 2, 3, 4]], I, Wr)
        stamp(A, 2)
        I, Wr = post_single(ACC[2], 10, 8*XS_)
        phase(3, [sq[i] for i in [10, 11, 12, 13, 0, 1, 2, 3, 4, 5, 6, 7, 8, 9]], [sq[i] for i in [5, 6, 7, 8, 9]], I, Wr)
        stamp(A, 3)
        if TAGS or TAGC: A('v_add_u32 v7, 1, v7'); A.nop(7)
        else: A.nop(8)
        I, Wr = post_single(ACC[3], 10, 9*XS_)
        for x in I + Wr: A(x)
        if TAGS or TAGC: A('ds_write_b32 v6, v7')
        else:
            A('s_waitcnt lgkmcnt(0)')
            A('s_barrier')
        if EWPOS == 99:
            Lq = A.newlabel('w0f'); A('s_cmp_lg_u32 s3, 0'); A(f's_cbranch_scc1 {Lq}')
            A('v_mbcnt_lo_u32_b32 v1, -1, 0'); A('v_mbcnt_hi_u32_b32 v1, -1, v1'); A('v_lshlrev_b32 v1, 7, v1'); A('s_lshl_b32 s22, s17, 2'); A('v_add_u32 v1, s22, v1')
            A.nop(PDEL)
            store_flag(A, 1, 's41', st, 0)
            A.label(Lq)
        if SSF:
            Lq = A.newlabel('ssf'); A('s_or_b32 s22, s15, s3'); A('s_cmp_lg_u32 s22, 0'); A(f's_cbranch_scc1 {Lq}')
            A.nop(PDEL)
            ssf_store(A, 's41', st, 0, 1)
            A.label(Lq)
        stamp(A, 4); stamp_flush(A, 10, 0, 1)
        A('s_add_u32 s20, s20, 1')
        A(f's_cmp_lt_u32 s20, {NSTEP}')
        A(f's_cbranch_scc1 {Lloop}')
        A(f's_branch {done}')
        if OWN and wv < 2: A.label(f'sc_w{wv+1}_{tag}')

    A.label(Lfin)
    ACC = [16, 20]; DX, DM = 24, 28
    PS = [32, 48]
    AF = [64 + 4*p for p in range(14)]
    A2 = [120 + 4*i for i in range(4)]
    T = 136
    XSR = [144 + 8*kk for kk in range(14)]
    W = lambda tl, p: 256 + (tl*14+p)*8
    posof = lambda kk: kk
    A('v_lshlrev_b32 v12, 4, v0')
    A('v_and_b32 v11, 16, v0'); A('v_lshlrev_b32 v1, 2, v11')
    A('v_lshrrev_b32 v11, 5, v0'); A('v_lshl_add_u32 v1, v11, 4, v1')
    A('v_and_b32 v11, 12, v0'); A('v_lshl_add_u32 v13, v11, 6, v1')
    A('v_and_b32 v11, 3, v0'); A('v_lshl_add_u32 v13, v11, 2, v13')
    A('s_lshr_b32 s16, s17, 1'); A('s_lshl_b32 s16, s16, 10')
    A('s_and_b32 s18, s17, 1'); A('s_lshl_b32 s19, s18, 7'); A('s_add_u32 s16, s16, s19')
    A('v_add_u32 v13, s16, v13')
    A('v_and_b32 v11, 8, v0');  A('v_lshl_add_u32 v14, v11, 2, v1')
    A('v_cmp_ne_u32 s[34:35], 0, v11')
    A('v_and_b32 v11, 7, v0');  A('v_lshl_add_u32 v14, v11, 1, v14')
    A('s_lshr_b32 s16, s17, 3'); A('s_lshl_b32 s16, s16, 10')
    A('s_and_b32 s19, s17, 3'); A('s_lshl_b32 s19, s19, 8'); A('s_add_u32 s16, s16, s19')
    A('s_and_b32 s19, s17, 4'); A('s_lshl_b32 s19, s19, 5'); A('s_add_u32 s16, s16, s19')
    A('s_add_u32 s16, s16, 8192'); A('v_add_u32 v14, s16, v14')
    A('s_lshl_b32 s16, s17, 2'); A('v_lshlrev_b32 v6, 7, v0'); A('v_add_u32 v6, s16, v6')
    A('v_lshrrev_b32 v11, 4, v0'); A('v_mul_u32_u24 v15, 144, v11')
    A('v_and_b32 v11, 7, v0'); A('v_lshl_add_u32 v15, v11, 4, v15')
    A(f'v_add_u32 v15, {XB}, v15')
    A(f's_mov_b32 s31, 0x{f2u(LOG2E):08x}')
    A('s_mov_b32 s33, 0x7fff7fff')
    A('s_mov_b32 s38, 0'); A('s_mov_b32 s39, -1')
    A('v_min_u32 v7, 2, v0'); A('v_lshlrev_b32 v7, 8, v7'); A(f'v_add_u32 v7, {TG}, v7')
    A('s_mov_b32 s36, 0')
    def load_xs():
        for i in range(28):
            if i % 4 == 0:
                if i == 0: A('s_mov_b32 s23, s32')
                else: A('s_add_u32 s23, s23, 4096')
            A(f'buffer_load_dwordx4 {v(XSR[0]+4*i,4)}, v12, s[4:7], s23 offen offset:{(i%4)*1024}')
    A(f's_mov_b32 s32, {XNS}')
    load_xs()
    Lloop = f'sf_loop_{tag}'
    A('s_mov_b32 s20, 0')
    A.label(Lloop)
    if QUICK:
        Lq = A.newlabel('q')
        A('s_cmp_lg_u32 s20, 2'); A(f's_cbranch_scc1 {Lq}'); A('s_memrealtime s[64:65]'); A('s_memtime s[60:61]'); A.label(Lq)
    step_addr(A)
    for k in range(8): A(f'v_mov_b64 {v(16+2*k,2)}, 0')
    wait_flag(A, 5, 's74' if MSS else 's46', 's20', [PS[0]+k for k in range(4)], fail, None)
    Q = Lds(A)
    sq = [(K0[3]+i) % 14 for i in range(14)] if OWN else list(range(14))
    rdf = lambda p: Q.op(('r', p), f'ds_read_b128 {v(AF[p],4)}, v8 offset:{p*512}')
    def early():
        for i in range(3): rdf(sq[i])
        return 3
    poll_mem(A, PS[:MSETS], fail, early if OWN else None)
    for i in range(3 if OWN else 0, 14): rdf(sq[i])
    for i in range(14):
        p = sq[i]
        Q.need(('r', sq[13] if (FEWW and i == 7) else p))
        smf(A, ACC[0], AF[p], W(0, p)); smf(A, ACC[1], AF[p], W(1, p))
    A.nop(8)
    I, Wr = post_paired(ACC[0], ACC[1], 9, 0, ACC[0])
    for x in I: A(x)
    for x in Wr: Q.op('w', x)
    nb = [0]
    def rd2(kk2):
        Q.op(('x', kk2), f'ds_read_b128 {v(A2[nb[0]%4],4)}, v15 offset:{kk2*XS_}')
        buf[kk2] = A2[nb[0] % 4]; nb[0] += 1
    buf = {}
    def second(kk2):
        Q.need(('x', kk2))
        smf(A, DX, buf[kk2], XSR[kk2])
        A(f'v_mfma_f32_16x16x32_bf16 {v(DM,4)}, {v(buf[kk2],4)}, {v(AF[posof(kk2)],4)}, {v(DM,4)}')
    rd2(6); rd2(7)
    second(6); second(7)
    if True:
        def sync(kks):
            Ls = A.newlabel('ts')
            A('s_add_u32 s36, s36, 1')
            A(f's_mov_b32 s30, {SPIN*4}')
            n0 = nb[0]
            A.label(Ls)
            A('ds_read_b32 v0, v7')
            for kk2 in kks: rd2(kk2)
            A('s_sub_u32 s30, s30, 1'); A('s_cmp_eq_u32 s30, 0'); A(f's_cbranch_scc1 {fail}')
            A(f's_waitcnt lgkmcnt({len(kks)})')
            A('v_cmp_gt_u32 vcc, s36, v0')
            A(f's_cbranch_vccnz {Ls}')
    if TAGS:
        sync([0, 1, 2, 3])
        stamp(A, 2)
        second(0); rd2(4); second(1); rd2(5); second(2); second(3); second(4); second(5)
        sync([8, 10, 12])
        second(8); second(10); second(12)
        sync([9, 11, 13])
        stamp(A, 3)
    else:
        A('s_barrier')
        stamp(A, 2)
        for kk2 in range(4): rd2(kk2)
        second(0); rd2(4); second(1); rd2(5); second(2); second(3)
        A('s_barrier')
        rd2(8); rd2(10)
        second(4); rd2(12); second(5); second(8); second(10); second(12)
        if TAGC: sync([9, 11, 13]); stamp(A, 3)
        else:
            A('s_barrier')
            stamp(A, 3)
            rd2(9); rd2(11); rd2(13)
    if EWPOS == -1: store_flag(A, 6, 's41', st, T+7)
    second(9); second(11); second(13)
    if EWPOS == 0: store_flag(A, 6, 's41', st, T+7)
    A.nop(8)
    stamp(A, 4)
    A(f'v_permlane32_swap_b32 {v(DX)}, {v(DX+1)}')
    A(f'v_permlane32_swap_b32 {v(DX+2)}, {v(DX+3)}')
    A(f'v_cndmask_b32 {v(DM)}, {v(DM)}, {v(DM+1)}, s[38:39]')
    A(f'v_cndmask_b32 {v(DM+2)}, {v(DM+2)}, {v(DM+3)}, s[38:39]')
    if EWPOS == 10: store_flag(A, 6, 's41', st, T+7)
    mx = [T, T+1]; sm = [T+2, T+3]; ml = [T+4, T+5]
    el = lambda t: (DX+2*t, DX+2*t+1, DM+2*t)
    for t in range(2):
        A(f'v_max3_f32 {v(mx[t])}, {v(el(t)[0])}, {v(el(t)[1])}, {v(el(t)[2])}')
    for t in range(2):
        A(f'v_mul_f32 {v(ml[t])}, 0x{f2u(-LOG2E):08x}, {v(mx[t])}')
    fx = []
    for j in (2, 0, 1):
        for t in range(2): fx.append(f'v_fma_f32 {v(el(t)[j])}, {v(el(t)[j])}, s31, {v(ml[t])}')
    for j in (2, 0, 1):
        for t in range(2): fx.append(f'v_exp_f32 {v(el(t)[j])}, {v(el(t)[j])}')
    for ror in (8, 4, 2, 1):
        for t in range(2):
            A(f'v_max_f32_dpp {v(mx[t])}, {v(mx[t])}, {v(mx[t])} row_ror:{ror} row_mask:0xf bank_mask:0xf')
        for _ in range(3): A(fx.pop(0))
        if EWPOS == 11 and ror == 8: store_flag(A, 6, 's41', st, T+7)
        if EWPOS == 12 and ror == 4: store_flag(A, 6, 's41', st, T+7)
    if EWPOS == 1: store_flag(A, 6, 's41', st, T+7)
    for t in range(2):
        A(f'v_fma_f32 {v(ml[t])}, -{v(mx[t])}, s31, -{v(ml[t])}')
    for t in range(2):
        A(f'v_fma_f32 {v(sm[t])}, {v(el(t)[2])}, 0.5, {v(el(t)[0])}')
    for t in range(2):
        A(f'v_exp_f32 {v(ml[t])}, {v(ml[t])}')
    for t in range(2):
        A(f'v_add_f32 {v(sm[t])}, {v(sm[t])}, {v(el(t)[1])}')
    for t in range(2):
        A(f'v_mul_f32 {v(sm[t])}, {v(sm[t])}, {v(ml[t])}')
    if EWPOS == 2: store_flag(A, 6, 's41', st, T+7)
    pre = [f'v_mul_f32 {v(el(t)[j])}, {v(el(t)[j])}, {v(ml[t])}' for j in range(3) for t in range(2)]
    for ror in (8, 4, 2, 1):
        A(pre.pop(0))
        if ror in (8, 4): A(pre.pop(0))
        for t in range(2):
            A(f'v_add_f32_dpp {v(sm[t])}, {v(sm[t])}, {v(sm[t])} row_ror:{ror} row_mask:0xf bank_mask:0xf')
    if EWPOS == 3: store_flag(A, 6, 's41', st, T+7)
    for t in range(2):
        A(f'v_rcp_f32 {v(sm[t])}, {v(sm[t])}')
    A(f'v_cndmask_b32 {v(T+6)}, {v(DM)}, {v(DM+2)}, s[34:35]')
    for j in range(2):
        for t in range(2):
            A(f'v_mul_f32 {v(el(t)[j])}, {v(el(t)[j])}, {v(sm[t])}')
    A(f'v_cndmask_b32 {v(T+7)}, {v(sm[0])}, {v(sm[1])}, s[34:35]')
    for t in range(2):
        A(f'v_cvt_pk_bf16_f32 {v(T+4+t)}, {v(el(t)[0])}, {v(el(t)[1])}')
    A(f'v_mul_f32 {v(T+6)}, {v(T+6)}, {v(T+7)}')
    for t in range(2):
        A(f'v_and_b32 {v(T+4+t)}, s33, {v(T+4+t)}')
    A(f'v_cvt_pk_bf16_f32 {v(T+6)}, {v(T+6)}, {v(T+6)}')
    for t in range(2):
        A(f'buffer_store_dword {v(T+4+t)}, v13, s[4:7], s26 offen offset:{32*t}{st}')
    A(f'v_and_b32 {v(T+6)}, s33, {v(T+6)}')
    A(f'buffer_store_short {v(T+6)}, v14, s[4:7], s26 offen{st}')
    if PSETS == 2:
        for t in range(2):
            A(f'buffer_store_dword {v(T+4+t)}, v13, s[4:7], s45 offen offset:{32*t}{st}')
        A(f'buffer_store_short {v(T+6)}, v14, s[4:7], s45 offen{st}')
    if EWPOS == 4: store_flag(A, 6, 's41', st, T+7)
    stamp(A, 5)
    A(f'v_mov_b32 {v(T+7)}, -1')
    for cp in range(PSETS):
        if cp: A('s_add_u32 s27, s27, 16384')
        for t in range(2):
            A(f'buffer_store_dword {v(T+7)}, v13, s[4:7], s27 offen offset:{32*t}{st}')
        A(f'buffer_store_short {v(T+7)}, v14, s[4:7], s27 offen{st}')
    tstamp(A, 16, 0, 1, sreg=20)
    if not DBG_X0: A('s_add_u32 s32, s32, 28672')
    load_xs()
    stamp_flush(A, 10, 0, 1)
    A('s_add_u32 s20, s20, 1')
    A(f's_cmp_lt_u32 s20, {NSTEP}')
    A(f's_cbranch_scc1 {Lloop}')
    if QUICK:
        A('s_memrealtime s[66:67]'); A('s_memtime s[62:63]'); A('s_waitcnt lgkmcnt(0)')
        A('s_sub_u32 s62, s62, s60'); A('v_mov_b32 v0, s62'); A('s_lshl_b32 s16, s17, 2'); A('s_add_u32 s16, s16, 192'); A('v_mov_b32 v1, s16')
        A('buffer_store_dword v0, v1, s[8:11], 0 offen')
        A('s_sub_u32 s66, s66, s64'); A('v_mov_b32 v0, s66'); A('s_lshl_b32 s16, s17, 2'); A('s_add_u32 s16, s16, 128'); A('v_mov_b32 v1, s16')
        A('buffer_store_dword v0, v1, s[8:11], 0 offen')
    A(f's_branch {done}')

def interleave(A, g):
    if g < 256:
        A(f'v_swap_b32 {v(g+1)}, {v(g+4)}')
        A(f'v_swap_b32 {v(g+2)}, {v(g+4)}')
        A(f'v_swap_b32 {v(g+3)}, {v(g+5)}')
        A(f'v_swap_b32 {v(g+5)}, {v(g+6)}')
    else:
        q = g - 256
        A(f'v_accvgpr_read_b32 v11, {a(q+1)}')
        A(f'v_accvgpr_mov_b32 {a(q+1)}, {a(q+4)}')
        A(f'v_accvgpr_mov_b32 {a(q+4)}, {a(q+2)}')
        A(f'v_accvgpr_write_b32 {a(q+2)}, v11')
        A(f'v_accvgpr_read_b32 v11, {a(q+3)}')
        A(f'v_accvgpr_mov_b32 {a(q+3)}, {a(q+5)}')
        A(f'v_accvgpr_mov_b32 {a(q+5)}, {a(q+6)}')
        A(f'v_accvgpr_write_b32 {a(q+6)}, v11')

def load_tiles(A, tiles, post=None, pre=None, issued=None):
    WIN = 30
    q = []
    def retire(left):
        g = q.pop(0)
        A(f's_waitcnt vmcnt({2*left})')
        interleave(A, g)
        if post: post(g)
    for ti, (dst, offa, offb, plist) in enumerate(tiles):
        if pre: pre(ti)
        for p in plist:
            if p % 4 == 0 or p == plist[0]:
                A(f's_add_u32 s22, s18, {offa+(p//4)*4096}')
                A(f's_add_u32 s23, s18, {offb+(p//4)*4096}')
            im = (p % 4)*1024
            A(f'buffer_load_dwordx4 {r(dst(p),4)}, v1, s[4:7], s22 offen offset:{im}')
            A(f'buffer_load_dwordx4 {r(dst(p)+4,4)}, v1, s[4:7], s23 offen offset:{im}')
            q.append(dst(p))
            if len(q) > WIN: retire(len(q)-1)
    if issued: issued()
    while q: retire(len(q)-1)

def score_weights(A, fail=None):
    TS = 14*1024
    Lw3 = A.newlabel('w3'); Ld = A.newlabel('wd')
    A(f's_mul_i32 s18, s17, {28*TS}')
    A(f's_add_u32 s18, s18, {MC}')
    A(f's_mul_i32 s19, s3, {4*TS}')
    A('s_add_u32 s18, s18, s19')
    A('s_cmp_eq_u32 s3, 3')
    A(f's_cbranch_scc1 {Lw3}')
    W = lambda tl: (lambda p: 64 + (tl*14+p)*8)
    def pre(ti):
        if fail and ti in (0, 2):
            A('s_lshl_b32 s19, s17, 3'); A('s_add_u32 s19, s19, s3'); A(f's_add_u32 s19, s19, {2*ti}'); A('s_lshl_b32 s19, s19, 7')
            mnf_addr(A, 13, None, 's19')
            wait_words(A, 13, 11, fail, sleep=16)
    load_tiles(A, [(W(0), 0, 2*TS, range(14)), (W(1), TS, 3*TS, range(14)),
                   (W(2), 16*TS, 17*TS, range(14)), (W(3), 18*TS, 19*TS, range(14))], pre=pre)
    A(f's_branch {Ld}')
    A.label(Lw3)
    W = lambda tl: (lambda p: 256 + (tl*14+p)*8)
    load_tiles(A, [(W(0), 0, 2*TS, range(14)), (W(1), TS, 3*TS, range(14))], pre=pre)
    A.label(Ld)

YL = 8192
def ucheck(A, fail, t0, once=False):
    Lr = A.newlabel('ur'); Lro = A.newlabel('uro')
    A('s_cmp_lt_u32 s20, s33'); A(f's_cbranch_scc1 {Lro}')
    A('v_lshrrev_b32 v1, 2, v12')
    if once:
        A(f'buffer_load_dword {v(t0)}, v1, s[4:7], s37 offen sc1')
        A('s_waitcnt vmcnt(0)')
        A(f'v_cmp_eq_u32 vcc, 0, {v(t0)}'); A('s_cmp_lg_u64 vcc, 0'); A('s_cselect_b32 s33, 0, 8')
    else:
        A('s_cmp_eq_u32 s20, 0'); A(f's_cbranch_scc1 {Lr}')
        for rd_ in range(8):
            A(f's_add_u32 s22, s37, {rd_*14*256}')
            A(f'buffer_load_dword {v(t0+rd_)}, v1, s[4:7], s22 offen sc1')
        A('s_waitcnt vmcnt(0)')
        A('s_mov_b32 s33, 64')
        for rd_ in range(7, -1, -1):
            A(f'v_cmp_eq_u32 vcc, 0, {v(t0+rd_)}'); A('s_cmp_lg_u64 vcc, 0'); A(f's_cselect_b32 s33, {8*rd_}, s33')
        A('s_cmp_lt_u32 s20, s33'); A(f's_cbranch_scc1 {Lro}')
        A.label(Lr)
        A('s_lshr_b32 s22, s20, 3'); A('s_lshl_b32 s33, s22, 3'); A('s_add_u32 s33, s33, 8')
        A(f's_mul_i32 s22, s22, {14*256}'); A('s_add_u32 s22, s22, s37'); A('v_add_u32 v1, s22, v1')
        wait_words(A, 1, t0, fail, cnt='s30', sleep=12)
    A.label(Lro)

def ypack(A, ACC, T):
    for ct in range(2):
        for hpl in range(2):
            d = ACC + 4*(hpl*2+ct); t = T + 2*(hpl*2+ct)
            A(f'v_cvt_pk_bf16_f32 {v(t)}, {v(d)}, {v(d+1)}'); A(f'v_cvt_pk_bf16_f32 {v(t+1)}, {v(d+2)}, {v(d+3)}')
            A(f'ds_write_b32 v13, {v(t)} offset:{(ct*2+hpl)*1024}')
            A(f'ds_write_b32 v13, {v(t+1)} offset:{(ct*2+hpl)*1024+8}')

def gen_value(A, st, tag, fail, done, merged_u=False):
    L3 = f'va3_{tag}'
    A('s_cmp_eq_u32 s3, 3'); A(f's_cbranch_scc1 {L3}')
    ACC = 16; SL = [32 + 4*i for i in range(8)]
    W = lambda ti, p: 64 + (ti*14+p)*8
    Lloop = f'va_loop_{tag}'
    A('s_mov_b32 s20, 0')
    A.label(Lloop)
    step_addr(A)
    for k in range(8): A(f'v_mov_b64 {v(ACC+2*k,2)}, 0')
    poll_mem(A, [SL[4], SL[6]][:VMSETS], fail)
    Q = Lds(A)
    slot = {}; free = [0, 1, 2, 3]; nxt = [0]
    def rd():
        p = nxt[0]
        if p > 13 or not free: return
        sl = free.pop(0); slot[p] = sl; nxt[0] += 1
        Q.op(('r', p), f'ds_read_b128 {v(SL[sl],4)}, v8 offset:{p*512}')
    for _ in range(4): rd()
    for p in range(14):
        Q.need(('r', p))
        for ti in range(4): smf(A, ACC+4*ti, SL[slot[p]], W(ti, p))
        free.append(slot[p]); rd()
    A.nop(8)
    ypack(A, ACC, SL[0])
    stamp(A, 2)
    A('s_waitcnt lgkmcnt(0)')
    A('s_barrier')
    if MSS:
        Lq = A.newlabel('vf'); A('s_cmp_lg_u32 s3, 0'); A(f's_cbranch_scc1 {Lq}'); A(f's_cmp_ge_u32 s17, {MSS}'); A(f's_cbranch_scc1 {Lq}')
        A('v_lshlrev_b32 v1, 4, v12'); A('s_lshl_b32 s22, s17, 2'); A('v_add_u32 v1, s22, v1'); A('v_mov_b32 v0, s44')
        wait_flag(A, 7, 's47', 's44', [SL[0]+k for k in range(4)], fail, 0)
        if MDEL: A.nop(MDEL)
        A(f'buffer_store_dword v0, v1, s[4:7], s75 offen{st}')
        A(f'buffer_store_dword v0, v1, s[4:7], s75 offen offset:128{st}')
        A.label(Lq)
    A('s_barrier')
    stamp_flush(A, 8, 0, 1)
    A('s_add_u32 s20, s20, 1')
    A(f's_cmp_lt_u32 s20, {NSTEP}')
    A(f's_cbranch_scc1 {Lloop}')
    A(f's_branch {done}')
    A.label(L3)
    ACC = 16; SL = [32 + 4*i for i in range(4)]; TM = [48, 56, 64, 72]
    PS = [32, 80]
    UB = lambda hp, ct: 128 + (hp*2+ct)*8
    W = lambda ti, p: 256 + (ti*14+p)*8
    YB = lambda e, ct: 480 + (e*2+ct)*8
    Lloop = f'va3_loop_{tag}'
    A('s_mov_b32 s20, 0')
    A.label(Lloop)
    step_addr(A)
    for k in range(8): A(f'v_mov_b64 {v(ACC+2*k,2)}, 0')
    if merged_u: ucheck(A, fail, 80)
    poll_mem(A, [80, 88][:VMSETS], fail)
    Q = Lds(A)
    slot = {}; free = [0, 1, 2, 3]; nxt = [0]
    def rd():
        p = nxt[0]
        if p > 13 or not free: return
        sl = free.pop(0); slot[p] = sl; nxt[0] += 1
        Q.op(('r', p), f'ds_read_b128 {v(SL[sl],4)}, v8 offset:{p*512}')
    def ldsw(n):
        if n > 27: return
        t = TM[n % 4]
        Q.op(('wa', n), f'ds_read_b128 {v(t,4)}, v11 offset:{n*2048}')
        Q.op(('wb', n), f'ds_read_b128 {v(t+4,4)}, v11 offset:{n*2048+1024}')
    for _ in range(3): rd()
    for n in range(4): ldsw(n)
    rd()
    uq = []
    for hp in range(8):
        uq.append(f's_add_u32 s23, s36, {hp*14*4096}')
        for j in range(4): uq.append(f'buffer_load_dwordx4 {v(UB(hp,0)+4*j,4)}, v12, s[4:7], s23 offen offset:{j*1024}')
    for p in range(14):
        Q.need(('r', p))
        for ti in range(2):
            smf(A, ACC+4*ti, SL[slot[p]], W(ti, p))
            for _ in range(2):
                if uq: A(uq.pop(0))
        for ct in range(2):
            n = 2*p+ct
            Q.need(('wb', n))
            smf(A, ACC+8+4*ct, SL[slot[p]], TM[n % 4])
            ldsw(n+4)
        free.append(slot[p]); rd()
    assert not uq
    if not DBG_U0: A(f's_add_u32 s36, s36, {16*28*1024}')
    A.nop(8)
    ypack(A, ACC, SL[0])
    stamp(A, 2)
    A('s_waitcnt lgkmcnt(0)')
    A('s_barrier')
    for e in range(2):
        for ct in range(2):
            for u in range(2):
                A(f'ds_read_b128 {r(YB(e,ct)+4*u,4)}, v12 offset:{YL+((e*2+ct)*2+u)*1024}')
    D = [ACC, ACC+4]
    for kk in range(4): A(f'v_mov_b64 {v(ACC+2*kk,2)}, 0')
    wait_flag(A, 7, 's47', 's44', [PS[0]+k for k in range(4)], fail, 3)
    stamp(A, 6)
    if PROFILE: A('s_mov_b32 s64, 0')
    A('s_waitcnt lgkmcnt(0)')
    A('s_add_u32 s22, s26, 4096'); A('s_add_u32 s23, s26, 8192')
    A('s_add_u32 s18, s45, 4096'); A('s_add_u32 s19, s45, 8192')
    def issue(k):
        so = ('s26', 's22', 's23') if k == 0 else ('s45', 's18', 's19')
        for i in range(10):
            A(f'buffer_load_dwordx4 {v(PS[k]+4*i,4)}, v12, s[4:7], {so[i//4]} offen offset:{(i%4)*1024} sc1')
    L = A.newlabel('pp'); Lf = A.newlabel('ppf')
    def attempt(k, younger):
        Lskip = A.newlabel('ps'); b = PS[k]
        if EWMI < 0: store_flag(A, 6, 's40', st, 1); younger += 1
        A(f's_waitcnt vmcnt({younger+9})')
        if PROFILE: A('s_add_u32 s64, s64, 1')
        A(f'v_or3_b32 v0, {v(b)}, {v(b+1)}, {v(b+2)}'); A(f'v_or_b32 v0, v0, {v(b+3)}')
        A('v_and_b32 v1, 0x80008000, v0')
        A('v_cmp_ne_u32 vcc, 0, v1')
        A(f's_cbranch_vccnz {Lskip}')
        for i in range(10):
            x = b+4*i
            if i: A(f's_waitcnt vmcnt({younger+9-i})')
            for ct in range(2):
                smf(A, D[ct], x, UB(i, ct) if i < 8 else YB(i-8, ct))
                if i: A(f'v_or3_b32 v0, v0, {v(x+2*ct)}, {v(x+2*ct+1)}')
            if i == EWMI: store_flag(A, 6, 's40', st, 1); younger += 1
        A('v_and_b32 v0, 0x80008000, v0')
        A('v_cmp_ne_u32 vcc, 0, v0')
        A(f's_cbranch_vccz {Lf}')
        A.nop(6)
        for kk in range(4): A(f'v_mov_b64 {v(ACC+2*kk,2)}, 0')
        A('s_waitcnt vmcnt(0)')
        A.label(Lskip)
        A(f's_waitcnt vmcnt({younger-1 if EWMI >= 0 else 0})')
    A(f's_mov_b32 s30, {SPIN}')
    if RING:
        so = ('s26', 's22', 's23'); b = PS[0]
        ld = lambda i: A(f'buffer_load_dwordx4 {v(b+4*i,4)}, v12, s[4:7], {so[i//4]} offen offset:{(i%4)*1024} sc1')
        A('s_mov_b32 s18, 0')
        for i in range(10):
            ld(i)
            if RSP: A.nop(RSP)
        A.label(L)
        for i in range(10):
            x = b+4*i; Ln = A.newlabel('rn')
            A('s_waitcnt vmcnt(9)')
            A(f'v_or3_b32 v0, {v(x)}, {v(x+1)}, {v(x+2)}')
            A(f'v_or_b32 v0, v0, {v(x+3)}')
            A(f's_bitcmp1_b32 s18, {i}')
            A(f's_cbranch_scc1 {Ln}')
            A('v_and_b32 v0, 0x80008000, v0')
            A('v_cmp_ne_u32 vcc, 0, v0')
            A(f's_cbranch_vccnz {Ln}')
            for ct in range(2): smf(A, D[ct], x, UB(i, ct) if i < 8 else YB(i-8, ct))
            Lnf = A.newlabel('rf')
            A('s_cmp_lg_u32 s18, 0'); A(f's_cbranch_scc1 {Lnf}')
            store_flag(A, 6, 's40', st, 1)
            A(f's_bitset1_b32 s18, {i}')
            A(f's_branch {Ln}x')
            A.label(Lnf)
            A(f's_bitset1_b32 s18, {i}')
            A('s_cmp_eq_u32 s18, 0x3ff'); A(f's_cbranch_scc1 {Lf}')
            A.label(Ln)
            ld(i)
            A.label(Ln+'x')
    elif PSETS == 2:
        issue(0)
        A.nop(STAGP)
        A.label(L)
        issue(1); attempt(0, 10)
        issue(0); attempt(1, 10)
    else:
        pass
    if RING or PSETS == 2:
        A('s_sub_u32 s30, s30, 1')
        A('s_cmp_lg_u32 s30, 0')
        A(f's_cbranch_scc1 {L}')
        A(f's_branch {fail}')
    else:
        b = PS[0]; Ll = A.newlabel('pl'); Lacc = A.newlabel('pa')
        A.label(L)
        if MFIRST: store_flag(A, 6, 's40', st, 1)
        issue(0)
        if not MFIRST: store_flag(A, 6, 's40', st, 1)
        if PROFILE: A('s_add_u32 s64, s64, 1')
        for i in range(10):
            A(f's_waitcnt vmcnt({(9 if MFIRST else 10)-i})')
            for ct in range(2): smf(A, D[ct], b+4*i, UB(i, ct) if i < 8 else YB(i-8, ct))
        A.nop(3)
        def ool():
            A.label(Ll)
            A(f'v_or3_b32 v0, {v(b)}, {v(b+1)}, {v(b+2)}')
            for j in range(3, 39, 2): A(f'v_or3_b32 v0, v0, {v(b+j)}, {v(b+j+1)}')
            A(f'v_or_b32 v0, v0, {v(b+39)}')
            A('v_and_b32 v0, 0x80008000, v0')
            A('v_cmp_ne_u32 vcc, 0, v0')
            A(f's_cbranch_vccz {Lacc}')
            for kk in range(4): A(f'v_mov_b64 {v(ACC+2*kk,2)}, 0')
            A('s_waitcnt vmcnt(0)')
            A('s_sub_u32 s30, s30, 1'); A('s_cmp_lg_u32 s30, 0'); A(f's_cbranch_scc1 {L}')
            A(f's_branch {fail}')
        OOL.append(ool)
    A.label(Lf)
    stamp(A, 3)
    A.nop(5)
    for ct in range(2):
        A(f'v_permlane32_swap_b32 {v(D[ct])}, {v(D[ct]+1)}'); A(f'v_permlane32_swap_b32 {v(D[ct]+2)}, {v(D[ct]+3)}')
    for t in range(2):
        for ct in range(2): A(f'v_add_f32 {v(D[ct]+2*t)}, {v(D[ct]+2*t)}, {v(D[ct]+2*t+1)}')
    if not RING and PSETS == 1:
        A(f'v_cmp_u_f32 vcc, {v(D[0])}, {v(D[0]+2)}')
    O = ACC+8
    for t in range(2): A(f'v_cvt_pk_bf16_f32 {v(O+t)}, {v(D[0]+2*t)}, {v(D[1]+2*t)}')
    for t in range(2): A(f'v_min_u32 {v(O+t)}, 0xfffffffe, {v(O+t)}')
    if not RING and PSETS == 1:
        A(f's_cbranch_vccnz {Ll}')
        A.label(Lacc)
    def mstore(reg2, so, fl):
        for t in range(2): A(f'buffer_store_dword {v(reg2[t])}, v15, s[4:7], {so} offen offset:{32*t}{fl}')
    mstore([O, O+1], 's28', st)
    A('s_add_u32 s28, s28, 8192')
    mstore([O, O+1], 's28', st)
    stamp(A, 4); stamp(A, 5)
    A('s_barrier')
    A(f'v_mov_b32 {v(O+2)}, -1')
    mstore([O+2, O+2], 's29', st)
    A('s_add_u32 s29, s29, 8192')
    mstore([O+2, O+2], 's29', st)
    mstore([O, O+1], 's39', st)
    Lnx = A.newlabel('vnx')
    if merged_u:
        A(f's_cmp_lg_u32 s20, {NSTEP-1}'); A(f's_cbranch_scc1 {Lnx}')
        A(f's_mov_b32 s22, {MEMG2+63*8192}')
        mstore([O, O+1], 's22', ' sc1')
    A.label(Lnx)
    stamp_flush(A, 8, 0, 1)
    A('s_add_u32 s39, s39, 8192')
    A('s_add_u32 s20, s20, 1')
    A(f's_cmp_lt_u32 s20, {NSTEP}')
    A(f's_cbranch_scc1 {Lloop}')
    A(f's_branch {done}')

def value_setup(A, fail=None):
    TS = 14*1024; HS = 28*TS
    A(f's_mul_i32 s18, s3, {4*HS}')
    A(f's_mul_i32 s22, s17, {2*TS}')
    A('s_add_u32 s18, s18, s22')
    A(f's_add_u32 s18, s18, {NC}')
    A('v_lshlrev_b32 v12, 4, v0')
    A('s_mov_b32 s33, 0')
    A('s_lshl_b32 s37, s17, 8'); A(f's_add_u32 s37, s37, {UFL}')
    def prew(hpl):
        if not fail: return
        A('s_lshl_b32 s19, s3, 2'); A(f's_add_u32 s19, s19, {16+2*hpl}'); A('s_lshl_b32 s19, s19, 3'); A('s_lshr_b32 s22, s17, 1'); A('s_add_u32 s19, s19, s22'); A('s_lshl_b32 s19, s19, 7')
        mnf_addr(A, 13, 11, 's19')
        wait_words(A, 13, 11, fail, sleep=16)
    off = lambda ti: ((2*(ti >> 1))*HS+(ti & 1)*TS, (2*(ti >> 1)+1)*HS+(ti & 1)*TS)
    Lw3 = A.newlabel('vw3'); Ld = A.newlabel('vwd')
    A('s_cmp_eq_u32 s3, 3'); A(f's_cbranch_scc1 {Lw3}')
    load_tiles(A, [((lambda p, ti=ti: 64 + (ti*14+p)*8), *off(ti), range(14)) for ti in (2, 3, 0, 1)], pre=lambda n: prew(1-n//2) if n % 2 == 0 else None)
    A(f's_branch {Ld}')
    A.label(Lw3)
    A(f'v_add_u32 v14, {WL}, v12')
    def early():
        if not fail: return
        A('v_mov_b32 v15, v0'); A('s_mov_b32 s20, 0')
        ucheck(A, fail, 16, once=True)
        A('v_mov_b32 v0, v15'); A('v_lshlrev_b32 v1, 4, v0')
    def post(g):
        if g < 256:
            n = (g-32)//8; ct, p = n // 14, n % 14
            A(f'ds_write_b128 v14, {v(g,4)} offset:{(p*2+ct)*2048}')
            A(f'ds_write_b128 v14, {v(g+4,4)} offset:{(p*2+ct)*2048+1024}')
    load_tiles(A, [((lambda p, ct=ct: 32 + (ct*14+p)*8), *off(2+ct), range(14)) for ct in range(2)] +
                  [((lambda p, ti=ti: 256 + (ti*14+p)*8), *off(ti), range(14)) for ti in range(2)], post, pre=lambda n: prew(1-n//2) if n % 2 == 0 else None, issued=early)
    A('s_waitcnt lgkmcnt(0)')
    A.label(Ld)
    A('s_lshr_b32 s22, s3, 1'); A('s_lshl_b32 s22, s22, 12'); A('s_and_b32 s23, s3, 1'); A('s_lshl_b32 s23, s23, 2'); A('s_add_u32 s22, s22, s23')
    A(f's_add_u32 s22, s22, {YL}'); A('v_add_u32 v13, s22, v12')
    A('v_and_b32 v11, 15, v0'); A('v_lshlrev_b32 v7, 2, v11')
    if SSF: A('v_mov_b32 v7, 0')
    A('v_and_b32 v11, 12, v0'); A('v_lshlrev_b32 v15, 5, v11')
    A('v_and_b32 v11, 3, v0'); A('v_lshl_add_u32 v15, v11, 2, v15')
    A('v_and_b32 v11, 16, v0'); A('v_lshl_add_u32 v15, v11, 2, v15')
    A('v_lshrrev_b32 v11, 5, v0'); A('v_lshl_add_u32 v15, v11, 4, v15')
    A('s_lshl_b32 s23, s17, 9'); A('v_add_u32 v15, s23, v15')
    A('s_lshl_b32 s23, s17, 2'); A('v_lshlrev_b32 v6, 7, v0'); A('v_add_u32 v6, s23, v6')
    A('s_lshl_b32 s36, s17, 12'); A(f's_add_u32 s36, s36, {UF}')
    A(f's_mov_b32 s39, {MEMG+8192}')

def value_setup2(A):
    A(f'v_add_u32 v11, {WL}, v12')

def mode_exchange(A, va=8, vb=9):
    srd(A, 8, 96, 256)
    A('s_getreg_b32 s12, hwreg(HW_REG_XCC_ID)')
    A('s_and_b32 s12, s12, 15')
    A('s_add_u32 s12, s12, 1')
    A(f'v_mov_b32 {v(va)}, s12')
    A('s_lshl_b32 s13, s15, 2')
    A(f'v_mov_b32 {v(vb)}, s13')
    A('s_waitcnt lgkmcnt(0)')
    A(f'buffer_store_dword {v(va)}, {v(vb)}, s[8:11], 0 offen sc1')

def mode_gather(A, fail):
    A(f'v_min_u32 v1, {NROLE-1}, v0')
    A('v_lshlrev_b32 v1, 2, v1')
    L = A.newlabel('mg')
    A(f's_mov_b32 s30, {SPIN}')
    A.label(L)
    A('buffer_load_dword v11, v1, s[8:11], 0 offen sc1')
    A('s_sub_u32 s30, s30, 1')
    A('s_cmp_eq_u32 s30, 0')
    A(f's_cbranch_scc1 {fail}')
    A('s_waitcnt vmcnt(0)')
    A('v_cmp_eq_u32 vcc, 0, v11')
    A(f's_cbranch_vccnz {L}')
    A('v_cmp_ne_u32 vcc, s12, v11')
    A('s_cmp_eq_u64 vcc, 0')
    A('s_cselect_b32 s14, 1, 0')

def gen_forwarders(A, fail, done):
    A('s_sub_u32 s17, s15, 30'); A('s_lshl_b32 s17, s17, 2'); A('s_add_u32 s17, s17, s3')
    A('v_lshlrev_b32 v6, 7, v0')
    A('v_lshlrev_b32 v12, 4, v0')
    A('s_cmp_lg_u32 s17, 0')
    A('s_cbranch_scc1 fw_pf')
    A('s_mov_b32 s20, 1')
    A(f's_mov_b32 s22, {HINT}')
    A.label('fw_m_loop')
    A('s_lshl_b32 s24, s20, 13'); A(f's_add_u32 s26, s24, {MEMG2}'); A(f's_add_u32 s24, s24, {MEMG}')
    A('s_add_u32 s25, s24, 4096'); A('s_add_u32 s27, s26, 4096')
    A(f's_mov_b32 s30, {SPIN*4}')
    A.label('fw_m_poll')
    for j in range(7):
        A(f'buffer_load_dwordx4 {v(16+4*j,4)}, v12, s[4:7], {"s24" if j < 4 else "s25"} offen offset:{(j%4)*1024} sc1')
    A('s_sub_u32 s30, s30, 1'); A('s_cmp_eq_u32 s30, 0'); A(f's_cbranch_scc1 {fail}')
    A('s_waitcnt vmcnt(0)')
    A('v_max_u32 v1, v16, v17')
    for j in range(1, 14): A(f'v_max3_u32 v1, v1, {v(16+2*j)}, {v(17+2*j)}')
    A('v_cmp_eq_u32 vcc, -1, v1')
    A('s_cbranch_vccz fw_m_ok')
    A('s_sleep 2')
    A('s_branch fw_m_poll')
    A.label('fw_m_ok')
    for j in range(7):
        A(f'buffer_store_dwordx4 {v(16+4*j,4)}, v12, s[4:7], {"s26" if j < 4 else "s27"} offen offset:{(j%4)*1024} sc1')
    A('s_waitcnt vmcnt(0)')
    A('v_mov_b32 v1, s20'); A('s_mov_b64 exec, 0xffff')
    A('buffer_store_dword v1, v6, s[4:7], s22 offen sc1'); A('s_mov_b64 exec, -1')
    A('s_add_u32 s20, s20, 1'); A('s_cmp_lt_u32 s20, 64'); A('s_cbranch_scc1 fw_m_loop')
    A(f's_branch {done}')
    A.label('fw_pf')
    if not PREF: A(f's_branch {done}')
    A('s_cmp_lg_u32 s17, 4'); A(f's_cbranch_scc1 {done}')
    A('v_mov_b32 v13, 0')
    wait_words(A, 13, 11, fail, srd_='s[8:11]', cnt='s30', ln=(14, 16), sleep=16)
    A(f's_mov_b32 s30, {SPIN*4}')
    A('s_mov_b32 s20, 0')
    A('v_mov_b32 v7, 0')
    A.label('fw_pf_loop')
    A('s_mov_b64 exec, 1')
    A('buffer_load_dword v16, v7, s[4:7], s46 offen sc1')
    A('s_mov_b64 exec, -1')
    A('s_waitcnt vmcnt(0)')
    A('v_readfirstlane_b32 s21, v16')
    A('s_cmp_ge_u32 s20, 63'); A(f's_cbranch_scc1 {done}')
    A(f's_add_u32 s22, s21, {PREF}')
    A('s_cmp_gt_u32 s20, s22'); A('s_cbranch_scc1 fw_pf_idle')
    A('s_mul_i32 s24, s20, 28672'); A(f's_add_u32 s24, s24, {XNS}')
    for j in range(7):
        for sub in range(4): A(f'buffer_load_dwordx4 {v(16+4*sub,4)}, v12, s[4:7], s24 offen offset:{sub*1024}')
        A('s_add_u32 s24, s24, 4096')
    A('s_add_u32 s20, s20, 1')
    A('s_branch fw_pf_loop')
    A.label('fw_pf_idle')
    A('s_sleep 8')
    A('s_sub_u32 s30, s30, 1'); A('s_cmp_eq_u32 s30, 0'); A(f's_cbranch_scc1 {done}')
    A('s_branch fw_pf_loop')

def gen_chain_body(A, fail, done, merged=False, fused=False):
    if fused:
        import p0
        srd(A, 36, 0, 2048*448*2)
        A('s_lshl_b32 s32, s15, 2'); A('s_add_u32 s32, s32, s3')
        def hook():
            p0.ph_zero_flags(A)
            A('s_waitcnt vmcnt(0)'); A('s_barrier')
            mode_exchange(A, 184, 185)
            tstamp(A, 3, 186, 187)
        def wi():
            A('v_and_b32 v5, 31, v0'); A('v_lshlrev_b32 v5, 2, v5')
            wait_words(A, 5, 1, fail, srd_='s[8:11]')
        p0.ph_ln(A, 32, wi, xsrd='s[36:39]', hook=hook)
        tstamp(A, 4, 12, 13)
        A('s_cmp_lt_u32 s15, 30'); A('s_cbranch_scc1 ch_noinit')
        p0.ph_init(A)
        A('s_sub_u32 s16, s15, 30'); A('s_lshl_b32 s16, s16, 2'); A('s_add_u32 s16, s16, s3'); A('s_min_u32 s16, s16, 6'); A('s_lshl_b32 s16, s16, 9')
        for half in range(2):
            A(f's_add_u32 s17, s16, {FFL + half*256}'); A('v_lshlrev_b32 v16, 2, v0'); A('v_add_u32 v16, s17, v16')
            wait_words(A, 16, 17, fail, sleep=16)
        A('s_barrier')
        A('v_mov_b32 v16, 1'); A('s_add_u32 s13, s13, 128'); A('v_mov_b32 v17, s13')
        A('buffer_store_dword v16, v17, s[8:11], 0 offen sc1')
        A.label('ch_noinit')
    else: mode_exchange(A)
    common_setup(A)
    stamp_init(A)
    mode_gather(A, fail)
    A('v_lshlrev_b32 v1, 4, v0')
    def wait_ring(va, vd, ln=None):
        if not fused: return
        A(f'v_and_b32 {v(va)}, 1, v0'); A(f'v_lshlrev_b32 {v(va)}, 2, {v(va)}'); A(f'v_add_u32 {v(va)}, {128+120}, {v(va)}')
        wait_words(A, va, vd, fail, srd_='s[8:11]', cnt='s30', ln=ln)
    if merged:
        A('s_cmp_lt_u32 s15, 30'); A('s_cbranch_scc1 ch_main')
        wait_ring(13, 11)
        gen_forwarders(A, fail, done)
        A.label('ch_main')
    A('s_cmp_ge_u32 s15, 16')
    A('s_cbranch_scc1 ch_value')
    A('s_mov_b32 s17, s15')
    score_weights(A, fail if fused else None)
    x_addrs(A)
    wait_ring(13, 11, ln=(12, 14))
    tstamp(A, 1, 12, 13)
    A('s_cmp_eq_u32 s14, 0')
    A('s_cbranch_scc1 ch_score_slow')
    gen_score(A, '', 'f', fail, done); flush_ool(A)
    A.label('ch_score_slow')
    gen_score(A, ' sc1', 's', fail, done); flush_ool(A)
    A.label('ch_value')
    A('s_sub_u32 s17, s15, 16')
    value_setup(A, fail if fused else None)
    wait_ring(16, 17)
    tstamp(A, 1, 16, 17)
    value_setup2(A)
    tstamp(A, 2, 16, 17)
    A('s_cmp_eq_u32 s14, 0')
    A('s_cbranch_scc1 ch_value_slow')
    gen_value(A, '', 'f', fail, done, merged); flush_ool(A)
    A.label('ch_value_slow')
    gen_value(A, ' sc1', 's', fail, done, merged); flush_ool(A)

def gen_k3(A):
    A.label('k3_kernel')
    A('s_and_b32 s15, s2, 7')
    A('s_cmp_lg_u32 s15, 0')
    A('s_cbranch_scc1 k3_end')
    A('s_lshr_b32 s15, s2, 3')
    A('s_cmp_ge_u32 s15, 30')
    A('s_cbranch_scc1 k3_end')
    prologue(A)
    gen_chain_body(A, 'k3_end', 'k3_end')
    A.label('k3_end')
    A('s_endpgm')
    return dict(name='k3_kernel', grid=256, block=256, lds=CHAIN_LDS, vgpr=256, sgpr=72, agpr=256)
```
